```python
import torch

def _softmax(x, axis=-1):
    return torch.softmax(x, dim=axis)
def _gelu(x):
    return torch.nn.functional.gelu(x, approximate="tanh")
def _silu(x):
    return torch.nn.functional.silu(x)
def _sigmoid(x):
    return torch.sigmoid(x)
def _layernorm(x, axis=-1, eps=1e-5):
    m = x.mean(dim=axis, keepdim=True)
    v = x.var(dim=axis, keepdim=True, unbiased=False)
    return (x - m) / torch.sqrt(v + eps)
def _scatter_add(tgt, idx, src, axis=0):
    return tgt.clone().index_add_(axis, idx, src)
def _segment_sum(src, seg, n):
    out = torch.zeros((n,) + src.shape[1:], dtype=src.dtype)
    return out.index_add_(0, seg, src)
def _pad(x, pw):
    flat = tuple(v for pair in reversed(pw) for v in pair)
    return torch.nn.functional.pad(x, flat)

kernel_name = 'concat_heads__mha_block_cached__gqa_block_cached__near_ridge'

def setup_inputs():

    _w = (lambda a: (lambda t: t.to(torch.bfloat16) if t.is_floating_point() else t)(torch.as_tensor(a)))
    def _A_setup():
        B, Sq, D = 16, 32, 1024
        H, Sk, Dh = 32, 32, 128
        return {
            "x": _w((lambda *s: torch.randn(*s, dtype=torch.bfloat16) * 0.8)(B, Sq, D)),
            "k_cache": _w((lambda *s: torch.randn(*s, dtype=torch.bfloat16) * 0.8)(B, H, Sk, Dh)),
            "v_cache": _w((lambda *s: torch.randn(*s, dtype=torch.bfloat16) * 0.05)(B, H, Sk, Dh)),
            "wq": _w((lambda *s: torch.randn(*s, dtype=torch.bfloat16) * 0.8)(D, H * Dh) * (D ** -0.5)),
            "wo": _w((lambda *s: torch.randn(*s, dtype=torch.bfloat16) * 0.05)(H * Dh, D) * ((H * Dh) ** -0.5)),
        }
    _A_in = _A_setup()

    def _B_setup():
        B, Sq, D = 16, 32, 1024
        Hq, Hkv, Sk, Dh = 32, 32, 32, 128
        assert Hq % Hkv == 0, (Hq, Hkv)
        return {
            "x": _w((lambda *s: torch.randn(*s, dtype=torch.bfloat16) * 0.8)(B, Sq, D)),
            "k_cache": _w((lambda *s: torch.randn(*s, dtype=torch.bfloat16) * 0.8)(B, Hkv, Sk, Dh)),
            "v_cache": _w((lambda *s: torch.randn(*s, dtype=torch.bfloat16) * 0.05)(B, Hkv, Sk, Dh)),
            "wq": _w((lambda *s: torch.randn(*s, dtype=torch.bfloat16) * 0.8)(D, Hq * Dh) * (D ** -0.5)),
            "wo": _w((lambda *s: torch.randn(*s, dtype=torch.bfloat16) * 0.05)(Hq * Dh, D) * ((Hq * Dh) ** -0.5)),
        }
    _B_in = _B_setup()

    return {
        "A_x": _A_in["x"],
        "A_k_cache": _A_in["k_cache"],
        "A_v_cache": _A_in["v_cache"],
        "A_wq": _A_in["wq"],
        "A_wo": _A_in["wo"],
        "B_x": _B_in["x"],
        "B_k_cache": _B_in["k_cache"],
        "B_v_cache": _B_in["v_cache"],
        "B_wq": _B_in["wq"],
        "B_wo": _B_in["wo"],
    }

def reference(A_x, A_k_cache, A_v_cache, A_wq, A_wo, B_x, B_k_cache, B_v_cache, B_wq, B_wo):
    def _A_ref(x, k_cache, v_cache, wq, wo):
        B, Sq, D = x.shape
        H, Dh = 32, 128
        q = (lambda x, *d: x.permute(*d))((x @ wq).reshape(B, Sq, H, Dh), 0, 2, 1, 3)
        scores = torch.einsum("bhqd,bhkd->bhqk", q, k_cache) * (Dh ** -0.5)
        p = _softmax(scores, axis=-1)
        o = torch.einsum("bhqk,bhkd->bhqd", p, v_cache)
        return (lambda x, *d: x.permute(*d))(o, 0, 2, 1, 3).reshape(B, Sq, H * Dh) @ wo

    def _B_ref(x, k_cache, v_cache, wq, wo):
        B, Sq, D = x.shape
        Hq, Dh = 32, 128
        Hkv = k_cache.shape[1]
        rep = Hq // Hkv
        q = (lambda x, *d: x.permute(*d))((x @ wq).reshape(B, Sq, Hq, Dh), 0, 2, 1, 3)
        k = (lambda x, n, axis: torch.repeat_interleave(x, n, dim=axis))(k_cache, rep, axis=1)
        v = (lambda x, n, axis: torch.repeat_interleave(x, n, dim=axis))(v_cache, rep, axis=1)
        scores = torch.einsum("bhqd,bhkd->bhqk", q, k) * (Dh ** -0.5)
        p = _softmax(scores, axis=-1)
        o = torch.einsum("bhqk,bhkd->bhqd", p, v)
        return (lambda x, *d: x.permute(*d))(o, 0, 2, 1, 3).reshape(B, Sq, Hq * Dh) @ wo

    a = _A_ref(A_x, A_k_cache, A_v_cache, A_wq, A_wo)
    b = _B_ref(B_x, B_k_cache, B_v_cache, B_wq, B_wo)
    return torch.concatenate([a, b], axis=-1)
```

```python
class Asm:
    def __init__(self):
        self.L = []
        self.vm = []
        self.lg = []
    def __call__(self, s):
        self.L.append("    " + s)
    def c(self, s):
        self.L.append("    ; " + s)
    def label(self, l):
        self.L.append(l + ":")
    def raw(self, s):
        self.L.append(s)
    def vmem(self, s, tag):
        self(s); self.vm.append(tag)
        assert len(self.vm) <= 63, "too many vmem outstanding"
    def lds(self, s, tag):
        self(s); self.lg.append(tag)
        assert len(self.lg) <= 15, ("too many lds outstanding", self.lg)
    def _cnt(self, q, tags):
        if not isinstance(tags, (list, set)): tags = [tags]
        last = -1
        for i, t in enumerate(q):
            if t in tags: last = i
        return last
    def wait_vm(self, tags):
        last = self._cnt(self.vm, tags)
        if last < 0: return
        n = len(self.vm) - 1 - last
        self(f"s_waitcnt vmcnt({n})")
        self.vm = self.vm[last + 1:]
    def wait_lg(self, tags):
        last = self._cnt(self.lg, tags)
        if last < 0: return
        n = len(self.lg) - 1 - last
        self(f"s_waitcnt lgkmcnt({n})")
        self.lg = self.lg[last + 1:]
    def wait_vm_all(self):
        self("s_waitcnt vmcnt(0)"); self.vm = []
    def wait_lg_all(self):
        self("s_waitcnt lgkmcnt(0)"); self.lg = []
    def text(self):
        return "\n".join(self.L) + "\n"

def vr(a, n=1):
    return f"v{a}" if n == 1 else f"v[{a}:{a+n-1}]"
def ar(a, n=1):
    return f"a{a}" if n == 1 else f"a[{a}:{a+n-1}]"
def sr(a, n=1):
    return f"s{a}" if n == 1 else f"s[{a}:{a+n-1}]"
```

```python
import sys, struct
from asmlib import *

NAME = "concat_heads__mha_block_cached__gqa_block_cached__near_ridge"
def f32(x): return "0x%08x" % struct.unpack("<I", struct.pack("<f", x))[0]

O_BASE = 0
PART_BASE = 8 << 20
WS_USED = 32 << 20
STAMP_BASE = 28 << 20

SX, SK, SV, SWQ, SWO, SWS, SOUT, SDBG = 32, 36, 40, 44, 48, 52, 56, 60
S_W, S_BR, S_G, S_HL, S_R = 64, 65, 66, 67, 68
S_T = 70

class Opt:
    nt_x = ""; nt_wq = "nt"; nt_kv = "nt"; nt_wo = "nt"
    rot = True
    kv_stage = 1
    stamps = False
    clk = "s_memrealtime"

def prologue(a, end):
    a("s_cmp_ge_u32 s2, 256")
    a(f"s_cbranch_scc1 {end}")
    a("s_load_dwordx16 s[4:19], s[0:1], 0")
    a("s_load_dwordx4 s[20:23], s[0:1], 64")
    a("s_load_dwordx4 s[24:27], s[0:1], 80")
    a("s_load_dwordx2 s[28:29], s[0:1], 96")
    a("v_lshrrev_b32 v1, 6, v0")
    a("v_and_b32 v0, 63, v0")
    a(f"v_readfirstlane_b32 s{S_W}, v1")
    a(f"s_and_b32 s{S_T}, s2, 7")
    a(f"s_lshr_b32 s{S_T+1}, s2, 3")
    a(f"s_lshr_b32 s{S_BR}, s{S_T}, 2")
    a(f"s_and_b32 s{S_G}, s{S_T}, 3")
    a(f"s_and_b32 s{S_HL}, s{S_T+1}, 7")
    a(f"s_lshr_b32 s{S_R}, s{S_T+1}, 3")
    a("s_waitcnt lgkmcnt(0)")
    a(f"s_cmp_eq_u32 s{S_BR}, 0")
    for i, srd in enumerate([SX, SK, SV, SWQ, SWO]):
        a(f"s_cselect_b32 s{srd}, s{4+2*i}, s{14+2*i}")
        a(f"s_cselect_b32 s{srd+1}, s{5+2*i}, s{15+2*i}")
    for srd, lo in [(SOUT, 24), (SDBG, 26), (SWS, 28)]:
        a(f"s_mov_b32 s{srd}, s{lo}")
        a(f"s_mov_b32 s{srd+1}, s{lo+1}")
    for srd, n in [(SX, 1 << 20), (SK, 4 << 20), (SV, 4 << 20), (SWQ, 8 << 20), (SWO, 8 << 20), (SWS, WS_USED), (SOUT, 2 << 20), (SDBG, 256)]:
        a(f"s_and_b32 s{srd+1}, s{srd+1}, 0xffff")
        a(f"s_mov_b32 s{srd+2}, {n}")
        a(f"s_mov_b32 s{srd+3}, 0x20000")

def stamp(a, idx, opt):
    if opt.stamps:
        r = stamp_reg(idx)
        a(f"{opt.clk} s[{r}:{r+1}]")
        if idx:
            a("s_waitcnt lgkmcnt(0)"); a.lg = []
def stamp_reg(idx): return 30 if idx == 0 else 4 + 2 * (idx - 1)

def dump_stamps(a, n, opt, kern):
    if not opt.stamps: return
    a("s_waitcnt lgkmcnt(0)")
    a(f"s_lshl_b32 s{S_T}, s2, 2")
    a(f"s_add_u32 s{S_T}, s{S_T}, s{S_W}")
    a(f"s_lshl_b32 s{S_T}, s{S_T}, 6")
    a(f"s_add_u32 s{S_T}, s{S_T}, {STAMP_BASE + kern*65536}")
    a("v_mov_b32 v1, 0")
    for i in range(n):
        a(f"v_mov_b32 v2, s{stamp_reg(i)}")
        a(f"buffer_store_dword v2, v1, s[{SWS}:{SWS+3}], s{S_T} offen offset:{4*i}")
        a("s_nop 1")
    a("s_waitcnt vmcnt(0)")

def seg_src(a, dst, rowstride_shift, t1, t2):
    a(f"v_lshrrev_b32 v{t1}, 4, v0")
    a(f"v_bfe_u32 v{t2}, v0, 2, 2")
    a(f"v_xor_b32 v{t2}, v{t2}, v{t1}")
    a(f"v_lshlrev_b32 v{t2}, 6, v{t2}")
    a(f"v_lshlrev_b32 v{dst}, {rowstride_shift}, v{t1}")
    a(f"v_add_u32 v{dst}, v{dst}, v{t2}")
    a(f"v_and_b32 v{t2}, 3, v0")
    a(f"v_lshlrev_b32 v{t2}, 4, v{t2}")
    a(f"v_add_u32 v{dst}, v{dst}, v{t2}")

def tr_base(a, dst, r4, t1, t2):
    a(f"v_bfe_u32 v{r4}, v0, 2, 2")
    a(f"v_lshrrev_b32 v{t1}, 5, v0")
    a(f"v_lshlrev_b32 v{t1}, 3, v{t1}")
    a(f"v_add_u32 v{t1}, v{t1}, v{r4}")
    a(f"v_lshlrev_b32 v{dst}, 8, v{t1}")
    a(f"v_bfe_u32 v{t1}, v0, 4, 1")
    a(f"v_lshlrev_b32 v{t1}, 5, v{t1}")
    a(f"v_add_u32 v{dst}, v{dst}, v{t1}")
    a(f"v_and_b32 v{t1}, 1, v0")
    a(f"v_lshlrev_b32 v{t1}, 4, v{t1}")
    a(f"v_add_u32 v{dst}, v{dst}, v{t1}")
    a(f"v_bfe_u32 v{t1}, v0, 1, 1")
    a(f"v_lshlrev_b32 v{t1}, 3, v{t1}")
    a(f"v_add_u32 v{dst}, v{dst}, v{t1}")

MF = "v_mfma_f32_32x32x16_bf16"

def gen_p1(a, opt):
    end = "L_p1_end"
    stamp(a, 0, opt)
    prologue(a, end)
    VWQ, VXE, VXO, VKS, VVS = 2, 3, 4, 5, 6
    VA = [8, 9, 10, 11]; VB = [12, 13, 14, 15]
    ACC = 16
    FA = [80, 100]; FB = [96, 116]
    KF, VF, QP, SS, PP, TT = 120, 152, 184, 216, 232, 240
    XR, KR, VR = 49152, 98304, 131072
    S_B, S_H = 69, 79
    S_WQO = [92, 93, 94, 95]; S_XO = [96, 97, 98, 99]
    S_KV, S_MW, S_MX = 100, 101, 78
    a(f"s_lshl_b32 s{S_B}, s{S_R}, 2")
    a(f"s_add_u32 s{S_B}, s{S_B}, s{S_W}")
    a(f"s_lshl_b32 s{S_H}, s{S_G}, 3")
    a(f"s_add_u32 s{S_H}, s{S_H}, s{S_HL}")
    a(f"s_lshl_b32 s{S_T}, s{S_W}, 17")
    a(f"s_lshl_b32 s{S_T+1}, s{S_H}, 8")
    a(f"s_add_u32 s{S_T}, s{S_T}, s{S_T+1}")
    a(f"s_lshl_b32 s{S_T+1}, s{S_B}, 16")
    if opt.rot:
        a(f"s_add_u32 s{S_T+2}, s{S_R}, s{S_HL}")
    else:
        a(f"s_mov_b32 s{S_T+2}, 0")
    for j in range(4):
        a(f"s_add_u32 s{S_T+3}, s{S_T+2}, {j}")
        a(f"s_and_b32 s{S_T+3}, s{S_T+3}, 3")
        a(f"s_lshl_b32 s{S_T+4}, s{S_T+3}, 19")
        a(f"s_add_u32 s{S_WQO[j]}, s{S_T}, s{S_T+4}")
        a(f"s_lshl_b32 s{S_T+4}, s{S_T+3}, 7")
        a(f"s_add_u32 s{S_XO[j]}, s{S_T+1}, s{S_T+4}")
    a(f"s_lshl_b32 s{S_KV}, s{S_B}, 5")
    a(f"s_add_u32 s{S_KV}, s{S_KV}, s{S_H}")
    a(f"s_lshl_b32 s{S_KV}, s{S_KV}, 13")
    a(f"s_lshl_b32 s{S_MW}, s{S_W}, 12")
    a(f"s_mul_i32 s{S_MX}, s{S_W}, 12288")
    a(f"s_add_u32 s{S_MX}, s{S_MX}, {XR}")
    seg_src(a, VWQ, 13, 240, 241)
    a("v_lshrrev_b32 v240, 3, v0")
    a("v_lshlrev_b32 v240, 11, v240")
    a("v_lshrrev_b32 v241, 4, v0")
    a("v_and_b32 v242, 7, v0")
    a("v_xor_b32 v242, v242, v241")
    a("v_lshlrev_b32 v242, 4, v242")
    a(f"v_add_u32 v{VXE}, v240, v242")
    a(f"v_xor_b32 v{VXO}, 64, v{VXE}")

    def dma_stage(s, j8):
        slot = s % 3
        if j8 < 4:
            j = j8
            a(f"s_add_u32 m0, s{S_MW}, {slot*16384 + j*1024}")
            a(f"s_add_u32 s{S_T}, s{S_WQO[s&3]}, {(s>>2)*4*524288 + j*32768}")
            a.vmem(f"buffer_load_dwordx4 v{VWQ}, s[{SWQ}:{SWQ+3}], s{S_T} offen {opt.nt_wq} lds", ("st", s))
        else:
            j = j8 - 4
            a(f"s_add_u32 m0, s{S_MX}, {slot*4096 + j*1024}")
            a(f"s_add_u32 s{S_T}, s{S_XO[s&3]}, {(s>>2)*4*128 + j*16384}")
            a.vmem(f"buffer_load_dwordx4 v{VXO if j&1 else VXE}, s[{SX}:{SX+3}], s{S_T} offen {opt.nt_x} lds", ("st", s))
    for s in range(2):
        for j8 in range(8): dma_stage(s, j8)
    seg_src(a, VVS, 8, 240, 241)
    a("v_lshrrev_b32 v240, 4, v0")
    a("v_and_b32 v241, 15, v0")
    a("v_xor_b32 v241, v241, v240")
    a("v_lshlrev_b32 v241, 4, v241")
    a("v_lshlrev_b32 v240, 8, v240")
    a(f"v_add_u32 v{VKS}, v240, v241")
    def dma_kv():
        a(f"s_lshl_b32 s{S_T+1}, s{S_W}, 13")
        for half in range(2):
            a(f"s_add_u32 m0, s{S_T+1}, {KR + half*4096}")
            a(f"s_add_u32 s{S_T}, s{S_KV}, {half*4096}")
            for j in range(4):
                a(f"v_xor_b32 v{TT+j}, {64*j}, v{VKS}")
            for j in range(4):
                a.vmem(f"buffer_load_dwordx4 v{TT+j}, s[{SK}:{SK+3}], s{S_T} offen offset:{j*1024} {opt.nt_kv} lds", "k")
        for half in range(2):
            a(f"s_add_u32 m0, s{S_T+1}, {VR + half*4096}")
            a(f"s_add_u32 s{S_T}, s{S_KV}, {half*4096}")
            for j in range(4):
                a.vmem(f"buffer_load_dwordx4 v{VVS}, s[{SV}:{SV+3}], s{S_T} offen offset:{j*1024} {opt.nt_kv} lds", "v")
    if opt.kv_stage < 0: dma_kv()
    tr_base(a, 243, 244, 240, 241)
    for i in range(4):
        a(f"v_xor_b32 v240, {i}, v244")
        a(f"v_lshlrev_b32 v240, 6, v240")
        a(f"v_add_u32 v{VA[i]}, v243, v240")
    a("v_and_b32 v240, 31, v0")
    a("v_lshrrev_b32 v241, 5, v0")
    a("v_bfe_u32 v242, v0, 1, 3")
    a("v_xor_b32 v241, v241, v242")
    a("v_lshlrev_b32 v241, 4, v241")
    a("v_lshlrev_b32 v240, 7, v240")
    a("v_add_u32 v240, v240, v241")
    for t in range(4):
        a(f"v_xor_b32 v241, {32*t}, v240")
        a(f"v_add_u32 v{VB[t]}, s{S_MX}, v241")

    def reads(n):
        s, t = n >> 2, n & 3
        slot = s % 3
        fs = n & 1
        r = [(f"ds_read_b128 {vr(FB[fs],4)}, v{VB[t]} offset:{slot*4096}", ("b", n))]
        for i in range(4):
            for h2 in range(2):
                r.append((f"ds_read_b64_tr_b16 {vr(FA[fs]+4*i+2*h2,2)}, v{VA[i]} offset:{slot*16384 + (16*t+4*h2)*256}", ("a", n, i)))
        return r
    def mfma(n, i):
        fs = n & 1
        c = "0" if n == 0 else vr(ACC+16*i, 16)
        a.wait_lg([("b", n), ("a", n, i)])
        a(f"{MF} {vr(ACC+16*i,16)}, {vr(FA[fs]+4*i,4)}, {vr(FB[fs],4)}, {c}")

    for s in range(16):
        a.c(f"---- stage {s}")
        a.wait_lg_all() if a.lg else None
        a.wait_vm(("st", s))
        a("s_barrier")
        if s in (0, 4, 8, 12): stamp(a, 1 + s // 4, opt)
        for t in range(4):
            n = 4 * s + t
            rd = reads(n)
            for i in range(4):
                for (ins, tag) in rd[3*i:3*i+3]:
                    a.lds(ins, tag)
                if n > 0: mfma(n - 1, i)
                if i in (1, 3) and s + 2 < 16:
                    dma_stage(s + 2, 2 * t + (i >> 1))
        if s == opt.kv_stage: dma_kv()
    for i in range(4): mfma(63, i)
    stamp(a, 5, opt)
    a.c("---- attention")
    a.wait_vm(["k", "v"])
    a("v_and_b32 v240, 0x13, v0")
    a("v_bfe_u32 v241, v0, 2, 1")
    a("v_lshlrev_b32 v241, 3, v241")
    a("v_or_b32 v240, v240, v241")
    a("v_bfe_u32 v241, v0, 3, 1")
    a("v_lshlrev_b32 v241, 2, v241")
    a("v_or_b32 v240, v240, v241")
    a("v_and_b32 v241, 15, v240")
    a("v_lshrrev_b32 v242, 5, v0")
    a("v_xor_b32 v241, v241, v242")
    a("v_lshlrev_b32 v241, 4, v241")
    a("v_lshlrev_b32 v240, 8, v240")
    a("v_add_u32 v240, v240, v241")
    a(f"s_lshl_b32 s{S_T+1}, s{S_W}, 13")
    a(f"s_add_u32 s{S_T}, s{S_T+1}, {KR}")
    for u in range(8):
        a(f"v_xor_b32 v241, {32*u}, v240")
        a(f"v_add_u32 v241, s{S_T}, v241")
        a.lds(f"ds_read_b128 {vr(KF+4*u,4)}, v241", ("k", u))
    a(f"s_add_u32 s{S_T}, s{S_T+1}, {VR}")
    a("s_nop 7")
    for i in range(4):
        for p in range(8):
            a(f"v_cvt_pk_bf16_f32 v{QP+8*i+p}, v{ACC+16*i+2*p}, v{ACC+16*i+2*p+1}")
    for i in range(4):
        a(f"v_add_u32 v{VA[i]}, s{S_T}, v{VA[i]}")
    for u in range(8):
        a.wait_lg(("k", u))
        c = "0" if u == 0 else vr(SS, 16)
        a(f"{MF} {vr(SS,16)}, {vr(KF+4*u,4)}, {vr(QP+4*u,4)}, {c}")
    for i in range(4):
        for u in range(2):
            for h2 in range(2):
                if len(a.lg) >= 15: a.wait_lg(a.lg[0])
                a.lds(f"ds_read_b64_tr_b16 {vr(VF+8*i+4*u+2*h2,2)}, v{VA[i]} offset:{(16*u+4*h2)*256}", ("v", i, u, h2))
    a("s_nop 7")
    a(f"v_max3_f32 v240, v{SS}, v{SS+1}, v{SS+2}")
    for k in range(3, 15, 2):
        a(f"v_max3_f32 v240, v240, v{SS+k}, v{SS+k+1}")
    a(f"v_max_f32 v240, v240, v{SS+15}")
    a("v_mov_b32 v241, v240")
    a("s_nop 1")
    a("v_permlane32_swap_b32 v240, v241")
    a("s_nop 1")
    a("v_max_f32 v240, v240, v241")
    CS = 128 ** -0.5 * 1.4426950408889634
    a(f"s_mov_b32 s{S_T+2}, {f32(CS)}")
    a(f"v_mul_f32 v240, s{S_T+2}, v240")
    for k in range(16):
        a(f"v_fma_f32 v{SS+k}, v{SS+k}, s{S_T+2}, -v240")
    for k in range(16):
        a(f"v_exp_f32 v{SS+k}, v{SS+k}")
    a("s_nop 0")
    a(f"v_add_f32 v241, v{SS}, v{SS+1}")
    a(f"v_add_f32 v242, v{SS+2}, v{SS+3}")
    for k in range(4, 16, 2):
        a(f"v_add_f32 v241, v241, v{SS+k}")
        a(f"v_add_f32 v242, v242, v{SS+k+1}")
    a("v_add_f32 v241, v241, v242")
    a("v_mov_b32 v242, v241")
    a("s_nop 1")
    a("v_permlane32_swap_b32 v241, v242")
    a("s_nop 1")
    a("v_add_f32 v241, v241, v242")
    a("v_rcp_f32 v241, v241")
    a("s_nop 0")
    for k in range(16):
        a(f"v_mul_f32 v{SS+k}, v{SS+k}, v241")
    for p in range(8):
        a(f"v_cvt_pk_bf16_f32 v{PP+p}, v{SS+2*p}, v{SS+2*p+1}")
    a.wait_lg_all()
    a("s_nop 1")
    for i in range(4):
        a(f"{MF} {vr(ACC+16*i,16)}, {vr(VF+8*i,4)}, {vr(PP,4)}, 0")
        a(f"{MF} {vr(ACC+16*i,16)}, {vr(VF+8*i+4,4)}, {vr(PP+4,4)}, {vr(ACC+16*i,16)}")
    a(f"s_lshl_b32 s{S_T}, s{S_BR}, 22")
    a(f"s_add_u32 s{S_T}, s{S_T}, s{S_KV}")
    if O_BASE: a(f"s_add_u32 s{S_T}, s{S_T}, {O_BASE}")
    a(f"s_add_u32 s{S_T+1}, s{S_T}, 4096")
    a("v_lshlrev_b32 v240, 4, v0")
    a("s_nop 7")
    a("s_nop 3")
    for i in range(4):
        for p in range(8):
            a(f"v_cvt_pk_bf16_f32 v{QP+8*i+p}, v{ACC+16*i+2*p}, v{ACC+16*i+2*p+1}")
        for u2 in range(2):
            u = 2 * i + u2
            a.vmem(f"buffer_store_dwordx4 {vr(QP+4*u,4)}, v240, s[{SWS}:{SWS+3}], s{S_T + (u>>2)} offen offset:{(u&3)*1024}", "o")
    stamp(a, 6, opt)
    a.wait_vm_all()
    stamp(a, 7, opt)
    dump_stamps(a, 8, opt, 0)
    a.label(end)
    a("s_endpgm")

def gen_p2(a, opt):
    end = "L_p2_end"
    stamp(a, 0, opt)
    prologue(a, end)
    VWO = 2; VA = [8, 9, 10, 11]; VL16 = 3; VRW = [4, 5, 6]; VRR = 7
    ACC = 16; RT = 80; OF = [128, 192]
    S_WOB, S_ML, S_OB, S_PB = 92, 93, 94, 95
    NSL = 10
    a(f"s_lshl_b32 s{S_T}, s{S_G}, 2")
    a(f"s_add_u32 s{S_T}, s{S_T}, s{S_W}")
    a(f"s_lshl_b32 s{S_WOB}, s{S_T}, 19")
    a(f"s_lshl_b32 s{S_T+1}, s{S_HL}, 8")
    a(f"s_add_u32 s{S_WOB}, s{S_WOB}, s{S_T+1}")
    a(f"s_mul_i32 s{S_ML}, s{S_W}, 40960")
    seg_src(a, VWO, 11, 240, 241)
    def dma_wo(ks):
        for j in range(4):
            a(f"s_add_u32 m0, s{S_ML}, {(ks % NSL)*4096 + j*1024}")
            a(f"s_add_u32 s{S_T}, s{S_WOB}, {(16*ks+4*j)*2048}")
            a.vmem(f"buffer_load_dwordx4 v{VWO}, s[{SWO}:{SWO+3}], s{S_T} offen {opt.nt_wo} lds", ("wo", ks))
    for ks in range(NSL): dma_wo(ks)
    a(f"s_lshl_b32 s{S_T}, s{S_BR}, 2")
    a(f"s_add_u32 s{S_T}, s{S_T}, s{S_R}")
    a(f"s_lshl_b32 s{S_OB}, s{S_T}, 20")
    a(f"s_lshl_b32 s{S_T+1}, s{S_G}, 2")
    a(f"s_add_u32 s{S_T+1}, s{S_T+1}, s{S_W}")
    a(f"s_lshl_b32 s{S_T+1}, s{S_T+1}, 14")
    a(f"s_add_u32 s{S_OB}, s{S_OB}, s{S_T+1}")
    if O_BASE: a(f"s_add_u32 s{S_OB}, s{S_OB}, {O_BASE}")
    a(f"s_lshl_b32 s{S_T}, s{S_T}, 3")
    a(f"s_add_u32 s{S_T}, s{S_T}, s{S_HL}")
    a(f"s_lshl_b32 s{S_PB}, s{S_T}, 18")
    a(f"s_lshl_b32 s{S_T+1}, s{S_G}, 2")
    a(f"s_add_u32 s{S_T+1}, s{S_T+1}, s{S_W}")
    a(f"s_lshl_b32 s{S_T+1}, s{S_T+1}, 12")
    a(f"s_add_u32 s{S_PB}, s{S_PB}, s{S_T+1}")
    a(f"s_add_u32 s{S_PB}, s{S_PB}, {PART_BASE}")
    a(f"v_lshlrev_b32 v{VL16}, 4, v0")
    tr_base(a, 243, 244, 240, 241)
    a(f"v_add_u32 v243, s{S_ML}, v243")
    for sl in range(4):
        a(f"s_add_u32 s{S_T}, s{S_W}, {sl}")
        a(f"s_and_b32 s{S_T}, s{S_T}, 3")
        a(f"v_xor_b32 v240, s{S_T}, v244")
        a(f"v_lshlrev_b32 v240, 6, v240")
        a(f"v_add_u32 v{VA[sl]}, v243, v240")
        if sl:
            a(f"s_mul_i32 s{S_T}, s{S_T}, 12288")
            a(f"s_add_u32 s{S_T}, s{S_T}, {(sl-1)*4096}")
            a(f"v_add_u32 v{VRW[sl-1]}, s{S_T}, v{VL16}")
    a(f"s_mul_i32 s{S_T}, s{S_W}, 12288")
    a(f"v_add_u32 v{VRR}, s{S_T}, v{VL16}")
    S_Q = [96, 97, 98, 99]
    for n in range(4):
        a(f"s_add_u32 s{S_Q[n]}, s{S_G}, {n+1}")
        a(f"s_and_b32 s{S_Q[n]}, s{S_Q[n]}, 3")
    def load_o(n, f):
        if f % 4 == 0:
            a(f"s_lshl_b32 s{S_T+2}, s{S_Q[n]}, 18")
            a(f"s_add_u32 s{S_T+2}, s{S_T+2}, s{S_OB}")
            if f: a(f"s_add_u32 s{S_T+2}, s{S_T+2}, {f*1024}")
        a.vmem(f"buffer_load_dwordx4 {vr(OF[n&1]+4*f,4)}, v{VL16}, s[{SWS}:{SWS+3}], s{S_T+2} offen offset:{(f&3)*1024}", ("o", n, f))
    for ks in range(16):
        a.wait_vm(("wo", ks))
        for sl in range(4):
            for h2 in range(2):
                a.lds(f"ds_read_b64_tr_b16 {ar(16*ks+4*sl+2*h2,2)}, v{VA[sl]} offset:{(ks%NSL)*4096 + 4*h2*256}", ("wo", ks))
        a.wait_lg_all()
        if ks + NSL < 16: dma_wo(ks + NSL)
        if ks == 16 - NSL - 1:
            for f in range(16): load_o(0, f)
    stamp(a, 1, opt)
    a("s_barrier")
    for n in range(4):
        a.c(f"---- strip {n}")
        for ks in range(16):
            a.wait_vm(("o", n, ks))
            for sl in range(4):
                c = "0" if ks == 0 else vr(ACC+16*sl, 16)
                a(f"{MF} {vr(ACC+16*sl,16)}, {ar(16*ks+4*sl,4)}, {vr(OF[n&1]+4*ks,4)}, {c}")
                if sl == 1 and n + 1 < 4: load_o(n + 1, ks)
        rb = (n & 1) * 49152
        a("s_nop 7"); a("s_nop 3")
        for sl in range(1, 4):
            for j in range(4):
                a.lds(f"ds_write_b128 v{VRW[sl-1]}, {vr(ACC+16*sl+4*j,4)} offset:{rb + j*1024}", "rw")
        a.wait_lg_all()
        a("s_barrier")
        for k in range(12):
            a.lds(f"ds_read_b128 {vr(RT+4*k,4)}, v{VRR} offset:{rb + k*1024}", ("rr", k))
        a(f"s_lshl_b32 s{S_T}, s{S_Q[n]}, 16")
        a(f"s_add_u32 s{S_T}, s{S_T}, s{S_PB}")
        for src in range(3):
            for j in range(4):
                a.wait_lg(("rr", 4*src+j))
                for e in range(4):
                    dst = RT + 4*j + e
                    if src == 0:
                        a(f"v_add_f32 v{dst}, v{dst}, v{ACC+4*j+e}")
                    else:
                        a(f"v_add_f32 v{dst}, v{dst}, v{RT+16*src+4*j+e}")
        for j in range(4):
            a.vmem(f"buffer_store_dwordx4 {vr(RT+4*j,4)}, v{VL16}, s[{SWS}:{SWS+3}], s{S_T} offen offset:{j*1024}", "p")
        a("s_nop 1")
        stamp(a, 2 + n, opt)
    a.wait_vm_all()
    stamp(a, 6, opt)
    dump_stamps(a, 7, opt, 1)
    a.label(end)
    a("s_endpgm")

def gen_p3(a, opt):
    end = "L_p3_end"
    stamp(a, 0, opt)
    prologue(a, end)
    a(f"s_lshl_b32 s{S_T}, s{S_BR}, 2")
    a(f"s_add_u32 s{S_T}, s{S_T}, s{S_R}")
    a(f"s_lshl_b32 s{S_T}, s{S_T}, 3")
    a(f"s_add_u32 s{S_T}, s{S_T}, s{S_HL}")
    a(f"s_lshl_b32 s{S_T}, s{S_T}, 2")
    a(f"s_add_u32 s{S_T}, s{S_T}, s{S_G}")
    a(f"s_lshl_b32 s{S_T}, s{S_T}, 16")
    a(f"s_lshl_b32 s{S_T+1}, s{S_W}, 12")
    a(f"s_add_u32 s{S_T}, s{S_T}, s{S_T+1}")
    a(f"s_add_u32 s{S_T}, s{S_T}, {PART_BASE}")
    a("v_lshlrev_b32 v3, 4, v0")
    for src in range(4):
        for j in range(4):
            a.vmem(f"buffer_load_dwordx4 {vr(16+16*src+4*j,4)}, v3, s[{SWS}:{SWS+3}], s{S_T} offen offset:{j*1024}", ("p", src))
        a(f"s_add_u32 s{S_T}, s{S_T}, 16384")
    a(f"s_lshl_b32 s{S_T+2}, s{S_R}, 2")
    a(f"s_add_u32 s{S_T+2}, s{S_T+2}, s{S_G}")
    a(f"s_lshl_b32 s{S_T+2}, s{S_T+2}, 17")
    a(f"s_lshl_b32 s{S_T+3}, s{S_BR}, 11")
    a(f"s_add_u32 s{S_T+2}, s{S_T+2}, s{S_T+3}")
    a(f"s_lshl_b32 s{S_T+3}, s{S_HL}, 8")
    a(f"s_add_u32 s{S_T+2}, s{S_T+2}, s{S_T+3}")
    a(f"s_lshl_b32 s{S_T+3}, s{S_W}, 6")
    a(f"s_add_u32 s{S_T+2}, s{S_T+2}, s{S_T+3}")
    a("v_and_b32 v4, 31, v0")
    a("v_lshlrev_b32 v4, 12, v4")
    a("v_lshrrev_b32 v5, 5, v0")
    a("v_lshlrev_b32 v5, 4, v5")
    a("v_add_u32 v4, v4, v5")
    for src in range(1, 4):
        a.wait_vm(("p", src))
        for e in range(16):
            a(f"v_add_f32 v{16+e}, v{16+e}, v{16+16*src+e}")
    for p in range(8):
        a(f"v_cvt_pk_bf16_f32 v{8+p}, v{16+2*p}, v{16+2*p+1}")
    a.vmem(f"buffer_store_dwordx4 v[8:11], v4, s[{SOUT}:{SOUT+3}], s{S_T+2} offen", "out")
    a.vmem(f"buffer_store_dwordx4 v[12:15], v4, s[{SOUT}:{SOUT+3}], s{S_T+2} offen offset:32", "out")
    a.wait_vm_all()
    stamp(a, 1, opt)
    dump_stamps(a, 2, opt, 2)
    a.label(end)
    a("s_endpgm")

def kd(name, nv, acc):
    return f""".p2align 6
.amdhsa_kernel {name}
  .amdhsa_next_free_vgpr {nv}
  .amdhsa_next_free_sgpr 102
  .amdhsa_accum_offset {acc}
  .amdhsa_group_segment_fixed_size 0
  .amdhsa_kernarg_size 104
  .amdhsa_user_sgpr_count 2
  .amdhsa_user_sgpr_kernarg_segment_ptr 1
  .amdhsa_system_sgpr_workgroup_id_x 1
.end_amdhsa_kernel
"""

def build(opt):
    out = []
    out.append("; @launch kernel=p1_kernel grid=(256,1,1) block=(256,1,1) lds=163840")
    out.append("; @launch kernel=p2_kernel grid=(256,1,1) block=(256,1,1) lds=163840")
    out.append("; @launch kernel=p3_kernel grid=(256,1,1) block=(256,1,1) lds=0")
    out.append('.amdgcn_target "amdgcn-amd-amdhsa--gfx950"')
    out.append(".text")
    for nm, fn in [("p1_kernel", gen_p1), ("p2_kernel", gen_p2), ("p3_kernel", gen_p3)]:
        a = Asm()
        fn(a, opt)
        out.append(f".globl {nm}\n.p2align 8\n.type {nm},@function\n{nm}:")
        out.append(a.text())
    out.append('.section .rodata,"a"')
    out.append(kd("p1_kernel", 256, 256))
    out.append(kd("p2_kernel", 512, 256))
    out.append(kd("p3_kernel", 80, 80))
    return "\n".join(out)

if __name__ == "__main__":
    opt = Opt()
    for kv in sys.argv[2:]:
        k, v = kv.split("=")
        cur = getattr(opt, k)
        setattr(opt, k, (v == "1") if isinstance(cur, bool) else type(cur)(v))
    open(sys.argv[1], "w").write(build(opt))
```

```python
import sys
from gen1 import *
def gen_probe(a, kofs, n, stride):
    a("s_cmp_ge_u32 s2, 1")
    a("s_cbranch_scc1 L_pr_end")
    a(f"s_load_dwordx2 s[4:5], s[0:1], {kofs}")
    a("s_waitcnt lgkmcnt(0)")
    a("s_mov_b32 s8, s4"); a("s_and_b32 s9, s5, 0xffff"); a(f"s_mov_b32 s10, {1<<20}"); a("s_mov_b32 s11, 0x20000")
    a("v_mov_b32 v1, 0")
    a("s_mov_b32 s12, 0")
    a(f"s_mov_b32 s13, {n}")
    a.label("L_pr_loop")
    a("buffer_load_dword v2, v1, s[8:11], s12 offen")
    a("s_waitcnt vmcnt(0)")
    a(f"s_add_u32 s12, s12, {stride}")
    a("s_sub_u32 s13, s13, 1")
    a("s_cmp_lg_u32 s13, 0")
    a("s_cbranch_scc1 L_pr_loop")
    a.label("L_pr_end")
    a("s_endpgm")
def build_probe(kofs, n, stride):
    opt = Opt()
    t = build(opt)
    a = Asm(); gen_probe(a, kofs, n, stride)
    t = t.replace("; @launch kernel=p1_kernel", "; @launch kernel=pr_kernel grid=(1,1,1) block=(64,1,1) lds=0\n; @launch kernel=p1_kernel", 1)
    t = t.replace(".text\n", ".text\n.globl pr_kernel\n.p2align 8\n.type pr_kernel,@function\npr_kernel:\n" + a.text(), 1)
    t += kd("pr_kernel", 8, 8)
    return t
for nm, kofs, stride in [("base", 0, 0), ("ax", 0, 4224), ("awq", 24, 4224), ("bk", 48, 4224), ("bwo", 72, 4224), ("ws", 96, 4224)]:
    open(f"pr_{nm}.s", "w").write(build_probe(kofs, 200, stride))
```

```python
import sys, struct
from asmlib import *

NAME = "concat_heads__mha_block_cached__gqa_block_cached__near_ridge"
def f32(x): return "0x%08x" % struct.unpack("<I", struct.pack("<f", x))[0]

O_BASE = 0
PART_BASE = 8 << 20
FO_BASE = 24 << 20
FP_BASE = 25 << 20
STAMP_BASE = 28 << 20
WS_USED = 32 << 20
SPIN_MAX = 20000

SX, SK, SV, SWQ, SWO, SWS, SOUT, SDBG = 32, 36, 40, 44, 48, 52, 56, 60
S_W, S_BR, S_G, S_HL, S_R, S_B = 64, 65, 66, 67, 68, 69
S_T = 70
S_MX, S_H = 78, 79
S_SCW = [80, 81, 82, 83]; S_RTW = [84, 85, 86, 87]; S_SCX = [88, 89, 90, 91]; S_RTX = [92, 93, 94, 95]
S_KV, S_MW, S_STW, S_STX = 96, 97, 98, 99
S_NONCE, S_CNT = 100, 101
S_WOG = [4, 5, 6, 7]
S_OG = [8, 9, 10, 11]
S_Q = [12, 13, 14, 15]
S_OB, S_PB, S_FOW, S_FOR, S_FPB, S_OUTB, S_PR = 16, 17, 18, 19, 20, 21, 22
S_EX = 24

class Opt:
    nt_x = ""; nt_wq = ""; nt_kv = ""; nt_wo = ""
    rot = True
    kv = "1,1,1,1"
    stamps = False
    clk = "s_memrealtime"
    nonce_stage = 8
    worot = True

VSTAMP = 1
def stamp(a, idx, opt):
    if opt.stamps:
        a(f"{opt.clk} s[30:31]")
        a("s_waitcnt lgkmcnt(0)"); a.lg = []
        a(f"v_writelane_b32 v{VSTAMP}, s30, {idx}")

def dump_stamps(a, opt):
    if not opt.stamps: return
    a(f"s_lshl_b32 s{S_T}, s2, 2")
    a(f"s_add_u32 s{S_T}, s{S_T}, s{S_W}")
    a(f"s_lshl_b32 s{S_T}, s{S_T}, 8")
    a(f"s_add_u32 s{S_T}, s{S_T}, {STAMP_BASE}")
    a("v_lshlrev_b32 v2, 2, v0")
    a(f"buffer_store_dword v{VSTAMP}, v2, s[{SWS}:{SWS+3}], s{S_T} offen")
    a("s_waitcnt vmcnt(0)")

def seg_src(a, dst, rowstride_shift, t1, t2):
    a(f"v_lshrrev_b32 v{t1}, 4, v0")
    a(f"v_bfe_u32 v{t2}, v0, 2, 2")
    a(f"v_xor_b32 v{t2}, v{t2}, v{t1}")
    a(f"v_lshlrev_b32 v{t2}, 6, v{t2}")
    a(f"v_lshlrev_b32 v{dst}, {rowstride_shift}, v{t1}")
    a(f"v_add_u32 v{dst}, v{dst}, v{t2}")
    a(f"v_and_b32 v{t2}, 3, v0")
    a(f"v_lshlrev_b32 v{t2}, 4, v{t2}")
    a(f"v_add_u32 v{dst}, v{dst}, v{t2}")

def tr_base(a, dst, r4, t1):
    a(f"v_bfe_u32 v{r4}, v0, 2, 2")
    a(f"v_lshrrev_b32 v{t1}, 5, v0")
    a(f"v_lshlrev_b32 v{t1}, 3, v{t1}")
    a(f"v_add_u32 v{t1}, v{t1}, v{r4}")
    a(f"v_lshlrev_b32 v{dst}, 8, v{t1}")
    a(f"v_bfe_u32 v{t1}, v0, 4, 1")
    a(f"v_lshlrev_b32 v{t1}, 5, v{t1}")
    a(f"v_add_u32 v{dst}, v{dst}, v{t1}")
    a(f"v_and_b32 v{t1}, 1, v0")
    a(f"v_lshlrev_b32 v{t1}, 4, v{t1}")
    a(f"v_add_u32 v{dst}, v{dst}, v{t1}")
    a(f"v_bfe_u32 v{t1}, v0, 1, 1")
    a(f"v_lshlrev_b32 v{t1}, 3, v{t1}")
    a(f"v_add_u32 v{dst}, v{dst}, v{t1}")

MF = "v_mfma_f32_32x32x16_bf16"
srd = lambda r: f"s[{r}:{r+3}]"

def gen(a, opt):
    end = "L_end"
    T = S_T
    stamp(a, 0, opt)
    a("s_cmp_ge_u32 s2, 256")
    a(f"s_cbranch_scc1 {end}")
    a("s_load_dwordx16 s[4:19], s[0:1], 0")
    a("s_load_dwordx4 s[20:23], s[0:1], 64")
    a("s_load_dwordx4 s[24:27], s[0:1], 80")
    a("s_load_dwordx2 s[28:29], s[0:1], 96")
    a("v_lshrrev_b32 v2, 6, v0")
    a("v_and_b32 v0, 63, v0")
    a(f"v_readfirstlane_b32 s{S_W}, v2")
    a(f"s_and_b32 s{T}, s2, 7")
    a(f"s_lshr_b32 s{T+1}, s2, 3")
    a(f"s_lshr_b32 s{S_BR}, s{T}, 2")
    a(f"s_and_b32 s{S_G}, s{T}, 3")
    a(f"s_and_b32 s{S_HL}, s{T+1}, 7")
    a(f"s_lshr_b32 s{S_R}, s{T+1}, 3")
    VWQ, VXE, VXO, VKS, VVS, VWO = 2, 3, 4, 5, 6, 7
    VA = [8, 9, 10, 11]; VB = [12, 13, 14, 15]
    ACC = 16
    FA = [80, 100]; FB = [96, 116]
    KF, VF, QP, SS, PP, TT = 120, 152, 184, 216, 232, 240
    VTB, VR4, VNON = 250, 251, 252
    XR, KR, VR = 49152, 98304, 131072
    a(f"s_lshl_b32 s{S_B}, s{S_R}, 2")
    a(f"s_add_u32 s{S_B}, s{S_B}, s{S_W}")
    a(f"s_lshl_b32 s{S_H}, s{S_G}, 3")
    a(f"s_add_u32 s{S_H}, s{S_H}, s{S_HL}")
    a(f"s_lshl_b32 s{T}, s{S_W}, 17")
    a(f"s_lshl_b32 s{T+1}, s{S_H}, 8")
    a(f"s_add_u32 s{T}, s{T}, s{T+1}")
    a(f"s_lshl_b32 s{T+1}, s{S_B}, 16")
    if opt.rot:
        a(f"s_lshr_b32 s{T+2}, s{S_HL}, 1")
        a(f"s_and_b32 s{T+3}, s{S_HL}, 1")
        a(f"s_lshl_b32 s{T+3}, s{T+3}, 1")
        a(f"s_add_u32 s{T+3}, s{T+3}, s{S_R}")
    else:
        a(f"s_mov_b32 s{T+2}, 0"); a(f"s_mov_b32 s{T+3}, 0")
    for j in range(4):
        a(f"s_add_u32 s{T+4}, s{T+2}, {j}")
        a(f"s_and_b32 s{T+4}, s{T+4}, 3")
        a(f"s_lshl_b32 s{T+5}, s{T+4}, 21")
        a(f"s_add_u32 s{S_SCW[j]}, s{T}, s{T+5}")
        a(f"s_lshl_b32 s{T+5}, s{T+4}, 9")
        a(f"s_add_u32 s{S_SCX[j]}, s{T+1}, s{T+5}")
        a(f"s_add_u32 s{T+4}, s{T+3}, {j}")
        a(f"s_and_b32 s{T+4}, s{T+4}, 3")
        a(f"s_lshl_b32 s{S_RTW[j]}, s{T+4}, 19")
        a(f"s_lshl_b32 s{S_RTX[j]}, s{T+4}, 7")
    a(f"s_lshl_b32 s{S_KV}, s{S_B}, 5")
    a(f"s_add_u32 s{S_KV}, s{S_KV}, s{S_H}")
    a(f"s_lshl_b32 s{S_KV}, s{S_KV}, 13")
    a(f"s_lshl_b32 s{S_MW}, s{S_W}, 12")
    a(f"s_mul_i32 s{S_MX}, s{S_W}, 12288")
    a(f"s_add_u32 s{S_MX}, s{S_MX}, {XR}")
    seg_src(a, VWQ, 13, 240, 241)
    a("v_lshrrev_b32 v240, 3, v0")
    a("v_lshlrev_b32 v240, 11, v240")
    a("v_lshrrev_b32 v241, 4, v0")
    a("v_and_b32 v242, 7, v0")
    a("v_xor_b32 v242, v242, v241")
    a("v_lshlrev_b32 v242, 4, v242")
    a(f"v_add_u32 v{VXE}, v240, v242")
    a(f"v_xor_b32 v{VXO}, 64, v{VXE}")
    seg_src(a, VVS, 8, 240, 241)
    a("v_lshrrev_b32 v240, 4, v0")
    a("v_and_b32 v241, 15, v0")
    a("v_xor_b32 v241, v241, v240")
    a("v_lshlrev_b32 v241, 4, v241")
    a("v_lshlrev_b32 v240, 8, v240")
    a(f"v_add_u32 v{VKS}, v240, v241")
    for s_, n in [(SX, 1 << 20), (SK, 4 << 20), (SV, 4 << 20), (SWQ, 8 << 20), (SWO, 8 << 20), (SWS, WS_USED), (SOUT, 2 << 20), (SDBG, 256)]:
        a(f"s_mov_b32 s{s_+2}, {n}")
        a(f"s_mov_b32 s{s_+3}, 0x20000")
    a("s_waitcnt lgkmcnt(0)")
    a(f"s_cmp_eq_u32 s{S_BR}, 0")
    for i, s_ in enumerate([SX, SK, SV, SWQ, SWO]):
        a(f"s_cselect_b32 s{s_}, s{4+2*i}, s{14+2*i}")
        a(f"s_cselect_b32 s{s_+1}, s{5+2*i}, s{15+2*i}")
    for s_, lo in [(SOUT, 24), (SDBG, 26), (SWS, 28)]:
        a(f"s_mov_b32 s{s_}, s{lo}")
        a(f"s_mov_b32 s{s_+1}, s{lo+1}")

    def dma_stage(s, j8):
        slot = s % 3
        if j8 == 0:
            a(f"s_add_u32 s{S_STW}, s{S_SCW[s>>2]}, s{S_RTW[s&3]}")
            a(f"s_add_u32 s{S_STX}, s{S_SCX[s>>2]}, s{S_RTX[s&3]}")
        if j8 < 4:
            j = j8
            a(f"s_add_u32 m0, s{S_MW}, {slot*16384 + j*1024}")
            a(f"s_add_u32 s{T}, s{S_STW}, {j*32768}")
            a.vmem(f"buffer_load_dwordx4 v{VWQ}, {srd(SWQ)}, s{T} offen {opt.nt_wq} lds", ("st", s))
        else:
            j = j8 - 4
            a(f"s_add_u32 m0, s{S_MX}, {slot*4096 + j*1024}")
            a(f"s_add_u32 s{T}, s{S_STX}, {j*16384}")
            a.vmem(f"buffer_load_dwordx4 v{VXO if j&1 else VXE}, {srd(SX)}, s{T} offen {opt.nt_x} lds", ("st", s))
    def dma_kv(piece):
        half = piece & 1
        a(f"s_lshl_b32 s{T+1}, s{S_W}, 13")
        if piece < 2:
            a(f"s_add_u32 m0, s{T+1}, {KR + half*4096}")
            a(f"s_add_u32 s{T}, s{S_KV}, {half*4096}")
            for j in range(4):
                a(f"v_xor_b32 v{TT+j}, {64*j}, v{VKS}")
            for j in range(4):
                a.vmem(f"buffer_load_dwordx4 v{TT+j}, {srd(SK)}, s{T} offen offset:{j*1024} {opt.nt_kv} lds", "k")
        else:
            a(f"s_add_u32 m0, s{T+1}, {VR + half*4096}")
            a(f"s_add_u32 s{T}, s{S_KV}, {half*4096}")
            for j in range(4):
                a.vmem(f"buffer_load_dwordx4 v{VVS}, {srd(SV)}, s{T} offen offset:{j*1024} {opt.nt_kv} lds", "v")
    kvs = [int(x) for x in opt.kv.split(",")]
    for p in range(4):
        if kvs[p] == -1: dma_kv(p)
    for s in range(2):
        for j8 in range(8): dma_stage(s, j8)
    for p in range(4):
        if kvs[p] == -2: dma_kv(p)
    a(f"s_or_b32 s{T}, s2, s{S_W}")
    a(f"s_cmp_lg_u32 s{T}, 0")
    a("s_cbranch_scc1 L_nononce")
    a(f"s_memrealtime s[{T+2}:{T+3}]")
    a("s_waitcnt lgkmcnt(0)")
    a(f"s_or_b32 s{T+2}, s{T+2}, 1")
    a(f"v_mov_b32 v240, s{T+2}")
    a("v_mov_b32 v241, 0")
    a(f"buffer_store_dword v240, v241, {srd(SDBG)}, 0 offen sc1")
    a("s_waitcnt vmcnt(0)")
    a.label("L_nononce")
    tr_base(a, VTB, VR4, 240)
    for i in range(4):
        a(f"v_xor_b32 v240, {i}, v{VR4}")
        a(f"v_lshlrev_b32 v240, 6, v240")
        a(f"v_add_u32 v{VA[i]}, v{VTB}, v240")
    a("v_and_b32 v240, 31, v0")
    a("v_lshrrev_b32 v241, 5, v0")
    a("v_bfe_u32 v242, v0, 1, 3")
    a("v_xor_b32 v241, v241, v242")
    a("v_lshlrev_b32 v241, 4, v241")
    a("v_lshlrev_b32 v240, 7, v240")
    a("v_add_u32 v240, v240, v241")
    for t in range(4):
        a(f"v_xor_b32 v241, {32*t}, v240")
        a(f"v_add_u32 v{VB[t]}, s{S_MX}, v241")
    seg_src(a, VWO, 11, 240, 241)
    a(f"s_lshl_b32 s{T}, s{S_G}, 2")
    a(f"s_add_u32 s{T}, s{T}, s{S_W}")
    a(f"s_lshl_b32 s{T+1}, s{T}, 19")
    a(f"s_lshl_b32 s{T+2}, s{S_HL}, 8")
    a(f"s_add_u32 s{T+1}, s{T+1}, s{T+2}")
    for jg in range(4):
        if opt.worot:
            a(f"s_add_u32 s{T+2}, s{S_R}, {jg}")
            a(f"s_and_b32 s{T+2}, s{T+2}, 3")
        else:
            a(f"s_mov_b32 s{T+2}, {jg}")
        a(f"s_lshl_b32 s{T+3}, s{T+2}, 17")
        a(f"s_add_u32 s{S_WOG[jg]}, s{T+1}, s{T+3}")
        a(f"s_lshl_b32 s{S_OG[jg]}, s{T+2}, 12")
        a(f"s_add_u32 s{S_Q[jg]}, s{S_G}, {jg+1}")
        a(f"s_and_b32 s{S_Q[jg]}, s{S_Q[jg]}, 3")
    a(f"s_lshl_b32 s{T+1}, s{S_BR}, 2")
    a(f"s_add_u32 s{T+1}, s{T+1}, s{S_R}")
    a(f"s_lshl_b32 s{S_OB}, s{T+1}, 20")
    a(f"s_lshl_b32 s{T+2}, s{T}, 14")
    a(f"s_add_u32 s{S_OB}, s{S_OB}, s{T+2}")
    if O_BASE: a(f"s_add_u32 s{S_OB}, s{S_OB}, {O_BASE}")
    a(f"s_lshl_b32 s{T+2}, s{T+1}, 2")
    a(f"s_add_u32 s{T+2}, s{T+2}, s{S_G}")
    a(f"s_lshl_b32 s{T+2}, s{T+2}, 9")
    a(f"s_add_u32 s{T+2}, s{T+2}, {FO_BASE}")
    a(f"s_lshl_b32 s{T+3}, s{S_W}, 7")
    a(f"s_add_u32 s{S_FOR}, s{T+2}, s{T+3}")
    a(f"s_lshr_b32 s{T+3}, s{S_HL}, 1")
    a(f"s_lshl_b32 s{T+3}, s{T+3}, 7")
    a(f"s_add_u32 s{S_FOW}, s{T+2}, s{T+3}")
    a(f"s_and_b32 s{T+3}, s{S_HL}, 1")
    a(f"s_lshl_b32 s{T+3}, s{T+3}, 2")
    a(f"s_add_u32 s{T+3}, s{T+3}, s{S_W}")
    a(f"s_lshl_b32 s{T+3}, s{T+3}, 2")
    a(f"s_add_u32 s{S_FOW}, s{S_FOW}, s{T+3}")
    a(f"s_lshl_b32 s{T+1}, s{T+1}, 3")
    a(f"s_add_u32 s{T+1}, s{T+1}, s{S_HL}")
    a(f"s_lshl_b32 s{T+2}, s{T+1}, 18")
    a(f"s_add_u32 s{T+2}, s{T+2}, {PART_BASE}")
    a(f"s_lshl_b32 s{T+3}, s{T}, 12")
    a(f"s_add_u32 s{S_PB}, s{T+2}, s{T+3}")
    a(f"s_lshl_b32 s{T+3}, s{S_G}, 16")
    a(f"s_add_u32 s{S_PR}, s{T+2}, s{T+3}")
    a(f"s_lshl_b32 s{T+3}, s{S_W}, 12")
    a(f"s_add_u32 s{S_PR}, s{S_PR}, s{T+3}")
    a(f"s_lshl_b32 s{T+2}, s{T+1}, 11")
    a(f"s_lshl_b32 s{T+3}, s{S_W}, 7")
    a(f"s_add_u32 s{T+2}, s{T+2}, s{T+3}")
    a(f"s_add_u32 s{S_FPB}, s{T+2}, {FP_BASE}")
    a(f"s_lshl_b32 s{T+2}, s{S_R}, 2")
    a(f"s_add_u32 s{T+2}, s{T+2}, s{S_G}")
    a(f"s_lshl_b32 s{T+2}, s{T+2}, 17")
    a(f"s_lshl_b32 s{T+3}, s{S_BR}, 11")
    a(f"s_add_u32 s{T+2}, s{T+2}, s{T+3}")
    a(f"s_lshl_b32 s{T+3}, s{S_HL}, 8")
    a(f"s_add_u32 s{T+2}, s{T+2}, s{T+3}")
    a(f"s_lshl_b32 s{T+3}, s{S_W}, 6")
    a(f"s_add_u32 s{S_OUTB}, s{T+2}, s{T+3}")

    WSL = [("w", 16384), ("x", 4096), ("w", 32768), ("x", 8192), ("x", 0), ("w", 0), ("k", 0), ("k", 4096), ("v", 0), ("v", 4096)]
    S_MK = 26
    a(f"s_lshl_b32 s{S_MK}, s{S_W}, 13")
    def slot_m0(sl, extra):
        kind, off = WSL[sl]
        if kind == "w": return f"s_add_u32 m0, s{S_MW}, {off+extra}"
        if kind == "x": return f"s_add_u32 m0, s{S_MX}, {off+extra}"
        if kind == "k": return f"s_add_u32 m0, s{S_MK}, {KR+off+extra}"
        return f"s_add_u32 m0, s{S_MK}, {VR+off+extra}"
    def dma_wo(ks, j, sl):
        a(slot_m0(sl, j*1024))
        a(f"s_add_u32 s{T}, s{S_WOG[ks>>2]}, {(16*(ks&3)+4*j)*2048}")
        a.vmem(f"buffer_load_dwordx4 v{VWO}, {srd(SWO)}, s{T} offen {opt.nt_wo} lds", ("wo", ks))

    def reads(n):
        s, t = n >> 2, n & 3
        slot = s % 3
        fs = n & 1
        r = [(f"ds_read_b128 {vr(FB[fs],4)}, v{VB[t]} offset:{slot*4096}", ("b", n))]
        for i in range(4):
            for h2 in range(2):
                r.append((f"ds_read_b64_tr_b16 {vr(FA[fs]+4*i+2*h2,2)}, v{VA[i]} offset:{slot*16384 + (16*t+4*h2)*256}", ("a", n, i)))
        return r
    def mfma(n, i):
        fs = n & 1
        c = "0" if n == 0 else vr(ACC+16*i, 16)
        a.wait_lg([("b", n), ("a", n, i)])
        a(f"{MF} {vr(ACC+16*i,16)}, {vr(FA[fs]+4*i,4)}, {vr(FB[fs],4)}, {c}")

    for s in range(16):
        a.c(f"---- stage {s}")
        if a.lg: a.wait_lg_all()
        a.wait_vm(("st", s))
        a("s_barrier")
        stamp(a, 1 + s, opt)
        for t in range(4):
            n = 4 * s + t
            rd = reads(n)
            for i in range(4):
                for (ins, tag) in rd[3*i:3*i+3]:
                    a.lds(ins, tag)
                if n > 0: mfma(n - 1, i)
                if i in (1, 3):
                    j8 = 2 * t + (i >> 1)
                    if s + 2 < 16: dma_stage(s + 2, j8)
                    else:
                        ks = (s - 14) * 2 + (j8 >> 2)
                        dma_wo(ks, j8 & 3, ks)
        for p in range(4):
            if kvs[p] == s: dma_kv(p)
        if s == opt.nonce_stage:
            a("v_mov_b32 v240, 0")
            a.vmem(f"buffer_load_dword v{VNON}, v240, {srd(SDBG)}, 0 offen sc1", "nonce")
    for i in range(4): mfma(63, i)
    for j in range(4): dma_wo(4, j, 4)
    stamp(a, 17, opt)
    a.c("---- attention")
    a.wait_vm(["k", "v", "nonce"])
    a("v_and_b32 v240, 0x13, v0")
    a("v_bfe_u32 v241, v0, 2, 1")
    a("v_lshlrev_b32 v241, 3, v241")
    a("v_or_b32 v240, v240, v241")
    a("v_bfe_u32 v241, v0, 3, 1")
    a("v_lshlrev_b32 v241, 2, v241")
    a("v_or_b32 v240, v240, v241")
    a("v_and_b32 v241, 15, v240")
    a("v_lshrrev_b32 v242, 5, v0")
    a("v_xor_b32 v241, v241, v242")
    a("v_lshlrev_b32 v241, 4, v241")
    a("v_lshlrev_b32 v240, 8, v240")
    a("v_add_u32 v240, v240, v241")
    a(f"s_add_u32 s{T+1}, s{S_MK}, {KR}")
    for u in range(8):
        a(f"v_xor_b32 v241, {32*u}, v240")
        a(f"v_add_u32 v241, s{T+1}, v241")
        a.lds(f"ds_read_b128 {vr(KF+4*u,4)}, v241", ("k", u))
    a(f"s_add_u32 s{T+1}, s{S_MK}, {VR}")
    a(f"v_readfirstlane_b32 s{S_NONCE}, v{VNON}")
    for i in range(4):
        for p in range(8):
            a(f"v_cvt_pk_bf16_f32 v{QP+8*i+p}, v{ACC+16*i+2*p}, v{ACC+16*i+2*p+1}")
    for i in range(4):
        a(f"v_add_u32 v{VA[i]}, s{T+1}, v{VA[i]}")
    a("s_barrier")
    for u in range(8):
        a.wait_lg(("k", u))
        c = "0" if u == 0 else vr(SS, 16)
        a(f"{MF} {vr(SS,16)}, {vr(KF+4*u,4)}, {vr(QP+4*u,4)}, {c}")
        if u & 1: dma_wo(5, u >> 1, 5)
    for i in range(4):
        for u in range(2):
            for h2 in range(2):
                if len(a.lg) >= 15: a.wait_lg(a.lg[0])
                a.lds(f"ds_read_b64_tr_b16 {vr(VF+8*i+4*u+2*h2,2)}, v{VA[i]} offset:{(16*u+4*h2)*256}", ("v", i, u, h2))
    a(f"v_max3_f32 v240, v{SS}, v{SS+1}, v{SS+2}")
    for k in range(3, 15, 2):
        a(f"v_max3_f32 v240, v240, v{SS+k}, v{SS+k+1}")
    a(f"v_max_f32 v240, v240, v{SS+15}")
    a("v_mov_b32 v241, v240")
    a("s_nop 1")
    a("v_permlane32_swap_b32 v240, v241")
    a("s_nop 1")
    a("v_max_f32 v240, v240, v241")
    CS = 128 ** -0.5 * 1.4426950408889634
    a(f"s_mov_b32 s{T+2}, {f32(CS)}")
    a(f"v_mul_f32 v240, s{T+2}, v240")
    for k in range(16):
        a(f"v_fma_f32 v{SS+k}, v{SS+k}, s{T+2}, -v240")
    for k in range(16):
        a(f"v_exp_f32 v{SS+k}, v{SS+k}")
        if k % 4 == 3: dma_wo(6, k >> 2, 6)
    a(f"v_add_f32 v241, v{SS}, v{SS+1}")
    a(f"v_add_f32 v242, v{SS+2}, v{SS+3}")
    for k in range(4, 16, 2):
        a(f"v_add_f32 v241, v241, v{SS+k}")
        a(f"v_add_f32 v242, v242, v{SS+k+1}")
    a("v_add_f32 v241, v241, v242")
    a("v_mov_b32 v242, v241")
    a("s_nop 1")
    a("v_permlane32_swap_b32 v241, v242")
    a("s_nop 1")
    a("v_add_f32 v241, v241, v242")
    a("v_rcp_f32 v241, v241")
    a("s_nop 0")
    for k in range(16):
        a(f"v_mul_f32 v{SS+k}, v{SS+k}, v241")
    for p in range(8):
        a(f"v_cvt_pk_bf16_f32 v{PP+p}, v{SS+2*p}, v{SS+2*p+1}")
    a.wait_lg_all()
    a("s_nop 1")
    for i in range(4):
        a(f"{MF} {vr(ACC+16*i,16)}, {vr(VF+8*i,4)}, {vr(PP,4)}, 0")
        a(f"{MF} {vr(ACC+16*i,16)}, {vr(VF+8*i+4,4)}, {vr(PP+4,4)}, {vr(ACC+16*i,16)}")
    a(f"s_lshl_b32 s{T+2}, s{S_BR}, 22")
    a(f"s_add_u32 s{T+2}, s{T+2}, s{S_KV}")
    if O_BASE: a(f"s_add_u32 s{T+2}, s{T+2}, {O_BASE}")
    a(f"s_add_u32 s{T+3}, s{T+2}, 4096")
    VL16 = 2
    a(f"v_lshlrev_b32 v{VL16}, 4, v0")
    a("s_nop 7")
    a("s_nop 3")
    for i in range(4):
        for p in range(8):
            a(f"v_cvt_pk_bf16_f32 v{QP+8*i+p}, v{ACC+16*i+2*p}, v{ACC+16*i+2*p+1}")
        for u2 in range(2):
            u = 2 * i + u2
            a.vmem(f"buffer_store_dwordx4 {vr(QP+4*u,4)}, v{VL16}, {srd(SWS)}, s{T+2+(u>>2)} offen offset:{(u&3)*1024} sc1", "o")
    stamp(a, 18, opt)
    for ks in (7, 8, 9):
        for j in range(4): dma_wo(ks, j, ks)
    a(f"s_cmp_lg_u32 s{S_NONCE}, 0")
    a("s_cbranch_scc1 L_havenonce")
    a(f"s_mov_b32 s{S_CNT}, 0")
    a("v_mov_b32 v240, 0")
    a.label("L_nonce_spin")
    a(f"buffer_load_dword v{VNON}, v240, {srd(SDBG)}, 0 offen sc1")
    a("s_waitcnt vmcnt(0)")
    a(f"v_readfirstlane_b32 s{S_NONCE}, v{VNON}")
    a(f"s_add_u32 s{S_CNT}, s{S_CNT}, 1")
    a(f"s_cmp_gt_u32 s{S_CNT}, {SPIN_MAX}")
    a("s_cbranch_scc1 L_havenonce")
    a(f"s_cmp_eq_u32 s{S_NONCE}, 0")
    a("s_cbranch_scc1 L_nonce_spin")
    a.label("L_havenonce")
    VRW = [3, 4, 5]; VRR = 6; VZ = 12; VNV = 13; VFL = 14; VFA = 15
    VAW = {"w": [240, 241, 242, 243], "x": [244, 245, 246, 247], "k": [8, 9, 10, 11]}
    for sl in range(4):
        a(f"s_add_u32 s{T}, s{S_W}, {sl}")
        a(f"s_and_b32 s{T}, s{T}, 3")
        a(f"v_xor_b32 v248, s{T}, v{VR4}")
        a(f"v_lshlrev_b32 v248, 6, v248")
        a(f"v_add_u32 v248, v{VTB}, v248")
        a(f"v_add_u32 v{VAW['w'][sl]}, s{S_MW}, v248")
        a(f"v_add_u32 v{VAW['x'][sl]}, s{S_MX}, v248")
        a(f"s_add_u32 s{T+1}, s{S_MK}, {KR}")
        a(f"v_add_u32 v{VAW['k'][sl]}, s{T+1}, v248")
        if sl:
            a(f"s_mul_i32 s{T}, s{T}, 12288")
            a(f"s_add_u32 s{T}, s{T}, {(sl-1)*4096}")
            a(f"v_add_u32 v{VRW[sl-1]}, s{T}, v{VL16}")
    a(f"s_mul_i32 s{T}, s{S_W}, 12288")
    a(f"v_add_u32 v{VRR}, s{T}, v{VL16}")
    a(f"v_mov_b32 v{VZ}, 0")
    a(f"v_mov_b32 v{VNV}, s{S_NONCE}")
    def tr_wo(ks, sl):
        kind, off = WSL[sl]
        if kind == "v": kind, off = "k", off + (VR - KR)
        a.wait_vm(("wo", ks))
        for s4 in range(4):
            for h2 in range(2):
                a.lds(f"ds_read_b64_tr_b16 {ar(16*ks+4*s4+2*h2,2)}, v{VAW[kind][s4]} offset:{off + 4*h2*256}", ("wo", ks))
        a.wait_lg_all()
    def flag_store(soff):
        a(f"s_mov_b64 s[{S_EX}:{S_EX+1}], exec")
        a("s_mov_b64 exec, 1")
        a.vmem(f"buffer_store_dword v{VNV}, v{VZ}, {srd(SWS)}, {soff} offen sc1", "flag")
        a(f"s_mov_b64 exec, s[{S_EX}:{S_EX+1}]")
    for ks in range(7):
        tr_wo(ks, ks)
        if ks + 10 < 16 and ks < 6:
            pass
    a.wait_vm("o")
    flag_store(f"s{S_FOW}")
    stamp(a, 19, opt)
    for ks in range(10, 16):
        for j in range(4): dma_wo(ks, j, ks - 10)
    for ks in range(7, 16):
        tr_wo(ks, ks if ks < 10 else ks - 10)
    stamp(a, 20, opt)
    def poll(label, soff, nl, skip_lane_sgpr=None):
        a(f"v_and_b32 v{VFA}, {nl-1}, v0")
        if skip_lane_sgpr is not None:
            a(f"s_add_u32 s{T+4}, s{skip_lane_sgpr}, 1")
            a(f"s_and_b32 s{T+4}, s{T+4}, 3")
            a(f"v_mov_b32 v{VFL}, s{T+4}")
            a(f"v_cmp_eq_u32 vcc, s{skip_lane_sgpr}, v{VFA}")
            a("s_nop 1")
            a(f"v_cndmask_b32 v{VFA}, v{VFA}, v{VFL}, vcc")
        a(f"v_lshlrev_b32 v{VFA}, 2, v{VFA}")
        a(f"s_mov_b32 s{S_CNT}, 0")
        a.label(label)
        a(f"buffer_load_dword v{VFL}, v{VFA}, {srd(SWS)}, {soff} offen sc1")
        a("s_waitcnt vmcnt(0)"); a.vm = []
        a(f"v_cmp_ne_u32 vcc, s{S_NONCE}, v{VFL}")
        a(f"s_add_u32 s{S_CNT}, s{S_CNT}, 1")
        a(f"s_cmp_gt_u32 s{S_CNT}, {SPIN_MAX}")
        a(f"s_cbranch_scc1 {label}_done")
        a("s_nop 1")
        a(f"s_cbranch_vccnz {label}")
        a.label(label + "_done")
    poll("L_pollo", f"s{S_FOR}", 8)
    stamp(a, 21, opt)
    AC = [16, 80]; OFB = 144; NOF = 24
    def load_o(gi):
        n, f = gi >> 4, gi & 15
        if f % 4 == 0:
            a(f"s_lshl_b32 s{T+2}, s{S_Q[n]}, 18")
            a(f"s_add_u32 s{T+2}, s{T+2}, s{S_OB}")
            a(f"s_add_u32 s{T+2}, s{T+2}, s{S_OG[f>>2]}")
        a.vmem(f"buffer_load_dwordx4 {vr(OFB+4*(gi%NOF),4)}, v{VL16}, {srd(SWS)}, s{T+2} offen offset:{(f&3)*1024} sc1", ("o", gi))
    AHEAD = NOF - 2
    for gi in range(AHEAD): load_o(gi)
    a("s_barrier")
    def red_items(n):
        A0 = AC[n & 1]; rb = (n & 1) * 49152
        it = []
        for sl in range(1, 4):
            for j in range(4):
                it.append(lambda sl=sl, j=j: a.lds(f"ds_write_b128 v{VRW[sl-1]}, {vr(A0+16*sl+4*j,4)} offset:{rb + j*1024}", "rw"))
        def bar():
            a.wait_lg_all(); a("s_barrier")
        it.append(bar)
        for k in range(12):
            it.append(lambda k=k: a.lds(f"ds_read_b128 {vr(A0+16+4*k,4)}, v{VRR} offset:{rb + k*1024}", ("rr", k)))
        for src in range(3):
            for j in range(4):
                def adds(src=src, j=j):
                    a.wait_lg(("rr", 4*src+j))
                    for e in range(4):
                        a(f"v_add_f32 v{A0+4*j+e}, v{A0+4*j+e}, v{A0+16+16*src+4*j+e}")
                it.append(adds)
        if n < 3:
            def st():
                a(f"s_lshl_b32 s{T}, s{S_Q[n]}, 16")
                a(f"s_add_u32 s{T}, s{T}, s{S_PB}")
                for j in range(4):
                    a.vmem(f"buffer_store_dwordx4 {vr(A0+4*j,4)}, v{VL16}, {srd(SWS)}, s{T} offen offset:{j*1024} sc1", ("p", n))
            it.append(st)
        return it
    def pub(n):
        a.wait_vm(("p", n))
        a(f"s_lshl_b32 s{T}, s{S_Q[n]}, 9")
        a(f"s_add_u32 s{T}, s{T}, s{S_FPB}")
        a(f"s_lshl_b32 s{T+1}, s{S_G}, 2")
        a(f"s_add_u32 s{T}, s{T}, s{T+1}")
        flag_store(f"s{T}")
    for n in range(4):
        a.c(f"---- strip {n}")
        A0 = AC[n & 1]
        items = red_items(n - 1) if n else []
        m = 0
        for ks in range(16):
            gi = 16 * n + ks
            a.wait_vm(("o", gi))
            for sl in range(4):
                c = "0" if ks == 0 else vr(A0+16*sl, 16)
                a(f"{MF} {vr(A0+16*sl,16)}, {ar(16*ks+4*sl,4)}, {vr(OFB+4*(gi%NOF),4)}, {c}")
                m += 1
                if sl == 1 and gi + AHEAD < 64: load_o(gi + AHEAD)
                if m == 4 and items: a("s_nop 7")
                if m >= 5 and items:
                    items.pop(0)()
                    if len(items) > 14: items.pop(0)()
            if n >= 1 and ks == 15:
                assert not items
                pub(n - 1)
        stamp(a, 22 + n, opt)
    a("s_nop 7"); a("s_nop 3")
    for f in red_items(3): f()
    A0 = AC[1]
    stamp(a, 26, opt)
    a(f"s_lshl_b32 s{T+5}, s{S_G}, 9")
    a(f"s_add_u32 s{T+5}, s{T+5}, s{S_FPB}")
    poll("L_pollp", f"s{T+5}", 4, S_G)
    stamp(a, 27, opt)
    for k in range(3):
        a(f"s_lshl_b32 s{T}, s{S_Q[k]}, 14")
        a(f"s_add_u32 s{T}, s{T}, s{S_PR}")
        for j in range(4):
            a.vmem(f"buffer_load_dwordx4 {vr(A0+16+16*k+4*j,4)}, v{VL16}, {srd(SWS)}, s{T} offen offset:{j*1024} sc1", ("pp", k))
    a("v_and_b32 v4, 31, v0")
    a("v_lshlrev_b32 v4, 12, v4")
    a("v_lshrrev_b32 v5, 5, v0")
    a("v_lshlrev_b32 v5, 4, v5")
    a("v_add_u32 v4, v4, v5")
    for k in range(3):
        a.wait_vm(("pp", k))
        for e in range(16):
            a(f"v_add_f32 v{A0+e}, v{A0+e}, v{A0+16+16*k+e}")
    for p in range(8):
        a(f"v_cvt_pk_bf16_f32 v{8+p}, v{A0+2*p}, v{A0+2*p+1}")
    a.vmem(f"buffer_store_dwordx4 v[8:11], v4, {srd(SOUT)}, s{S_OUTB} offen", "out")
    a.vmem(f"buffer_store_dwordx4 v[12:15], v4, {srd(SOUT)}, s{S_OUTB} offen offset:32", "out")
    if opt.stamps:
        a.wait_vm_all()
        stamp(a, 28, opt)
        dump_stamps(a, opt)
    a.label(end)
    a("s_endpgm")

def build(opt):
    nm = NAME + "_kernel"
    out = []
    out.append("; @launch grid=(256,1,1) block=(256,1,1) lds=163840")
    out.append('.amdgcn_target "amdgcn-amd-amdhsa--gfx950"')
    out.append(".text")
    a = Asm()
    gen(a, opt)
    out.append(f".globl {nm}\n.p2align 8\n.type {nm},@function\n{nm}:")
    out.append(a.text())
    out.append('.section .rodata,"a"')
    out.append(f""".p2align 6
.amdhsa_kernel {nm}
  .amdhsa_next_free_vgpr 512
  .amdhsa_next_free_sgpr 102
  .amdhsa_accum_offset 256
  .amdhsa_group_segment_fixed_size 0
  .amdhsa_kernarg_size 104
  .amdhsa_user_sgpr_count 2
  .amdhsa_user_sgpr_kernarg_segment_ptr 1
  .amdhsa_system_sgpr_workgroup_id_x 1
.end_amdhsa_kernel
""")
    return "\n".join(out)

if __name__ == "__main__":
    opt = Opt()
    for kv in sys.argv[2:]:
        k, v = kv.split("=")
        cur = getattr(opt, k)
        setattr(opt, k, (v == "1") if isinstance(cur, bool) else type(cur)(v))
    open(sys.argv[1], "w").write(build(opt))
```

```python
import sys, struct
from asmlib import *

NAME = "concat_heads__mha_block_cached__gqa_block_cached__near_ridge"
def f32(x): return "0x%08x" % struct.unpack("<I", struct.pack("<f", x))[0]

O_BASE = 0
PART_BASE = 8 << 20
FO_BASE = 24 << 20
FP_BASE = 25 << 20
STAMP_BASE = 28 << 20
WS_USED = 32 << 20
SPIN_MAX = 20000

SX, SK, SV, SWQ, SWO, SWS, SOUT, SDBG = 32, 36, 40, 44, 48, 52, 56, 60
S_W, S_BR, S_G, S_HL, S_R, S_B = 64, 65, 66, 67, 68, 69
S_T = 70
S_MX, S_H = 78, 79
S_SCW = [80, 81, 82, 83]; S_RTW = [84, 85, 86, 87]; S_SCX = [88, 89, 90, 91]; S_RTX = [92, 93, 94, 95]
S_KV, S_MW, S_STW, S_STX = 96, 97, 98, 99
S_NONCE, S_CNT = 100, 101
S_WOG = [4, 5, 6, 7]
S_OG = [8, 9, 10, 11]
S_Q = [12, 13, 14, 15]
S_OB, S_PB, S_FOW, S_FOR, S_FPB, S_OUTB, S_PR = 16, 17, 18, 19, 20, 21, 22
S_EX = 24

class Opt:
    nt_x = ""; nt_wq = ""; nt_kv = ""; nt_wo = ""
    rot = True
    kv = "1,1,1,1"
    stamps = False
    clk = "s_memrealtime"
    nonce_stage = 8
    worot = True
    dbgwg = -1

VSTAMP = 1
def stamp(a, idx, opt):
    if opt.stamps:
        a(f"{opt.clk} s[30:31]")
        a("s_waitcnt lgkmcnt(0)"); a.lg = []
        a(f"v_writelane_b32 v{VSTAMP}, s30, {idx}")

def dump_stamps(a, opt):
    if not opt.stamps: return
    a(f"s_lshl_b32 s{S_T}, s2, 2")
    a(f"s_add_u32 s{S_T}, s{S_T}, s{S_W}")
    a(f"s_lshl_b32 s{S_T}, s{S_T}, 8")
    a(f"s_add_u32 s{S_T}, s{S_T}, {STAMP_BASE}")
    a("v_lshlrev_b32 v2, 2, v0")
    a(f"buffer_store_dword v{VSTAMP}, v2, s[{SWS}:{SWS+3}], s{S_T} offen")
    a("s_waitcnt vmcnt(0)")
    if opt.dbgwg >= 0:
        a(f"s_cmp_lg_u32 s2, {opt.dbgwg}")
        a("s_cbranch_scc1 L_end")
        a(f"s_cmp_lg_u32 s{S_W}, 0")
        a("s_cbranch_scc1 L_end")
        a(f"v_readlane_b32 s{S_T}, v{VSTAMP}, 0")
        a("v_mov_b32 v2, 0")
        for i, idx in enumerate([1, 2, 5, 9, 13, 17, 18, 19, 20, 21, 22, 25, 26, 27, 28]):
            a(f"v_readlane_b32 s{S_T+1}, v{VSTAMP}, {idx}")
            a("s_nop 3")
            a(f"s_sub_u32 s{S_T+1}, s{S_T+1}, s{S_T}")
            a(f"v_mov_b32 v3, s{S_T+1}")
            a(f"buffer_store_dword v3, v2, s[{SDBG}:{SDBG+3}], 0 offen offset:{4*(i+1)}")
            a("s_nop 1")
        a("s_waitcnt vmcnt(0)")

def seg_src(a, dst, rowstride_shift, t1, t2):
    a(f"v_lshrrev_b32 v{t1}, 4, v0")
    a(f"v_bfe_u32 v{t2}, v0, 2, 2")
    a(f"v_xor_b32 v{t2}, v{t2}, v{t1}")
    a(f"v_lshlrev_b32 v{t2}, 6, v{t2}")
    a(f"v_lshlrev_b32 v{dst}, {rowstride_shift}, v{t1}")
    a(f"v_add_u32 v{dst}, v{dst}, v{t2}")
    a(f"v_and_b32 v{t2}, 3, v0")
    a(f"v_lshlrev_b32 v{t2}, 4, v{t2}")
    a(f"v_add_u32 v{dst}, v{dst}, v{t2}")

def tr_base(a, dst, r4, t1):
    a(f"v_bfe_u32 v{r4}, v0, 2, 2")
    a(f"v_lshrrev_b32 v{t1}, 5, v0")
    a(f"v_lshlrev_b32 v{t1}, 3, v{t1}")
    a(f"v_add_u32 v{t1}, v{t1}, v{r4}")
    a(f"v_lshlrev_b32 v{dst}, 8, v{t1}")
    a(f"v_bfe_u32 v{t1}, v0, 4, 1")
    a(f"v_lshlrev_b32 v{t1}, 5, v{t1}")
    a(f"v_add_u32 v{dst}, v{dst}, v{t1}")
    a(f"v_and_b32 v{t1}, 1, v0")
    a(f"v_lshlrev_b32 v{t1}, 4, v{t1}")
    a(f"v_add_u32 v{dst}, v{dst}, v{t1}")
    a(f"v_bfe_u32 v{t1}, v0, 1, 1")
    a(f"v_lshlrev_b32 v{t1}, 3, v{t1}")
    a(f"v_add_u32 v{dst}, v{dst}, v{t1}")

MF = "v_mfma_f32_32x32x16_bf16"
srd = lambda r: f"s[{r}:{r+3}]"

def gen(a, opt):
    end = "L_end"
    T = S_T
    stamp(a, 0, opt)
    a("s_cmp_ge_u32 s2, 256")
    a(f"s_cbranch_scc1 {end}")
    a("s_load_dwordx16 s[4:19], s[0:1], 0")
    a("s_load_dwordx4 s[20:23], s[0:1], 64")
    a("s_load_dwordx4 s[24:27], s[0:1], 80")
    a("s_load_dwordx2 s[28:29], s[0:1], 96")
    a("v_lshrrev_b32 v2, 6, v0")
    a("v_and_b32 v0, 63, v0")
    a(f"v_readfirstlane_b32 s{S_W}, v2")
    a(f"s_and_b32 s{T}, s2, 7")
    a(f"s_lshr_b32 s{T+1}, s2, 3")
    a(f"s_lshr_b32 s{S_BR}, s{T}, 2")
    a(f"s_and_b32 s{S_G}, s{T}, 3")
    a(f"s_and_b32 s{S_HL}, s{T+1}, 7")
    a(f"s_lshr_b32 s{S_R}, s{T+1}, 3")
    VWQ, VXE, VXO, VKS, VVS, VWO = 2, 3, 4, 5, 6, 7
    VA = [8, 9, 10, 11]; VB = [12, 13, 14, 15]
    ACC = 16
    FA = [80, 100]; FB = [96, 116]
    KF, VF, QP, SS, PP, TT = 120, 152, 184, 216, 232, 240
    VTB, VR4, VNON = 250, 251, 252
    XR, KR, VR = 49152, 98304, 131072
    a(f"s_lshl_b32 s{S_B}, s{S_R}, 2")
    a(f"s_add_u32 s{S_B}, s{S_B}, s{S_W}")
    a(f"s_lshl_b32 s{S_H}, s{S_G}, 3")
    a(f"s_add_u32 s{S_H}, s{S_H}, s{S_HL}")
    a(f"s_lshl_b32 s{T}, s{S_W}, 17")
    a(f"s_lshl_b32 s{T+1}, s{S_H}, 8")
    a(f"s_add_u32 s{T}, s{T}, s{T+1}")
    a(f"s_lshl_b32 s{T+1}, s{S_B}, 16")
    if opt.rot:
        a(f"s_lshr_b32 s{T+2}, s{S_HL}, 1")
        a(f"s_and_b32 s{T+3}, s{S_HL}, 1")
        a(f"s_lshl_b32 s{T+3}, s{T+3}, 1")
        a(f"s_add_u32 s{T+3}, s{T+3}, s{S_R}")
    else:
        a(f"s_mov_b32 s{T+2}, 0"); a(f"s_mov_b32 s{T+3}, 0")
    for j in range(4):
        a(f"s_add_u32 s{T+4}, s{T+2}, {j}")
        a(f"s_and_b32 s{T+4}, s{T+4}, 3")
        a(f"s_lshl_b32 s{T+5}, s{T+4}, 21")
        a(f"s_add_u32 s{S_SCW[j]}, s{T}, s{T+5}")
        a(f"s_lshl_b32 s{T+5}, s{T+4}, 9")
        a(f"s_add_u32 s{S_SCX[j]}, s{T+1}, s{T+5}")
        a(f"s_add_u32 s{T+4}, s{T+3}, {j}")
        a(f"s_and_b32 s{T+4}, s{T+4}, 3")
        a(f"s_lshl_b32 s{S_RTW[j]}, s{T+4}, 19")
        a(f"s_lshl_b32 s{S_RTX[j]}, s{T+4}, 7")
    a(f"s_lshl_b32 s{S_KV}, s{S_B}, 5")
    a(f"s_add_u32 s{S_KV}, s{S_KV}, s{S_H}")
    a(f"s_lshl_b32 s{S_KV}, s{S_KV}, 13")
    a(f"s_lshl_b32 s{S_MW}, s{S_W}, 12")
    a(f"s_mul_i32 s{S_MX}, s{S_W}, 12288")
    a(f"s_add_u32 s{S_MX}, s{S_MX}, {XR}")
    seg_src(a, VWQ, 13, 240, 241)
    a("v_lshrrev_b32 v240, 3, v0")
    a("v_lshlrev_b32 v240, 11, v240")
    a("v_lshrrev_b32 v241, 4, v0")
    a("v_and_b32 v242, 7, v0")
    a("v_xor_b32 v242, v242, v241")
    a("v_lshlrev_b32 v242, 4, v242")
    a(f"v_add_u32 v{VXE}, v240, v242")
    a(f"v_xor_b32 v{VXO}, 64, v{VXE}")
    seg_src(a, VVS, 8, 240, 241)
    a("v_lshrrev_b32 v240, 4, v0")
    a("v_and_b32 v241, 15, v0")
    a("v_xor_b32 v241, v241, v240")
    a("v_lshlrev_b32 v241, 4, v241")
    a("v_lshlrev_b32 v240, 8, v240")
    a(f"v_add_u32 v{VKS}, v240, v241")
    for s_, n in [(SX, 1 << 20), (SK, 4 << 20), (SV, 4 << 20), (SWQ, 8 << 20), (SWO, 8 << 20), (SWS, WS_USED), (SOUT, 2 << 20), (SDBG, 256)]:
        a(f"s_mov_b32 s{s_+2}, {n}")
        a(f"s_mov_b32 s{s_+3}, 0x20000")
    a("s_waitcnt lgkmcnt(0)")
    a(f"s_cmp_eq_u32 s{S_BR}, 0")
    for i, s_ in enumerate([SX, SK, SV, SWQ, SWO]):
        a(f"s_cselect_b32 s{s_}, s{4+2*i}, s{14+2*i}")
        a(f"s_cselect_b32 s{s_+1}, s{5+2*i}, s{15+2*i}")
    for s_, lo in [(SOUT, 24), (SDBG, 26), (SWS, 28)]:
        a(f"s_mov_b32 s{s_}, s{lo}")
        a(f"s_mov_b32 s{s_+1}, s{lo+1}")

    def dma_stage(s, j8):
        slot = s % 3
        if j8 == 0:
            a(f"s_add_u32 s{S_STW}, s{S_SCW[s>>2]}, s{S_RTW[s&3]}")
            a(f"s_add_u32 s{S_STX}, s{S_SCX[s>>2]}, s{S_RTX[s&3]}")
        if j8 < 4:
            j = j8
            a(f"s_add_u32 m0, s{S_MW}, {slot*16384 + j*1024}")
            a(f"s_add_u32 s{T}, s{S_STW}, {j*32768}")
            a.vmem(f"buffer_load_dwordx4 v{VWQ}, {srd(SWQ)}, s{T} offen {opt.nt_wq} lds", ("st", s))
        else:
            j = j8 - 4
            a(f"s_add_u32 m0, s{S_MX}, {slot*4096 + j*1024}")
            a(f"s_add_u32 s{T}, s{S_STX}, {j*16384}")
            a.vmem(f"buffer_load_dwordx4 v{VXO if j&1 else VXE}, {srd(SX)}, s{T} offen {opt.nt_x} lds", ("st", s))
    def dma_kv(piece):
        half = piece & 1
        a(f"s_lshl_b32 s{T+1}, s{S_W}, 13")
        if piece < 2:
            a(f"s_add_u32 m0, s{T+1}, {KR + half*4096}")
            a(f"s_add_u32 s{T}, s{S_KV}, {half*4096}")
            for j in range(4):
                a(f"v_xor_b32 v{TT+j}, {64*j}, v{VKS}")
            for j in range(4):
                a.vmem(f"buffer_load_dwordx4 v{TT+j}, {srd(SK)}, s{T} offen offset:{j*1024} {opt.nt_kv} lds", "k")
        else:
            a(f"s_add_u32 m0, s{T+1}, {VR + half*4096}")
            a(f"s_add_u32 s{T}, s{S_KV}, {half*4096}")
            for j in range(4):
                a.vmem(f"buffer_load_dwordx4 v{VVS}, {srd(SV)}, s{T} offen offset:{j*1024} {opt.nt_kv} lds", "v")
    kvs = [int(x) for x in opt.kv.split(",")]
    for p in range(4):
        if kvs[p] == -1: dma_kv(p)
    for s in range(2):
        for j8 in range(8): dma_stage(s, j8)
    for p in range(4):
        if kvs[p] == -2: dma_kv(p)
    a(f"s_or_b32 s{T}, s2, s{S_W}")
    a(f"s_cmp_lg_u32 s{T}, 0")
    a("s_cbranch_scc1 L_nononce")
    a(f"s_memrealtime s[{T+2}:{T+3}]")
    a("s_waitcnt lgkmcnt(0)")
    a(f"s_or_b32 s{T+2}, s{T+2}, 1")
    a(f"v_mov_b32 v240, s{T+2}")
    a("v_mov_b32 v241, 0")
    a(f"buffer_store_dword v240, v241, {srd(SDBG)}, 0 offen sc1")
    a("s_waitcnt vmcnt(0)")
    a.label("L_nononce")
    tr_base(a, VTB, VR4, 240)
    for i in range(4):
        a(f"v_xor_b32 v240, {i}, v{VR4}")
        a(f"v_lshlrev_b32 v240, 6, v240")
        a(f"v_add_u32 v{VA[i]}, v{VTB}, v240")
    a("v_and_b32 v240, 31, v0")
    a("v_lshrrev_b32 v241, 5, v0")
    a("v_bfe_u32 v242, v0, 1, 3")
    a("v_xor_b32 v241, v241, v242")
    a("v_lshlrev_b32 v241, 4, v241")
    a("v_lshlrev_b32 v240, 7, v240")
    a("v_add_u32 v240, v240, v241")
    for t in range(4):
        a(f"v_xor_b32 v241, {32*t}, v240")
        a(f"v_add_u32 v{VB[t]}, s{S_MX}, v241")
    seg_src(a, VWO, 11, 240, 241)
    a(f"s_lshl_b32 s{T}, s{S_G}, 2")
    a(f"s_add_u32 s{T}, s{T}, s{S_W}")
    a(f"s_lshl_b32 s{T+1}, s{T}, 19")
    a(f"s_lshl_b32 s{T+2}, s{S_HL}, 8")
    a(f"s_add_u32 s{T+1}, s{T+1}, s{T+2}")
    for jg in range(4):
        if opt.worot:
            a(f"s_add_u32 s{T+2}, s{S_R}, {jg}")
            a(f"s_and_b32 s{T+2}, s{T+2}, 3")
        else:
            a(f"s_mov_b32 s{T+2}, {jg}")
        a(f"s_lshl_b32 s{T+3}, s{T+2}, 17")
        a(f"s_add_u32 s{S_WOG[jg]}, s{T+1}, s{T+3}")
        a(f"s_lshl_b32 s{S_OG[jg]}, s{T+2}, 12")
        a(f"s_add_u32 s{S_Q[jg]}, s{S_G}, {jg+1}")
        a(f"s_and_b32 s{S_Q[jg]}, s{S_Q[jg]}, 3")
    a(f"s_lshl_b32 s{T+1}, s{S_BR}, 2")
    a(f"s_add_u32 s{T+1}, s{T+1}, s{S_R}")
    a(f"s_lshl_b32 s{S_OB}, s{T+1}, 20")
    a(f"s_lshl_b32 s{T+2}, s{T}, 14")
    a(f"s_add_u32 s{S_OB}, s{S_OB}, s{T+2}")
    if O_BASE: a(f"s_add_u32 s{S_OB}, s{S_OB}, {O_BASE}")
    a(f"s_lshl_b32 s{T+2}, s{T+1}, 2")
    a(f"s_add_u32 s{T+2}, s{T+2}, s{S_G}")
    a(f"s_lshl_b32 s{T+2}, s{T+2}, 9")
    a(f"s_add_u32 s{T+2}, s{T+2}, {FO_BASE}")
    a(f"s_lshl_b32 s{T+3}, s{S_W}, 7")
    a(f"s_add_u32 s{S_FOR}, s{T+2}, s{T+3}")
    a(f"s_lshr_b32 s{T+3}, s{S_HL}, 1")
    a(f"s_lshl_b32 s{T+3}, s{T+3}, 7")
    a(f"s_add_u32 s{S_FOW}, s{T+2}, s{T+3}")
    a(f"s_and_b32 s{T+3}, s{S_HL}, 1")
    a(f"s_lshl_b32 s{T+3}, s{T+3}, 2")
    a(f"s_add_u32 s{T+3}, s{T+3}, s{S_W}")
    a(f"s_lshl_b32 s{T+3}, s{T+3}, 2")
    a(f"s_add_u32 s{S_FOW}, s{S_FOW}, s{T+3}")
    a(f"s_lshl_b32 s{T+1}, s{T+1}, 3")
    a(f"s_add_u32 s{T+1}, s{T+1}, s{S_HL}")
    a(f"s_lshl_b32 s{T+2}, s{T+1}, 18")
    a(f"s_add_u32 s{T+2}, s{T+2}, {PART_BASE}")
    a(f"s_lshl_b32 s{T+3}, s{T}, 12")
    a(f"s_add_u32 s{S_PB}, s{T+2}, s{T+3}")
    a(f"s_lshl_b32 s{T+3}, s{S_G}, 16")
    a(f"s_add_u32 s{S_PR}, s{T+2}, s{T+3}")
    a(f"s_lshl_b32 s{T+3}, s{S_W}, 12")
    a(f"s_add_u32 s{S_PR}, s{S_PR}, s{T+3}")
    a(f"s_lshl_b32 s{T+2}, s{T+1}, 11")
    a(f"s_lshl_b32 s{T+3}, s{S_W}, 7")
    a(f"s_add_u32 s{T+2}, s{T+2}, s{T+3}")
    a(f"s_add_u32 s{S_FPB}, s{T+2}, {FP_BASE}")
    a(f"s_lshl_b32 s{T+2}, s{S_R}, 2")
    a(f"s_add_u32 s{T+2}, s{T+2}, s{S_G}")
    a(f"s_lshl_b32 s{T+2}, s{T+2}, 17")
    a(f"s_lshl_b32 s{T+3}, s{S_BR}, 11")
    a(f"s_add_u32 s{T+2}, s{T+2}, s{T+3}")
    a(f"s_lshl_b32 s{T+3}, s{S_HL}, 8")
    a(f"s_add_u32 s{T+2}, s{T+2}, s{T+3}")
    a(f"s_lshl_b32 s{T+3}, s{S_W}, 6")
    a(f"s_add_u32 s{S_OUTB}, s{T+2}, s{T+3}")

    WSL = [("w", 16384), ("x", 4096), ("w", 32768), ("x", 8192), ("x", 0), ("w", 0), ("k", 0), ("k", 4096), ("v", 0), ("v", 4096)]
    S_MK = 26
    a(f"s_lshl_b32 s{S_MK}, s{S_W}, 13")
    def slot_m0(sl, extra):
        kind, off = WSL[sl]
        if kind == "w": return f"s_add_u32 m0, s{S_MW}, {off+extra}"
        if kind == "x": return f"s_add_u32 m0, s{S_MX}, {off+extra}"
        if kind == "k": return f"s_add_u32 m0, s{S_MK}, {KR+off+extra}"
        return f"s_add_u32 m0, s{S_MK}, {VR+off+extra}"
    def dma_wo(ks, j, sl):
        a(slot_m0(sl, j*1024))
        a(f"s_add_u32 s{T}, s{S_WOG[ks>>2]}, {(16*(ks&3)+4*j)*2048}")
        a.vmem(f"buffer_load_dwordx4 v{VWO}, {srd(SWO)}, s{T} offen {opt.nt_wo} lds", ("wo", ks))

    def reads(n):
        s, t = n >> 2, n & 3
        slot = s % 3
        fs = n & 1
        r = [(f"ds_read_b128 {vr(FB[fs],4)}, v{VB[t]} offset:{slot*4096}", ("b", n))]
        for i in range(4):
            for h2 in range(2):
                r.append((f"ds_read_b64_tr_b16 {vr(FA[fs]+4*i+2*h2,2)}, v{VA[i]} offset:{slot*16384 + (16*t+4*h2)*256}", ("a", n, i)))
        return r
    def mfma(n, i):
        fs = n & 1
        c = "0" if n == 0 else vr(ACC+16*i, 16)
        a.wait_lg([("b", n), ("a", n, i)])
        a(f"{MF} {vr(ACC+16*i,16)}, {vr(FA[fs]+4*i,4)}, {vr(FB[fs],4)}, {c}")

    for s in range(16):
        a.c(f"---- stage {s}")
        if a.lg: a.wait_lg_all()
        a.wait_vm(("st", s))
        a("s_barrier")
        stamp(a, 1 + s, opt)
        for t in range(4):
            n = 4 * s + t
            rd = reads(n)
            for i in range(4):
                for (ins, tag) in rd[3*i:3*i+3]:
                    a.lds(ins, tag)
                if n > 0: mfma(n - 1, i)
                if i in (1, 3):
                    j8 = 2 * t + (i >> 1)
                    if s + 2 < 16: dma_stage(s + 2, j8)
                    else:
                        ks = (s - 14) * 2 + (j8 >> 2)
                        dma_wo(ks, j8 & 3, ks)
        for p in range(4):
            if kvs[p] == s: dma_kv(p)
        if s == opt.nonce_stage:
            a("v_mov_b32 v240, 0")
            a.vmem(f"buffer_load_dword v{VNON}, v240, {srd(SDBG)}, 0 offen sc1", "nonce")
    for i in range(4): mfma(63, i)
    for j in range(4): dma_wo(4, j, 4)
    stamp(a, 17, opt)
    a.c("---- attention")
    a.wait_vm(["k", "v", "nonce"])
    a("v_and_b32 v240, 0x13, v0")
    a("v_bfe_u32 v241, v0, 2, 1")
    a("v_lshlrev_b32 v241, 3, v241")
    a("v_or_b32 v240, v240, v241")
    a("v_bfe_u32 v241, v0, 3, 1")
    a("v_lshlrev_b32 v241, 2, v241")
    a("v_or_b32 v240, v240, v241")
    a("v_and_b32 v241, 15, v240")
    a("v_lshrrev_b32 v242, 5, v0")
    a("v_xor_b32 v241, v241, v242")
    a("v_lshlrev_b32 v241, 4, v241")
    a("v_lshlrev_b32 v240, 8, v240")
    a("v_add_u32 v240, v240, v241")
    a(f"s_add_u32 s{T+1}, s{S_MK}, {KR}")
    for u in range(8):
        a(f"v_xor_b32 v241, {32*u}, v240")
        a(f"v_add_u32 v241, s{T+1}, v241")
        a.lds(f"ds_read_b128 {vr(KF+4*u,4)}, v241", ("k", u))
    a(f"s_add_u32 s{T+1}, s{S_MK}, {VR}")
    a(f"v_readfirstlane_b32 s{S_NONCE}, v{VNON}")
    for i in range(4):
        for p in range(8):
            a(f"v_cvt_pk_bf16_f32 v{QP+8*i+p}, v{ACC+16*i+2*p}, v{ACC+16*i+2*p+1}")
    for i in range(4):
        a(f"v_add_u32 v{VA[i]}, s{T+1}, v{VA[i]}")
    a("s_barrier")
    for u in range(8):
        a.wait_lg(("k", u))
        c = "0" if u == 0 else vr(SS, 16)
        a(f"{MF} {vr(SS,16)}, {vr(KF+4*u,4)}, {vr(QP+4*u,4)}, {c}")
        if u & 1: dma_wo(5, u >> 1, 5)
    for i in range(4):
        for u in range(2):
            for h2 in range(2):
                if len(a.lg) >= 15: a.wait_lg(a.lg[0])
                a.lds(f"ds_read_b64_tr_b16 {vr(VF+8*i+4*u+2*h2,2)}, v{VA[i]} offset:{(16*u+4*h2)*256}", ("v", i, u, h2))
    a(f"v_max3_f32 v240, v{SS}, v{SS+1}, v{SS+2}")
    for k in range(3, 15, 2):
        a(f"v_max3_f32 v240, v240, v{SS+k}, v{SS+k+1}")
    a(f"v_max_f32 v240, v240, v{SS+15}")
    a("v_mov_b32 v241, v240")
    a("s_nop 1")
    a("v_permlane32_swap_b32 v240, v241")
    a("s_nop 1")
    a("v_max_f32 v240, v240, v241")
    CS = 128 ** -0.5 * 1.4426950408889634
    a(f"s_mov_b32 s{T+2}, {f32(CS)}")
    a(f"v_mul_f32 v240, s{T+2}, v240")
    for k in range(16):
        a(f"v_fma_f32 v{SS+k}, v{SS+k}, s{T+2}, -v240")
    for k in range(16):
        a(f"v_exp_f32 v{SS+k}, v{SS+k}")
        if k % 4 == 3: dma_wo(6, k >> 2, 6)
    a(f"v_add_f32 v241, v{SS}, v{SS+1}")
    a(f"v_add_f32 v242, v{SS+2}, v{SS+3}")
    for k in range(4, 16, 2):
        a(f"v_add_f32 v241, v241, v{SS+k}")
        a(f"v_add_f32 v242, v242, v{SS+k+1}")
    a("v_add_f32 v241, v241, v242")
    a("v_mov_b32 v242, v241")
    a("s_nop 1")
    a("v_permlane32_swap_b32 v241, v242")
    a("s_nop 1")
    a("v_add_f32 v241, v241, v242")
    a("v_rcp_f32 v241, v241")
    a("s_nop 0")
    for k in range(16):
        a(f"v_mul_f32 v{SS+k}, v{SS+k}, v241")
    for p in range(8):
        a(f"v_cvt_pk_bf16_f32 v{PP+p}, v{SS+2*p}, v{SS+2*p+1}")
    a.wait_lg_all()
    a("s_nop 1")
    for i in range(4):
        a(f"{MF} {vr(ACC+16*i,16)}, {vr(VF+8*i,4)}, {vr(PP,4)}, 0")
        a(f"{MF} {vr(ACC+16*i,16)}, {vr(VF+8*i+4,4)}, {vr(PP+4,4)}, {vr(ACC+16*i,16)}")
    a(f"s_lshl_b32 s{T+2}, s{S_BR}, 22")
    a(f"s_add_u32 s{T+2}, s{T+2}, s{S_KV}")
    if O_BASE: a(f"s_add_u32 s{T+2}, s{T+2}, {O_BASE}")
    a(f"s_add_u32 s{T+3}, s{T+2}, 4096")
    VL16 = 2
    a(f"v_lshlrev_b32 v{VL16}, 4, v0")
    a("s_nop 7")
    a("s_nop 3")
    for i in range(4):
        for p in range(8):
            a(f"v_cvt_pk_bf16_f32 v{QP+8*i+p}, v{ACC+16*i+2*p}, v{ACC+16*i+2*p+1}")
        for u2 in range(2):
            u = 2 * i + u2
            a.vmem(f"buffer_store_dwordx4 {vr(QP+4*u,4)}, v{VL16}, {srd(SWS)}, s{T+2+(u>>2)} offen offset:{(u&3)*1024} sc1", "o")
    stamp(a, 18, opt)
    for ks in (7, 8, 9):
        for j in range(4): dma_wo(ks, j, ks)
    a(f"s_cmp_lg_u32 s{S_NONCE}, 0")
    a("s_cbranch_scc1 L_havenonce")
    a(f"s_mov_b32 s{S_CNT}, 0")
    a("v_mov_b32 v240, 0")
    a.label("L_nonce_spin")
    a(f"buffer_load_dword v{VNON}, v240, {srd(SDBG)}, 0 offen sc1")
    a("s_waitcnt vmcnt(0)")
    a(f"v_readfirstlane_b32 s{S_NONCE}, v{VNON}")
    a(f"s_add_u32 s{S_CNT}, s{S_CNT}, 1")
    a(f"s_cmp_gt_u32 s{S_CNT}, {SPIN_MAX}")
    a("s_cbranch_scc1 L_havenonce")
    a(f"s_cmp_eq_u32 s{S_NONCE}, 0")
    a("s_cbranch_scc1 L_nonce_spin")
    a.label("L_havenonce")
    VRW = [3, 4, 5]; VRR = 6; VZ = 12; VNV = 13; VFL = 14; VFA = 15
    VAW = {"w": [240, 241, 242, 243], "x": [244, 245, 246, 247], "k": [8, 9, 10, 11]}
    for sl in range(4):
        a(f"s_add_u32 s{T}, s{S_W}, {sl}")
        a(f"s_and_b32 s{T}, s{T}, 3")
        a(f"v_xor_b32 v248, s{T}, v{VR4}")
        a(f"v_lshlrev_b32 v248, 6, v248")
        a(f"v_add_u32 v248, v{VTB}, v248")
        a(f"v_add_u32 v{VAW['w'][sl]}, s{S_MW}, v248")
        a(f"v_add_u32 v{VAW['x'][sl]}, s{S_MX}, v248")
        a(f"s_add_u32 s{T+1}, s{S_MK}, {KR}")
        a(f"v_add_u32 v{VAW['k'][sl]}, s{T+1}, v248")
        if sl:
            a(f"s_mul_i32 s{T}, s{T}, 12288")
            a(f"s_add_u32 s{T}, s{T}, {(sl-1)*4096}")
            a(f"v_add_u32 v{VRW[sl-1]}, s{T}, v{VL16}")
    a(f"s_mul_i32 s{T}, s{S_W}, 12288")
    a(f"v_add_u32 v{VRR}, s{T}, v{VL16}")
    a(f"v_mov_b32 v{VZ}, 0")
    a(f"v_mov_b32 v{VNV}, s{S_NONCE}")
    def tr_wo(ks, sl):
        kind, off = WSL[sl]
        if kind == "v": kind, off = "k", off + (VR - KR)
        a.wait_vm(("wo", ks))
        for s4 in range(4):
            for h2 in range(2):
                a.lds(f"ds_read_b64_tr_b16 {ar(16*ks+4*s4+2*h2,2)}, v{VAW[kind][s4]} offset:{off + 4*h2*256}", ("wo", ks))
        a.wait_lg_all()
    def flag_store(soff):
        a(f"s_mov_b64 s[{S_EX}:{S_EX+1}], exec")
        a("s_mov_b64 exec, 1")
        a.vmem(f"buffer_store_dword v{VNV}, v{VZ}, {srd(SWS)}, {soff} offen sc1", "flag")
        a(f"s_mov_b64 exec, s[{S_EX}:{S_EX+1}]")
    for ks in range(7):
        tr_wo(ks, ks)
        if ks + 10 < 16 and ks < 6:
            pass
    a.wait_vm("o")
    flag_store(f"s{S_FOW}")
    stamp(a, 19, opt)
    for ks in range(10, 16):
        for j in range(4): dma_wo(ks, j, ks - 10)
    for ks in range(7, 16):
        tr_wo(ks, ks if ks < 10 else ks - 10)
    stamp(a, 20, opt)
    def poll(label, soff, nl, skip_lane_sgpr=None):
        a(f"v_and_b32 v{VFA}, {nl-1}, v0")
        if skip_lane_sgpr is not None:
            a(f"s_add_u32 s{T+4}, s{skip_lane_sgpr}, 1")
            a(f"s_and_b32 s{T+4}, s{T+4}, 3")
            a(f"v_mov_b32 v{VFL}, s{T+4}")
            a(f"v_cmp_eq_u32 vcc, s{skip_lane_sgpr}, v{VFA}")
            a("s_nop 1")
            a(f"v_cndmask_b32 v{VFA}, v{VFA}, v{VFL}, vcc")
        a(f"v_lshlrev_b32 v{VFA}, 2, v{VFA}")
        a(f"s_mov_b32 s{S_CNT}, 0")
        a.label(label)
        a(f"buffer_load_dword v{VFL}, v{VFA}, {srd(SWS)}, {soff} offen sc1")
        a("s_waitcnt vmcnt(0)"); a.vm = []
        a(f"v_cmp_ne_u32 vcc, s{S_NONCE}, v{VFL}")
        a(f"s_add_u32 s{S_CNT}, s{S_CNT}, 1")
        a(f"s_cmp_gt_u32 s{S_CNT}, {SPIN_MAX}")
        a(f"s_cbranch_scc1 {label}_done")
        a("s_nop 1")
        a(f"s_cbranch_vccnz {label}")
        a.label(label + "_done")
    poll("L_pollo", f"s{S_FOR}", 8)
    stamp(a, 21, opt)
    AC = [16, 80]; OFB = 144; NOF = 24
    def load_o(gi):
        n, f = gi >> 4, gi & 15
        if f % 4 == 0:
            a(f"s_lshl_b32 s{T+2}, s{S_Q[n]}, 18")
            a(f"s_add_u32 s{T+2}, s{T+2}, s{S_OB}")
            a(f"s_add_u32 s{T+2}, s{T+2}, s{S_OG[f>>2]}")
        a.vmem(f"buffer_load_dwordx4 {vr(OFB+4*(gi%NOF),4)}, v{VL16}, {srd(SWS)}, s{T+2} offen offset:{(f&3)*1024} sc1", ("o", gi))
    AHEAD = NOF - 2
    for gi in range(AHEAD): load_o(gi)
    a("s_barrier")
    def red_items(n):
        A0 = AC[n & 1]; rb = (n & 1) * 49152
        it = []
        for sl in range(1, 4):
            for j in range(4):
                it.append(lambda sl=sl, j=j: a.lds(f"ds_write_b128 v{VRW[sl-1]}, {vr(A0+16*sl+4*j,4)} offset:{rb + j*1024}", "rw"))
        def bar():
            a.wait_lg_all(); a("s_barrier")
        it.append(bar)
        for k in range(12):
            it.append(lambda k=k: a.lds(f"ds_read_b128 {vr(A0+16+4*k,4)}, v{VRR} offset:{rb + k*1024}", ("rr", k)))
        for src in range(3):
            for j in range(4):
                def adds(src=src, j=j):
                    a.wait_lg(("rr", 4*src+j))
                    for e in range(4):
                        a(f"v_add_f32 v{A0+4*j+e}, v{A0+4*j+e}, v{A0+16+16*src+4*j+e}")
                it.append(adds)
        if n < 3:
            def st():
                a(f"s_lshl_b32 s{T}, s{S_Q[n]}, 16")
                a(f"s_add_u32 s{T}, s{T}, s{S_PB}")
                for j in range(4):
                    a.vmem(f"buffer_store_dwordx4 {vr(A0+4*j,4)}, v{VL16}, {srd(SWS)}, s{T} offen offset:{j*1024} sc1", ("p", n))
            it.append(st)
        return it
    def pub(n):
        a.wait_vm(("p", n))
        a(f"s_lshl_b32 s{T}, s{S_Q[n]}, 9")
        a(f"s_add_u32 s{T}, s{T}, s{S_FPB}")
        a(f"s_lshl_b32 s{T+1}, s{S_G}, 2")
        a(f"s_add_u32 s{T}, s{T}, s{T+1}")
        flag_store(f"s{T}")
    for n in range(4):
        a.c(f"---- strip {n}")
        A0 = AC[n & 1]
        items = red_items(n - 1) if n else []
        m = 0
        for ks in range(16):
            gi = 16 * n + ks
            a.wait_vm(("o", gi))
            for sl in range(4):
                c = "0" if ks == 0 else vr(A0+16*sl, 16)
                a(f"{MF} {vr(A0+16*sl,16)}, {ar(16*ks+4*sl,4)}, {vr(OFB+4*(gi%NOF),4)}, {c}")
                m += 1
                if sl == 1 and gi + AHEAD < 64: load_o(gi + AHEAD)
                if m == 4 and items: a("s_nop 7")
                if m >= 5 and items:
                    items.pop(0)()
                    if len(items) > 14: items.pop(0)()
            if n >= 1 and ks == 15:
                assert not items
                pub(n - 1)
        stamp(a, 22 + n, opt)
    a("s_nop 7"); a("s_nop 3")
    for f in red_items(3): f()
    A0 = AC[1]
    stamp(a, 26, opt)
    a(f"s_lshl_b32 s{T+5}, s{S_G}, 9")
    a(f"s_add_u32 s{T+5}, s{T+5}, s{S_FPB}")
    poll("L_pollp", f"s{T+5}", 4, S_G)
    stamp(a, 27, opt)
    for k in range(3):
        a(f"s_lshl_b32 s{T}, s{S_Q[k]}, 14")
        a(f"s_add_u32 s{T}, s{T}, s{S_PR}")
        for j in range(4):
            a.vmem(f"buffer_load_dwordx4 {vr(A0+16+16*k+4*j,4)}, v{VL16}, {srd(SWS)}, s{T} offen offset:{j*1024} sc1", ("pp", k))
    a("v_and_b32 v4, 31, v0")
    a("v_lshlrev_b32 v4, 12, v4")
    a("v_lshrrev_b32 v5, 5, v0")
    a("v_lshlrev_b32 v5, 4, v5")
    a("v_add_u32 v4, v4, v5")
    for k in range(3):
        a.wait_vm(("pp", k))
        for e in range(16):
            a(f"v_add_f32 v{A0+e}, v{A0+e}, v{A0+16+16*k+e}")
    for p in range(8):
        a(f"v_cvt_pk_bf16_f32 v{8+p}, v{A0+2*p}, v{A0+2*p+1}")
    a.vmem(f"buffer_store_dwordx4 v[8:11], v4, {srd(SOUT)}, s{S_OUTB} offen", "out")
    a.vmem(f"buffer_store_dwordx4 v[12:15], v4, {srd(SOUT)}, s{S_OUTB} offen offset:32", "out")
    if opt.stamps:
        a.wait_vm_all()
        stamp(a, 28, opt)
        dump_stamps(a, opt)
    a.label(end)
    a("s_endpgm")

def build(opt):
    nm = NAME + "_kernel"
    out = []
    out.append("; @launch grid=(256,1,1) block=(256,1,1) lds=163840")
    out.append('.amdgcn_target "amdgcn-amd-amdhsa--gfx950"')
    out.append(".text")
    a = Asm()
    gen(a, opt)
    out.append(f".globl {nm}\n.p2align 8\n.type {nm},@function\n{nm}:")
    out.append(a.text())
    out.append('.section .rodata,"a"')
    out.append(f""".p2align 6
.amdhsa_kernel {nm}
  .amdhsa_next_free_vgpr 512
  .amdhsa_next_free_sgpr 102
  .amdhsa_accum_offset 256
  .amdhsa_group_segment_fixed_size 0
  .amdhsa_kernarg_size 104
  .amdhsa_user_sgpr_count 2
  .amdhsa_user_sgpr_kernarg_segment_ptr 1
  .amdhsa_system_sgpr_workgroup_id_x 1
.end_amdhsa_kernel
""")
    return "\n".join(out)

if __name__ == "__main__":
    opt = Opt()
    for kv in sys.argv[2:]:
        k, v = kv.split("=")
        cur = getattr(opt, k)
        setattr(opt, k, (v == "1") if isinstance(cur, bool) else type(cur)(v))
    open(sys.argv[1], "w").write(build(opt))
```

```python
class Asm:
    def __init__(self):
        self.L = []
        self.vm = []
        self.lg = []
    def __call__(self, s):
        self.L.append("    " + s)
    def c(self, s):
        self.L.append("    ; " + s)
    def label(self, l):
        self.L.append(l + ":")
    def raw(self, s):
        self.L.append(s)
    def vmem(self, s, tag):
        self(s); self.vm.append(tag)
        assert len(self.vm) <= 63, "too many vmem outstanding"
    def lds(self, s, tag):
        if len(self.lg) >= 15:
            self("s_waitcnt lgkmcnt(12)")
            self.lg = self.lg[-12:]
        self(s); self.lg.append(tag)
    def _cnt(self, q, tags):
        if not isinstance(tags, (list, set)): tags = [tags]
        last = -1
        for i, t in enumerate(q):
            if t in tags: last = i
        return last
    def wait_vm(self, tags):
        last = self._cnt(self.vm, tags)
        if last < 0: return
        n = len(self.vm) - 1 - last
        self(f"s_waitcnt vmcnt({n})")
        self.vm = self.vm[last + 1:]
    def wait_lg(self, tags):
        last = self._cnt(self.lg, tags)
        if last < 0: return
        n = len(self.lg) - 1 - last
        self(f"s_waitcnt lgkmcnt({n})")
        self.lg = self.lg[last + 1:]
    def wait_vm_all(self):
        self("s_waitcnt vmcnt(0)"); self.vm = []
    def wait_lg_all(self):
        self("s_waitcnt lgkmcnt(0)"); self.lg = []
    def text(self):
        return "\n".join(self.L) + "\n"

def vr(a, n=1):
    return f"v{a}" if n == 1 else f"v[{a}:{a+n-1}]"
def ar(a, n=1):
    return f"a{a}" if n == 1 else f"a[{a}:{a+n-1}]"
def sr(a, n=1):
    return f"s{a}" if n == 1 else f"s[{a}:{a+n-1}]"
```

```python
import sys, struct
from asmlib import *

NAME = "concat_heads__mha_block_cached__gqa_block_cached__near_ridge"
def f32(x): return "0x%08x" % struct.unpack("<I", struct.pack("<f", x))[0]

O_BASE = 0
PART_BASE = 8 << 20
FO_BASE = 24 << 20
FP_BASE = (24 << 20) + (1 << 16)
STAMP_BASE = 28 << 20
WS_USED = 32 << 20
SPIN_MAX = 20000

SX, SK, SV, SWQ, SWO, SWS, SOUT, SDBG = 32, 36, 40, 44, 48, 52, 56, 60
S_W, S_BR, S_G, S_HL, S_R, S_B = 64, 65, 66, 67, 68, 69
S_T = 70
S_MX, S_H = 78, 79
S_WQB = [80, 81]; S_XB = [82, 83]
S_LAM = 84
S_KV, S_MW, S_MK = 85, 86, 87
S_NONCE, S_CNT, S_DONE = 88, 89, 90
S_WOG = [4, 5, 6, 7]; S_OG = [8, 9, 10, 11]; S_Q = [12, 13, 14, 15]
S_OB, S_PB, S_FOW, S_FOR, S_FPB, S_OUTB, S_PR, S_FPR = 16, 17, 18, 19, 20, 21, 22, 23
S_EX = 24
S_OW = [26, 27]

class Opt:
    nt_x = ""; nt_wq = ""; nt_kv = ""; nt_wo = ""
    stamps = False
    clk = "s_memrealtime"
    dbgwg = -1
    lead = 2
    half = True
    ex = "W0|K0,K1|V0,V1"
    mid = "||"
    init = ""
    att_dma = 4
    ahead = 22

VSTAMP = 1
def stamp(a, idx, opt):
    if opt.stamps:
        a(f"{opt.clk} s[30:31]")
        a("s_waitcnt lgkmcnt(0)"); a.lg = []
        a(f"v_writelane_b32 v{VSTAMP}, s30, {idx}")

def dump_stamps(a, opt):
    if not opt.stamps: return
    a(f"s_lshl_b32 s{S_T}, s2, 2")
    a(f"s_add_u32 s{S_T}, s{S_T}, s{S_W}")
    a(f"s_lshl_b32 s{S_T}, s{S_T}, 8")
    a(f"s_add_u32 s{S_T}, s{S_T}, {STAMP_BASE}")
    a("v_lshlrev_b32 v2, 2, v0")
    a(f"buffer_store_dword v{VSTAMP}, v2, s[{SWS}:{SWS+3}], s{S_T} offen")
    a("s_waitcnt vmcnt(0)")

def seg_src(a, dst, rowstride_shift, t1, t2):
    a(f"v_lshrrev_b32 v{t1}, 4, v0")
    a(f"v_bfe_u32 v{t2}, v0, 2, 2")
    a(f"v_xor_b32 v{t2}, v{t2}, v{t1}")
    a(f"v_lshlrev_b32 v{t2}, 6, v{t2}")
    a(f"v_lshl_add_u32 v{dst}, v{t1}, {rowstride_shift}, v{t2}")
    a(f"v_and_b32 v{t2}, 3, v0")
    a(f"v_lshl_add_u32 v{dst}, v{t2}, 4, v{dst}")

def tr_base(a, dst, r4, t1):
    a(f"v_bfe_u32 v{r4}, v0, 2, 2")
    a(f"v_lshrrev_b32 v{t1}, 5, v0")
    a(f"v_lshl_add_u32 v{t1}, v{t1}, 3, v{r4}")
    a(f"v_lshlrev_b32 v{dst}, 8, v{t1}")
    a(f"v_bfe_u32 v{t1}, v0, 4, 1")
    a(f"v_lshl_add_u32 v{dst}, v{t1}, 5, v{dst}")
    a(f"v_and_b32 v{t1}, 1, v0")
    a(f"v_lshl_add_u32 v{dst}, v{t1}, 4, v{dst}")
    a(f"v_bfe_u32 v{t1}, v0, 1, 1")
    a(f"v_lshl_add_u32 v{dst}, v{t1}, 3, v{dst}")

MF = "v_mfma_f32_32x32x16_bf16"
srd = lambda r: f"s[{r}:{r+3}]"

def sched(lam, opt):
    order = list(range(16))
    mpos = []
    for c in range(lam, 16, 4):
        p = order.index(c)
        q = max(0, p - opt.lead)
        order.pop(p); order.insert(q, c)
        if c >= 4: mpos.append(q)
    extras = {}
    for j, lst in enumerate(opt.ex.split("|")):
        for pc in filter(None, lst.split(",")):
            extras.setdefault(mpos[j] - 2, []).append(pc)
    for j, lst in enumerate(opt.mid.split("|")):
        for pc in filter(None, lst.split(",")):
            extras.setdefault(mpos[j], []).append(pc)
    for pc in filter(None, opt.init.split(",")):
        extras.setdefault(-1, []).append(pc)
    return order, extras

def gen(a, opt):
    end = "L_end"
    T = S_T
    stamp(a, 0, opt)
    a("s_cmp_ge_u32 s2, 256")
    a(f"s_cbranch_scc1 {end}")
    a("s_load_dwordx16 s[4:19], s[0:1], 0")
    a("s_load_dwordx4 s[20:23], s[0:1], 64")
    a("s_load_dwordx4 s[24:27], s[0:1], 80")
    a("s_load_dwordx2 s[28:29], s[0:1], 96")
    a("v_lshrrev_b32 v2, 6, v0")
    a("v_and_b32 v0, 63, v0")
    a(f"v_readfirstlane_b32 s{S_W}, v2")
    a(f"s_and_b32 s{T}, s2, 7")
    a(f"s_lshr_b32 s{T+1}, s2, 3")
    a(f"s_lshr_b32 s{S_BR}, s{T}, 2")
    a(f"s_and_b32 s{S_G}, s{T}, 3")
    a(f"s_and_b32 s{S_HL}, s{T+1}, 7")
    a(f"s_lshr_b32 s{S_R}, s{T+1}, 3")
    VWQ, VXE, VXO, VKS, VVS, VWO = 2, 3, 4, 5, 6, 7
    VA = [8, 9, 10, 11]; VB = [12, 13, 14, 15]
    ACC = 16
    FA = [80, 100]; FB = [96, 116]
    KF, VF, QP, SS, PP = 120, 152, 184, 216, 232
    TT = 240
    VWT = [244, 245, 246, 247]
    VKA, VL16, VTB, VR4, VNON, VT2 = 248, 249, 250, 251, 252, 253
    XR, KR, VR = 49152, 98304, 131072
    a(f"s_lshl_b32 s{S_B}, s{S_R}, 2")
    a(f"s_add_u32 s{S_B}, s{S_B}, s{S_W}")
    a(f"s_lshl_b32 s{S_H}, s{S_G}, 3")
    a(f"s_add_u32 s{S_H}, s{S_H}, s{S_HL}")
    a(f"s_lshl_b32 s{T}, s{S_W}, 17")
    a(f"s_lshl_b32 s{T+1}, s{S_H}, 8")
    a(f"s_add_u32 s{T}, s{T}, s{T+1}")
    a(f"s_lshl_b32 s{T+1}, s{S_B}, 16")
    if opt.half: a(f"s_lshr_b32 s{T+2}, s{S_HL}, 2")
    else: a(f"s_mov_b32 s{T+2}, 0")
    a(f"s_lshl_b32 s{T+3}, s{T+2}, 22")
    a(f"s_add_u32 s{S_WQB[0]}, s{T}, s{T+3}")
    a(f"s_xor_b32 s{T+3}, s{T+3}, {1<<22}")
    a(f"s_add_u32 s{S_WQB[1]}, s{T}, s{T+3}")
    a(f"s_lshl_b32 s{T+3}, s{T+2}, 10")
    a(f"s_add_u32 s{S_XB[0]}, s{T+1}, s{T+3}")
    a(f"s_xor_b32 s{T+3}, s{T+3}, {1<<10}")
    a(f"s_add_u32 s{S_XB[1]}, s{T+1}, s{T+3}")
    a(f"s_add_u32 s{S_LAM}, s{S_R}, s{S_HL}")
    a(f"s_and_b32 s{S_LAM}, s{S_LAM}, 3")
    a(f"s_lshl_b32 s{S_KV}, s{S_B}, 5")
    a(f"s_add_u32 s{S_KV}, s{S_KV}, s{S_H}")
    a(f"s_lshl_b32 s{S_KV}, s{S_KV}, 13")
    a(f"s_lshl_b32 s{S_MW}, s{S_W}, 12")
    a(f"s_lshl_b32 s{S_MK}, s{S_W}, 13")
    a(f"s_mul_i32 s{S_MX}, s{S_W}, 12288")
    a(f"s_add_u32 s{S_MX}, s{S_MX}, {XR}")
    seg_src(a, VWQ, 13, 240, 241)
    a("v_lshrrev_b32 v240, 3, v0")
    a("v_lshrrev_b32 v241, 4, v0")
    a("v_and_b32 v242, 7, v0")
    a("v_xor_b32 v242, v242, v241")
    a("v_lshlrev_b32 v242, 4, v242")
    a(f"v_lshl_add_u32 v{VXE}, v240, 11, v242")
    a(f"v_xor_b32 v{VXO}, 64, v{VXE}")
    for s_, n in [(SX, 1 << 20), (SK, 4 << 20), (SV, 4 << 20), (SWQ, 8 << 20), (SWO, 8 << 20), (SWS, WS_USED), (SOUT, 2 << 20), (SDBG, 256)]:
        a(f"s_mov_b32 s{s_+2}, {n}")
        a(f"s_mov_b32 s{s_+3}, 0x20000")
    ords = [sched(l, opt)[0] for l in range(4)]
    for pos in range(2):
        assert all(o[pos] < 8 for o in ords)
        pk = sum(ords[l][pos] << (4 * l) for l in range(4))
        a(f"s_lshl_b32 s{T+2}, s{S_LAM}, 2")
        a(f"s_lshr_b32 s{T+2}, {pk}, s{T+2}")
        a(f"s_and_b32 s{T+2}, s{T+2}, 15")
        a(f"s_lshl_b32 s{T+3}, s{T+2}, 19")
        a(f"s_add_u32 s{T+4+2*pos}, s{S_WQB[0]}, s{T+3}")
        a(f"s_lshl_b32 s{T+3}, s{T+2}, 7")
        a(f"s_add_u32 s{T+5+2*pos}, s{S_XB[0]}, s{T+3}")
    a("s_waitcnt lgkmcnt(0)")
    a(f"s_cmp_eq_u32 s{S_BR}, 0")
    for i, s_ in [(0, SX), (3, SWQ), (1, SK), (2, SV), (4, SWO)]:
        a(f"s_cselect_b32 s{s_}, s{4+2*i}, s{14+2*i}")
        a(f"s_cselect_b32 s{s_+1}, s{5+2*i}, s{15+2*i}")
    def dma_x(pos, j, sbase, lit):
        a(f"s_add_u32 m0, s{S_MX}, {(pos%3)*4096 + j*1024}")
        a(f"s_add_u32 s{T}, s{sbase}, {lit + j*16384}")
        a.vmem(f"buffer_load_dwordx4 v{VXO if j&1 else VXE}, {srd(SX)}, s{T} offen {opt.nt_x} lds", ("st", pos))
    def dma_wq(pos, j, sbase, lit):
        a(f"s_add_u32 m0, s{S_MW}, {(pos%3)*16384 + j*1024}")
        a(f"s_add_u32 s{T}, s{sbase}, {lit + j*32768}")
        a.vmem(f"buffer_load_dwordx4 v{VWQ}, {srd(SWQ)}, s{T} offen {opt.nt_wq} lds", ("st", pos))
    for pos in range(2):
        for j in range(4): dma_x(pos, j, T+5+2*pos, 0)
        for j in range(4): dma_wq(pos, j, T+4+2*pos, 0)
    for s_, lo in [(SOUT, 24), (SDBG, 26), (SWS, 28)]:
        a(f"s_mov_b32 s{s_}, s{lo}")
        a(f"s_mov_b32 s{s_+1}, s{lo+1}")
    a(f"s_or_b32 s{T}, s2, s{S_W}")
    a(f"s_cmp_lg_u32 s{T}, 0")
    a("s_cbranch_scc1 L_nononce")
    a(f"s_memrealtime s[{T+2}:{T+3}]")
    a("s_waitcnt lgkmcnt(0)")
    a(f"s_or_b32 s{T+2}, s{T+2}, 1")
    a(f"v_mov_b32 v240, s{T+2}")
    a("v_mov_b32 v241, 0")
    a(f"buffer_store_dword v240, v241, {srd(SDBG)}, 0 offen sc1")
    a("s_waitcnt vmcnt(0)")
    a.label("L_nononce")
    seg_src(a, VVS, 8, 240, 241)
    seg_src(a, VWO, 11, 240, 241)
    a("v_lshrrev_b32 v240, 4, v0")
    a("v_and_b32 v241, 15, v0")
    a("v_xor_b32 v241, v241, v240")
    a("v_lshlrev_b32 v241, 4, v241")
    a(f"v_lshl_add_u32 v{VKS}, v240, 8, v241")
    tr_base(a, VTB, VR4, 240)
    for i in range(4):
        a(f"v_xor_b32 v240, {i}, v{VR4}")
        a(f"v_lshl_add_u32 v{VA[i]}, v240, 6, v{VTB}")
        a(f"s_add_u32 s{T}, s{S_W}, {i}")
        a(f"s_and_b32 s{T}, s{T}, 3")
        a(f"v_xor_b32 v240, s{T}, v{VR4}")
        a(f"v_lshl_add_u32 v{VWT[i]}, v240, 6, v{VTB}")
    a("v_and_b32 v240, 31, v0")
    a("v_lshrrev_b32 v241, 5, v0")
    a("v_bfe_u32 v242, v0, 1, 3")
    a("v_xor_b32 v241, v241, v242")
    a("v_lshlrev_b32 v241, 4, v241")
    a("v_lshl_add_u32 v240, v240, 7, v241")
    for t in range(4):
        a(f"v_xor_b32 v241, {32*t}, v240")
        a(f"v_add_u32 v{VB[t]}, s{S_MX}, v241")
    a("v_and_b32 v240, 0x13, v0")
    a("v_bfe_u32 v241, v0, 2, 1")
    a("v_lshl_or_b32 v240, v241, 3, v240")
    a("v_bfe_u32 v241, v0, 3, 1")
    a("v_lshl_or_b32 v240, v241, 2, v240")
    a("v_and_b32 v241, 15, v240")
    a("v_lshrrev_b32 v242, 5, v0")
    a("v_xor_b32 v241, v241, v242")
    a("v_lshlrev_b32 v241, 4, v241")
    a("v_lshl_add_u32 v240, v240, 8, v241")
    a(f"s_add_u32 s{T+1}, s{S_MK}, {KR}")
    a(f"v_add_u32 v{VKA}, s{T+1}, v240")
    a(f"v_lshlrev_b32 v{VL16}, 4, v0")
    a(f"s_lshl_b32 s{T}, s{S_G}, 2")
    a(f"s_add_u32 s{T}, s{T}, s{S_W}")
    a(f"s_lshl_b32 s{T+1}, s{T}, 19")
    a(f"s_lshl_b32 s{T+2}, s{S_HL}, 8")
    a(f"s_add_u32 s{T+1}, s{T+1}, s{T+2}")
    for jg in range(4):
        a(f"s_add_u32 s{T+2}, s{S_LAM}, {jg}")
        a(f"s_and_b32 s{T+2}, s{T+2}, 3")
        a(f"s_lshl_b32 s{T+3}, s{T+2}, 17")
        a(f"s_add_u32 s{S_WOG[jg]}, s{T+1}, s{T+3}")
        a(f"s_lshl_b32 s{S_OG[jg]}, s{T+2}, 12")
        a(f"s_add_u32 s{S_Q[jg]}, s{S_G}, {jg+1}")
        a(f"s_and_b32 s{S_Q[jg]}, s{S_Q[jg]}, 3")
    a(f"s_lshl_b32 s{T+1}, s{S_BR}, 2")
    a(f"s_add_u32 s{T+1}, s{T+1}, s{S_R}")
    a(f"s_lshl_b32 s{S_OB}, s{T+1}, 20")
    a(f"s_lshl_b32 s{T+2}, s{T}, 14")
    a(f"s_add_u32 s{S_OB}, s{S_OB}, s{T+2}")
    a(f"s_lshl_b32 s{S_OW[0]}, s{S_BR}, 22")
    a(f"s_add_u32 s{S_OW[0]}, s{S_OW[0]}, s{S_KV}")
    a(f"s_add_u32 s{S_OW[1]}, s{S_OW[0]}, 4096")
    a(f"s_lshl_b32 s{T+2}, s{T+1}, 2")
    a(f"s_add_u32 s{T+2}, s{T+2}, s{S_G}")
    a(f"s_lshl_b32 s{T+2}, s{T+2}, 9")
    a(f"s_add_u32 s{T+2}, s{T+2}, {FO_BASE}")
    a(f"s_lshl_b32 s{T+3}, s{S_W}, 7")
    a(f"s_add_u32 s{S_FOR}, s{T+2}, s{T+3}")
    a(f"s_lshr_b32 s{T+3}, s{S_HL}, 1")
    a(f"s_lshl_b32 s{T+3}, s{T+3}, 7")
    a(f"s_add_u32 s{S_FOW}, s{T+2}, s{T+3}")
    a(f"s_and_b32 s{T+3}, s{S_HL}, 1")
    a(f"s_lshl_b32 s{T+3}, s{T+3}, 2")
    a(f"s_add_u32 s{T+3}, s{T+3}, s{S_W}")
    a(f"s_lshl_b32 s{T+3}, s{T+3}, 2")
    a(f"s_add_u32 s{S_FOW}, s{S_FOW}, s{T+3}")
    a(f"s_lshl_b32 s{T+1}, s{T+1}, 3")
    a(f"s_add_u32 s{T+1}, s{T+1}, s{S_HL}")
    a(f"s_lshl_b32 s{T+2}, s{T+1}, 18")
    a(f"s_add_u32 s{T+2}, s{T+2}, {PART_BASE}")
    a(f"s_lshl_b32 s{T+3}, s{T}, 12")
    a(f"s_add_u32 s{S_PB}, s{T+2}, s{T+3}")
    a(f"s_lshl_b32 s{T+3}, s{S_G}, 16")
    a(f"s_add_u32 s{S_PR}, s{T+2}, s{T+3}")
    a(f"s_lshl_b32 s{T+3}, s{S_W}, 12")
    a(f"s_add_u32 s{S_PR}, s{S_PR}, s{T+3}")
    a(f"s_lshl_b32 s{T+2}, s{T+1}, 11")
    a(f"s_lshl_b32 s{T+3}, s{S_W}, 7")
    a(f"s_add_u32 s{T+2}, s{T+2}, s{T+3}")
    a(f"s_add_u32 s{T+2}, s{T+2}, {FP_BASE}")
    a(f"s_lshl_b32 s{T+3}, s{S_G}, 9")
    a(f"s_add_u32 s{S_FPR}, s{T+2}, s{T+3}")
    a(f"s_lshl_b32 s{T+3}, s{S_G}, 2")
    a(f"s_add_u32 s{S_FPB}, s{T+2}, s{T+3}")
    a(f"s_lshl_b32 s{T+2}, s{S_R}, 2")
    a(f"s_add_u32 s{T+2}, s{T+2}, s{S_G}")
    a(f"s_lshl_b32 s{T+2}, s{T+2}, 17")
    a(f"s_lshl_b32 s{T+3}, s{S_BR}, 11")
    a(f"s_add_u32 s{T+2}, s{T+2}, s{T+3}")
    a(f"s_lshl_b32 s{T+3}, s{S_HL}, 8")
    a(f"s_add_u32 s{T+2}, s{T+2}, s{T+3}")
    a(f"s_lshl_b32 s{T+3}, s{S_W}, 6")
    a(f"s_add_u32 s{S_OUTB}, s{T+2}, s{T+3}")

    SLOT = {"w0": (S_MW, 0), "w1": (S_MW, 16384), "w2": (S_MW, 32768),
            "x0": (S_MX, 0), "x1": (S_MX, 4096), "x2": (S_MX, 8192),
            "k0": (S_MK, KR), "k1": (S_MK, KR + 4096), "v0": (S_MK, VR), "v1": (S_MK, VR + 4096)}
    def dma_wo(pos, j, slot):
        sb, off = SLOT[slot]
        a(f"s_add_u32 m0, s{sb}, {off + j*1024}")
        a(f"s_add_u32 s{T}, s{S_WOG[pos>>2]}, {(16*(pos&3)+4*j)*2048}")
        a.vmem(f"buffer_load_dwordx4 v{VWO}, {srd(SWO)}, s{T} offen {opt.nt_wo} lds", ("wo", pos))
    def tr_wo_items(pos, slot):
        sb, off = SLOT[slot]
        it = []
        for s4 in range(4):
            def f(s4=s4):
                if s4 == 0:
                    a.wait_vm(("wo", pos))
                    a(f"s_add_u32 s{T+1}, s{sb}, {off}")
                a(f"v_add_u32 v{VT2}, s{T+1}, v{VWT[s4]}")
                for h2 in range(2):
                    a.lds(f"ds_read_b64_tr_b16 {ar(16*pos+4*s4+2*h2,2)}, v{VT2} offset:{4*h2*256}", ("wo", pos))
            it.append(f)
        return it
    def dma_kv(pc, j):
        half = int(pc[1])
        if pc[0] == "K":
            a(f"s_add_u32 m0, s{S_MK}, {KR + half*4096}")
            a(f"s_add_u32 s{T}, s{S_KV}, {half*4096}")
            a(f"v_xor_b32 v{TT}, {64*j}, v{VKS}")
            a.vmem(f"buffer_load_dwordx4 v{TT}, {srd(SK)}, s{T} offen offset:{j*1024} {opt.nt_kv} lds", "k")
        else:
            a(f"s_add_u32 m0, s{S_MK}, {VR + half*4096}")
            a(f"s_add_u32 s{T}, s{S_KV}, {half*4096}")
            a.vmem(f"buffer_load_dwordx4 v{VVS}, {srd(SV)}, s{T} offen offset:{j*1024} {opt.nt_kv} lds", "v")

    def reads(n):
        s, t = n >> 2, n & 3
        slot = s % 3
        fs = n & 1
        r = [(f"ds_read_b128 {vr(FB[fs],4)}, v{VB[t]} offset:{slot*4096}", ("b", n))]
        for i in range(4):
            for h2 in range(2):
                r.append((f"ds_read_b64_tr_b16 {vr(FA[fs]+4*i+2*h2,2)}, v{VA[i]} offset:{slot*16384 + (16*t+4*h2)*256}", ("a", n, i)))
        return r
    def mfma(n, i):
        fs = n & 1
        c = "0" if n == 0 else vr(ACC+16*i, 16)
        a.wait_lg([("b", n), ("a", n, i)])
        a(f"{MF} {vr(ACC+16*i,16)}, {vr(FA[fs]+4*i,4)}, {vr(FB[fs],4)}, {c}")

    allex = [p for grp in (opt.ex, opt.mid, opt.init) for p in grp.replace("|", ",").split(",") if p]
    w_early = sorted(int(p[1]) for p in allex if p[0] == "W")
    rest = [p for p in range(4) if p not in w_early] + [4, 5, 8, 9, 12, 13, 6, 7, 10, 11, 14, 15]
    late_slots = ["w1", "x1", "w2", "x2", "x0", "k0", "k1", "v0", "v1", "w0"]

    for lam in range(1, 4):
        a(f"s_cmp_eq_u32 s{S_LAM}, {lam}")
        a(f"s_cbranch_scc1 L_p1_{lam}")
    vm0, lg0 = list(a.vm), list(a.lg)
    end_state = None
    for lam in range(4):
        a.vm, a.lg = list(vm0), list(lg0)
        a.label(f"L_p1_{lam}")
        order, extras = sched(lam, opt)
        kv_issue = {}
        for st, l in extras.items():
            for pc in l:
                if pc[0] in "KV": kv_issue[pc.lower()] = st
        assert len(kv_issue) == 4 and max(kv_issue.values()) <= 11, kv_issue
        busy = {}
        wslot = {}; consume = {}
        for st in sorted(extras):
            for pc in extras[st]:
                if pc[0] == "W":
                    cs = max(st + 3, 1)
                    cand = [k for k in ("v1", "v0", "k1", "k0") if kv_issue[k] > cs and busy.get(k, -9) < st]
                    assert cand, (lam, pc, st, kv_issue)
                    wslot[pc] = cand[0]; busy[cand[0]] = cs
                    consume.setdefault(cs, []).append(pc)
        def extra_items(st):
            it = []
            for pc in extras.get(st, []):
                for j in range(4):
                    if pc[0] == "W": it.append(lambda pc=pc, j=j: dma_wo(int(pc[1]), j, wslot[pc]))
                    else: it.append(lambda pc=pc, j=j: dma_kv(pc, j))
            return it
        for f in extra_items(-1): f()
        for s in range(16):
            a.c(f"---- class {lam} stage {s} chunk {order[s]}")
            if a.lg: a.wait_lg_all()
            a.wait_vm(("st", s))
            a("s_barrier")
            stamp(a, 1 + s, opt)
            dm = []
            if s + 2 < 16:
                c = order[s + 2]
                for j in range(4): dm.append(lambda j=j, c=c: dma_x(s + 2, j, S_XB[c >> 3], (c & 7) * 128))
                for j in range(4): dm.append(lambda j=j, c=c: dma_wq(s + 2, j, S_WQB[c >> 3], (c & 7) << 19))
            else:
                for k in range(2):
                    idx = (s - 14) * 2 + k
                    for j in range(4): dm.append(lambda j=j, idx=idx: dma_wo(rest[idx], j, late_slots[idx]))
            dm += extra_items(s)
            if s == 8:
                def non():
                    a(f"v_mov_b32 v{TT}, 0")
                    a.vmem(f"buffer_load_dword v{VNON}, v{TT}, {srd(SDBG)}, 0 offen sc1", "nonce")
                dm.append(non)
            lw = []
            for pc in consume.get(s, []): lw += tr_wo_items(int(pc[1]), wslot[pc])
            if s == 14:
                for u in range(8):
                    def f(u=u):
                        if u == 0: a.wait_vm(["k", "v", "nonce"])
                        a(f"v_xor_b32 v{VT2}, {32*u}, v{VKA}")
                        a.lds(f"ds_read_b128 {vr(KF+4*u,4)}, v{VT2}", ("k", u))
                    lw.append(f)
            if s == 15:
                for i in range(4):
                    for u in range(2):
                        def f(i=i, u=u):
                            if i == 0 and u == 0: a(f"s_add_u32 s{T+1}, s{S_MK}, {VR}")
                            if u == 0: a(f"v_add_u32 v{VT2}, s{T+1}, v{VA[i]}")
                            for h2 in range(2):
                                a.lds(f"ds_read_b64_tr_b16 {vr(VF+8*i+4*u+2*h2,2)}, v{VT2} offset:{(16*u+4*h2)*256}", ("v", i, u, h2))
                        lw.append(f)
            nd = len(dm)
            gap = 0
            for t in range(4):
                n = 4 * s + t
                rd = reads(n)
                for i in range(4):
                    if n > 0 and i == 0: mfma(n - 1, i)
                    for (ins, tag) in rd[3*i:3*i+3]:
                        a.lds(ins, tag)
                    if i == 3:
                        for _ in range(2):
                            if lw: lw.pop(0)()
                    if n > 0 and i < 3: mfma(n - 1, i + 1)
                    gap += 1
                    want = (gap * nd + 15) // 16
                    while nd - len(dm) < want: dm.pop(0)()
            assert not dm and not lw, (s, len(dm), len(lw))
        st_ = (list(a.vm), list(a.lg))
        if end_state is None: end_state = st_
        assert end_state == st_, (end_state, st_)
        if lam < 3: a("s_branch L_common")
    a.label("L_common")
    ri = 4
    pend = [(rest[i], late_slots[i]) for i in range(4)]
    adm = []
    for k in range(opt.att_dma):
        pos, sl = rest[ri + k], late_slots[ri + k]
        pend.append((pos, sl))
        for j in range(4): adm.append(lambda pos=pos, sl=sl, j=j: dma_wo(pos, j, sl))
    ri += opt.att_dma
    def ad():
        if adm: adm.pop(0)()
    for i in range(4): mfma(63, i)
    a.wait_lg_all()
    stamp(a, 17, opt)
    a.c("---- attention")
    a(f"v_readfirstlane_b32 s{S_NONCE}, v{VNON}")
    CS = 128 ** -0.5 * 1.4426950408889634
    a(f"s_mov_b32 s{T+2}, {f32(CS)}")
    ad()
    a("s_nop 3")
    def cvq(i):
        for p in range(8):
            a(f"v_cvt_pk_bf16_f32 v{QP+8*i+p}, v{ACC+16*i+2*p}, v{ACC+16*i+2*p+1}")
    cvq(0); cvq(1)
    for u in range(8):
        c = "0" if u == 0 else vr(SS, 16)
        a(f"{MF} {vr(SS,16)}, {vr(KF+4*u,4)}, {vr(QP+4*u,4)}, {c}")
        if u == 0: cvq(2)
        if u == 1: cvq(3)
        if u in (3, 5, 7): ad()
    a("s_nop 7")
    a("s_nop 0")
    a(f"v_max3_f32 v240, v{SS}, v{SS+1}, v{SS+2}")
    a(f"v_max3_f32 v241, v{SS+3}, v{SS+4}, v{SS+5}")
    a(f"v_max3_f32 v242, v{SS+6}, v{SS+7}, v{SS+8}")
    a(f"v_max3_f32 v243, v{SS+9}, v{SS+10}, v{SS+11}")
    a(f"v_max3_f32 v240, v240, v{SS+12}, v{SS+13}")
    a(f"v_max3_f32 v241, v241, v{SS+14}, v{SS+15}")
    a(f"v_max3_f32 v240, v240, v242, v243")
    a(f"v_max_f32 v240, v240, v241")
    a("v_mov_b32 v241, v240")
    a("s_nop 1")
    a("v_permlane32_swap_b32 v240, v241")
    a("s_nop 1")
    a("v_max_f32 v240, v240, v241")
    a(f"v_mul_f32 v240, s{T+2}, v240")
    ad()
    for k in range(16):
        a(f"v_fma_f32 v{SS+k}, v{SS+k}, s{T+2}, -v240")
    ad()
    for k in range(16):
        a(f"v_exp_f32 v{SS+k}, v{SS+k}")
        if k % 8 == 7: ad()
    a("s_nop 0")
    a(f"v_add_f32 v241, v{SS}, v{SS+1}")
    a(f"v_add_f32 v242, v{SS+2}, v{SS+3}")
    for k in range(4, 16, 2):
        a(f"v_add_f32 v241, v241, v{SS+k}")
        a(f"v_add_f32 v242, v242, v{SS+k+1}")
    a("v_add_f32 v241, v241, v242")
    a("v_mov_b32 v242, v241")
    a("s_nop 1")
    a("v_permlane32_swap_b32 v241, v242")
    a("s_nop 1")
    a("v_add_f32 v241, v241, v242")
    a("v_rcp_f32 v241, v241")
    ad()
    a("s_nop 0")
    for k in range(16):
        a(f"v_mul_f32 v{SS+k}, v{SS+k}, v241")
    for p in range(8):
        a(f"v_cvt_pk_bf16_f32 v{PP+p}, v{SS+2*p}, v{SS+2*p+1}")
    ad()
    a("s_nop 1")
    def ost(i):
        cvq(i)
        for u2 in range(2):
            u = 2 * i + u2
            a.vmem(f"buffer_store_dwordx4 {vr(QP+4*u,4)}, v{VL16}, {srd(SWS)}, s{S_OW[u>>2]} offen offset:{(u&3)*1024} sc1", "o")
    for i in range(4):
        a(f"{MF} {vr(ACC+16*i,16)}, {vr(VF+8*i,4)}, {vr(PP,4)}, 0")
        a(f"{MF} {vr(ACC+16*i,16)}, {vr(VF+8*i+4,4)}, {vr(PP+4,4)}, {vr(ACC+16*i,16)}")
    a("s_nop 5")
    ost(0); ost(1); ost(2); ost(3)
    stamp(a, 18, opt)
    while adm: ad()
    a("s_barrier")
    while ri < min(len(rest), len(late_slots)):
        pos, sl = rest[ri], late_slots[ri]
        pend.append((pos, sl))
        for j in range(4): dma_wo(pos, j, sl)
        ri += 1
    a(f"s_cmp_lg_u32 s{S_NONCE}, 0")
    a("s_cbranch_scc1 L_havenonce")
    a(f"s_mov_b32 s{S_CNT}, 0")
    a("v_mov_b32 v240, 0")
    a.label("L_nonce_spin")
    a(f"buffer_load_dword v{VNON}, v240, {srd(SDBG)}, 0 offen sc1")
    a("s_waitcnt vmcnt(0)")
    a(f"v_readfirstlane_b32 s{S_NONCE}, v{VNON}")
    a(f"s_add_u32 s{S_CNT}, s{S_CNT}, 1")
    a(f"s_cmp_gt_u32 s{S_CNT}, {SPIN_MAX}")
    a("s_cbranch_scc1 L_havenonce")
    a(f"s_cmp_eq_u32 s{S_NONCE}, 0")
    a("s_cbranch_scc1 L_nonce_spin")
    a.label("L_havenonce")
    VRW = [3, 4, 5]; VRR = 6; VZ = 12; VNV = 13; VFL = 14; VFA = 15; VFP = 11; VOUT = 10
    for sl in range(1, 4):
        a(f"s_add_u32 s{T}, s{S_W}, {sl}")
        a(f"s_and_b32 s{T}, s{T}, 3")
        a(f"s_mul_i32 s{T}, s{T}, 12288")
        a(f"s_add_u32 s{T}, s{T}, {(sl-1)*4096}")
        a(f"v_add_u32 v{VRW[sl-1]}, s{T}, v{VL16}")
    a(f"s_mul_i32 s{T}, s{S_W}, 12288")
    a(f"v_add_u32 v{VRR}, s{T}, v{VL16}")
    a(f"v_mov_b32 v{VZ}, 0")
    a(f"v_mov_b32 v{VNV}, s{S_NONCE}")
    a(f"v_and_b32 v{VFA}, 7, v0")
    a(f"v_lshlrev_b32 v{VFA}, 2, v{VFA}")
    a(f"s_add_u32 s{T}, s{S_G}, 1")
    a(f"v_add_u32 v{VFP}, s{T}, v0")
    a(f"v_and_b32 v{VFP}, 3, v{VFP}")
    a(f"v_lshlrev_b32 v{VFP}, 2, v{VFP}")
    a(f"v_and_b32 v{VOUT}, 31, v0")
    a(f"v_lshlrev_b32 v{VOUT}, 12, v{VOUT}")
    a(f"v_lshrrev_b32 v240, 5, v0")
    a(f"v_lshl_add_u32 v{VOUT}, v240, 4, v{VOUT}")
    a(f"s_mov_b32 s{S_DONE}, 0")
    def flag_store(soff):
        a("s_mov_b64 exec, 1")
        a.vmem(f"buffer_store_dword v{VNV}, v{VZ}, {srd(SWS)}, {soff} offen sc1", "flag")
        a("s_mov_b64 exec, -1")
    published = False
    def tr_one():
        nonlocal ri, published
        pos, sl = pend.pop(0)
        if not published and "o" in a.vm and a._cnt(a.vm, ("wo", pos)) > a.vm.index("o"):
            a.wait_vm("o"); flag_store(f"s{S_FOW}"); published = True
            stamp(a, 19, opt)
        for f in tr_wo_items(pos, sl): f()
        if ri < len(rest):
            a.wait_lg_all()
            pend.append((rest[ri], sl))
            for j in range(4): dma_wo(rest[ri], j, sl)
            ri += 1
    while pend: tr_one()
    assert published
    stamp(a, 20, opt)
    a(f"s_mov_b32 s{S_CNT}, 0")
    a.label("L_pollo")
    a(f"buffer_load_dword v{VFL}, v{VFA}, {srd(SWS)}, s{S_FOR} offen sc1")
    a("s_waitcnt vmcnt(0)"); a.vm = []
    a(f"v_cmp_ne_u32 vcc, s{S_NONCE}, v{VFL}")
    a(f"s_add_u32 s{S_CNT}, s{S_CNT}, 1")
    a(f"s_cmp_gt_u32 s{S_CNT}, {SPIN_MAX}")
    a(f"s_cbranch_scc1 L_pollo_done")
    a("s_nop 1")
    a(f"s_cbranch_vccnz L_pollo")
    a.label("L_pollo_done")
    stamp(a, 21, opt)
    AC = [16, 80]; OFB = 144; NOF = 24
    def load_o(gi):
        n, f = gi >> 4, gi & 15
        if f % 4 == 0:
            a(f"s_lshl_b32 s{T+2}, s{S_Q[n]}, 18")
            a(f"s_add_u32 s{T+2}, s{T+2}, s{S_OB}")
            a(f"s_add_u32 s{T+2}, s{T+2}, s{S_OG[f>>2]}")
        a.vmem(f"buffer_load_dwordx4 {vr(OFB+4*(gi%NOF),4)}, v{VL16}, {srd(SWS)}, s{T+2} offen offset:{(f&3)*1024} sc1", ("o", gi))
    INIT = 8
    nxt = 0
    for gi in range(INIT): load_o(gi)
    nxt = INIT
    a.wait_lg_all()
    a("s_barrier")
    def red_items(n):
        A0 = AC[n & 1]; rb = (n & 1) * 49152
        it = []
        for sl in range(1, 4):
            for j in range(4):
                it.append(lambda sl=sl, j=j: a.lds(f"ds_write_b128 v{VRW[sl-1]}, {vr(A0+16*sl+4*j,4)} offset:{rb + j*1024}", "rw"))
        it.append(None)
        def bar():
            a.wait_lg_all(); a("s_barrier")
        it.append(bar)
        for k in range(0, 12, 2):
            def rd2(k=k):
                for kk in (k, k + 1):
                    a.lds(f"ds_read_b128 {vr(A0+16+4*kk,4)}, v{VRR} offset:{rb + kk*1024}", ("rr", kk))
            it.append(rd2)
        for j in range(4):
            for src in range(3):
                def adds(src=src, j=j):
                    a.wait_lg(("rr", 4*src+j))
                    for e in range(4):
                        a(f"v_add_f32 v{A0+4*j+e}, v{A0+4*j+e}, v{A0+16+16*src+4*j+e}")
                it.append(adds)
            if n < 3:
                def st(j=j):
                    if j == 0:
                        a(f"s_lshl_b32 s{T+3}, s{S_Q[n]}, 16")
                        a(f"s_add_u32 s{T+3}, s{T+3}, s{S_PB}")
                    a.vmem(f"buffer_store_dwordx4 {vr(A0+4*j,4)}, v{VL16}, {srd(SWS)}, s{T+3} offen offset:{j*1024} sc1", ("p", n))
                it.append(st)
        return it
    def pub(n):
        a.wait_vm(("p", n))
        a(f"s_lshl_b32 s{T}, s{S_Q[n]}, 9")
        a(f"s_add_u32 s{T}, s{T}, s{S_FPB}")
        flag_store(f"s{T}")
    PT = AC[0] + 16
    tcount = [0]
    def try_partials():
        tcount[0] += 1
        a(f"v_cmp_eq_u32 vcc, s{S_NONCE}, v{VFL}")
        a("s_nop 3")
        a(f"s_andn2_b32 s{T+4}, vcc_lo, s{S_DONE}")
        a(f"s_and_b32 s{T+4}, s{T+4}, 7")
        a(f"s_or_b32 s{S_DONE}, s{S_DONE}, s{T+4}")
        for k in range(3):
            lab = f"L_tp{tcount[0]}_{k}"
            a(f"s_bitcmp1_b32 s{T+4}, {k}")
            a(f"s_cbranch_scc0 {lab}")
            a(f"s_lshl_b32 s{T}, s{S_Q[k]}, 14")
            a(f"s_add_u32 s{T}, s{T}, s{S_PR}")
            for j in range(4):
                a(f"buffer_load_dwordx4 {vr(PT+16*k+4*j,4)}, v{VL16}, {srd(SWS)}, s{T} offen offset:{j*1024} sc1")
            a.label(lab)
    for n in range(4):
        a.c(f"---- strip {n}")
        A0 = AC[n & 1]
        items = red_items(n - 1) if n else []
        m = 0
        for ks in range(16):
            gi = 16 * n + ks
            a.wait_vm(("o", gi))
            for sl in range(4):
                c = "0" if ks == 0 else vr(A0+16*sl, 16)
                a(f"{MF} {vr(A0+16*sl,16)}, {ar(16*ks+4*sl,4)}, {vr(OFB+4*(gi%NOF),4)}, {c}")
                m += 1
                if sl in (1, 3) and nxt < 64 and nxt <= gi + opt.ahead - (1 if sl == 1 else 0):
                    load_o(nxt); nxt += 1
                if m == 2 and items: a("s_nop 7")
                if m >= 3 and items:
                    f = items.pop(0)
                    if f: f()
            if n >= 2 and ks == 1: pub(n - 2)
            if ks == 15: assert not items
            if n == 3 and ks == 10:
                a.vmem(f"buffer_load_dword v{VFL}, v{VFP}, {srd(SWS)}, s{S_FPR} offen sc1", "pf")
            if n == 3 and ks == 15:
                a.wait_vm("pf")
                assert not a.vm
                pub(2)
                a.vm = []
                try_partials()
        stamp(a, 22 + n, opt)
    a(f"buffer_load_dword v{VFL}, v{VFP}, {srd(SWS)}, s{S_FPR} offen sc1")
    a("s_nop 3")
    for f in red_items(3):
        if f: f()
    A0 = AC[1]
    stamp(a, 26, opt)
    a(f"s_mov_b32 s{S_CNT}, 0")
    a.label("L_pollp")
    a("s_waitcnt vmcnt(0)")
    try_partials()
    a(f"s_cmp_eq_u32 s{S_DONE}, 7")
    a("s_cbranch_scc1 L_pollp_done")
    a(f"s_add_u32 s{S_CNT}, s{S_CNT}, 1")
    a(f"s_cmp_gt_u32 s{S_CNT}, {SPIN_MAX}")
    a("s_cbranch_scc1 L_pollp_done")
    a(f"buffer_load_dword v{VFL}, v{VFP}, {srd(SWS)}, s{S_FPR} offen sc1")
    a("s_branch L_pollp")
    a.label("L_pollp_done")
    stamp(a, 27, opt)
    a("s_waitcnt vmcnt(0)")
    for k in range(3):
        for e in range(16):
            a(f"v_add_f32 v{A0+e}, v{A0+e}, v{PT+16*k+e}")
    for p in range(8):
        a(f"v_cvt_pk_bf16_f32 v{OFB+p}, v{A0+2*p}, v{A0+2*p+1}")
    a(f"buffer_store_dwordx4 {vr(OFB,4)}, v{VOUT}, {srd(SOUT)}, s{S_OUTB} offen")
    a(f"buffer_store_dwordx4 {vr(OFB+4,4)}, v{VOUT}, {srd(SOUT)}, s{S_OUTB} offen offset:32")
    if opt.stamps:
        a("s_waitcnt vmcnt(0)")
        stamp(a, 28, opt)
        dump_stamps(a, opt)
    a.label(end)
    a("s_endpgm")

def build(opt):
    nm = NAME + "_kernel"
    out = []
    out.append("; @launch grid=(256,1,1) block=(256,1,1) lds=163840")
    out.append('.amdgcn_target "amdgcn-amd-amdhsa--gfx950"')
    out.append(".text")
    a = Asm()
    gen(a, opt)
    out.append(f".globl {nm}\n.p2align 8\n.type {nm},@function\n{nm}:")
    out.append(a.text())
    out.append('.section .rodata,"a"')
    out.append(f""".p2align 6
.amdhsa_kernel {nm}
  .amdhsa_next_free_vgpr 512
  .amdhsa_next_free_sgpr 102
  .amdhsa_accum_offset 256
  .amdhsa_group_segment_fixed_size 0
  .amdhsa_kernarg_size 104
  .amdhsa_user_sgpr_count 2
  .amdhsa_user_sgpr_kernarg_segment_ptr 1
  .amdhsa_system_sgpr_workgroup_id_x 1
.end_amdhsa_kernel
""")
    return "\n".join(out)

if __name__ == "__main__":
    opt = Opt()
    for kv in sys.argv[2:]:
        k, v = kv.split("=")
        cur = getattr(opt, k)
        setattr(opt, k, (v == "1") if isinstance(cur, bool) else type(cur)(v))
    open(sys.argv[1], "w").write(build(opt))
```

```python
import sys, struct
from asmlib import *

NAME = "concat_heads__mha_block_cached__gqa_block_cached__near_ridge"
def f32(x): return "0x%08x" % struct.unpack("<I", struct.pack("<f", x))[0]

O_BASE = 0
PART_BASE = 8 << 20
FO_BASE = 24 << 20
FP_BASE = (24 << 20) + (1 << 16)
STAMP_BASE = 28 << 20
WS_USED = 32 << 20
SPIN_MAX = 20000

SX, SK, SV, SWQ, SWO, SWS, SOUT, SDBG = 32, 36, 40, 44, 48, 52, 56, 60
S_W, S_BR, S_G, S_HL, S_R, S_B = 64, 65, 66, 67, 68, 69
S_T = 70
S_MX, S_H = 78, 79
S_WQB = [80, 81]; S_XB = [82, 83]
S_LAM = 84
S_KV, S_MW, S_MK = 85, 86, 87
S_NONCE, S_CNT, S_DONE = 88, 89, 90
S_WOG = [4, 5, 6, 7]; S_OG = [8, 9, 10, 11]; S_Q = [12, 13, 14, 15]
S_OB, S_PB, S_FOW, S_FOR, S_FPB, S_OUTB, S_PR, S_FPR = 16, 17, 18, 19, 20, 21, 22, 23
S_EX = 24
S_OW = [26, 27]

class Opt:
    nt_x = ""; nt_wq = ""; nt_kv = ""; nt_wo = ""
    stamps = False
    clk = "s_memrealtime"
    dbgwg = -1
    lead = 2
    half = True
    ex = "W0|K0,K1|V0,V1"
    mid = "||"
    init = ""
    att_dma = 4
    ahead = 22

VSTAMP = 1
def stamp(a, idx, opt):
    if opt.stamps:
        a(f"{opt.clk} s[30:31]")
        a("s_waitcnt lgkmcnt(0)"); a.lg = []
        a(f"v_writelane_b32 v{VSTAMP}, s30, {idx}")

def dump_stamps(a, opt):
    if not opt.stamps: return
    a(f"s_lshl_b32 s{S_T}, s2, 2")
    a(f"s_add_u32 s{S_T}, s{S_T}, s{S_W}")
    a(f"s_lshl_b32 s{S_T}, s{S_T}, 8")
    a(f"s_add_u32 s{S_T}, s{S_T}, {STAMP_BASE}")
    a("v_lshlrev_b32 v2, 2, v0")
    a(f"buffer_store_dword v{VSTAMP}, v2, s[{SWS}:{SWS+3}], s{S_T} offen")
    a("s_waitcnt vmcnt(0)")

def seg_src(a, dst, rowstride_shift, t1, t2):
    a(f"v_lshrrev_b32 v{t1}, 4, v0")
    a(f"v_bfe_u32 v{t2}, v0, 2, 2")
    a(f"v_xor_b32 v{t2}, v{t2}, v{t1}")
    a(f"v_lshlrev_b32 v{t2}, 6, v{t2}")
    a(f"v_lshl_add_u32 v{dst}, v{t1}, {rowstride_shift}, v{t2}")
    a(f"v_and_b32 v{t2}, 3, v0")
    a(f"v_lshl_add_u32 v{dst}, v{t2}, 4, v{dst}")

def tr_base(a, dst, r4, t1):
    a(f"v_bfe_u32 v{r4}, v0, 2, 2")
    a(f"v_lshrrev_b32 v{t1}, 5, v0")
    a(f"v_lshl_add_u32 v{t1}, v{t1}, 3, v{r4}")
    a(f"v_lshlrev_b32 v{dst}, 8, v{t1}")
    a(f"v_bfe_u32 v{t1}, v0, 4, 1")
    a(f"v_lshl_add_u32 v{dst}, v{t1}, 5, v{dst}")
    a(f"v_and_b32 v{t1}, 1, v0")
    a(f"v_lshl_add_u32 v{dst}, v{t1}, 4, v{dst}")
    a(f"v_bfe_u32 v{t1}, v0, 1, 1")
    a(f"v_lshl_add_u32 v{dst}, v{t1}, 3, v{dst}")

MF = "v_mfma_f32_32x32x16_bf16"
srd = lambda r: f"s[{r}:{r+3}]"

def sched(lam, opt):
    order = list(range(16))
    mpos = []
    for c in range(lam, 16, 4):
        p = order.index(c)
        q = max(0, p - opt.lead)
        order.pop(p); order.insert(q, c)
        if c >= 4: mpos.append(q)
    extras = {}
    for j, lst in enumerate(opt.ex.split("|")):
        for pc in filter(None, lst.split(",")):
            extras.setdefault(mpos[j] - 2, []).append(pc)
    for j, lst in enumerate(opt.mid.split("|")):
        for pc in filter(None, lst.split(",")):
            extras.setdefault(mpos[j], []).append(pc)
    for pc in filter(None, opt.init.split(",")):
        extras.setdefault(-1, []).append(pc)
    return order, extras

def gen(a, opt):
    end = "L_end"
    T = S_T
    stamp(a, 0, opt)
    a("s_cmp_ge_u32 s2, 256")
    a(f"s_cbranch_scc1 {end}")
    a("s_load_dwordx16 s[4:19], s[0:1], 0")
    a("s_load_dwordx4 s[20:23], s[0:1], 64")
    a("s_load_dwordx4 s[24:27], s[0:1], 80")
    a("s_load_dwordx2 s[28:29], s[0:1], 96")
    a("v_lshrrev_b32 v2, 6, v0")
    a("v_and_b32 v0, 63, v0")
    a(f"v_readfirstlane_b32 s{S_W}, v2")
    a(f"s_and_b32 s{T}, s2, 7")
    a(f"s_lshr_b32 s{T+1}, s2, 3")
    a(f"s_lshr_b32 s{S_BR}, s{T}, 2")
    a(f"s_and_b32 s{S_G}, s{T}, 3")
    a(f"s_and_b32 s{S_HL}, s{T+1}, 7")
    a(f"s_lshr_b32 s{S_R}, s{T+1}, 3")
    VWQ, VXE, VXO, VKS, VVS, VWO = 2, 3, 4, 5, 6, 7
    VA = [8, 9, 10, 11]; VB = [12, 13, 14, 15]
    ACC = 16
    FA = [80, 100]; FB = [96, 116]
    KF, VF, QP, SS, PP = 120, 152, 184, 216, 232
    TT = 240
    VWT = [244, 245, 246, 247]
    VKA, VL16, VTB, VR4, VNON, VT2 = 248, 249, 250, 251, 252, 253
    XR, KR, VR = 49152, 98304, 131072
    a(f"s_lshl_b32 s{S_B}, s{S_R}, 2")
    a(f"s_add_u32 s{S_B}, s{S_B}, s{S_W}")
    a(f"s_lshl_b32 s{S_H}, s{S_G}, 3")
    a(f"s_add_u32 s{S_H}, s{S_H}, s{S_HL}")
    a(f"s_lshl_b32 s{T}, s{S_W}, 17")
    a(f"s_lshl_b32 s{T+1}, s{S_H}, 8")
    a(f"s_add_u32 s{T}, s{T}, s{T+1}")
    a(f"s_lshl_b32 s{T+1}, s{S_B}, 16")
    if opt.half: a(f"s_lshr_b32 s{T+2}, s{S_HL}, 2")
    else: a(f"s_mov_b32 s{T+2}, 0")
    a(f"s_lshl_b32 s{T+3}, s{T+2}, 22")
    a(f"s_add_u32 s{S_WQB[0]}, s{T}, s{T+3}")
    a(f"s_xor_b32 s{T+3}, s{T+3}, {1<<22}")
    a(f"s_add_u32 s{S_WQB[1]}, s{T}, s{T+3}")
    a(f"s_lshl_b32 s{T+3}, s{T+2}, 10")
    a(f"s_add_u32 s{S_XB[0]}, s{T+1}, s{T+3}")
    a(f"s_xor_b32 s{T+3}, s{T+3}, {1<<10}")
    a(f"s_add_u32 s{S_XB[1]}, s{T+1}, s{T+3}")
    a(f"s_add_u32 s{S_LAM}, s{S_R}, s{S_HL}")
    a(f"s_and_b32 s{S_LAM}, s{S_LAM}, 3")
    a(f"s_lshl_b32 s{S_KV}, s{S_B}, 5")
    a(f"s_add_u32 s{S_KV}, s{S_KV}, s{S_H}")
    a(f"s_lshl_b32 s{S_KV}, s{S_KV}, 13")
    a(f"s_lshl_b32 s{S_MW}, s{S_W}, 12")
    a(f"s_lshl_b32 s{S_MK}, s{S_W}, 13")
    a(f"s_mul_i32 s{S_MX}, s{S_W}, 12288")
    a(f"s_add_u32 s{S_MX}, s{S_MX}, {XR}")
    seg_src(a, VWQ, 13, 240, 241)
    a("v_lshrrev_b32 v240, 3, v0")
    a("v_lshrrev_b32 v241, 4, v0")
    a("v_and_b32 v242, 7, v0")
    a("v_xor_b32 v242, v242, v241")
    a("v_lshlrev_b32 v242, 4, v242")
    a(f"v_lshl_add_u32 v{VXE}, v240, 11, v242")
    a(f"v_xor_b32 v{VXO}, 64, v{VXE}")
    for s_, n in [(SX, 1 << 20), (SK, 4 << 20), (SV, 4 << 20), (SWQ, 8 << 20), (SWO, 8 << 20), (SWS, WS_USED), (SOUT, 2 << 20), (SDBG, 256)]:
        a(f"s_mov_b32 s{s_+2}, {n}")
        a(f"s_mov_b32 s{s_+3}, 0x20000")
    ords = [sched(l, opt)[0] for l in range(4)]
    for pos in range(2):
        assert all(o[pos] < 8 for o in ords)
        pk = sum(ords[l][pos] << (4 * l) for l in range(4))
        a(f"s_lshl_b32 s{T+2}, s{S_LAM}, 2")
        a(f"s_lshr_b32 s{T+2}, {pk}, s{T+2}")
        a(f"s_and_b32 s{T+2}, s{T+2}, 15")
        a(f"s_lshl_b32 s{T+3}, s{T+2}, 19")
        a(f"s_add_u32 s{T+4+2*pos}, s{S_WQB[0]}, s{T+3}")
        a(f"s_lshl_b32 s{T+3}, s{T+2}, 7")
        a(f"s_add_u32 s{T+5+2*pos}, s{S_XB[0]}, s{T+3}")
    a("s_waitcnt lgkmcnt(0)")
    stamp(a, 29, opt)
    a(f"s_cmp_eq_u32 s{S_BR}, 0")
    for i, s_ in [(0, SX), (3, SWQ), (1, SK), (2, SV), (4, SWO)]:
        a(f"s_cselect_b32 s{s_}, s{4+2*i}, s{14+2*i}")
        a(f"s_cselect_b32 s{s_+1}, s{5+2*i}, s{15+2*i}")
    def dma_x(pos, j, sbase, lit):
        a(f"s_add_u32 m0, s{S_MX}, {(pos%3)*4096 + j*1024}")
        a(f"s_add_u32 s{T}, s{sbase}, {lit + j*16384}")
        a.vmem(f"buffer_load_dwordx4 v{VXO if j&1 else VXE}, {srd(SX)}, s{T} offen {opt.nt_x} lds", ("st", pos))
    def dma_wq(pos, j, sbase, lit):
        a(f"s_add_u32 m0, s{S_MW}, {(pos%3)*16384 + j*1024}")
        a(f"s_add_u32 s{T}, s{sbase}, {lit + j*32768}")
        a.vmem(f"buffer_load_dwordx4 v{VWQ}, {srd(SWQ)}, s{T} offen {opt.nt_wq} lds", ("st", pos))
    for pos in range(2):
        for j in range(4): dma_x(pos, j, T+5+2*pos, 0)
        for j in range(4): dma_wq(pos, j, T+4+2*pos, 0)
    stamp(a, 30, opt)
    for s_, lo in [(SOUT, 24), (SDBG, 26), (SWS, 28)]:
        a(f"s_mov_b32 s{s_}, s{lo}")
        a(f"s_mov_b32 s{s_+1}, s{lo+1}")
    a(f"s_or_b32 s{T}, s2, s{S_W}")
    a(f"s_cmp_lg_u32 s{T}, 0")
    a("s_cbranch_scc1 L_nononce")
    a(f"s_memrealtime s[{T+2}:{T+3}]")
    a("s_waitcnt lgkmcnt(0)")
    a(f"s_or_b32 s{T+2}, s{T+2}, 1")
    a(f"v_mov_b32 v240, s{T+2}")
    a("v_mov_b32 v241, 0")
    a(f"buffer_store_dword v240, v241, {srd(SDBG)}, 0 offen sc1")
    a("s_waitcnt vmcnt(0)")
    a.label("L_nononce")
    seg_src(a, VVS, 8, 240, 241)
    seg_src(a, VWO, 11, 240, 241)
    a("v_lshrrev_b32 v240, 4, v0")
    a("v_and_b32 v241, 15, v0")
    a("v_xor_b32 v241, v241, v240")
    a("v_lshlrev_b32 v241, 4, v241")
    a(f"v_lshl_add_u32 v{VKS}, v240, 8, v241")
    tr_base(a, VTB, VR4, 240)
    for i in range(4):
        a(f"v_xor_b32 v240, {i}, v{VR4}")
        a(f"v_lshl_add_u32 v{VA[i]}, v240, 6, v{VTB}")
        a(f"s_add_u32 s{T}, s{S_W}, {i}")
        a(f"s_and_b32 s{T}, s{T}, 3")
        a(f"v_xor_b32 v240, s{T}, v{VR4}")
        a(f"v_lshl_add_u32 v{VWT[i]}, v240, 6, v{VTB}")
    a("v_and_b32 v240, 31, v0")
    a("v_lshrrev_b32 v241, 5, v0")
    a("v_bfe_u32 v242, v0, 1, 3")
    a("v_xor_b32 v241, v241, v242")
    a("v_lshlrev_b32 v241, 4, v241")
    a("v_lshl_add_u32 v240, v240, 7, v241")
    for t in range(4):
        a(f"v_xor_b32 v241, {32*t}, v240")
        a(f"v_add_u32 v{VB[t]}, s{S_MX}, v241")
    a("v_and_b32 v240, 0x13, v0")
    a("v_bfe_u32 v241, v0, 2, 1")
    a("v_lshl_or_b32 v240, v241, 3, v240")
    a("v_bfe_u32 v241, v0, 3, 1")
    a("v_lshl_or_b32 v240, v241, 2, v240")
    a("v_and_b32 v241, 15, v240")
    a("v_lshrrev_b32 v242, 5, v0")
    a("v_xor_b32 v241, v241, v242")
    a("v_lshlrev_b32 v241, 4, v241")
    a("v_lshl_add_u32 v240, v240, 8, v241")
    a(f"s_add_u32 s{T+1}, s{S_MK}, {KR}")
    a(f"v_add_u32 v{VKA}, s{T+1}, v240")
    a(f"v_lshlrev_b32 v{VL16}, 4, v0")
    a(f"s_lshl_b32 s{T}, s{S_G}, 2")
    a(f"s_add_u32 s{T}, s{T}, s{S_W}")
    a(f"s_lshl_b32 s{T+1}, s{T}, 19")
    a(f"s_lshl_b32 s{T+2}, s{S_HL}, 8")
    a(f"s_add_u32 s{T+1}, s{T+1}, s{T+2}")
    for jg in range(4):
        a(f"s_add_u32 s{T+2}, s{S_LAM}, {jg}")
        a(f"s_and_b32 s{T+2}, s{T+2}, 3")
        a(f"s_lshl_b32 s{T+3}, s{T+2}, 17")
        a(f"s_add_u32 s{S_WOG[jg]}, s{T+1}, s{T+3}")
        a(f"s_lshl_b32 s{S_OG[jg]}, s{T+2}, 12")
        a(f"s_add_u32 s{S_Q[jg]}, s{S_G}, {jg+1}")
        a(f"s_and_b32 s{S_Q[jg]}, s{S_Q[jg]}, 3")
    a(f"s_lshl_b32 s{T+1}, s{S_BR}, 2")
    a(f"s_add_u32 s{T+1}, s{T+1}, s{S_R}")
    a(f"s_lshl_b32 s{S_OB}, s{T+1}, 20")
    a(f"s_lshl_b32 s{T+2}, s{T}, 14")
    a(f"s_add_u32 s{S_OB}, s{S_OB}, s{T+2}")
    a(f"s_lshl_b32 s{S_OW[0]}, s{S_BR}, 22")
    a(f"s_add_u32 s{S_OW[0]}, s{S_OW[0]}, s{S_KV}")
    a(f"s_add_u32 s{S_OW[1]}, s{S_OW[0]}, 4096")
    a(f"s_lshl_b32 s{T+2}, s{T+1}, 2")
    a(f"s_add_u32 s{T+2}, s{T+2}, s{S_G}")
    a(f"s_lshl_b32 s{T+2}, s{T+2}, 9")
    a(f"s_add_u32 s{T+2}, s{T+2}, {FO_BASE}")
    a(f"s_lshl_b32 s{T+3}, s{S_W}, 7")
    a(f"s_add_u32 s{S_FOR}, s{T+2}, s{T+3}")
    a(f"s_lshr_b32 s{T+3}, s{S_HL}, 1")
    a(f"s_lshl_b32 s{T+3}, s{T+3}, 7")
    a(f"s_add_u32 s{S_FOW}, s{T+2}, s{T+3}")
    a(f"s_and_b32 s{T+3}, s{S_HL}, 1")
    a(f"s_lshl_b32 s{T+3}, s{T+3}, 2")
    a(f"s_add_u32 s{T+3}, s{T+3}, s{S_W}")
    a(f"s_lshl_b32 s{T+3}, s{T+3}, 2")
    a(f"s_add_u32 s{S_FOW}, s{S_FOW}, s{T+3}")
    a(f"s_lshl_b32 s{T+1}, s{T+1}, 3")
    a(f"s_add_u32 s{T+1}, s{T+1}, s{S_HL}")
    a(f"s_lshl_b32 s{T+2}, s{T+1}, 18")
    a(f"s_add_u32 s{T+2}, s{T+2}, {PART_BASE}")
    a(f"s_lshl_b32 s{T+3}, s{T}, 12")
    a(f"s_add_u32 s{S_PB}, s{T+2}, s{T+3}")
    a(f"s_lshl_b32 s{T+3}, s{S_G}, 16")
    a(f"s_add_u32 s{S_PR}, s{T+2}, s{T+3}")
    a(f"s_lshl_b32 s{T+3}, s{S_W}, 12")
    a(f"s_add_u32 s{S_PR}, s{S_PR}, s{T+3}")
    a(f"s_lshl_b32 s{T+2}, s{T+1}, 11")
    a(f"s_lshl_b32 s{T+3}, s{S_W}, 7")
    a(f"s_add_u32 s{T+2}, s{T+2}, s{T+3}")
    a(f"s_add_u32 s{T+2}, s{T+2}, {FP_BASE}")
    a(f"s_lshl_b32 s{T+3}, s{S_G}, 9")
    a(f"s_add_u32 s{S_FPR}, s{T+2}, s{T+3}")
    a(f"s_lshl_b32 s{T+3}, s{S_G}, 2")
    a(f"s_add_u32 s{S_FPB}, s{T+2}, s{T+3}")
    a(f"s_lshl_b32 s{T+2}, s{S_R}, 2")
    a(f"s_add_u32 s{T+2}, s{T+2}, s{S_G}")
    a(f"s_lshl_b32 s{T+2}, s{T+2}, 17")
    a(f"s_lshl_b32 s{T+3}, s{S_BR}, 11")
    a(f"s_add_u32 s{T+2}, s{T+2}, s{T+3}")
    a(f"s_lshl_b32 s{T+3}, s{S_HL}, 8")
    a(f"s_add_u32 s{T+2}, s{T+2}, s{T+3}")
    a(f"s_lshl_b32 s{T+3}, s{S_W}, 6")
    a(f"s_add_u32 s{S_OUTB}, s{T+2}, s{T+3}")

    SLOT = {"w0": (S_MW, 0), "w1": (S_MW, 16384), "w2": (S_MW, 32768),
            "x0": (S_MX, 0), "x1": (S_MX, 4096), "x2": (S_MX, 8192),
            "k0": (S_MK, KR), "k1": (S_MK, KR + 4096), "v0": (S_MK, VR), "v1": (S_MK, VR + 4096)}
    def dma_wo(pos, j, slot):
        sb, off = SLOT[slot]
        a(f"s_add_u32 m0, s{sb}, {off + j*1024}")
        a(f"s_add_u32 s{T}, s{S_WOG[pos>>2]}, {(16*(pos&3)+4*j)*2048}")
        a.vmem(f"buffer_load_dwordx4 v{VWO}, {srd(SWO)}, s{T} offen {opt.nt_wo} lds", ("wo", pos))
    def tr_wo_items(pos, slot):
        sb, off = SLOT[slot]
        it = []
        for s4 in range(4):
            def f(s4=s4):
                if s4 == 0:
                    a.wait_vm(("wo", pos))
                    a(f"s_add_u32 s{T+1}, s{sb}, {off}")
                a(f"v_add_u32 v{VT2}, s{T+1}, v{VWT[s4]}")
                for h2 in range(2):
                    a.lds(f"ds_read_b64_tr_b16 {ar(16*pos+4*s4+2*h2,2)}, v{VT2} offset:{4*h2*256}", ("wo", pos))
            it.append(f)
        return it
    def dma_kv(pc, j):
        half = int(pc[1])
        if pc[0] == "K":
            a(f"s_add_u32 m0, s{S_MK}, {KR + half*4096}")
            a(f"s_add_u32 s{T}, s{S_KV}, {half*4096}")
            a(f"v_xor_b32 v{TT}, {64*j}, v{VKS}")
            a.vmem(f"buffer_load_dwordx4 v{TT}, {srd(SK)}, s{T} offen offset:{j*1024} {opt.nt_kv} lds", "k")
        else:
            a(f"s_add_u32 m0, s{S_MK}, {VR + half*4096}")
            a(f"s_add_u32 s{T}, s{S_KV}, {half*4096}")
            a.vmem(f"buffer_load_dwordx4 v{VVS}, {srd(SV)}, s{T} offen offset:{j*1024} {opt.nt_kv} lds", "v")

    def reads(n):
        s, t = n >> 2, n & 3
        slot = s % 3
        fs = n & 1
        r = [(f"ds_read_b128 {vr(FB[fs],4)}, v{VB[t]} offset:{slot*4096}", ("b", n))]
        for i in range(4):
            for h2 in range(2):
                r.append((f"ds_read_b64_tr_b16 {vr(FA[fs]+4*i+2*h2,2)}, v{VA[i]} offset:{slot*16384 + (16*t+4*h2)*256}", ("a", n, i)))
        return r
    def mfma(n, i):
        fs = n & 1
        c = "0" if n == 0 else vr(ACC+16*i, 16)
        a.wait_lg([("b", n), ("a", n, i)])
        a(f"{MF} {vr(ACC+16*i,16)}, {vr(FA[fs]+4*i,4)}, {vr(FB[fs],4)}, {c}")

    allex = [p for grp in (opt.ex, opt.mid, opt.init) for p in grp.replace("|", ",").split(",") if p]
    w_early = sorted(int(p[1]) for p in allex if p[0] == "W")
    rest = [p for p in range(4) if p not in w_early] + [4, 5, 8, 9, 12, 13, 6, 7, 10, 11, 14, 15]
    late_slots = ["w1", "x1", "w2", "x2", "x0", "k0", "k1", "v0", "v1", "w0"]

    stamp(a, 31, opt)
    if opt.stamps:
        a("s_waitcnt vmcnt(15)")
        stamp(a, 32, opt)
        a("s_waitcnt vmcnt(12)")
        stamp(a, 33, opt)
        a("s_waitcnt vmcnt(8)")
        stamp(a, 34, opt)
    for lam in range(1, 4):
        a(f"s_cmp_eq_u32 s{S_LAM}, {lam}")
        a(f"s_cbranch_scc1 L_p1_{lam}")
    vm0, lg0 = list(a.vm), list(a.lg)
    end_state = None
    for lam in range(4):
        a.vm, a.lg = list(vm0), list(lg0)
        a.label(f"L_p1_{lam}")
        order, extras = sched(lam, opt)
        kv_issue = {}
        for st, l in extras.items():
            for pc in l:
                if pc[0] in "KV": kv_issue[pc.lower()] = st
        assert len(kv_issue) == 4 and max(kv_issue.values()) <= 11, kv_issue
        busy = {}
        wslot = {}; consume = {}
        for st in sorted(extras):
            for pc in extras[st]:
                if pc[0] == "W":
                    cs = max(st + 3, 1)
                    cand = [k for k in ("v1", "v0", "k1", "k0") if kv_issue[k] > cs and busy.get(k, -9) < st]
                    assert cand, (lam, pc, st, kv_issue)
                    wslot[pc] = cand[0]; busy[cand[0]] = cs
                    consume.setdefault(cs, []).append(pc)
        def extra_items(st):
            it = []
            for pc in extras.get(st, []):
                for j in range(4):
                    if pc[0] == "W": it.append(lambda pc=pc, j=j: dma_wo(int(pc[1]), j, wslot[pc]))
                    else: it.append(lambda pc=pc, j=j: dma_kv(pc, j))
            return it
        for f in extra_items(-1): f()
        for s in range(16):
            a.c(f"---- class {lam} stage {s} chunk {order[s]}")
            if a.lg: a.wait_lg_all()
            a.wait_vm(("st", s))
            a("s_barrier")
            stamp(a, 1 + s, opt)
            dm = []
            if s + 2 < 16:
                c = order[s + 2]
                for j in range(4): dm.append(lambda j=j, c=c: dma_x(s + 2, j, S_XB[c >> 3], (c & 7) * 128))
                for j in range(4): dm.append(lambda j=j, c=c: dma_wq(s + 2, j, S_WQB[c >> 3], (c & 7) << 19))
            else:
                for k in range(2):
                    idx = (s - 14) * 2 + k
                    for j in range(4): dm.append(lambda j=j, idx=idx: dma_wo(rest[idx], j, late_slots[idx]))
            dm += extra_items(s)
            if s == 8:
                def non():
                    a(f"v_mov_b32 v{TT}, 0")
                    a.vmem(f"buffer_load_dword v{VNON}, v{TT}, {srd(SDBG)}, 0 offen sc1", "nonce")
                dm.append(non)
            lw = []
            for pc in consume.get(s, []): lw += tr_wo_items(int(pc[1]), wslot[pc])
            if s == 14:
                for u in range(8):
                    def f(u=u):
                        if u == 0: a.wait_vm(["k", "v", "nonce"])
                        a(f"v_xor_b32 v{VT2}, {32*u}, v{VKA}")
                        a.lds(f"ds_read_b128 {vr(KF+4*u,4)}, v{VT2}", ("k", u))
                    lw.append(f)
            if s == 15:
                for i in range(4):
                    for u in range(2):
                        def f(i=i, u=u):
                            if i == 0 and u == 0: a(f"s_add_u32 s{T+1}, s{S_MK}, {VR}")
                            if u == 0: a(f"v_add_u32 v{VT2}, s{T+1}, v{VA[i]}")
                            for h2 in range(2):
                                a.lds(f"ds_read_b64_tr_b16 {vr(VF+8*i+4*u+2*h2,2)}, v{VT2} offset:{(16*u+4*h2)*256}", ("v", i, u, h2))
                        lw.append(f)
            nd = len(dm)
            gap = 0
            for t in range(4):
                n = 4 * s + t
                rd = reads(n)
                for i in range(4):
                    if n > 0 and i == 0: mfma(n - 1, i)
                    for (ins, tag) in rd[3*i:3*i+3]:
                        a.lds(ins, tag)
                    if i == 3:
                        for _ in range(2):
                            if lw: lw.pop(0)()
                    if n > 0 and i < 3: mfma(n - 1, i + 1)
                    gap += 1
                    want = (gap * nd + 15) // 16
                    while nd - len(dm) < want: dm.pop(0)()
            assert not dm and not lw, (s, len(dm), len(lw))
        st_ = (list(a.vm), list(a.lg))
        if end_state is None: end_state = st_
        assert end_state == st_, (end_state, st_)
        if lam < 3: a("s_branch L_common")
    a.label("L_common")
    ri = 4
    pend = [(rest[i], late_slots[i]) for i in range(4)]
    adm = []
    for k in range(opt.att_dma):
        pos, sl = rest[ri + k], late_slots[ri + k]
        pend.append((pos, sl))
        for j in range(4): adm.append(lambda pos=pos, sl=sl, j=j: dma_wo(pos, j, sl))
    ri += opt.att_dma
    def ad():
        if adm: adm.pop(0)()
    for i in range(4): mfma(63, i)
    a.wait_lg_all()
    stamp(a, 17, opt)
    a.c("---- attention")
    a(f"v_readfirstlane_b32 s{S_NONCE}, v{VNON}")
    CS = 128 ** -0.5 * 1.4426950408889634
    a(f"s_mov_b32 s{T+2}, {f32(CS)}")
    ad()
    a("s_nop 3")
    def cvq(i):
        for p in range(8):
            a(f"v_cvt_pk_bf16_f32 v{QP+8*i+p}, v{ACC+16*i+2*p}, v{ACC+16*i+2*p+1}")
    cvq(0); cvq(1)
    for u in range(8):
        c = "0" if u == 0 else vr(SS, 16)
        a(f"{MF} {vr(SS,16)}, {vr(KF+4*u,4)}, {vr(QP+4*u,4)}, {c}")
        if u == 0: cvq(2)
        if u == 1: cvq(3)
        if u in (3, 5, 7): ad()
    a("s_nop 7")
    a("s_nop 0")
    a(f"v_max3_f32 v240, v{SS}, v{SS+1}, v{SS+2}")
    a(f"v_max3_f32 v241, v{SS+3}, v{SS+4}, v{SS+5}")
    a(f"v_max3_f32 v242, v{SS+6}, v{SS+7}, v{SS+8}")
    a(f"v_max3_f32 v243, v{SS+9}, v{SS+10}, v{SS+11}")
    a(f"v_max3_f32 v240, v240, v{SS+12}, v{SS+13}")
    a(f"v_max3_f32 v241, v241, v{SS+14}, v{SS+15}")
    a(f"v_max3_f32 v240, v240, v242, v243")
    a(f"v_max_f32 v240, v240, v241")
    a("v_mov_b32 v241, v240")
    a("s_nop 1")
    a("v_permlane32_swap_b32 v240, v241")
    a("s_nop 1")
    a("v_max_f32 v240, v240, v241")
    a(f"v_mul_f32 v240, s{T+2}, v240")
    ad()
    for k in range(16):
        a(f"v_fma_f32 v{SS+k}, v{SS+k}, s{T+2}, -v240")
    ad()
    for k in range(16):
        a(f"v_exp_f32 v{SS+k}, v{SS+k}")
        if k % 8 == 7: ad()
    a("s_nop 0")
    a(f"v_add_f32 v241, v{SS}, v{SS+1}")
    a(f"v_add_f32 v242, v{SS+2}, v{SS+3}")
    for k in range(4, 16, 2):
        a(f"v_add_f32 v241, v241, v{SS+k}")
        a(f"v_add_f32 v242, v242, v{SS+k+1}")
    a("v_add_f32 v241, v241, v242")
    a("v_mov_b32 v242, v241")
    a("s_nop 1")
    a("v_permlane32_swap_b32 v241, v242")
    a("s_nop 1")
    a("v_add_f32 v241, v241, v242")
    a("v_rcp_f32 v241, v241")
    ad()
    a("s_nop 0")
    for k in range(16):
        a(f"v_mul_f32 v{SS+k}, v{SS+k}, v241")
    for p in range(8):
        a(f"v_cvt_pk_bf16_f32 v{PP+p}, v{SS+2*p}, v{SS+2*p+1}")
    ad()
    a("s_nop 1")
    def ost(i):
        cvq(i)
        for u2 in range(2):
            u = 2 * i + u2
            a.vmem(f"buffer_store_dwordx4 {vr(QP+4*u,4)}, v{VL16}, {srd(SWS)}, s{S_OW[u>>2]} offen offset:{(u&3)*1024} sc1", "o")
    for i in range(4):
        a(f"{MF} {vr(ACC+16*i,16)}, {vr(VF+8*i,4)}, {vr(PP,4)}, 0")
        a(f"{MF} {vr(ACC+16*i,16)}, {vr(VF+8*i+4,4)}, {vr(PP+4,4)}, {vr(ACC+16*i,16)}")
    a("s_nop 5")
    ost(0); ost(1); ost(2); ost(3)
    stamp(a, 18, opt)
    while adm: ad()
    a("s_barrier")
    while ri < min(len(rest), len(late_slots)):
        pos, sl = rest[ri], late_slots[ri]
        pend.append((pos, sl))
        for j in range(4): dma_wo(pos, j, sl)
        ri += 1
    a(f"s_cmp_lg_u32 s{S_NONCE}, 0")
    a("s_cbranch_scc1 L_havenonce")
    a(f"s_mov_b32 s{S_CNT}, 0")
    a("v_mov_b32 v240, 0")
    a.label("L_nonce_spin")
    a(f"buffer_load_dword v{VNON}, v240, {srd(SDBG)}, 0 offen sc1")
    a("s_waitcnt vmcnt(0)")
    a(f"v_readfirstlane_b32 s{S_NONCE}, v{VNON}")
    a(f"s_add_u32 s{S_CNT}, s{S_CNT}, 1")
    a(f"s_cmp_gt_u32 s{S_CNT}, {SPIN_MAX}")
    a("s_cbranch_scc1 L_havenonce")
    a(f"s_cmp_eq_u32 s{S_NONCE}, 0")
    a("s_cbranch_scc1 L_nonce_spin")
    a.label("L_havenonce")
    VRW = [3, 4, 5]; VRR = 6; VZ = 12; VNV = 13; VFL = 14; VFA = 15; VFP = 11; VOUT = 10
    for sl in range(1, 4):
        a(f"s_add_u32 s{T}, s{S_W}, {sl}")
        a(f"s_and_b32 s{T}, s{T}, 3")
        a(f"s_mul_i32 s{T}, s{T}, 12288")
        a(f"s_add_u32 s{T}, s{T}, {(sl-1)*4096}")
        a(f"v_add_u32 v{VRW[sl-1]}, s{T}, v{VL16}")
    a(f"s_mul_i32 s{T}, s{S_W}, 12288")
    a(f"v_add_u32 v{VRR}, s{T}, v{VL16}")
    a(f"v_mov_b32 v{VZ}, 0")
    a(f"v_mov_b32 v{VNV}, s{S_NONCE}")
    a(f"v_and_b32 v{VFA}, 7, v0")
    a(f"v_lshlrev_b32 v{VFA}, 2, v{VFA}")
    a(f"s_add_u32 s{T}, s{S_G}, 1")
    a(f"v_add_u32 v{VFP}, s{T}, v0")
    a(f"v_and_b32 v{VFP}, 3, v{VFP}")
    a(f"v_lshlrev_b32 v{VFP}, 2, v{VFP}")
    a(f"v_and_b32 v{VOUT}, 31, v0")
    a(f"v_lshlrev_b32 v{VOUT}, 12, v{VOUT}")
    a(f"v_lshrrev_b32 v240, 5, v0")
    a(f"v_lshl_add_u32 v{VOUT}, v240, 4, v{VOUT}")
    a(f"s_mov_b32 s{S_DONE}, 0")
    def flag_store(soff):
        a("s_mov_b64 exec, 1")
        a.vmem(f"buffer_store_dword v{VNV}, v{VZ}, {srd(SWS)}, {soff} offen sc1", "flag")
        a("s_mov_b64 exec, -1")
    published = False
    def tr_one():
        nonlocal ri, published
        pos, sl = pend.pop(0)
        if not published and "o" in a.vm and a._cnt(a.vm, ("wo", pos)) > a.vm.index("o"):
            a.wait_vm("o"); flag_store(f"s{S_FOW}"); published = True
            stamp(a, 19, opt)
        for f in tr_wo_items(pos, sl): f()
        if ri < len(rest):
            a.wait_lg_all()
            pend.append((rest[ri], sl))
            for j in range(4): dma_wo(rest[ri], j, sl)
            ri += 1
    while pend: tr_one()
    assert published
    stamp(a, 20, opt)
    a(f"s_mov_b32 s{S_CNT}, 0")
    a.label("L_pollo")
    a(f"buffer_load_dword v{VFL}, v{VFA}, {srd(SWS)}, s{S_FOR} offen sc1")
    a("s_waitcnt vmcnt(0)"); a.vm = []
    a(f"v_cmp_ne_u32 vcc, s{S_NONCE}, v{VFL}")
    a(f"s_add_u32 s{S_CNT}, s{S_CNT}, 1")
    a(f"s_cmp_gt_u32 s{S_CNT}, {SPIN_MAX}")
    a(f"s_cbranch_scc1 L_pollo_done")
    a("s_nop 1")
    a(f"s_cbranch_vccnz L_pollo")
    a.label("L_pollo_done")
    stamp(a, 21, opt)
    AC = [16, 80]; OFB = 144; NOF = 24
    def load_o(gi):
        n, f = gi >> 4, gi & 15
        if f % 4 == 0:
            a(f"s_lshl_b32 s{T+2}, s{S_Q[n]}, 18")
            a(f"s_add_u32 s{T+2}, s{T+2}, s{S_OB}")
            a(f"s_add_u32 s{T+2}, s{T+2}, s{S_OG[f>>2]}")
        a.vmem(f"buffer_load_dwordx4 {vr(OFB+4*(gi%NOF),4)}, v{VL16}, {srd(SWS)}, s{T+2} offen offset:{(f&3)*1024} sc1", ("o", gi))
    INIT = 8
    nxt = 0
    for gi in range(INIT): load_o(gi)
    nxt = INIT
    a.wait_lg_all()
    a("s_barrier")
    def red_items(n):
        A0 = AC[n & 1]; rb = (n & 1) * 49152
        it = []
        for sl in range(1, 4):
            for j in range(4):
                it.append(lambda sl=sl, j=j: a.lds(f"ds_write_b128 v{VRW[sl-1]}, {vr(A0+16*sl+4*j,4)} offset:{rb + j*1024}", "rw"))
        it.append(None)
        def bar():
            a.wait_lg_all(); a("s_barrier")
        it.append(bar)
        for k in range(0, 12, 2):
            def rd2(k=k):
                for kk in (k, k + 1):
                    a.lds(f"ds_read_b128 {vr(A0+16+4*kk,4)}, v{VRR} offset:{rb + kk*1024}", ("rr", kk))
            it.append(rd2)
        for j in range(4):
            for src in range(3):
                def adds(src=src, j=j):
                    a.wait_lg(("rr", 4*src+j))
                    for e in range(4):
                        a(f"v_add_f32 v{A0+4*j+e}, v{A0+4*j+e}, v{A0+16+16*src+4*j+e}")
                it.append(adds)
            if n < 3:
                def st(j=j):
                    if j == 0:
                        a(f"s_lshl_b32 s{T+3}, s{S_Q[n]}, 16")
                        a(f"s_add_u32 s{T+3}, s{T+3}, s{S_PB}")
                    a.vmem(f"buffer_store_dwordx4 {vr(A0+4*j,4)}, v{VL16}, {srd(SWS)}, s{T+3} offen offset:{j*1024} sc1", ("p", n))
                it.append(st)
        return it
    def pub(n):
        a.wait_vm(("p", n))
        a(f"s_lshl_b32 s{T}, s{S_Q[n]}, 9")
        a(f"s_add_u32 s{T}, s{T}, s{S_FPB}")
        flag_store(f"s{T}")
    PT = AC[0] + 16
    tcount = [0]
    def try_partials():
        tcount[0] += 1
        a(f"v_cmp_eq_u32 vcc, s{S_NONCE}, v{VFL}")
        a("s_nop 3")
        a(f"s_andn2_b32 s{T+4}, vcc_lo, s{S_DONE}")
        a(f"s_and_b32 s{T+4}, s{T+4}, 7")
        a(f"s_or_b32 s{S_DONE}, s{S_DONE}, s{T+4}")
        for k in range(3):
            lab = f"L_tp{tcount[0]}_{k}"
            a(f"s_bitcmp1_b32 s{T+4}, {k}")
            a(f"s_cbranch_scc0 {lab}")
            a(f"s_lshl_b32 s{T}, s{S_Q[k]}, 14")
            a(f"s_add_u32 s{T}, s{T}, s{S_PR}")
            for j in range(4):
                a(f"buffer_load_dwordx4 {vr(PT+16*k+4*j,4)}, v{VL16}, {srd(SWS)}, s{T} offen offset:{j*1024} sc1")
            a.label(lab)
    for n in range(4):
        a.c(f"---- strip {n}")
        A0 = AC[n & 1]
        items = red_items(n - 1) if n else []
        m = 0
        for ks in range(16):
            gi = 16 * n + ks
            a.wait_vm(("o", gi))
            for sl in range(4):
                c = "0" if ks == 0 else vr(A0+16*sl, 16)
                a(f"{MF} {vr(A0+16*sl,16)}, {ar(16*ks+4*sl,4)}, {vr(OFB+4*(gi%NOF),4)}, {c}")
                m += 1
                if sl in (1, 3) and nxt < 64 and nxt <= gi + opt.ahead - (1 if sl == 1 else 0):
                    load_o(nxt); nxt += 1
                if m == 2 and items: a("s_nop 7")
                if m >= 3 and items:
                    f = items.pop(0)
                    if f: f()
            if n >= 2 and ks == 1: pub(n - 2)
            if ks == 15: assert not items
            if n == 3 and ks == 10:
                a.vmem(f"buffer_load_dword v{VFL}, v{VFP}, {srd(SWS)}, s{S_FPR} offen sc1", "pf")
            if n == 3 and ks == 15:
                a.wait_vm("pf")
                assert not a.vm
                pub(2)
                a.vm = []
                try_partials()
        stamp(a, 22 + n, opt)
    a(f"buffer_load_dword v{VFL}, v{VFP}, {srd(SWS)}, s{S_FPR} offen sc1")
    a("s_nop 3")
    for f in red_items(3):
        if f: f()
    A0 = AC[1]
    stamp(a, 26, opt)
    a(f"s_mov_b32 s{S_CNT}, 0")
    a.label("L_pollp")
    a("s_waitcnt vmcnt(0)")
    try_partials()
    a(f"s_cmp_eq_u32 s{S_DONE}, 7")
    a("s_cbranch_scc1 L_pollp_done")
    a(f"s_add_u32 s{S_CNT}, s{S_CNT}, 1")
    a(f"s_cmp_gt_u32 s{S_CNT}, {SPIN_MAX}")
    a("s_cbranch_scc1 L_pollp_done")
    a(f"buffer_load_dword v{VFL}, v{VFP}, {srd(SWS)}, s{S_FPR} offen sc1")
    a("s_branch L_pollp")
    a.label("L_pollp_done")
    stamp(a, 27, opt)
    a("s_waitcnt vmcnt(0)")
    for k in range(3):
        for e in range(16):
            a(f"v_add_f32 v{A0+e}, v{A0+e}, v{PT+16*k+e}")
    for p in range(8):
        a(f"v_cvt_pk_bf16_f32 v{OFB+p}, v{A0+2*p}, v{A0+2*p+1}")
    a(f"buffer_store_dwordx4 {vr(OFB,4)}, v{VOUT}, {srd(SOUT)}, s{S_OUTB} offen")
    a(f"buffer_store_dwordx4 {vr(OFB+4,4)}, v{VOUT}, {srd(SOUT)}, s{S_OUTB} offen offset:32")
    if opt.stamps:
        a("s_waitcnt vmcnt(0)")
        stamp(a, 28, opt)
        dump_stamps(a, opt)
    a.label(end)
    a("s_endpgm")

def build(opt):
    nm = NAME + "_kernel"
    out = []
    out.append("; @launch grid=(256,1,1) block=(256,1,1) lds=163840")
    out.append('.amdgcn_target "amdgcn-amd-amdhsa--gfx950"')
    out.append(".text")
    a = Asm()
    gen(a, opt)
    out.append(f".globl {nm}\n.p2align 8\n.type {nm},@function\n{nm}:")
    out.append(a.text())
    out.append('.section .rodata,"a"')
    out.append(f""".p2align 6
.amdhsa_kernel {nm}
  .amdhsa_next_free_vgpr 512
  .amdhsa_next_free_sgpr 102
  .amdhsa_accum_offset 256
  .amdhsa_group_segment_fixed_size 0
  .amdhsa_kernarg_size 104
  .amdhsa_user_sgpr_count 2
  .amdhsa_user_sgpr_kernarg_segment_ptr 1
  .amdhsa_system_sgpr_workgroup_id_x 1
.end_amdhsa_kernel
""")
    return "\n".join(out)

if __name__ == "__main__":
    opt = Opt()
    for kv in sys.argv[2:]:
        k, v = kv.split("=")
        cur = getattr(opt, k)
        setattr(opt, k, (v == "1") if isinstance(cur, bool) else type(cur)(v))
    open(sys.argv[1], "w").write(build(opt))
```

```python
import sys, struct
from asmlib import *

NAME = "concat_heads__mha_block_cached__gqa_block_cached__near_ridge"
def f32(x): return "0x%08x" % struct.unpack("<I", struct.pack("<f", x))[0]

O_BASE = 0
PART_BASE = 8 << 20
FO_BASE = 24 << 20
FP_BASE = (24 << 20) + (1 << 16)
STAMP_BASE = 28 << 20
WS_USED = 32 << 20
SPIN_MAX = 4000

SX, SK, SV, SWQ, SWO, SWS, SOUT, SDBG = 32, 36, 40, 44, 48, 52, 56, 60
S_W, S_BR, S_G, S_HL, S_R, S_B = 64, 65, 66, 67, 68, 69
S_T = 70
S_MX, S_H = 78, 79
S_WQB = [80, 81]; S_XB = [82, 83]
S_LAM = 84
S_C = 91
S_KV, S_MW, S_MK = 85, 86, 87
S_NONCE, S_CNT, S_DONE = 88, 89, 90
S_U = 92
S_WOG = [4, 5, 6, 7]; S_OG = [8, 9, 10, 11]; S_Q = [12, 13, 14, 15]
S_OB, S_PB, S_FOW, S_FOR, S_FPB, S_OUTB, S_PR, S_FPR = 16, 17, 18, 19, 20, 21, 22, 23
S_OW = [26, 27]
S_XCC, S_XEXP, S_XOFF, S_XV = 20, 23, 24, 25

class Opt:
    nt_x = ""; nt_wq = ""; nt_kv = "nt"; nt_wo = ""
    stamps = False
    clk = "s_memrealtime"
    lead = 2
    half = True
    ex = "K0,K1|V0,V1|W0,W1"
    mid = "||"
    n14 = 8; n15 = 8; natt = 8
    pre_flag = 8
    codepf = True
    fill = 4

VSTAMP = 1
def stamp(a, idx, opt):
    if opt.stamps:
        a(f"{opt.clk} s[30:31]")
        a("s_waitcnt lgkmcnt(0)"); a.lg = []
        a(f"v_writelane_b32 v{VSTAMP}, s30, {idx}")

def dump_stamps(a, opt):
    if not opt.stamps: return
    a(f"s_lshl_b32 s{S_T}, s2, 2")
    a(f"s_add_u32 s{S_T}, s{S_T}, s{S_W}")
    a(f"s_lshl_b32 s{S_T}, s{S_T}, 8")
    a(f"s_add_u32 s{S_T}, s{S_T}, {STAMP_BASE}")
    a("v_lshlrev_b32 v2, 2, v0")
    a(f"buffer_store_dword v{VSTAMP}, v2, s[{SWS}:{SWS+3}], s{S_T} offen")
    a("s_waitcnt vmcnt(0)")

def seg_src(a, dst, rowstride_shift, t1, t2):
    a(f"v_lshrrev_b32 v{t1}, 4, v0")
    a(f"v_bfe_u32 v{t2}, v0, 2, 2")
    a(f"v_xor_b32 v{t2}, v{t2}, v{t1}")
    a(f"v_lshlrev_b32 v{t2}, 6, v{t2}")
    a(f"v_lshl_add_u32 v{dst}, v{t1}, {rowstride_shift}, v{t2}")
    a(f"v_and_b32 v{t2}, 3, v0")
    a(f"v_lshl_add_u32 v{dst}, v{t2}, 4, v{dst}")

def tr_base(a, dst, r4, t1):
    a(f"v_bfe_u32 v{r4}, v0, 2, 2")
    a(f"v_lshrrev_b32 v{t1}, 5, v0")
    a(f"v_lshl_add_u32 v{t1}, v{t1}, 3, v{r4}")
    a(f"v_lshlrev_b32 v{dst}, 8, v{t1}")
    a(f"v_bfe_u32 v{t1}, v0, 4, 1")
    a(f"v_lshl_add_u32 v{dst}, v{t1}, 5, v{dst}")
    a(f"v_and_b32 v{t1}, 1, v0")
    a(f"v_lshl_add_u32 v{dst}, v{t1}, 4, v{dst}")
    a(f"v_bfe_u32 v{t1}, v0, 1, 1")
    a(f"v_lshl_add_u32 v{dst}, v{t1}, 3, v{dst}")

MF = "v_mfma_f32_32x32x16_bf16"
srd = lambda r: f"s[{r}:{r+3}]"

def sched(lam, opt):
    order = list(range(16))
    mpos = []
    for c in range(lam, 16, 4):
        p = order.index(c)
        q = max(0, p - opt.lead)
        if c < 4 and opt.bal: q = 0
        order.pop(p); order.insert(q, c)
        if c >= 4: mpos.append(q)
    if opt.stag:
        order = [(4 * lam + i) & 15 for i in range(16)]
        mpos = [2 + lam, 6 + lam, 10 + lam]
    extras = {}
    for j, lst in enumerate(opt.ex.split("|")):
        for pc in filter(None, lst.split(",")):
            extras.setdefault(mpos[j] - 2, []).append(pc)
    for j, lst in enumerate(opt.mid.split("|")):
        for pc in filter(None, lst.split(",")):
            extras.setdefault(mpos[j], []).append(pc)
    for it in filter(None, opt.ab.split(";")):
        st, lst = it.split(":")
        for pc in lst.split(","): extras.setdefault(int(st), []).append(pc)
    return order, extras

class Rec:
    def __init__(self): self.L = []
    def __call__(self, s): self.L.append(s)

def gen(a, opt):
    end = "L_end"
    T = S_T; U = S_U
    stamp(a, 0, opt)
    a("s_cmp_ge_u32 s2, 256")
    a(f"s_cbranch_scc1 {end}")
    a("s_load_dwordx16 s[4:19], s[0:1], 0")
    a("s_load_dwordx4 s[20:23], s[0:1], 64")
    a("s_load_dwordx4 s[24:27], s[0:1], 80")
    a("s_load_dwordx2 s[28:29], s[0:1], 96")
    if opt.codepf:
        a(f"s_getpc_b64 s[{U}:{U+1}]")
        a.label("L_pc")
        a(f"s_lshr_b32 s{T}, s2, 3")
        a(f"v_lshrrev_b32 v240, 4, v0")
        a(f"v_lshl_add_u32 v240, s{T}, 4, v240")
        a(f"v_lshlrev_b32 v240, 7, v240")
        a(f"v_min_u32 v240, L_codeend-L_pc-4, v240")
        a(f"v_mov_b32 v241, s{U+1}")
        a(f"v_add_co_u32 v240, vcc, s{U}, v240")
        a("s_nop 1")
        a(f"v_addc_co_u32 v241, vcc, 0, v241, vcc")
        a.vmem(f"global_load_dword v241, v[240:241], off", "cpf")
    a("v_lshrrev_b32 v2, 6, v0")
    a("v_and_b32 v0, 63, v0")
    a(f"v_readfirstlane_b32 s{S_W}, v2")
    a(f"s_and_b32 s{T}, s2, 7")
    a(f"s_lshr_b32 s{T+1}, s2, 3")
    a(f"s_lshr_b32 s{S_BR}, s{T}, 2")
    a(f"s_and_b32 s{S_G}, s{T}, 3")
    if opt.map == 0:
        a(f"s_and_b32 s{S_HL}, s{T+1}, 7")
        a(f"s_lshr_b32 s{S_R}, s{T+1}, 3")
    elif opt.map == 1:
        a(f"s_and_b32 s{S_R}, s{T+1}, 3")
        a(f"s_lshr_b32 s{S_HL}, s{T+1}, 2")
    elif opt.map == 2:
        a(f"s_lshr_b32 s{S_HL}, s{T+1}, 2")
        a(f"s_sub_u32 s{S_R}, s{T+1}, s{S_HL}")
        a(f"s_and_b32 s{S_R}, s{S_R}, 3")
    VWQ, VXE, VXO, VKS, VVS, VWO = 2, 3, 4, 5, 6, 7
    VA = [8, 9, 10, 11]; VB = [12, 13, 14, 15]
    ACC = 16
    FA = [80, 100]; FB = [96, 116]
    KF, VF, QP, SS, PP = 120, 152, 184, 216, 232
    TT = 240
    VWT = [244, 245, 246, 247]
    VKA, VL16, VTB, VR4, VNON, VT2 = 248, 249, 250, 251, 252, 253
    F1, F2 = 254, 255
    VCEN, VCOF, VNOF = 241, 242, 243
    XR, KR, VR = 49152, 98304, 131072
    a(f"s_lshl_b32 s{S_B}, s{S_R}, 2")
    a(f"s_add_u32 s{S_B}, s{S_B}, s{S_W}")
    a(f"s_lshl_b32 s{S_H}, s{S_G}, 3")
    a(f"s_add_u32 s{S_H}, s{S_H}, s{S_HL}")
    a(f"s_lshl_b32 s{T}, s{S_W}, 17")
    a(f"s_lshl_b32 s{T+1}, s{S_H}, 8")
    a(f"s_add_u32 s{T}, s{T}, s{T+1}")
    a(f"s_lshl_b32 s{T+1}, s{S_B}, 16")
    if opt.half: a(f"s_lshr_b32 s{T+2}, s{S_HL}, 2")
    else: a(f"s_mov_b32 s{T+2}, 0")
    HB = opt.hbit
    a(f"s_lshl_b32 s{T+3}, s{T+2}, {19+HB}")
    a(f"s_add_u32 s{S_WQB[0]}, s{T}, s{T+3}")
    a(f"s_xor_b32 s{T+3}, s{T+3}, {1<<(19+HB)}")
    a(f"s_add_u32 s{S_WQB[1]}, s{T}, s{T+3}")
    a(f"s_lshl_b32 s{T+3}, s{T+2}, {7+HB}")
    a(f"s_add_u32 s{S_XB[0]}, s{T+1}, s{T+3}")
    a(f"s_xor_b32 s{T+3}, s{T+3}, {1<<(7+HB)}")
    a(f"s_add_u32 s{S_XB[1]}, s{T+1}, s{T+3}")
    a(f"s_add_u32 s{S_LAM}, s{S_R}, s{S_HL}")
    a(f"s_and_b32 s{S_LAM}, s{S_LAM}, 3")
    a(f"s_lshl_b32 s{S_MW}, s{S_W}, 12")
    a(f"s_mul_i32 s{S_MX}, s{S_W}, 12288")
    a(f"s_add_u32 s{S_MX}, s{S_MX}, {XR}")
    seg_src(a, VWQ, 13, 242, 243)
    a("v_lshrrev_b32 v242, 3, v0")
    a("v_lshrrev_b32 v243, 4, v0")
    a(f"v_and_b32 v{F1}, 7, v0")
    a(f"v_xor_b32 v{F1}, v{F1}, v243")
    a(f"v_lshlrev_b32 v{F1}, 4, v{F1}")
    a(f"v_lshl_add_u32 v{VXE}, v242, 11, v{F1}")
    a(f"v_xor_b32 v{VXO}, 64, v{VXE}")
    for s_, n in [(SX, 1 << 20), (SWQ, 8 << 20)]:
        a(f"s_mov_b32 s{s_+2}, {n}")
        a(f"s_mov_b32 s{s_+3}, 0x20000")
    ords = [sched(l, opt)[0] for l in range(4)]
    for pos in range(2):
        assert all(not (o[pos] >> HB) & 1 for o in ords)
        pk = sum(ords[l][pos] << (4 * l) for l in range(4))
        a(f"s_lshl_b32 s{T+2}, s{S_LAM}, 2")
        a(f"s_lshr_b32 s{T+2}, {pk}, s{T+2}")
        a(f"s_and_b32 s{T+2}, s{T+2}, 15")
        a(f"s_lshl_b32 s{T+3}, s{T+2}, 19")
        a(f"s_add_u32 s{T+4+2*pos}, s{S_WQB[0]}, s{T+3}")
        a(f"s_lshl_b32 s{T+3}, s{T+2}, 7")
        a(f"s_add_u32 s{T+5+2*pos}, s{S_XB[0]}, s{T+3}")
    a("s_waitcnt lgkmcnt(0)")
    stamp(a, 29, opt)
    a(f"s_cmp_eq_u32 s{S_BR}, 0")
    for i, s_ in [(0, SX), (3, SWQ), (1, SK), (2, SV), (4, SWO)]:
        a(f"s_cselect_b32 s{s_}, s{4+2*i}, s{14+2*i}")
        a(f"s_cselect_b32 s{s_+1}, s{5+2*i}, s{15+2*i}")
    def dma_x(pos, j, sbase, lit):
        a(f"s_add_u32 m0, s{S_MX}, {(pos%3)*4096 + j*1024}")
        a(f"s_add_u32 s{T}, s{sbase}, {lit + j*16384}")
        a.vmem(f"buffer_load_dwordx4 v{VXO if j&1 else VXE}, {srd(SX)}, s{T} offen {opt.nt_x} lds", ("st", pos))
    def dma_wq(pos, j, sbase, lit, lead=False):
        a(f"s_add_u32 m0, s{S_MW}, {(pos%3)*16384 + j*1024}")
        a(f"s_add_u32 s{T}, s{sbase}, {lit + j*32768}")
        a.vmem(f"buffer_load_dwordx4 v{VWQ}, {srd(SWQ)}, s{T} offen {opt.nt_lq if lead else opt.nt_wq} lds", ("st", pos))
    for j in range(4): dma_x(0, j, T+5, 0)
    for j in range(4): dma_wq(0, j, T+4, 0, True)
    stamp(a, 30, opt)
    tr_base(a, VTB, VR4, 242)
    for i in range(4):
        a(f"v_xor_b32 v242, {i}, v{VR4}")
        a(f"v_lshl_add_u32 v{VA[i]}, v242, 6, v{VTB}")
    a("v_and_b32 v242, 31, v0")
    a("v_lshrrev_b32 v243, 5, v0")
    a(f"v_bfe_u32 v{F1}, v0, 1, 3")
    a(f"v_xor_b32 v243, v243, v{F1}")
    a("v_lshlrev_b32 v243, 4, v243")
    a("v_lshl_add_u32 v242, v242, 7, v243")
    for t in range(4):
        a(f"v_xor_b32 v243, {32*t}, v242")
        a(f"v_add_u32 v{VB[t]}, s{S_MX}, v243")
    for s_, lo in [(SOUT, 24), (SDBG, 26), (SWS, 28)]:
        a(f"s_mov_b32 s{s_}, s{lo}")
        a(f"s_mov_b32 s{s_+1}, s{lo+1}")
    for s_, n in [(SK, 4 << 20), (SV, 4 << 20), (SWO, 8 << 20), (SWS, WS_USED), (SOUT, 2 << 20), (SDBG, 256)]:
        a(f"s_mov_b32 s{s_+2}, {n}")
        a(f"s_mov_b32 s{s_+3}, 0x20000")
    a(f"s_lshl_b32 s{S_KV}, s{S_B}, 5")
    a(f"s_add_u32 s{S_KV}, s{S_KV}, s{S_H}")
    a(f"s_lshl_b32 s{S_KV}, s{S_KV}, 13")
    a(f"s_lshl_b32 s{S_MK}, s{S_W}, 13")
    seg_src(a, VWO, 11, 242, 243)
    a(f"s_lshl_b32 s{U}, s{S_G}, 2")
    a(f"s_add_u32 s{U}, s{U}, s{S_W}")
    a(f"s_lshl_b32 s{U+1}, s{U}, 19")
    a(f"s_add_u32 s{S_C}, s{S_HL}, {opt.coff}")
    a(f"s_and_b32 s{S_C}, s{S_C}, 7")
    a(f"s_lshl_b32 s{U+2}, s{S_C}, 8")
    a(f"s_add_u32 s{U+1}, s{U+1}, s{U+2}")
    a(f"s_lshl_b32 s{U+3}, s{S_LAM}, 17")
    a(f"s_add_u32 s{S_WOG[0]}, s{U+1}, s{U+3}")
    for j in range(4): dma_x(1, j, T+7, 0)
    for j in range(4): dma_wq(1, j, T+6, 0)
    a(f"s_or_b32 s{T}, s2, s{S_W}")
    a(f"s_cmp_lg_u32 s{T}, 0")
    a("s_cbranch_scc1 L_nononce")
    a(f"s_memrealtime s[{T+2}:{T+3}]")
    a("s_waitcnt lgkmcnt(0)")
    a(f"s_or_b32 s{T+2}, s{T+2}, 1")
    a(f"s_mul_i32 s{T+2}, s{T+2}, 0x9e3779b1")
    a(f"v_mov_b32 v242, s{T+2}")
    a("v_mov_b32 v243, 0")
    a(f"buffer_store_dword v242, v243, {srd(SDBG)}, 0 offen sc1")
    a("s_waitcnt vmcnt(0)")
    a.label("L_nononce")
    stamp(a, 31, opt)
    f = Rec()
    f(f"v_lshrrev_b32 v{F1}, 4, v0")
    f(f"v_and_b32 v{F2}, 15, v0")
    f(f"v_xor_b32 v{F2}, v{F2}, v{F1}")
    f(f"v_lshlrev_b32 v{F2}, 4, v{F2}")
    f(f"v_lshl_add_u32 v{VKS}, v{F1}, 8, v{F2}")
    seg_src(f, VVS, 8, F1, F2)
    for i in range(4):
        f(f"s_add_u32 s{U+2}, s{S_W}, {i}")
        f(f"s_and_b32 s{U+2}, s{U+2}, 3")
        f(f"v_xor_b32 v{F1}, s{U+2}, v{VR4}")
        f(f"v_lshl_add_u32 v{VWT[i]}, v{F1}, 6, v{VTB}")
    f(f"v_and_b32 v{F1}, 0x13, v0")
    f(f"v_bfe_u32 v{F2}, v0, 2, 1")
    f(f"v_lshl_or_b32 v{F1}, v{F2}, 3, v{F1}")
    f(f"v_bfe_u32 v{F2}, v0, 3, 1")
    f(f"v_lshl_or_b32 v{F1}, v{F2}, 2, v{F1}")
    f(f"v_lshrrev_b32 v{VKA}, 5, v0")
    f(f"v_and_b32 v{F2}, 15, v{F1}")
    f(f"v_xor_b32 v{F2}, v{F2}, v{VKA}")
    f(f"v_lshlrev_b32 v{F2}, 4, v{F2}")
    f(f"v_lshl_add_u32 v{F1}, v{F1}, 8, v{F2}")
    f(f"s_add_u32 s{U+2}, s{S_MK}, {KR}")
    f(f"v_add_u32 v{VKA}, s{U+2}, v{F1}")
    f(f"v_lshlrev_b32 v{VL16}, 4, v0")
    for jg in range(4):
        f(f"s_add_u32 s{U+2}, s{S_LAM}, {jg}")
        f(f"s_and_b32 s{U+2}, s{U+2}, 3")
        if jg:
            f(f"s_lshl_b32 s{U+3}, s{U+2}, 17")
            f(f"s_add_u32 s{S_WOG[jg]}, s{U+1}, s{U+3}")
        f(f"s_lshl_b32 s{S_OG[jg]}, s{U+2}, 12")
        f(f"s_add_u32 s{S_Q[jg]}, s{S_G}, {jg+1}")
        f(f"s_and_b32 s{S_Q[jg]}, s{S_Q[jg]}, 3")
    f(f"s_lshl_b32 s{U+1}, s{S_BR}, 2")
    f(f"s_add_u32 s{U+1}, s{U+1}, s{S_R}")
    f(f"s_lshl_b32 s{S_OB}, s{U+1}, 20")
    f(f"s_lshl_b32 s{U+2}, s{U}, 14")
    f(f"s_add_u32 s{S_OB}, s{S_OB}, s{U+2}")
    f(f"s_lshl_b32 s{S_OW[0]}, s{S_BR}, 22")
    f(f"s_add_u32 s{S_OW[0]}, s{S_OW[0]}, s{S_KV}")
    f(f"s_add_u32 s{S_OW[1]}, s{S_OW[0]}, 4096")
    f(f"s_lshl_b32 s{U+2}, s{U+1}, 2")
    f(f"s_add_u32 s{U+2}, s{U+2}, s{S_G}")
    f(f"s_lshl_b32 s{U+2}, s{U+2}, {5+opt.fsh}")
    f(f"s_add_u32 s{U+2}, s{U+2}, {FO_BASE}")
    f(f"s_lshl_b32 s{U+3}, s{S_W}, {3+opt.fsh}")
    f(f"s_add_u32 s{S_FOR}, s{U+2}, s{U+3}")
    f(f"s_lshl_b32 s{U+3}, s{S_HL}, 2")
    f(f"s_add_u32 s{U+3}, s{U+3}, s{S_W}")
    f(f"s_lshl_b32 s{U+3}, s{U+3}, {opt.fsh}")
    f(f"s_add_u32 s{S_FOW}, s{U+2}, s{U+3}")
    f(f"s_lshl_b32 s{U+1}, s{U+1}, 3")
    f(f"s_add_u32 s{U+1}, s{U+1}, s{S_C}")
    f(f"s_lshl_b32 s{U+2}, s{U+1}, 18")
    f(f"s_add_u32 s{U+2}, s{U+2}, {PART_BASE}")
    f(f"s_lshl_b32 s{U+3}, s{U}, 12")
    f(f"s_add_u32 s{S_PB}, s{U+2}, s{U+3}")
    f(f"s_lshl_b32 s{U+3}, s{S_G}, 16")
    f(f"s_add_u32 s{S_PR}, s{U+2}, s{U+3}")
    f(f"s_lshl_b32 s{U+3}, s{S_W}, 12")
    f(f"s_add_u32 s{S_PR}, s{S_PR}, s{U+3}")
    f(f"s_lshl_b32 s{U+2}, s{S_R}, 2")
    f(f"s_add_u32 s{U+2}, s{U+2}, s{S_G}")
    f(f"s_lshl_b32 s{U+2}, s{U+2}, 17")
    f(f"s_lshl_b32 s{U+3}, s{S_BR}, 11")
    f(f"s_add_u32 s{U+2}, s{U+2}, s{U+3}")
    f(f"s_lshl_b32 s{U+3}, s{S_C}, 8")
    f(f"s_add_u32 s{U+2}, s{U+2}, s{U+3}")
    f(f"s_lshl_b32 s{U+3}, s{S_W}, 6")
    f(f"s_add_u32 s{S_OUTB}, s{U+2}, s{U+3}")
    f(f"s_getreg_b32 s{S_XCC}, hwreg(HW_REG_XCC_ID, 0, 4)")
    f(f"s_lshl_b32 s{U+2}, s{S_XCC}, 2")
    f(f"s_lshl_b32 s{U+3}, 1, s{U+2}")
    f(f"s_lshl_b32 s{S_XEXP}, 8, s{U+2}")
    f(f"v_mov_b32 v{VCEN}, s{U+3}")
    f(f"s_lshl_b32 s{U+2}, s{S_BR}, 2")
    f(f"s_add_u32 s{U+2}, s{U+2}, s{S_R}")
    f(f"s_lshl_b32 s{U+2}, s{U+2}, 2")
    f(f"s_add_u32 s{U+2}, s{U+2}, s{S_G}")
    f(f"s_lshl_b32 s{U+2}, s{U+2}, 2")
    f(f"s_add_u32 s{S_XOFF}, s{U+2}, 128")
    f(f"v_add_u32 v{VCOF}, s{S_W}, v0")
    f(f"v_lshlrev_b32 v{VCOF}, 8, v{VCOF}")
    f(f"v_and_b32 v{VNOF}, 1, v0")
    f(f"v_mul_u32_u24 v{VNOF}, s{S_XOFF}, v{VNOF}")
    FILL = f.L

    SLOT = {"w0": (S_MW, 0), "w1": (S_MW, 16384), "w2": (S_MW, 32768),
            "x0": (S_MX, 0), "x1": (S_MX, 4096), "x2": (S_MX, 8192),
            "k0": (S_MK, KR), "k1": (S_MK, KR + 4096), "v0": (S_MK, VR), "v1": (S_MK, VR + 4096)}
    def dma_wo(pos, j, slot):
        sb, off = SLOT[slot]
        a(f"s_add_u32 m0, s{sb}, {off + j*1024}")
        a(f"s_add_u32 s{T}, s{S_WOG[pos>>2]}, {(16*(pos&3)+4*j)*2048}")
        a.vmem(f"buffer_load_dwordx4 v{VWO}, {srd(SWO)}, s{T} offen {opt.nt_lo if pos < 4 else opt.nt_wo} lds", ("wo", pos))
    def tr_wo_items(pos, slot):
        sb, off = SLOT[slot]
        it = []
        for s4 in range(4):
            def g(s4=s4):
                if s4 == 0:
                    a.wait_vm(("wo", pos))
                    a(f"s_add_u32 s{T+1}, s{sb}, {off}")
                a(f"v_add_u32 v{VT2}, s{T+1}, v{VWT[s4]}")
                for h2 in range(2):
                    a.lds(f"ds_read_b64_tr_b16 {ar(16*pos+4*s4+2*h2,2)}, v{VT2} offset:{4*h2*256}", ("wo", pos))
            it.append(g)
        return it
    def dma_kv(pc, j):
        half = int(pc[1])
        if pc[0] == "K":
            a(f"s_add_u32 m0, s{S_MK}, {KR + half*4096}")
            a(f"s_add_u32 s{T}, s{S_KV}, {half*4096}")
            a(f"v_xor_b32 v{TT}, {64*j}, v{VKS}")
            a.vmem(f"buffer_load_dwordx4 v{TT}, {srd(SK)}, s{T} offen offset:{j*1024} {opt.nt_kv} lds", "k")
        else:
            a(f"s_add_u32 m0, s{S_MK}, {VR + half*4096}")
            a(f"s_add_u32 s{T}, s{S_KV}, {half*4096}")
            a.vmem(f"buffer_load_dwordx4 v{VVS}, {srd(SV)}, s{T} offen offset:{j*1024} {opt.nt_kv} lds", ("v", half))

    def reads(n):
        s, t = n >> 2, n & 3
        slot = s % 3
        fs = n & 1
        r = [(f"ds_read_b128 {vr(FB[fs],4)}, v{VB[t]} offset:{slot*4096}", ("b", n))]
        for i in range(4):
            for h2 in range(2):
                r.append((f"ds_read_b64_tr_b16 {vr(FA[fs]+4*i+2*h2,2)}, v{VA[i]} offset:{slot*16384 + (16*t+4*h2)*256}", ("a", n, i)))
        return r
    def mfma(n, i):
        fs = n & 1
        c = "0" if n == 0 else vr(ACC+16*i, 16)
        a.wait_lg([("b", n), ("a", n, i)])
        a(f"{MF} {vr(ACC+16*i,16)}, {vr(FA[fs]+4*i,4)}, {vr(FB[fs],4)}, {c}")

    allex = [p for l in sched(0, opt)[1].values() for p in l]
    w_early = sorted(int(p[1]) for p in allex if p[0] == "W")
    w_late = [p for p in range(4) if p not in w_early]
    hit_first = [4*g + k for k in w_early for g in (1, 2, 3)]
    hit_last = [4*g + k for k in w_late for g in (1, 2, 3)]
    rest = hit_first + w_late + hit_last
    late_slots = ["w1", "x1", "w2", "x2", "k0", "k1", "v0", "v1", "x0", "w0"]
    avail = {"w1": 14, "x1": 14, "w2": 15, "x2": 15, "k0": 15, "k1": 15, "v0": 15, "v1": 15, "x0": 16, "w0": 17}
    lateq = [(rest[i], j, late_slots[i]) for i in range(min(len(rest), len(late_slots))) for j in range(4)]
    def k_items():
        it = []
        for u in range(8):
            def g(u=u):
                if u == 0: a.wait_vm("k")
                a(f"v_xor_b32 v{VT2}, {32*u}, v{VKA}")
                a.lds(f"ds_read_b128 {vr(KF+4*u,4)}, v{VT2}", ("k", u))
            it.append(g)
        return it
    def v_items(u):
        it = []
        for i in range(4):
            def g(i=i):
                if i == 0:
                    a.wait_vm(("v", u))
                    a(f"s_add_u32 s{T+1}, s{S_MK}, {VR}")
                a(f"v_add_u32 v{VT2}, s{T+1}, v{VA[i]}")
                for h2 in range(2):
                    a.lds(f"ds_read_b64_tr_b16 {vr(VF+8*i+4*u+2*h2,2)}, v{VT2} offset:{(16*u+4*h2)*256}", ("v", i, u, h2))
            it.append(g)
        return it

    for lam in range(1, 4):
        a(f"s_cmp_eq_u32 s{S_LAM}, {lam}")
        a(f"s_cbranch_scc1 L_p1_{lam}")
    vm0, lg0 = list(a.vm), list(a.lg)
    end_state = None
    for lam in range(4):
        a.vm, a.lg = list(vm0), list(lg0)
        a.label(f"L_p1_{lam}")
        order, extras = sched(lam, opt)
        kv_issue = {}
        for st, l in extras.items():
            for pc in l:
                if pc[0] in "KV": kv_issue[pc.lower()] = st
        assert len(kv_issue) == 4 and max(extras) <= 11 and min(kv_issue.values()) >= 0, extras
        kc = max(kv_issue["k0"], kv_issue["k1"]) + 3
        occ = {"k0": [(kv_issue["k0"], kc)], "k1": [(kv_issue["k1"], kc)],
               "v0": [(kv_issue["v0"], kv_issue["v0"] + 3)], "v1": [(kv_issue["v1"], kv_issue["v1"] + 3)]}
        consume = {}
        consume.setdefault(kc, []).append("K")
        for u in range(2): consume.setdefault(kv_issue[f"v{u}"] + 3, []).append(f"V{u}")
        wslot = {}
        for st in sorted(extras):
            for pc in extras[st]:
                if pc[0] == "W":
                    cs = st + 3
                    cand = [k for k in ("v1", "v0", "k1", "k0") if all(cs < b or st > e for b, e in occ[k])]
                    assert cand, (lam, pc, st, occ)
                    wslot[pc] = cand[0]; occ[cand[0]].append((st, cs))
                    consume.setdefault(cs, []).append(pc)
        def extra_items(st):
            it = []
            for pc in extras.get(st, []):
                for j in range(4):
                    if pc[0] == "W": it.append(lambda pc=pc, j=j: dma_wo(int(pc[1]), j, wslot[pc]))
                    else: it.append(lambda pc=pc, j=j: dma_kv(pc, j))
            return it
        fill = list(FILL)
        lq = list(lateq)
        for s in range(16):
            a.c(f"---- class {lam} stage {s} chunk {order[s]}")
            if a.lg: a.wait_lg_all()
            a.wait_vm(("st", s))
            a("s_barrier")
            stamp(a, 1 + s, opt)
            dm = []
            if s + 2 < 16:
                c = order[s + 2]
                for j in range(4): dm.append(lambda j=j, c=c: dma_x(s + 2, j, S_XB[(c >> HB) & 1], (c & ~(1 << HB)) * 128))
                for j in range(4): dm.append(lambda j=j, c=c: dma_wq(s + 2, j, S_WQB[(c >> HB) & 1], (c & ~(1 << HB)) << 19, (c & 3) == lam))
            else:
                for k in range(opt.n14 if s == 14 else opt.n15):
                    pos, j, sl = lq.pop(0)
                    assert avail[sl] <= s
                    dm.append(lambda pos=pos, j=j, sl=sl: dma_wo(pos, j, sl))
            dm += extra_items(s)
            if opt.local and s == 5:
                assert not fill
                dm.append(lambda: a.vmem(f"buffer_atomic_add v{VCEN}, v{VCOF}, {srd(SDBG)}, s{S_XOFF} offen sc1", "cen"))
            if s == opt.non_stage:
                dm.append(lambda: a.vmem(f"buffer_load_dword v{VNON}, v{VNOF}, {srd(SDBG)}, 0 offen sc1", "nonce"))
            lw = []
            for pc in consume.get(s, []):
                if pc == "K": lw += k_items()
                elif pc[0] == "V": lw += v_items(int(pc[1]))
                else: lw += tr_wo_items(int(pc[1]), wslot[pc])
            nlw = (len(lw) + 3) // 4
            nd = len(dm)
            gap = 0
            for t in range(4):
                n = 4 * s + t
                rd = reads(n)
                for i in range(4):
                    if n > 0 and i == 0: mfma(n - 1, i)
                    for (ins, tag) in rd[3*i:3*i+3]:
                        a.lds(ins, tag)
                    if i == 3:
                        for _ in range(nlw):
                            if lw: lw.pop(0)()
                        for _ in range(opt.fill if n else 24):
                            if fill: a(fill.pop(0))
                    elif fill: a(fill.pop(0))
                    if n > 0 and i < 3: mfma(n - 1, i + 1)
                    gap += 1
                    want = (gap * nd + 15) // 16
                    while nd - len(dm) < want: dm.pop(0)()
            assert not dm and not lw, (s, len(dm), len(lw))
            if s == 0: assert len(FILL) - len(fill) >= 28, "VVS/VKS/VWT must be ready early"
        assert not fill
        st_ = (list(a.vm), list(a.lg))
        if end_state is None: end_state = st_
        assert end_state == st_, (end_state, st_)
        if lam < 3: a("s_branch L_common")
    a.label("L_common")
    natt = [opt.natt]
    def ad(lim=16):
        if natt[0] > 0 and lq and avail[lq[0][2]] <= lim:
            natt[0] -= 1
            dma_wo(*lq.pop(0)); return 3
        return 0
    def pad(n):
        while n > 0:
            k = min(n, 8); a(f"s_nop {k-1}"); n -= k
    k = 0
    for i in range(4):
        mfma(63, i)
        if i in (0, 2): k += ad(15)
    if a.lg: a.wait_lg_all(); k += 1
    stamp(a, 17, opt)
    a.c("---- attention")
    assert "nonce" not in a.vm
    a(f"v_readlane_b32 s{S_NONCE}, v{VNON}, 0")
    a(f"v_readlane_b32 s{S_XV}, v{VNON}, 1")
    CS = 128 ** -0.5 * 1.4426950408889634
    a(f"s_mov_b32 s{T+2}, {f32(CS)}")
    pad(max(0, 12 - 3 - 3 - 3 - k))
    def cvq(i):
        for p in range(8):
            a(f"v_cvt_pk_bf16_f32 v{QP+8*i+p}, v{ACC+16*i+2*p}, v{ACC+16*i+2*p+1}")
    cvq(0)
    for u in range(8):
        c = "0" if u == 0 else vr(SS, 16)
        a(f"{MF} {vr(SS,16)}, {vr(KF+4*u,4)}, {vr(QP+4*u,4)}, {c}")
        if u in (0, 2, 4):
            for p in range(6): a(f"v_cvt_pk_bf16_f32 v{QP+4*u+8+p}, v{ACC+8*u+16+2*p}, v{ACC+8*u+16+2*p+1}")
        if u in (1, 3, 5):
            for p in range(6, 8): a(f"v_cvt_pk_bf16_f32 v{QP+4*(u-1)+8+p}, v{ACC+8*(u-1)+16+2*p}, v{ACC+8*(u-1)+16+2*p+1}")
            if not ad(): a("s_nop 0")
    pad(12 - ad())
    a(f"v_max3_f32 v240, v{SS}, v{SS+1}, v{SS+2}")
    a(f"v_max3_f32 v241, v{SS+3}, v{SS+4}, v{SS+5}")
    a(f"v_max3_f32 v242, v{SS+6}, v{SS+7}, v{SS+8}")
    a(f"v_max3_f32 v243, v{SS+9}, v{SS+10}, v{SS+11}")
    a(f"v_max3_f32 v240, v240, v{SS+12}, v{SS+13}")
    a(f"v_max3_f32 v241, v241, v{SS+14}, v{SS+15}")
    a(f"v_max3_f32 v240, v240, v242, v243")
    a(f"v_max_f32 v240, v240, v241")
    a("v_mov_b32 v241, v240")
    pad(max(0, 2 - ad()))
    a("v_permlane32_swap_b32 v240, v241")
    a("s_nop 1")
    a("v_max_f32 v240, v240, v241")
    a(f"v_mul_f32 v240, s{T+2}, v240")
    for k in range(16):
        a(f"v_fma_f32 v{SS+k}, v{SS+k}, s{T+2}, -v240")
    ad()
    for k in range(16):
        a(f"v_exp_f32 v{SS+k}, v{SS+k}")
        if k == 7: ad()
    pad(max(0, 1 - ad()))
    a(f"v_add_f32 v241, v{SS}, v{SS+1}")
    a(f"v_add_f32 v242, v{SS+2}, v{SS+3}")
    for k in range(4, 16, 2):
        a(f"v_add_f32 v241, v241, v{SS+k}")
        a(f"v_add_f32 v242, v242, v{SS+k+1}")
    a("v_add_f32 v241, v241, v242")
    a("v_mov_b32 v242, v241")
    pad(max(0, 2 - ad()))
    a("v_permlane32_swap_b32 v241, v242")
    a("s_nop 1")
    a("v_add_f32 v241, v241, v242")
    a("v_rcp_f32 v241, v241")
    a("s_nop 0")
    for k in range(16):
        a(f"v_mul_f32 v{SS+k}, v{SS+k}, v241")
    ad()
    for p in range(8):
        a(f"v_cvt_pk_bf16_f32 v{PP+p}, v{SS+2*p}, v{SS+2*p+1}")
    def pv(i, h):
        c = "0" if h == 0 else vr(ACC+16*i, 16)
        a(f"{MF} {vr(ACC+16*i,16)}, {vr(VF+8*i+4*h,4)}, {vr(PP+4*h,4)}, {c}")
    pv(0, 0)
    pad(max(0, 1 - ad()))
    pv(0, 1); pv(1, 0)
    k = ad()
    pv(1, 1); pv(2, 0)
    k += ad()
    pv(2, 1)
    a(f"s_cmp_lt_u32 s{S_XCC}, 8")
    a(f"s_cselect_b32 s{S_XV}, s{S_XV}, 0")
    a(f"s_cmp_eq_u32 s{S_XV}, s{S_XEXP}")
    a(f"s_cselect_b32 s{S_XV}, {1 if opt.local else 0}, 0")
    pad(max(0, 12 - 4 - k - 6))
    a(f"s_cmp_eq_u32 s{S_XV}, 1")
    a("s_cbranch_scc1 L_ost_local")
    vm_save = list(a.vm)
    for aux in ("sc1", ""):
        a.vm = list(vm_save)
        if aux == "": a.label("L_ost_local")
        def ost(i):
            cvq(i)
            for u2 in range(2):
                u = 2 * i + u2
                a.vmem(f"buffer_store_dwordx4 {vr(QP+4*u,4)}, v{VL16}, {srd(SWS)}, s{S_OW[u>>2]} offen offset:{(u&3)*1024} {aux}", "o")
        ost(0)
        pv(3, 0); pv(3, 1)
        ost(1); ost(2); ost(3)
        if aux: a("s_branch L_ost_done")
    a.label("L_ost_done")
    stamp(a, 18, opt)
    a("s_barrier")
    VRW = [3, 4, 5]; VRR = 6; VZ = 12; VNV = 13; VFL = 14; VFA = 15; VMSK = 11; VOUT = 10; VL = 2; VBAD = [8, 9]
    S_TAG = [S_NONCE, 92, 93, 94]
    nfirst = min(len(rest), len(late_slots))
    slot_of = {rest[i]: late_slots[i] for i in range(nfirst)}
    for _ in range(opt.pre_flag):
        if lq: dma_wo(*lq.pop(0))
    a(f"s_cmp_lg_u32 s{S_NONCE}, 0")
    a("s_cbranch_scc1 L_havenonce")
    a(f"s_mov_b32 s{S_CNT}, 0")
    a("v_mov_b32 v240, 0")
    a.label("L_nonce_spin")
    a(f"buffer_load_dword v{VNON}, v240, {srd(SDBG)}, 0 offen sc1")
    a("s_waitcnt vmcnt(0)")
    a(f"v_readfirstlane_b32 s{S_NONCE}, v{VNON}")
    a(f"s_add_u32 s{S_CNT}, s{S_CNT}, 1")
    a(f"s_cmp_gt_u32 s{S_CNT}, {SPIN_MAX}")
    a("s_cbranch_scc1 L_havenonce")
    a(f"s_cmp_eq_u32 s{S_NONCE}, 0")
    a("s_cbranch_scc1 L_nonce_spin")
    a.label("L_havenonce")
    a(f"v_mov_b32 v{VL}, v{VL16}")
    for sl in range(1, 4):
        a(f"s_add_u32 s{T}, s{S_W}, {sl}")
        a(f"s_and_b32 s{T}, s{T}, 3")
        a(f"s_mul_i32 s{T}, s{T}, 12288")
        a(f"s_add_u32 s{T}, s{T}, {(sl-1)*4096}")
        a(f"v_add_u32 v{VRW[sl-1]}, s{T}, v{VL16}")
    a(f"s_mul_i32 s{T}, s{S_W}, 12288")
    a(f"v_add_u32 v{VRR}, s{T}, v{VL16}")
    a(f"v_lshrrev_b32 v{VZ}, 5, v0")
    a(f"v_lshlrev_b32 v{VZ}, 25, v{VZ}")
    a(f"v_lshl_add_u32 v{VZ}, v0, 2, v{VZ}")
    a(f"v_mov_b32 v{VNV}, s{S_NONCE}")
    a(f"v_and_b32 v{VFA}, 7, v0")
    a(f"v_lshlrev_b32 v{VFA}, {opt.fsh}, v{VFA}")
    a(f"v_and_b32 v{VOUT}, 31, v0")
    a(f"v_lshlrev_b32 v{VOUT}, 12, v{VOUT}")
    a(f"v_lshrrev_b32 v240, 5, v0")
    a(f"v_lshl_add_u32 v{VOUT}, v240, 4, v{VOUT}")
    ri = nfirst
    resident = list(w_early)
    free_slots = []
    def issued_fully(pos): return pos in slot_of and not any(q[0] == pos for q in lq)
    def assign_more():
        nonlocal ri
        while ri < len(rest) and free_slots:
            sl = free_slots.pop(0); slot_of[rest[ri]] = sl
            for j in range(4): lq.append((rest[ri], j, sl))
            ri += 1
    def tr_piece(pos):
        for g in tr_wo_items(pos, slot_of[pos]): g()
        resident.append(pos); free_slots.append(slot_of[pos])
    todo = list(rest)
    while todo and issued_fully(todo[0]) and a._cnt(a.vm, ("wo", todo[0])) < a.vm.index("o"):
        tr_piece(todo.pop(0))
    a.wait_lg_all(); assign_more()
    a.wait_vm("o")
    a(f"s_cmp_eq_u32 s{S_XV}, 1")
    a("s_cbranch_scc1 L_fl_local")
    a(f"buffer_store_dword v{VNV}, v{VZ}, {srd(SWS)}, s{S_FOW} offen sc1")
    a("s_branch L_fl_done")
    a.label("L_fl_local")
    a.vmem(f"buffer_store_dword v{VNV}, v{VZ}, {srd(SWS)}, s{S_FOW} offen", "flag")
    a.label("L_fl_done")
    stamp(a, 19, opt)
    for _ in range(opt.pre_poll):
        if lq: dma_wo(*lq.pop(0))
    a.vmem(f"buffer_load_dword v{VFL}, v{VFA}, {srd(SWS)}, s{S_FOR} offen sc1", "poll")
    while todo and issued_fully(todo[0]): tr_piece(todo.pop(0))
    if a.lg: a.wait_lg_all()
    assign_more()
    a(f"s_lshl_b32 s{T+2}, s{S_Q[0]}, 18")
    a(f"s_add_u32 s{T+2}, s{T+2}, s{S_OB}")
    for jg in range(4): a(f"s_add_u32 s{95+jg}, s{T+2}, s{S_OG[jg]}")
    stamp(a, 20, opt)
    a(f"s_mov_b32 s{S_CNT}, 0")
    a.label("L_pollo")
    a("s_waitcnt vmcnt(0)"); a.vm = []
    a(f"v_cmp_ne_u32 vcc, s{S_NONCE}, v{VFL}")
    a(f"s_add_u32 s{S_CNT}, s{S_CNT}, 1")
    a(f"s_cmp_gt_u32 s{S_CNT}, {SPIN_MAX}")
    a(f"s_cbranch_scc1 L_pollo_done")
    a("s_nop 1")
    a(f"s_cbranch_vccz L_pollo_done")
    a(f"buffer_load_dword v{VFL}, v{VFA}, {srd(SWS)}, s{S_FOR} offen sc1")
    a("s_branch L_pollo")
    a.label("L_pollo_done")
    stamp(a, 21, opt)
    assert ri == len(rest)
    korder0 = resident + todo
    assert sorted(korder0) == list(range(16))
    AC = 16; TMP = 80; OF = [128, 192]
    S_OS = [95, 96, 97, 98]
    def load_o(n, f):
        a.vmem(f"buffer_load_dwordx4 {vr(OF[n&1]+4*f,4)}, v{VL}, {srd(SWS)}, s{S_OS[f>>2]} offen offset:{(f&3)*1024} {opt.old}", ("o", n, f))
    def obase(n):
        a(f"s_lshl_b32 s{T+2}, s{S_Q[n]}, 18")
        a(f"s_add_u32 s{T+2}, s{T+2}, s{S_OB}")
        for jg in range(4): a(f"s_add_u32 s{S_OS[jg]}, s{T+2}, s{S_OG[jg]}")
    INIT = opt.init_o
    PT = OF[0]
    PK = TMP + 16
    PU = PT + 40
    S_SEL = [92, 93]
    dslot = [0, 1, 2, 4, 5, 6, 8, 9]
    O3L = 98304
    S_M3 = 94
    def wr(n, sl, j):
        a.lds(f"ds_write_b128 v{VRW[sl-1]}, {vr(AC+16*sl+4*j,4)} offset:{(n&1)*49152 + j*1024}", "rw")
    def rd(n, k):
        a.lds(f"ds_read_b128 {vr(TMP+4*k,4)}, v{VRR} offset:{(n&1)*49152 + k*1024}", ("rr", k))
    def presum(src, j):
        a.wait_lg([("rr", j), ("rr", 4*src+j)])
        for e in range(4): a(f"v_add_f32 v{TMP+4*j+e}, v{TMP+4*j+e}, v{TMP+16*src+4*j+e}")
    def fin(j):
        for e in range(4): a(f"v_add_f32 v{TMP+4*j+e}, v{TMP+4*j+e}, v{AC+4*j+e}")
    def pack(gr):
        for p in range(3*gr, min(3*gr+3, 8)):
            a(f"v_cvt_pk_bf16_f32 v{PK+dslot[p]}, v{TMP+2*p}, v{TMP+2*p+1}")
        a(f"v_mov_b32 v{PK+4*gr+3}, s{S_NONCE}")
        if gr == 2: a(f"v_mov_b32 v{PK+10}, s{S_NONCE}")
    def pst(n, j):
        if j == 0:
            a(f"s_lshl_b32 s{T+3}, s{S_Q[n]}, 16")
            a(f"s_add_u32 s{T+3}, s{T+3}, s{S_PB}")
        a.vmem(f"buffer_store_dwordx4 {vr(PK+4*j,4)}, v{VL}, {srd(SWS)}, s{T+3} offen offset:{j*1024} {opt.pst}", ("p", n))
    def pld(k, j, track=True):
        if j == 0:
            a(f"s_lshl_b32 s{T+4}, s{S_Q[k]}, 14")
            a(f"s_add_u32 s{T+4}, s{T+4}, s{S_PR}")
        ins = f"buffer_load_dwordx4 {vr(PT+12*k+4*j,4)}, v{VL}, {srd(SWS)}, s{T+4} offen offset:{j*1024} sc1"
        if track: a.vmem(ins, ("pp", k))
        else: a(ins)
    def chk(k):
        a(f"v_xor_b32 v{VBAD[0]}, s{S_NONCE}, v{PT+12*k+3}")
        a(f"v_bitop3_b32 v{VBAD[0]}, v{VBAD[0]}, v{PT+12*k+7}, s{S_NONCE} bitop3:0xf6")
        a(f"v_bitop3_b32 v{VBAD[0]}, v{VBAD[0]}, v{PT+12*k+11}, s{S_NONCE} bitop3:0xf6")
        a(f"v_cmp_ne_u32 vcc, 0, v{VBAD[0]}")
    def sel(k):
        a("s_cmp_eq_u64 vcc, 0")
        a(f"s_cselect_b32 s{S_SEL[0]}, 0x01000c0c, s{S_ZSEL}")
        a(f"s_cselect_b32 s{S_SEL[1]}, 0x03020c0c, s{S_ZSEL}")
        a(f"s_cselect_b32 s{T+5}, {1<<k}, 0")
        a(f"s_or_b32 s{S_DONE}, s{S_DONE}, s{T+5}")
    def unp_set(k, p2):
        for p in (2*p2, 2*p2+1):
            for h in range(2):
                d = PT + 12*k + dslot[p]
                a(f"v_perm_b32 v{AC+2*p+h}, v{d}, v{d}, s{S_SEL[h]}")
    def unp_add(k, p, dst):
        d = PT + 12*k + dslot[p]
        for h in range(2): a(f"v_perm_b32 v{PU+h}, v{d}, v{d}, s{S_SEL[h]}")
        for h in range(2): a(f"v_add_f32 v{dst+2*p+h}, v{dst+2*p+h}, v{PU+h}")
    def bar():
        if a.lg: a.wait_lg_all()
        a("s_barrier")
    S_ZSEL = 99
    carry = []
    ro = [0, 4, 8, 1, 5, 9, 2, 6, 10, 3, 7, 11]
    ps = [(src, j) for j in range(4) for src in (1, 2)]
    for f in korder0[:INIT]: load_o(0, f)
    a(f"s_mov_b32 s{S_ZSEL}, 0x0c0c0c0c")
    a(f"s_mov_b32 s{S_DONE}, 0")
    a(f"s_lshl_b32 s{S_M3}, s{S_W}, 14")
    a(f"s_add_u32 s{S_M3}, s{S_M3}, {O3L}")
    a(f"v_add_u32 v{VBAD[1]}, s{S_M3}, v{VL}")
    def dma_o3(f):
        if f % 4 == 0:
            a(f"s_add_u32 m0, s{S_M3}, {f*1024}")
            a("s_nop 0")
        a.vmem(f"buffer_load_dwordx4 v{VL}, {srd(SWS)}, s{S_OS[f>>2]} offen offset:{(f&3)*1024} {opt.old} lds", ("o3", f))
    def rd_o3(f):
        a.wait_vm(("o3", f))
        a.lds(f"ds_read_b128 {vr(OF[1]+4*f,4)}, v{VBAD[1]} offset:{f*1024}", ("o3", f))
    for n in range(4):
        a.c(f"---- strip {n}")
        if n == 0: seq = [(ks, sl) for ks in korder0 for sl in (1, 2, 3)] + [(ks, 0) for ks in range(16)]
        elif n == 1: seq = [(ks, sl) for ks in range(16) for sl in (1, 2)] + [(ks, sl) for sl in (3, 0) for ks in range(16)]
        else: seq = [(ks, sl) for sl in (1, 2, 3, 0) for ks in range(16)]
        at = {}
        def put(g, fn): at.setdefault(g, []).append(fn)
        for g, fn in carry: put(g, fn)
        carry = []
        if n == 0:
            mq = []
            of = korder0[INIT:]
            wl = list(lq); lq.clear()
            while of or wl:
                for _ in range(2):
                    if wl: mq.append(lambda w=wl.pop(0): dma_wo(*w))
                if of: mq.append(lambda f=of.pop(0): load_o(0, f))
            g = 0
            for fn in mq:
                put(g // opt.mq_den, fn); g += opt.mq_num
            gq = g // opt.mq_den + 1
            for i, pos in enumerate(korder0):
                if pos in todo:
                    its = tr_wo_items(pos, slot_of[pos])
                    for k2, fn in enumerate(its): put(3 * i - 4 + (k2 >> 1), fn)
            if todo: gq = max(gq, 20)
            stream = [lambda: obase(1)] + [lambda f=f: load_o(1, f) for f in range(16)]
            g = gq - 1
            def place(g, fn):
                if g < 64: put(g, fn)
                else: carry.append((g - 64, fn))
            place(g, stream[0]); g += 1
            for fn in stream[1:]: place(g, fn); g += 2
            g = max(g, 65)
            g += (g & 1) ^ 1
            place(g, lambda: obase(2)); g += 1
            for f in range(16): place(g, lambda f=f: load_o(2, f)); g += 2
            place(g - 1, lambda: obase(3))
            gend = g - 64
            assert gend <= 60, gend
            put(47, bar)
            put(48, lambda: a("s_nop 3"))
            put(49, lambda: a("s_nop 2"))
            for i, (sl, j) in enumerate([(sl, j) for sl in (1, 2, 3) for j in range(4)]): put(50 + i, lambda sl=sl, j=j: wr(n, sl, j))
            put(63, bar)
            g = 1
            for i in range(6):
                carry.append((g, lambda i=i: (rd(0, ro[2*i]), rd(0, ro[2*i+1])))); g += 2
            work = [lambda i=i: presum(*ps[i]) for i in range(8)] + [lambda j=j: fin(j) for j in range(4)] + [lambda j=j: pack(j) for j in range(3)]
            for fn in work: carry.append((g, fn)); g += 2
            assert g <= 47
            gs = max(gend, g)
            assert gs + 2 < 58
            for j in range(3): carry.append((gs + j, lambda j=j: pst(0, j)))
            left = []
        else:
            fast = n >= 2
            if n == 1:
                for i, (sl, j) in enumerate([(sl, j) for sl in (1, 2) for j in range(4)]): put(36 + i + (i >> 1), lambda sl=sl, j=j: wr(n, sl, j))
            else:
                if n == 2:
                    for f in range(16): put(opt.g_o3 + 2 * f, lambda f=f: load_o(3, f))
                    def pdma(j):
                        if j == 0:
                            a(f"s_lshl_b32 s{T+4}, s{S_Q[2]}, 14")
                            a(f"s_mov_b32 m0, s{S_M3}")
                            a(f"s_add_u32 s{T+4}, s{T+4}, s{S_PR}")
                        a.vmem(f"buffer_load_dwordx4 v{VL}, {srd(SWS)}, s{T+4} offen offset:{j*1024} sc1 lds", "pdma")
                    for j in range(3): put(opt.g_p2 + 2 * j, lambda j=j: pdma(j))
                for j in range(4): put(32 + 2 * j, lambda j=j: wr(n, 1, j))
                for j in range(4): put(41 + 2 * j, lambda j=j: wr(n, 2, j))
            put(48, lambda: a("s_nop 3"))
            put(49, lambda: a("s_nop 4" if n == 1 else "s_nop 3"))
            if fast:
                for j in range(4): put(50 + j, lambda j=j: wr(n, 3, j))
                gb = 55
            else:
                for j in range(4): put(50 + 2 * j, lambda j=j: wr(n, 3, j))
                gb = 58
            put(gb, bar)
            for i in range(6):
                put(gb + i, lambda i=i: (rd(n, ro[2*i]), rd(n, ro[2*i+1])))
            npre_s = 63 - (gb + 5)
            for i in range(npre_s): put(gb + 6 + i, lambda i=i: presum(*ps[i]))
            left = [lambda i=i: presum(*ps[i]) for i in range(npre_s, 8)]
            if n == 1:
                g = 1
                for fn in left + [lambda j=j: fin(j) for j in range(4)] + [lambda j=j: pack(j) for j in range(3)]: carry.append((g, fn)); g += 2
                for j in range(3): carry.append((opt.g_s1 + 2 * j, lambda j=j: pst(1, j)))
                assert opt.g_s1 >= g - 2
            if n == 2:
                g = 3 if opt.g_p1 == 0 else 0
                for fn in left + [lambda j=j: fin(j) for j in range(4)]: carry.append((g, fn)); g += 1
                for j in range(3):
                    carry.append((g, lambda j=j: pack(j))); g += 1
                    carry.append((g, lambda j=j, n=n: pst(n, j))); g += 1
                gfree = g
            if n == 3:
                for j in range(3): put(opt.g_p1 + j, lambda j=j: pld(1, j))
                def prd():
                    a.wait_vm("pdma")
                    for j in range(3):
                        a.lds(f"ds_read_b128 {vr(PT+24+4*j,4)}, v{VBAD[1]} offset:{j*1024}", "prd")
                g = gfree
                put(g - 3, prd)
                put(g, lambda: (a.wait_lg("prd"), chk(2))); g += 1
                put(g, lambda: sel(2)); g += 1
                for p2 in range(4): put(g, lambda p2=p2: unp_set(2, p2)); g += 1
                g = max(g, opt.g_c1)
                put(g, lambda: (a.wait_vm(("pp", 1)), chk(1))); g += 1
                put(g, lambda: sel(1)); g += 1
                for p in range(8):
                    while g in (32, 34, 36, 38, 41, 43, 45): g += 1
                    put(g, lambda p=p: unp_add(1, p, AC)); g += 1
                assert g <= 47, g
                for j in range(3): put(opt.g_p0 + j, lambda j=j: pld(0, j))
        seen = set()
        for g, (ks, sl) in enumerate(seq):
            if ks not in seen:
                a.wait_vm(("o", n, ks)); seen.add(ks)
                if n == 0: a.wait_lg(("wo", ks))
            first = (ks == korder0[0]) if (n == 0 and sl) else (ks == 0)
            if n == 3 and sl == 0: first = False
            c = "0" if first else vr(AC+16*sl, 16)
            a(f"{MF} {vr(AC+16*sl,16)}, {ar(16*ks+4*sl,4)}, {vr(OF[n&1]+4*ks,4)}, {c}")
            for fn in at.get(g, []): fn()
            if n == opt.sst and g % 8 == 7 and g < 63: stamp(a, 32 + g // 8, opt)
        stamp(a, 22 + n, opt)
    for fn in left: fn()
    for j in range(4): fin(j)
    a(f"s_mov_b32 s{S_SEL[0]}, 0x01000c0c")
    a(f"s_mov_b32 s{S_SEL[1]}, 0x03020c0c")
    stamp(a, 26, opt)
    a(f"s_mov_b32 s{S_CNT}, 0")
    for k in (0, 1, 2):
        if k:
            a(f"s_bitcmp1_b32 s{S_DONE}, {k}")
            a(f"s_cbranch_scc1 L_skip{k}")
            a(f"s_branch L_rel{k}")
        else:
            a.wait_vm(("pp", 0))
        a.label(f"L_chk{k}")
        chk(k)
        a(f"s_add_u32 s{S_CNT}, s{S_CNT}, 1")
        a(f"s_cmp_gt_u32 s{S_CNT}, {SPIN_MAX}")
        a(f"s_cbranch_scc1 L_ok{k}")
        a("s_nop 1")
        a(f"s_cbranch_vccz L_ok{k}")
        a.label(f"L_rel{k}")
        for j in range(3): pld(k, j, track=False)
        a("s_waitcnt vmcnt(0)")
        a(f"s_branch L_chk{k}")
        a.label(f"L_ok{k}")
        for p in range(8): unp_add(k, p, TMP)
        a.label(f"L_skip{k}")
    stamp(a, 27, opt)
    for p in range(8):
        a(f"v_cvt_pk_bf16_f32 v{AC+p}, v{TMP+2*p}, v{TMP+2*p+1}")
    a(f"buffer_store_dwordx4 {vr(AC,4)}, v{VOUT}, {srd(SOUT)}, s{S_OUTB} offen")
    a(f"buffer_store_dwordx4 {vr(AC+4,4)}, v{VOUT}, {srd(SOUT)}, s{S_OUTB} offen offset:32")
    if opt.stamps:
        a("s_waitcnt vmcnt(0)")
        stamp(a, 28, opt)
        if opt.stamps:
            a(f"v_writelane_b32 v{VSTAMP}, s{S_CNT}, 63")
        dump_stamps(a, opt)
    a.label(end)
    a("s_endpgm")
    a.label("L_codeend")

Opt.init_o = 8
Opt.fsh = 7
Opt.stag = False
Opt.hbit = 3
Opt.ab = ""
Opt.coff = 1
Opt.map = 0
Opt.nt_lq = ""
Opt.nt_lo = ""
Opt.pst = "sc1"
Opt.ostep = 1
Opt.g_o3 = 0
Opt.g_c1 = 28
Opt.bal = True
Opt.local = False
Opt.non_stage = 12
Opt.old = "sc1"
Opt.g_p1 = 0
Opt.g_p2 = 33
Opt.g_s1 = 39
Opt.pre_poll = 16
Opt.mq_num = 2
Opt.mq_den = 1
Opt.g_p0 = 56
Opt.ost = "sc1"
Opt.ofl = "sc1"
Opt.late_pst = True
Opt.g_mid = 54
Opt.g_pub = 62
Opt.sst = -1
Opt.g_pf2 = 58

def build(opt):
    nm = NAME + "_kernel"
    out = []
    out.append("; @launch grid=(256,1,1) block=(256,1,1) lds=163840")
    out.append('.amdgcn_target "amdgcn-amd-amdhsa--gfx950"')
    out.append(".text")
    a = Asm()
    gen(a, opt)
    out.append(f".globl {nm}\n.p2align 8\n.type {nm},@function\n{nm}:")
    out.append(a.text())
    out.append('.section .rodata,"a"')
    out.append(f""".p2align 6
.amdhsa_kernel {nm}
  .amdhsa_next_free_vgpr 512
  .amdhsa_next_free_sgpr 102
  .amdhsa_accum_offset 256
  .amdhsa_group_segment_fixed_size 0
  .amdhsa_kernarg_size 104
  .amdhsa_user_sgpr_count 2
  .amdhsa_user_sgpr_kernarg_segment_ptr 1
  .amdhsa_system_sgpr_workgroup_id_x 1
.end_amdhsa_kernel
""")
    return "\n".join(out)

if __name__ == "__main__":
    opt = Opt()
    for kv in sys.argv[2:]:
        k, v = kv.split("=")
        cur = getattr(opt, k)
        setattr(opt, k, (v == "1") if isinstance(cur, bool) else type(cur)(v))
    open(sys.argv[1], "w").write(build(opt))
```

```python
import sys, struct
from asmlib import *

NAME = "concat_heads__mha_block_cached__gqa_block_cached__near_ridge"
def f32(x): return "0x%08x" % struct.unpack("<I", struct.pack("<f", x))[0]

O_BASE = 0
PART_BASE = 8 << 20
FO_BASE = 24 << 20
FP_BASE = (24 << 20) + (1 << 16)
STAMP_BASE = 28 << 20
WS_USED = 32 << 20
SPIN_MAX = 4000

SX, SK, SV, SWQ, SWO, SWS, SOUT, SDBG = 32, 36, 40, 44, 48, 52, 56, 60
S_W, S_BR, S_G, S_HL, S_R, S_B = 64, 65, 66, 67, 68, 69
S_T = 70
S_MX, S_H = 78, 79
S_WQB = [80, 81]; S_XB = [82, 83]
S_LAM = 84
S_C = 91
S_KV, S_MW, S_MK = 85, 86, 87
S_NONCE, S_CNT, S_DONE = 88, 89, 90
S_U = 92
S_WOG = [4, 5, 6, 7]; S_OG = [8, 9, 10, 11]; S_Q = [12, 13, 14, 15]
S_OB, S_PB, S_FOW, S_FOR, S_FPB, S_OUTB, S_PR, S_FPR = 16, 17, 18, 19, 20, 21, 22, 23
S_OW = [26, 27]
S_XCC, S_XEXP, S_XOFF, S_XV = 20, 23, 24, 25

class Opt:
    nt_x = ""; nt_wq = ""; nt_kv = "nt"; nt_wo = ""
    stamps = False
    clk = "s_memrealtime"
    lead = 2
    half = True
    ex = "K0,K1|V0,V1|W0,W1"
    mid = "||"
    n14 = 8; n15 = 8; natt = 8
    pre_flag = 8
    codepf = True
    fill = 4

VSTAMP = 1
def stamp(a, idx, opt):
    if opt.stamps:
        a(f"{opt.clk} s[30:31]")
        a("s_waitcnt lgkmcnt(0)"); a.lg = []
        a(f"v_writelane_b32 v{VSTAMP}, s30, {idx}")

def dump_stamps(a, opt):
    if not opt.stamps: return
    a(f"s_lshl_b32 s{S_T}, s2, 2")
    a(f"s_add_u32 s{S_T}, s{S_T}, s{S_W}")
    a(f"s_lshl_b32 s{S_T}, s{S_T}, 8")
    a(f"s_add_u32 s{S_T}, s{S_T}, {STAMP_BASE}")
    a("v_lshlrev_b32 v2, 2, v0")
    a(f"buffer_store_dword v{VSTAMP}, v2, s[{SWS}:{SWS+3}], s{S_T} offen")
    a("s_waitcnt vmcnt(0)")

def seg_src(a, dst, rowstride_shift, t1, t2):
    a(f"v_lshrrev_b32 v{t1}, 4, v0")
    a(f"v_bfe_u32 v{t2}, v0, 2, 2")
    a(f"v_xor_b32 v{t2}, v{t2}, v{t1}")
    a(f"v_lshlrev_b32 v{t2}, 6, v{t2}")
    a(f"v_lshl_add_u32 v{dst}, v{t1}, {rowstride_shift}, v{t2}")
    a(f"v_and_b32 v{t2}, 3, v0")
    a(f"v_lshl_add_u32 v{dst}, v{t2}, 4, v{dst}")

def tr_base(a, dst, r4, t1):
    a(f"v_bfe_u32 v{r4}, v0, 2, 2")
    a(f"v_lshrrev_b32 v{t1}, 5, v0")
    a(f"v_lshl_add_u32 v{t1}, v{t1}, 3, v{r4}")
    a(f"v_lshlrev_b32 v{dst}, 8, v{t1}")
    a(f"v_bfe_u32 v{t1}, v0, 4, 1")
    a(f"v_lshl_add_u32 v{dst}, v{t1}, 5, v{dst}")
    a(f"v_and_b32 v{t1}, 1, v0")
    a(f"v_lshl_add_u32 v{dst}, v{t1}, 4, v{dst}")
    a(f"v_bfe_u32 v{t1}, v0, 1, 1")
    a(f"v_lshl_add_u32 v{dst}, v{t1}, 3, v{dst}")

MF = "v_mfma_f32_32x32x16_bf16"
srd = lambda r: f"s[{r}:{r+3}]"

def sched(lam, opt):
    order = list(range(16))
    mpos = []
    for c in range(lam, 16, 4):
        p = order.index(c)
        q = max(0, p - opt.lead)
        if c < 4 and opt.bal: q = 0
        order.pop(p); order.insert(q, c)
        if c >= 4: mpos.append(q)
    if opt.stag:
        order = [(4 * lam + i) & 15 for i in range(16)]
        mpos = [2 + lam, 6 + lam, 10 + lam]
    extras = {}
    for j, lst in enumerate(opt.ex.split("|")):
        for pc in filter(None, lst.split(",")):
            extras.setdefault(mpos[j] - 2, []).append(pc)
    for j, lst in enumerate(opt.mid.split("|")):
        for pc in filter(None, lst.split(",")):
            extras.setdefault(mpos[j], []).append(pc)
    for it in filter(None, opt.ab.split(";")):
        st, lst = it.split(":")
        for pc in lst.split(","): extras.setdefault(int(st), []).append(pc)
    return order, extras

class Rec:
    def __init__(self): self.L = []
    def __call__(self, s): self.L.append(s)

def gen(a, opt):
    end = "L_end"
    T = S_T; U = S_U
    stamp(a, 0, opt)
    a("s_cmp_ge_u32 s2, 256")
    a(f"s_cbranch_scc1 {end}")
    a("s_load_dwordx16 s[4:19], s[0:1], 0")
    a("s_load_dwordx4 s[20:23], s[0:1], 64")
    a("s_load_dwordx4 s[24:27], s[0:1], 80")
    a("s_load_dwordx2 s[28:29], s[0:1], 96")
    if opt.codepf:
        a(f"s_getpc_b64 s[{U}:{U+1}]")
        a.label("L_pc")
        a(f"s_lshr_b32 s{T}, s2, 3")
        a(f"v_lshrrev_b32 v240, 4, v0")
        a(f"v_lshl_add_u32 v240, s{T}, 4, v240")
        a(f"v_lshlrev_b32 v240, 7, v240")
        a(f"v_min_u32 v240, L_codeend-L_pc-4, v240")
        a(f"v_mov_b32 v241, s{U+1}")
        a(f"v_add_co_u32 v240, vcc, s{U}, v240")
        a("s_nop 1")
        a(f"v_addc_co_u32 v241, vcc, 0, v241, vcc")
        a.vmem(f"global_load_dword v241, v[240:241], off", "cpf")
    a("v_lshrrev_b32 v2, 6, v0")
    a("v_and_b32 v0, 63, v0")
    a(f"v_readfirstlane_b32 s{S_W}, v2")
    a(f"s_and_b32 s{T}, s2, 7")
    a(f"s_lshr_b32 s{T+1}, s2, 3")
    a(f"s_lshr_b32 s{S_BR}, s{T}, 2")
    a(f"s_and_b32 s{S_G}, s{T}, 3")
    if opt.map == 0:
        a(f"s_and_b32 s{S_HL}, s{T+1}, 7")
        a(f"s_lshr_b32 s{S_R}, s{T+1}, 3")
    elif opt.map == 1:
        a(f"s_and_b32 s{S_R}, s{T+1}, 3")
        a(f"s_lshr_b32 s{S_HL}, s{T+1}, 2")
    elif opt.map == 2:
        a(f"s_lshr_b32 s{S_HL}, s{T+1}, 2")
        a(f"s_sub_u32 s{S_R}, s{T+1}, s{S_HL}")
        a(f"s_and_b32 s{S_R}, s{S_R}, 3")
    VWQ, VXE, VXO, VKS, VVS, VWO = 2, 3, 4, 5, 6, 7
    VA = [8, 9, 10, 11]; VB = [12, 13, 14, 15]
    ACC = 16
    FA = [80, 100]; FB = [96, 116]
    KF, VF, QP, SS, PP = 120, 152, 184, 216, 232
    TT = 240
    VWT = [244, 245, 246, 247]
    VKA, VL16, VTB, VR4, VNON, VT2 = 248, 249, 250, 251, 252, 253
    F1, F2 = 254, 255
    VCEN, VCOF, VNOF = 241, 242, 243
    XR, KR, VR = 49152, 98304, 131072
    a(f"s_lshl_b32 s{S_B}, s{S_R}, 2")
    a(f"s_add_u32 s{S_B}, s{S_B}, s{S_W}")
    a(f"s_lshl_b32 s{S_H}, s{S_G}, 3")
    a(f"s_add_u32 s{S_H}, s{S_H}, s{S_HL}")
    a(f"s_lshl_b32 s{T}, s{S_W}, 17")
    a(f"s_lshl_b32 s{T+1}, s{S_H}, 8")
    a(f"s_add_u32 s{T}, s{T}, s{T+1}")
    a(f"s_lshl_b32 s{T+1}, s{S_B}, 16")
    if opt.half: a(f"s_lshr_b32 s{T+2}, s{S_HL}, 2")
    else: a(f"s_mov_b32 s{T+2}, 0")
    HB = opt.hbit
    a(f"s_lshl_b32 s{T+3}, s{T+2}, {19+HB}")
    a(f"s_add_u32 s{S_WQB[0]}, s{T}, s{T+3}")
    a(f"s_xor_b32 s{T+3}, s{T+3}, {1<<(19+HB)}")
    a(f"s_add_u32 s{S_WQB[1]}, s{T}, s{T+3}")
    a(f"s_lshl_b32 s{T+3}, s{T+2}, {7+HB}")
    a(f"s_add_u32 s{S_XB[0]}, s{T+1}, s{T+3}")
    a(f"s_xor_b32 s{T+3}, s{T+3}, {1<<(7+HB)}")
    a(f"s_add_u32 s{S_XB[1]}, s{T+1}, s{T+3}")
    a(f"s_add_u32 s{S_LAM}, s{S_R}, s{S_HL}")
    a(f"s_and_b32 s{S_LAM}, s{S_LAM}, 3")
    a(f"s_lshl_b32 s{S_MW}, s{S_W}, 12")
    a(f"s_mul_i32 s{S_MX}, s{S_W}, 12288")
    a(f"s_add_u32 s{S_MX}, s{S_MX}, {XR}")
    seg_src(a, VWQ, 13, 242, 243)
    a("v_lshrrev_b32 v242, 3, v0")
    a("v_lshrrev_b32 v243, 4, v0")
    a(f"v_and_b32 v{F1}, 7, v0")
    a(f"v_xor_b32 v{F1}, v{F1}, v243")
    a(f"v_lshlrev_b32 v{F1}, 4, v{F1}")
    a(f"v_lshl_add_u32 v{VXE}, v242, 11, v{F1}")
    a(f"v_xor_b32 v{VXO}, 64, v{VXE}")
    for s_, n in [(SX, 1 << 20), (SWQ, 8 << 20)]:
        a(f"s_mov_b32 s{s_+2}, {n}")
        a(f"s_mov_b32 s{s_+3}, 0x20000")
    ords = [sched(l, opt)[0] for l in range(4)]
    for pos in range(2):
        assert all(not (o[pos] >> HB) & 1 for o in ords)
        pk = sum(ords[l][pos] << (4 * l) for l in range(4))
        a(f"s_lshl_b32 s{T+2}, s{S_LAM}, 2")
        a(f"s_lshr_b32 s{T+2}, {pk}, s{T+2}")
        a(f"s_and_b32 s{T+2}, s{T+2}, 15")
        a(f"s_lshl_b32 s{T+3}, s{T+2}, 19")
        a(f"s_add_u32 s{T+4+2*pos}, s{S_WQB[0]}, s{T+3}")
        a(f"s_lshl_b32 s{T+3}, s{T+2}, 7")
        a(f"s_add_u32 s{T+5+2*pos}, s{S_XB[0]}, s{T+3}")
    a("s_waitcnt lgkmcnt(0)")
    stamp(a, 29, opt)
    a(f"s_cmp_eq_u32 s{S_BR}, 0")
    for i, s_ in [(0, SX), (3, SWQ), (1, SK), (2, SV), (4, SWO)]:
        a(f"s_cselect_b32 s{s_}, s{4+2*i}, s{14+2*i}")
        a(f"s_cselect_b32 s{s_+1}, s{5+2*i}, s{15+2*i}")
    def dma_x(pos, j, sbase, lit):
        a(f"s_add_u32 m0, s{S_MX}, {(pos%3)*4096 + j*1024}")
        a(f"s_add_u32 s{T}, s{sbase}, {lit + j*16384}")
        a.vmem(f"buffer_load_dwordx4 v{VXO if j&1 else VXE}, {srd(SX)}, s{T} offen {opt.nt_x} lds", ("st", pos))
    def dma_wq(pos, j, sbase, lit, lead=False):
        a(f"s_add_u32 m0, s{S_MW}, {(pos%3)*16384 + j*1024}")
        a(f"s_add_u32 s{T}, s{sbase}, {lit + j*32768}")
        a.vmem(f"buffer_load_dwordx4 v{VWQ}, {srd(SWQ)}, s{T} offen {opt.nt_lq if lead else opt.nt_wq} lds", ("st", pos))
    for j in range(4): dma_x(0, j, T+5, 0)
    for j in range(4): dma_wq(0, j, T+4, 0, True)
    stamp(a, 30, opt)
    tr_base(a, VTB, VR4, 242)
    for i in range(4):
        a(f"v_xor_b32 v242, {i}, v{VR4}")
        a(f"v_lshl_add_u32 v{VA[i]}, v242, 6, v{VTB}")
    a("v_and_b32 v242, 31, v0")
    a("v_lshrrev_b32 v243, 5, v0")
    a(f"v_bfe_u32 v{F1}, v0, 1, 3")
    a(f"v_xor_b32 v243, v243, v{F1}")
    a("v_lshlrev_b32 v243, 4, v243")
    a("v_lshl_add_u32 v242, v242, 7, v243")
    for t in range(4):
        a(f"v_xor_b32 v243, {32*t}, v242")
        a(f"v_add_u32 v{VB[t]}, s{S_MX}, v243")
    for s_, lo in [(SOUT, 24), (SDBG, 26), (SWS, 28)]:
        a(f"s_mov_b32 s{s_}, s{lo}")
        a(f"s_mov_b32 s{s_+1}, s{lo+1}")
    for s_, n in [(SK, 4 << 20), (SV, 4 << 20), (SWO, 8 << 20), (SWS, WS_USED), (SOUT, 2 << 20), (SDBG, 256)]:
        a(f"s_mov_b32 s{s_+2}, {n}")
        a(f"s_mov_b32 s{s_+3}, 0x20000")
    a(f"s_lshl_b32 s{S_KV}, s{S_B}, 5")
    a(f"s_add_u32 s{S_KV}, s{S_KV}, s{S_H}")
    a(f"s_lshl_b32 s{S_KV}, s{S_KV}, 13")
    a(f"s_lshl_b32 s{S_MK}, s{S_W}, 13")
    seg_src(a, VWO, 11, 242, 243)
    a(f"s_lshl_b32 s{U}, s{S_G}, 2")
    a(f"s_add_u32 s{U}, s{U}, s{S_W}")
    a(f"s_lshl_b32 s{U+1}, s{U}, 19")
    a(f"s_add_u32 s{S_C}, s{S_HL}, {opt.coff}")
    a(f"s_and_b32 s{S_C}, s{S_C}, 7")
    a(f"s_lshl_b32 s{U+2}, s{S_C}, 8")
    a(f"s_add_u32 s{U+1}, s{U+1}, s{U+2}")
    a(f"s_lshl_b32 s{U+3}, s{S_LAM}, 17")
    a(f"s_add_u32 s{S_WOG[0]}, s{U+1}, s{U+3}")
    for j in range(4): dma_x(1, j, T+7, 0)
    for j in range(4): dma_wq(1, j, T+6, 0)
    a(f"s_or_b32 s{T}, s2, s{S_W}")
    a(f"s_cmp_lg_u32 s{T}, 0")
    a("s_cbranch_scc1 L_nononce")
    a(f"s_memrealtime s[{T+2}:{T+3}]")
    a("s_waitcnt lgkmcnt(0)")
    a(f"s_or_b32 s{T+2}, s{T+2}, 1")
    a(f"s_mul_i32 s{T+2}, s{T+2}, 0x9e3779b1")
    a(f"v_mov_b32 v242, s{T+2}")
    a("v_mov_b32 v243, 0")
    a(f"buffer_store_dword v242, v243, {srd(SDBG)}, 0 offen sc1")
    a("s_waitcnt vmcnt(0)")
    a.label("L_nononce")
    stamp(a, 31, opt)
    f = Rec()
    f(f"v_lshrrev_b32 v{F1}, 4, v0")
    f(f"v_and_b32 v{F2}, 15, v0")
    f(f"v_xor_b32 v{F2}, v{F2}, v{F1}")
    f(f"v_lshlrev_b32 v{F2}, 4, v{F2}")
    f(f"v_lshl_add_u32 v{VKS}, v{F1}, 8, v{F2}")
    seg_src(f, VVS, 8, F1, F2)
    for i in range(4):
        f(f"s_add_u32 s{U+2}, s{S_W}, {i}")
        f(f"s_and_b32 s{U+2}, s{U+2}, 3")
        f(f"v_xor_b32 v{F1}, s{U+2}, v{VR4}")
        f(f"v_lshl_add_u32 v{VWT[i]}, v{F1}, 6, v{VTB}")
    f(f"v_and_b32 v{F1}, 0x13, v0")
    f(f"v_bfe_u32 v{F2}, v0, 2, 1")
    f(f"v_lshl_or_b32 v{F1}, v{F2}, 3, v{F1}")
    f(f"v_bfe_u32 v{F2}, v0, 3, 1")
    f(f"v_lshl_or_b32 v{F1}, v{F2}, 2, v{F1}")
    f(f"v_lshrrev_b32 v{VKA}, 5, v0")
    f(f"v_and_b32 v{F2}, 15, v{F1}")
    f(f"v_xor_b32 v{F2}, v{F2}, v{VKA}")
    f(f"v_lshlrev_b32 v{F2}, 4, v{F2}")
    f(f"v_lshl_add_u32 v{F1}, v{F1}, 8, v{F2}")
    f(f"s_add_u32 s{U+2}, s{S_MK}, {KR}")
    f(f"v_add_u32 v{VKA}, s{U+2}, v{F1}")
    f(f"v_lshlrev_b32 v{VL16}, 4, v0")
    for jg in range(4):
        f(f"s_add_u32 s{U+2}, s{S_LAM}, {jg}")
        f(f"s_and_b32 s{U+2}, s{U+2}, 3")
        if jg:
            f(f"s_lshl_b32 s{U+3}, s{U+2}, 17")
            f(f"s_add_u32 s{S_WOG[jg]}, s{U+1}, s{U+3}")
        f(f"s_lshl_b32 s{S_OG[jg]}, s{U+2}, 12")
        f(f"s_add_u32 s{S_Q[jg]}, s{S_G}, {jg+1}")
        f(f"s_and_b32 s{S_Q[jg]}, s{S_Q[jg]}, 3")
    f(f"s_lshl_b32 s{U+1}, s{S_BR}, 2")
    f(f"s_add_u32 s{U+1}, s{U+1}, s{S_R}")
    f(f"s_lshl_b32 s{S_OB}, s{U+1}, 20")
    f(f"s_lshl_b32 s{U+2}, s{U}, 14")
    f(f"s_add_u32 s{S_OB}, s{S_OB}, s{U+2}")
    f(f"s_lshl_b32 s{S_OW[0]}, s{S_BR}, 22")
    f(f"s_add_u32 s{S_OW[0]}, s{S_OW[0]}, s{S_KV}")
    f(f"s_add_u32 s{S_OW[1]}, s{S_OW[0]}, 4096")
    f(f"s_lshl_b32 s{U+2}, s{U+1}, 2")
    f(f"s_add_u32 s{U+2}, s{U+2}, s{S_G}")
    f(f"s_lshl_b32 s{U+2}, s{U+2}, {5+opt.fsh}")
    f(f"s_add_u32 s{U+2}, s{U+2}, {FO_BASE}")
    f(f"s_lshl_b32 s{U+3}, s{S_W}, {3+opt.fsh}")
    f(f"s_add_u32 s{S_FOR}, s{U+2}, s{U+3}")
    f(f"s_lshl_b32 s{U+3}, s{S_HL}, 2")
    f(f"s_add_u32 s{U+3}, s{U+3}, s{S_W}")
    f(f"s_lshl_b32 s{U+3}, s{U+3}, {opt.fsh}")
    f(f"s_add_u32 s{S_FOW}, s{U+2}, s{U+3}")
    f(f"s_lshl_b32 s{U+1}, s{U+1}, 3")
    f(f"s_add_u32 s{U+1}, s{U+1}, s{S_C}")
    f(f"s_lshl_b32 s{U+2}, s{U+1}, 18")
    f(f"s_add_u32 s{U+2}, s{U+2}, {PART_BASE}")
    f(f"s_lshl_b32 s{U+3}, s{U}, 12")
    f(f"s_add_u32 s{S_PB}, s{U+2}, s{U+3}")
    f(f"s_lshl_b32 s{U+3}, s{S_G}, 16")
    f(f"s_add_u32 s{S_PR}, s{U+2}, s{U+3}")
    f(f"s_lshl_b32 s{U+3}, s{S_W}, 12")
    f(f"s_add_u32 s{S_PR}, s{S_PR}, s{U+3}")
    f(f"s_lshl_b32 s{U+2}, s{S_R}, 2")
    f(f"s_add_u32 s{U+2}, s{U+2}, s{S_G}")
    f(f"s_lshl_b32 s{U+2}, s{U+2}, 17")
    f(f"s_lshl_b32 s{U+3}, s{S_BR}, 11")
    f(f"s_add_u32 s{U+2}, s{U+2}, s{U+3}")
    f(f"s_lshl_b32 s{U+3}, s{S_C}, 8")
    f(f"s_add_u32 s{U+2}, s{U+2}, s{U+3}")
    f(f"s_lshl_b32 s{U+3}, s{S_W}, 6")
    f(f"s_add_u32 s{S_OUTB}, s{U+2}, s{U+3}")
    f(f"s_getreg_b32 s{S_XCC}, hwreg(HW_REG_XCC_ID, 0, 4)")
    f(f"s_lshl_b32 s{U+2}, s{S_XCC}, 2")
    f(f"s_lshl_b32 s{U+3}, 1, s{U+2}")
    f(f"s_lshl_b32 s{S_XEXP}, 8, s{U+2}")
    f(f"v_mov_b32 v{VCEN}, s{U+3}")
    f(f"s_lshl_b32 s{U+2}, s{S_BR}, 2")
    f(f"s_add_u32 s{U+2}, s{U+2}, s{S_R}")
    f(f"s_lshl_b32 s{U+2}, s{U+2}, 2")
    f(f"s_add_u32 s{U+2}, s{U+2}, s{S_G}")
    f(f"s_lshl_b32 s{U+2}, s{U+2}, 2")
    f(f"s_add_u32 s{S_XOFF}, s{U+2}, 128")
    f(f"v_add_u32 v{VCOF}, s{S_W}, v0")
    f(f"v_lshlrev_b32 v{VCOF}, 8, v{VCOF}")
    f(f"v_and_b32 v{VNOF}, 1, v0")
    f(f"v_mul_u32_u24 v{VNOF}, s{S_XOFF}, v{VNOF}")
    FILL = f.L

    SLOT = {"w0": (S_MW, 0), "w1": (S_MW, 16384), "w2": (S_MW, 32768),
            "x0": (S_MX, 0), "x1": (S_MX, 4096), "x2": (S_MX, 8192),
            "k0": (S_MK, KR), "k1": (S_MK, KR + 4096), "v0": (S_MK, VR), "v1": (S_MK, VR + 4096)}
    def dma_wo(pos, j, slot):
        sb, off = SLOT[slot]
        a(f"s_add_u32 m0, s{sb}, {off + j*1024}")
        a(f"s_add_u32 s{T}, s{S_WOG[pos>>2]}, {(16*(pos&3)+4*j)*2048}")
        a.vmem(f"buffer_load_dwordx4 v{VWO}, {srd(SWO)}, s{T} offen {opt.nt_lo if pos < 4 else opt.nt_wo} lds", ("wo", pos))
    def tr_wo_items(pos, slot):
        sb, off = SLOT[slot]
        it = []
        for s4 in range(4):
            def g(s4=s4):
                if s4 == 0:
                    a.wait_vm(("wo", pos))
                    a(f"s_add_u32 s{T+1}, s{sb}, {off}")
                a(f"v_add_u32 v{VT2}, s{T+1}, v{VWT[s4]}")
                for h2 in range(2):
                    a.lds(f"ds_read_b64_tr_b16 {ar(16*pos+4*s4+2*h2,2)}, v{VT2} offset:{4*h2*256}", ("wo", pos))
            it.append(g)
        return it
    def dma_kv(pc, j):
        half = int(pc[1])
        if pc[0] == "K":
            a(f"s_add_u32 m0, s{S_MK}, {KR + half*4096}")
            a(f"s_add_u32 s{T}, s{S_KV}, {half*4096}")
            a(f"v_xor_b32 v{TT}, {64*j}, v{VKS}")
            a.vmem(f"buffer_load_dwordx4 v{TT}, {srd(SK)}, s{T} offen offset:{j*1024} {opt.nt_kv} lds", "k")
        else:
            a(f"s_add_u32 m0, s{S_MK}, {VR + half*4096}")
            a(f"s_add_u32 s{T}, s{S_KV}, {half*4096}")
            a.vmem(f"buffer_load_dwordx4 v{VVS}, {srd(SV)}, s{T} offen offset:{j*1024} {opt.nt_kv} lds", ("v", half))

    def reads(n):
        s, t = n >> 2, n & 3
        slot = s % 3
        fs = n & 1
        r = [(f"ds_read_b128 {vr(FB[fs],4)}, v{VB[t]} offset:{slot*4096}", ("b", n))]
        for i in range(4):
            for h2 in range(2):
                r.append((f"ds_read_b64_tr_b16 {vr(FA[fs]+4*i+2*h2,2)}, v{VA[i]} offset:{slot*16384 + (16*t+4*h2)*256}", ("a", n, i)))
        return r
    def mfma(n, i):
        fs = n & 1
        c = "0" if n == 0 else vr(ACC+16*i, 16)
        a.wait_lg([("b", n), ("a", n, i)])
        a(f"{MF} {vr(ACC+16*i,16)}, {vr(FA[fs]+4*i,4)}, {vr(FB[fs],4)}, {c}")

    allex = [p for l in sched(0, opt)[1].values() for p in l]
    w_early = sorted(int(p[1]) for p in allex if p[0] == "W")
    w_late = [p for p in range(4) if p not in w_early]
    hit_first = [4*g + k for k in w_early for g in (1, 2, 3)]
    hit_last = [4*g + k for k in w_late for g in (1, 2, 3)]
    rest = hit_first + w_late + hit_last
    late_slots = ["w1", "x1", "w2", "x2", "k0", "k1", "v0", "v1", "x0", "w0"]
    avail = {"w1": 14, "x1": 14, "w2": 15, "x2": 15, "k0": 15, "k1": 15, "v0": 15, "v1": 15, "x0": 16, "w0": 17}
    lateq = [(rest[i], j, late_slots[i]) for i in range(min(len(rest), len(late_slots))) for j in range(4)]
    def k_items():
        it = []
        for u in range(8):
            def g(u=u):
                if u == 0: a.wait_vm("k")
                a(f"v_xor_b32 v{VT2}, {32*u}, v{VKA}")
                a.lds(f"ds_read_b128 {vr(KF+4*u,4)}, v{VT2}", ("k", u))
            it.append(g)
        return it
    def v_items(u):
        it = []
        for i in range(4):
            def g(i=i):
                if i == 0:
                    a.wait_vm(("v", u))
                    a(f"s_add_u32 s{T+1}, s{S_MK}, {VR}")
                a(f"v_add_u32 v{VT2}, s{T+1}, v{VA[i]}")
                for h2 in range(2):
                    a.lds(f"ds_read_b64_tr_b16 {vr(VF+8*i+4*u+2*h2,2)}, v{VT2} offset:{(16*u+4*h2)*256}", ("v", i, u, h2))
            it.append(g)
        return it

    for lam in range(1, 4):
        a(f"s_cmp_eq_u32 s{S_LAM}, {lam}")
        a(f"s_cbranch_scc1 L_p1_{lam}")
    vm0, lg0 = list(a.vm), list(a.lg)
    end_state = None
    for lam in range(4):
        a.vm, a.lg = list(vm0), list(lg0)
        a.label(f"L_p1_{lam}")
        order, extras = sched(lam, opt)
        kv_issue = {}
        for st, l in extras.items():
            for pc in l:
                if pc[0] in "KV": kv_issue[pc.lower()] = st
        assert len(kv_issue) == 4 and max(extras) <= 11 and min(kv_issue.values()) >= 0, extras
        kc = max(kv_issue["k0"], kv_issue["k1"]) + 3
        occ = {"k0": [(kv_issue["k0"], kc)], "k1": [(kv_issue["k1"], kc)],
               "v0": [(kv_issue["v0"], kv_issue["v0"] + 3)], "v1": [(kv_issue["v1"], kv_issue["v1"] + 3)]}
        consume = {}
        consume.setdefault(kc, []).append("K")
        for u in range(2): consume.setdefault(kv_issue[f"v{u}"] + 3, []).append(f"V{u}")
        wslot = {}
        for st in sorted(extras):
            for pc in extras[st]:
                if pc[0] == "W":
                    cs = st + 3
                    cand = [k for k in ("v1", "v0", "k1", "k0") if all(cs < b or st > e for b, e in occ[k])]
                    assert cand, (lam, pc, st, occ)
                    wslot[pc] = cand[0]; occ[cand[0]].append((st, cs))
                    consume.setdefault(cs, []).append(pc)
        def extra_items(st):
            it = []
            for pc in extras.get(st, []):
                for j in range(4):
                    if pc[0] == "W": it.append(lambda pc=pc, j=j: dma_wo(int(pc[1]), j, wslot[pc]))
                    else: it.append(lambda pc=pc, j=j: dma_kv(pc, j))
            return it
        fill = list(FILL)
        lq = list(lateq)
        for s in range(16):
            a.c(f"---- class {lam} stage {s} chunk {order[s]}")
            if a.lg: a.wait_lg_all()
            a.wait_vm(("st", s))
            a("s_barrier")
            stamp(a, 1 + s, opt)
            dm = []
            if s + 2 < 16:
                c = order[s + 2]
                for j in range(4): dm.append(lambda j=j, c=c: dma_x(s + 2, j, S_XB[(c >> HB) & 1], (c & ~(1 << HB)) * 128))
                for j in range(4): dm.append(lambda j=j, c=c: dma_wq(s + 2, j, S_WQB[(c >> HB) & 1], (c & ~(1 << HB)) << 19, (c & 3) == lam))
            else:
                for k in range(opt.n14 if s == 14 else opt.n15):
                    pos, j, sl = lq.pop(0)
                    assert avail[sl] <= s
                    dm.append(lambda pos=pos, j=j, sl=sl: dma_wo(pos, j, sl))
            dm += extra_items(s)
            if opt.local and s == 5:
                assert not fill
                dm.append(lambda: a.vmem(f"buffer_atomic_add v{VCEN}, v{VCOF}, {srd(SDBG)}, s{S_XOFF} offen sc1", "cen"))
            if s == opt.non_stage:
                dm.append(lambda: a.vmem(f"buffer_load_dword v{VNON}, v{VNOF}, {srd(SDBG)}, 0 offen sc1", "nonce"))
            lw = []
            for pc in consume.get(s, []):
                if pc == "K": lw += k_items()
                elif pc[0] == "V": lw += v_items(int(pc[1]))
                else: lw += tr_wo_items(int(pc[1]), wslot[pc])
            nlw = (len(lw) + 3) // 4
            nd = len(dm)
            gap = 0
            for t in range(4):
                n = 4 * s + t
                rd = reads(n)
                for i in range(4):
                    if opt.fake16:
                        def m16(h):
                            if n == 0: return
                            fs = (n - 1) & 1
                            d = ACC + 16*i + 8*fs + 4*h
                            if h == 0 and i in (0, 2): a.wait_lg([("b", n-1), ("a", n-1, i + 1)])
                            a(f"v_mfma_f32_16x16x32_bf16 {vr(d,4)}, {vr(FA[fs]+4*i,4)}, {vr(FB[fs],4)}, {'0' if n < 3 else vr(d,4)}")
                        rr = rd[2*i + (1 if i else 0): 2*i + 3]
                        m16(0)
                        a.lds(*rr[0])
                        m16(1)
                        for x in rr[1:]: a.lds(*x)
                    if n > 0 and i == 0 and not opt.fake16: mfma(n - 1, i)
                    for (ins, tag) in ([] if opt.fake16 else rd[3*i:3*i+3]):
                        a.lds(ins, tag)
                    if i == 3:
                        for _ in range(nlw):
                            if lw: lw.pop(0)()
                        for _ in range(opt.fill if n else 24):
                            if fill: a(fill.pop(0))
                    elif fill: a(fill.pop(0))
                    if n > 0 and i < 3 and not opt.fake16: mfma(n - 1, i + 1)
                    gap += 1
                    want = (gap * nd + 15) // 16
                    while nd - len(dm) < want: dm.pop(0)()
            assert not dm and not lw, (s, len(dm), len(lw))
            if s == 0: assert len(FILL) - len(fill) >= 28, "VVS/VKS/VWT must be ready early"
        assert not fill
        st_ = (list(a.vm), list(a.lg))
        if end_state is None: end_state = st_
        assert end_state == st_, (end_state, st_)
        if lam < 3: a("s_branch L_common")
    a.label("L_common")
    natt = [opt.natt]
    def ad(lim=16):
        if natt[0] > 0 and lq and avail[lq[0][2]] <= lim:
            natt[0] -= 1
            dma_wo(*lq.pop(0)); return 3
        return 0
    def pad(n):
        while n > 0:
            k = min(n, 8); a(f"s_nop {k-1}"); n -= k
    k = 0
    for i in range(4):
        mfma(63, i)
        if i in (0, 2): k += ad(15)
    if a.lg: a.wait_lg_all(); k += 1
    stamp(a, 17, opt)
    a.c("---- attention")
    assert "nonce" not in a.vm
    a(f"v_readlane_b32 s{S_NONCE}, v{VNON}, 0")
    a(f"v_readlane_b32 s{S_XV}, v{VNON}, 1")
    CS = 128 ** -0.5 * 1.4426950408889634
    a(f"s_mov_b32 s{T+2}, {f32(CS)}")
    pad(max(0, 12 - 3 - 3 - 3 - k))
    def cvq(i):
        for p in range(8):
            a(f"v_cvt_pk_bf16_f32 v{QP+8*i+p}, v{ACC+16*i+2*p}, v{ACC+16*i+2*p+1}")
    cvq(0)
    for u in range(8):
        c = "0" if u == 0 else vr(SS, 16)
        a(f"{MF} {vr(SS,16)}, {vr(KF+4*u,4)}, {vr(QP+4*u,4)}, {c}")
        if u in (0, 2, 4):
            for p in range(6): a(f"v_cvt_pk_bf16_f32 v{QP+4*u+8+p}, v{ACC+8*u+16+2*p}, v{ACC+8*u+16+2*p+1}")
        if u in (1, 3, 5):
            for p in range(6, 8): a(f"v_cvt_pk_bf16_f32 v{QP+4*(u-1)+8+p}, v{ACC+8*(u-1)+16+2*p}, v{ACC+8*(u-1)+16+2*p+1}")
            if not ad(): a("s_nop 0")
    pad(12 - ad())
    a(f"v_max3_f32 v240, v{SS}, v{SS+1}, v{SS+2}")
    a(f"v_max3_f32 v241, v{SS+3}, v{SS+4}, v{SS+5}")
    a(f"v_max3_f32 v242, v{SS+6}, v{SS+7}, v{SS+8}")
    a(f"v_max3_f32 v243, v{SS+9}, v{SS+10}, v{SS+11}")
    a(f"v_max3_f32 v240, v240, v{SS+12}, v{SS+13}")
    a(f"v_max3_f32 v241, v241, v{SS+14}, v{SS+15}")
    a(f"v_max3_f32 v240, v240, v242, v243")
    a(f"v_max_f32 v240, v240, v241")
    a("v_mov_b32 v241, v240")
    pad(max(0, 2 - ad()))
    a("v_permlane32_swap_b32 v240, v241")
    a("s_nop 1")
    a("v_max_f32 v240, v240, v241")
    a(f"v_mul_f32 v240, s{T+2}, v240")
    for k in range(16):
        a(f"v_fma_f32 v{SS+k}, v{SS+k}, s{T+2}, -v240")
    ad()
    for k in range(16):
        a(f"v_exp_f32 v{SS+k}, v{SS+k}")
        if k == 7: ad()
    pad(max(0, 1 - ad()))
    a(f"v_add_f32 v241, v{SS}, v{SS+1}")
    a(f"v_add_f32 v242, v{SS+2}, v{SS+3}")
    for k in range(4, 16, 2):
        a(f"v_add_f32 v241, v241, v{SS+k}")
        a(f"v_add_f32 v242, v242, v{SS+k+1}")
    a("v_add_f32 v241, v241, v242")
    a("v_mov_b32 v242, v241")
    pad(max(0, 2 - ad()))
    a("v_permlane32_swap_b32 v241, v242")
    a("s_nop 1")
    a("v_add_f32 v241, v241, v242")
    a("v_rcp_f32 v241, v241")
    a("s_nop 0")
    for k in range(16):
        a(f"v_mul_f32 v{SS+k}, v{SS+k}, v241")
    ad()
    for p in range(8):
        a(f"v_cvt_pk_bf16_f32 v{PP+p}, v{SS+2*p}, v{SS+2*p+1}")
    def pv(i, h):
        c = "0" if h == 0 else vr(ACC+16*i, 16)
        a(f"{MF} {vr(ACC+16*i,16)}, {vr(VF+8*i+4*h,4)}, {vr(PP+4*h,4)}, {c}")
    pv(0, 0)
    pad(max(0, 1 - ad()))
    pv(0, 1); pv(1, 0)
    k = ad()
    pv(1, 1); pv(2, 0)
    k += ad()
    pv(2, 1)
    a(f"s_cmp_lt_u32 s{S_XCC}, 8")
    a(f"s_cselect_b32 s{S_XV}, s{S_XV}, 0")
    a(f"s_cmp_eq_u32 s{S_XV}, s{S_XEXP}")
    a(f"s_cselect_b32 s{S_XV}, {1 if opt.local else 0}, 0")
    pad(max(0, 12 - 4 - k - 6))
    a(f"s_cmp_eq_u32 s{S_XV}, 1")
    a("s_cbranch_scc1 L_ost_local")
    vm_save = list(a.vm)
    for aux in ("sc1", ""):
        a.vm = list(vm_save)
        if aux == "": a.label("L_ost_local")
        def ost(i):
            cvq(i)
            for u2 in range(2):
                u = 2 * i + u2
                a.vmem(f"buffer_store_dwordx4 {vr(QP+4*u,4)}, v{VL16}, {srd(SWS)}, s{S_OW[u>>2]} offen offset:{(u&3)*1024} {aux}", "o")
        ost(0)
        pv(3, 0); pv(3, 1)
        ost(1); ost(2); ost(3)
        if aux: a("s_branch L_ost_done")
    a.label("L_ost_done")
    stamp(a, 18, opt)
    a("s_barrier")
    VRW = [3, 4, 5]; VRR = 6; VZ = 12; VNV = 13; VFL = 14; VFA = 15; VMSK = 11; VOUT = 10; VL = 2; VBAD = [8, 9]
    S_TAG = [S_NONCE, 92, 93, 94]
    nfirst = min(len(rest), len(late_slots))
    slot_of = {rest[i]: late_slots[i] for i in range(nfirst)}
    for _ in range(opt.pre_flag):
        if lq: dma_wo(*lq.pop(0))
    a(f"s_cmp_lg_u32 s{S_NONCE}, 0")
    a("s_cbranch_scc1 L_havenonce")
    a(f"s_mov_b32 s{S_CNT}, 0")
    a("v_mov_b32 v240, 0")
    a.label("L_nonce_spin")
    a(f"buffer_load_dword v{VNON}, v240, {srd(SDBG)}, 0 offen sc1")
    a("s_waitcnt vmcnt(0)")
    a(f"v_readfirstlane_b32 s{S_NONCE}, v{VNON}")
    a(f"s_add_u32 s{S_CNT}, s{S_CNT}, 1")
    a(f"s_cmp_gt_u32 s{S_CNT}, {SPIN_MAX}")
    a("s_cbranch_scc1 L_havenonce")
    a(f"s_cmp_eq_u32 s{S_NONCE}, 0")
    a("s_cbranch_scc1 L_nonce_spin")
    a.label("L_havenonce")
    a(f"v_mov_b32 v{VL}, v{VL16}")
    for sl in range(1, 4):
        a(f"s_add_u32 s{T}, s{S_W}, {sl}")
        a(f"s_and_b32 s{T}, s{T}, 3")
        a(f"s_mul_i32 s{T}, s{T}, 12288")
        a(f"s_add_u32 s{T}, s{T}, {(sl-1)*4096}")
        a(f"v_add_u32 v{VRW[sl-1]}, s{T}, v{VL16}")
    a(f"s_mul_i32 s{T}, s{S_W}, 12288")
    a(f"v_add_u32 v{VRR}, s{T}, v{VL16}")
    a(f"v_lshrrev_b32 v{VZ}, 5, v0")
    a(f"v_lshlrev_b32 v{VZ}, 25, v{VZ}")
    a(f"v_lshl_add_u32 v{VZ}, v0, 2, v{VZ}")
    a(f"v_mov_b32 v{VNV}, s{S_NONCE}")
    a(f"v_and_b32 v{VFA}, 7, v0")
    a(f"v_lshlrev_b32 v{VFA}, {opt.fsh}, v{VFA}")
    a(f"v_and_b32 v{VOUT}, 31, v0")
    a(f"v_lshlrev_b32 v{VOUT}, 12, v{VOUT}")
    a(f"v_lshrrev_b32 v240, 5, v0")
    a(f"v_lshl_add_u32 v{VOUT}, v240, 4, v{VOUT}")
    ri = nfirst
    resident = list(w_early)
    free_slots = []
    def issued_fully(pos): return pos in slot_of and not any(q[0] == pos for q in lq)
    def assign_more():
        nonlocal ri
        while ri < len(rest) and free_slots:
            sl = free_slots.pop(0); slot_of[rest[ri]] = sl
            for j in range(4): lq.append((rest[ri], j, sl))
            ri += 1
    def tr_piece(pos):
        for g in tr_wo_items(pos, slot_of[pos]): g()
        resident.append(pos); free_slots.append(slot_of[pos])
    todo = list(rest)
    while todo and issued_fully(todo[0]) and a._cnt(a.vm, ("wo", todo[0])) < a.vm.index("o"):
        tr_piece(todo.pop(0))
    a.wait_lg_all(); assign_more()
    a.wait_vm("o")
    a(f"s_cmp_eq_u32 s{S_XV}, 1")
    a("s_cbranch_scc1 L_fl_local")
    a(f"buffer_store_dword v{VNV}, v{VZ}, {srd(SWS)}, s{S_FOW} offen sc1")
    a("s_branch L_fl_done")
    a.label("L_fl_local")
    a.vmem(f"buffer_store_dword v{VNV}, v{VZ}, {srd(SWS)}, s{S_FOW} offen", "flag")
    a.label("L_fl_done")
    stamp(a, 19, opt)
    for _ in range(opt.pre_poll):
        if lq: dma_wo(*lq.pop(0))
    a.vmem(f"buffer_load_dword v{VFL}, v{VFA}, {srd(SWS)}, s{S_FOR} offen sc1", "poll")
    while todo and issued_fully(todo[0]): tr_piece(todo.pop(0))
    if a.lg: a.wait_lg_all()
    assign_more()
    a(f"s_lshl_b32 s{T+2}, s{S_Q[0]}, 18")
    a(f"s_add_u32 s{T+2}, s{T+2}, s{S_OB}")
    for jg in range(4): a(f"s_add_u32 s{95+jg}, s{T+2}, s{S_OG[jg]}")
    stamp(a, 20, opt)
    a(f"s_mov_b32 s{S_CNT}, 0")
    a.label("L_pollo")
    a("s_waitcnt vmcnt(0)"); a.vm = []
    a(f"v_cmp_ne_u32 vcc, s{S_NONCE}, v{VFL}")
    a(f"s_add_u32 s{S_CNT}, s{S_CNT}, 1")
    a(f"s_cmp_gt_u32 s{S_CNT}, {SPIN_MAX}")
    a(f"s_cbranch_scc1 L_pollo_done")
    a("s_nop 1")
    a(f"s_cbranch_vccz L_pollo_done")
    a(f"buffer_load_dword v{VFL}, v{VFA}, {srd(SWS)}, s{S_FOR} offen sc1")
    a("s_branch L_pollo")
    a.label("L_pollo_done")
    stamp(a, 21, opt)
    assert ri == len(rest)
    korder0 = resident + todo
    assert sorted(korder0) == list(range(16))
    AC = 16; TMP = 80; OF = [128, 192]
    S_OS = [95, 96, 97, 98]
    def load_o(n, f):
        a.vmem(f"buffer_load_dwordx4 {vr(OF[n&1]+4*f,4)}, v{VL}, {srd(SWS)}, s{S_OS[f>>2]} offen offset:{(f&3)*1024} {opt.old}", ("o", n, f))
    def obase(n):
        a(f"s_lshl_b32 s{T+2}, s{S_Q[n]}, 18")
        a(f"s_add_u32 s{T+2}, s{T+2}, s{S_OB}")
        for jg in range(4): a(f"s_add_u32 s{S_OS[jg]}, s{T+2}, s{S_OG[jg]}")
    INIT = opt.init_o
    PT = OF[0]
    PK = TMP + 16
    PU = PT + 40
    S_SEL = [92, 93]
    dslot = [0, 1, 2, 4, 5, 6, 8, 9]
    O3L = 98304
    S_M3 = 94
    def wr(n, sl, j):
        a.lds(f"ds_write_b128 v{VRW[sl-1]}, {vr(AC+16*sl+4*j,4)} offset:{(n&1)*49152 + j*1024}", "rw")
    def rd(n, k):
        a.lds(f"ds_read_b128 {vr(TMP+4*k,4)}, v{VRR} offset:{(n&1)*49152 + k*1024}", ("rr", k))
    def presum(src, j):
        a.wait_lg([("rr", j), ("rr", 4*src+j)])
        for e in range(4): a(f"v_add_f32 v{TMP+4*j+e}, v{TMP+4*j+e}, v{TMP+16*src+4*j+e}")
    def fin(j):
        for e in range(4): a(f"v_add_f32 v{TMP+4*j+e}, v{TMP+4*j+e}, v{AC+4*j+e}")
    def pack(gr):
        for p in range(3*gr, min(3*gr+3, 8)):
            a(f"v_cvt_pk_bf16_f32 v{PK+dslot[p]}, v{TMP+2*p}, v{TMP+2*p+1}")
        a(f"v_mov_b32 v{PK+4*gr+3}, s{S_NONCE}")
        if gr == 2: a(f"v_mov_b32 v{PK+10}, s{S_NONCE}")
    def pst(n, j):
        if j == 0:
            a(f"s_lshl_b32 s{T+3}, s{S_Q[n]}, 16")
            a(f"s_add_u32 s{T+3}, s{T+3}, s{S_PB}")
        a.vmem(f"buffer_store_dwordx4 {vr(PK+4*j,4)}, v{VL}, {srd(SWS)}, s{T+3} offen offset:{j*1024} {opt.pst}", ("p", n))
    def pld(k, j, track=True):
        if j == 0:
            a(f"s_lshl_b32 s{T+4}, s{S_Q[k]}, 14")
            a(f"s_add_u32 s{T+4}, s{T+4}, s{S_PR}")
        ins = f"buffer_load_dwordx4 {vr(PT+12*k+4*j,4)}, v{VL}, {srd(SWS)}, s{T+4} offen offset:{j*1024} sc1"
        if track: a.vmem(ins, ("pp", k))
        else: a(ins)
    def chk(k):
        a(f"v_xor_b32 v{VBAD[0]}, s{S_NONCE}, v{PT+12*k+3}")
        a(f"v_bitop3_b32 v{VBAD[0]}, v{VBAD[0]}, v{PT+12*k+7}, s{S_NONCE} bitop3:0xf6")
        a(f"v_bitop3_b32 v{VBAD[0]}, v{VBAD[0]}, v{PT+12*k+11}, s{S_NONCE} bitop3:0xf6")
        a(f"v_cmp_ne_u32 vcc, 0, v{VBAD[0]}")
    def sel(k):
        a("s_cmp_eq_u64 vcc, 0")
        a(f"s_cselect_b32 s{S_SEL[0]}, 0x01000c0c, s{S_ZSEL}")
        a(f"s_cselect_b32 s{S_SEL[1]}, 0x03020c0c, s{S_ZSEL}")
        a(f"s_cselect_b32 s{T+5}, {1<<k}, 0")
        a(f"s_or_b32 s{S_DONE}, s{S_DONE}, s{T+5}")
    def unp_set(k, p2):
        for p in (2*p2, 2*p2+1):
            for h in range(2):
                d = PT + 12*k + dslot[p]
                a(f"v_perm_b32 v{AC+2*p+h}, v{d}, v{d}, s{S_SEL[h]}")
    def unp_add(k, p, dst):
        d = PT + 12*k + dslot[p]
        for h in range(2): a(f"v_perm_b32 v{PU+h}, v{d}, v{d}, s{S_SEL[h]}")
        for h in range(2): a(f"v_add_f32 v{dst+2*p+h}, v{dst+2*p+h}, v{PU+h}")
    def bar():
        if a.lg: a.wait_lg_all()
        a("s_barrier")
    S_ZSEL = 99
    carry = []
    ro = [0, 4, 8, 1, 5, 9, 2, 6, 10, 3, 7, 11]
    ps = [(src, j) for j in range(4) for src in (1, 2)]
    for f in korder0[:INIT]: load_o(0, f)
    a(f"s_mov_b32 s{S_ZSEL}, 0x0c0c0c0c")
    a(f"s_mov_b32 s{S_DONE}, 0")
    a(f"s_lshl_b32 s{S_M3}, s{S_W}, 14")
    a(f"s_add_u32 s{S_M3}, s{S_M3}, {O3L}")
    a(f"v_add_u32 v{VBAD[1]}, s{S_M3}, v{VL}")
    def dma_o3(f):
        if f % 4 == 0:
            a(f"s_add_u32 m0, s{S_M3}, {f*1024}")
            a("s_nop 0")
        a.vmem(f"buffer_load_dwordx4 v{VL}, {srd(SWS)}, s{S_OS[f>>2]} offen offset:{(f&3)*1024} {opt.old} lds", ("o3", f))
    def rd_o3(f):
        a.wait_vm(("o3", f))
        a.lds(f"ds_read_b128 {vr(OF[1]+4*f,4)}, v{VBAD[1]} offset:{f*1024}", ("o3", f))
    for n in range(4):
        a.c(f"---- strip {n}")
        if n == 0: seq = [(ks, sl) for ks in korder0 for sl in (1, 2, 3)] + [(ks, 0) for ks in range(16)]
        elif n == 1: seq = [(ks, sl) for ks in range(16) for sl in (1, 2)] + [(ks, sl) for sl in (3, 0) for ks in range(16)]
        else: seq = [(ks, sl) for sl in (1, 2, 3, 0) for ks in range(16)]
        at = {}
        def put(g, fn): at.setdefault(g, []).append(fn)
        for g, fn in carry: put(g, fn)
        carry = []
        if n == 0:
            mq = []
            of = korder0[INIT:]
            wl = list(lq); lq.clear()
            while of or wl:
                for _ in range(2):
                    if wl: mq.append(lambda w=wl.pop(0): dma_wo(*w))
                if of: mq.append(lambda f=of.pop(0): load_o(0, f))
            g = 0
            for fn in mq:
                put(g // opt.mq_den, fn); g += opt.mq_num
            gq = g // opt.mq_den + 1
            for i, pos in enumerate(korder0):
                if pos in todo:
                    its = tr_wo_items(pos, slot_of[pos])
                    for k2, fn in enumerate(its): put(3 * i - 4 + (k2 >> 1), fn)
            if todo: gq = max(gq, 20)
            stream = [lambda: obase(1)] + [lambda f=f: load_o(1, f) for f in range(16)]
            g = gq - 1
            def place(g, fn):
                if g < 64: put(g, fn)
                else: carry.append((g - 64, fn))
            place(g, stream[0]); g += 1
            for fn in stream[1:]: place(g, fn); g += 2
            g = max(g, 65)
            g += (g & 1) ^ 1
            place(g, lambda: obase(2)); g += 1
            for f in range(16): place(g, lambda f=f: load_o(2, f)); g += 2
            place(g - 1, lambda: obase(3))
            gend = g - 64
            assert gend <= 60, gend
            put(47, bar)
            put(48, lambda: a("s_nop 3"))
            put(49, lambda: a("s_nop 2"))
            for i, (sl, j) in enumerate([(sl, j) for sl in (1, 2, 3) for j in range(4)]): put(50 + i, lambda sl=sl, j=j: wr(n, sl, j))
            put(63, bar)
            g = 1
            for i in range(6):
                carry.append((g, lambda i=i: (rd(0, ro[2*i]), rd(0, ro[2*i+1])))); g += 2
            work = [lambda i=i: presum(*ps[i]) for i in range(8)] + [lambda j=j: fin(j) for j in range(4)] + [lambda j=j: pack(j) for j in range(3)]
            for fn in work: carry.append((g, fn)); g += 2
            assert g <= 47
            gs = max(gend, g)
            assert gs + 2 < 58
            for j in range(3): carry.append((gs + j, lambda j=j: pst(0, j)))
            left = []
        else:
            fast = n >= 2
            if n == 1:
                for i, (sl, j) in enumerate([(sl, j) for sl in (1, 2) for j in range(4)]): put(36 + i + (i >> 1), lambda sl=sl, j=j: wr(n, sl, j))
            else:
                if n == 2:
                    for f in range(16): put(opt.g_o3 + 2 * f, lambda f=f: load_o(3, f))
                    def pdma(j):
                        if j == 0:
                            a(f"s_lshl_b32 s{T+4}, s{S_Q[2]}, 14")
                            a(f"s_mov_b32 m0, s{S_M3}")
                            a(f"s_add_u32 s{T+4}, s{T+4}, s{S_PR}")
                        a.vmem(f"buffer_load_dwordx4 v{VL}, {srd(SWS)}, s{T+4} offen offset:{j*1024} sc1 lds", "pdma")
                    for j in range(3): put(opt.g_p2 + 2 * j, lambda j=j: pdma(j))
                for j in range(4): put(32 + 2 * j, lambda j=j: wr(n, 1, j))
                for j in range(4): put(41 + 2 * j, lambda j=j: wr(n, 2, j))
            put(48, lambda: a("s_nop 3"))
            put(49, lambda: a("s_nop 4" if n == 1 else "s_nop 3"))
            if fast:
                for j in range(4): put(50 + j, lambda j=j: wr(n, 3, j))
                gb = 55
            else:
                for j in range(4): put(50 + 2 * j, lambda j=j: wr(n, 3, j))
                gb = 58
            put(gb, bar)
            for i in range(6):
                put(gb + i, lambda i=i: (rd(n, ro[2*i]), rd(n, ro[2*i+1])))
            npre_s = 63 - (gb + 5)
            for i in range(npre_s): put(gb + 6 + i, lambda i=i: presum(*ps[i]))
            left = [lambda i=i: presum(*ps[i]) for i in range(npre_s, 8)]
            if n == 1:
                g = 1
                for fn in left + [lambda j=j: fin(j) for j in range(4)] + [lambda j=j: pack(j) for j in range(3)]: carry.append((g, fn)); g += 2
                for j in range(3): carry.append((opt.g_s1 + 2 * j, lambda j=j: pst(1, j)))
                assert opt.g_s1 >= g - 2
            if n == 2:
                g = 3 if opt.g_p1 == 0 else 0
                for fn in left + [lambda j=j: fin(j) for j in range(4)]: carry.append((g, fn)); g += 1
                for j in range(3):
                    carry.append((g, lambda j=j: pack(j))); g += 1
                    carry.append((g, lambda j=j, n=n: pst(n, j))); g += 1
                gfree = g
            if n == 3:
                for j in range(3): put(opt.g_p1 + j, lambda j=j: pld(1, j))
                def prd():
                    a.wait_vm("pdma")
                    for j in range(3):
                        a.lds(f"ds_read_b128 {vr(PT+24+4*j,4)}, v{VBAD[1]} offset:{j*1024}", "prd")
                g = gfree
                put(g - 3, prd)
                put(g, lambda: (a.wait_lg("prd"), chk(2))); g += 1
                put(g, lambda: sel(2)); g += 1
                for p2 in range(4): put(g, lambda p2=p2: unp_set(2, p2)); g += 1
                g = max(g, opt.g_c1)
                put(g, lambda: (a.wait_vm(("pp", 1)), chk(1))); g += 1
                put(g, lambda: sel(1)); g += 1
                for p in range(8):
                    while g in (32, 34, 36, 38, 41, 43, 45): g += 1
                    put(g, lambda p=p: unp_add(1, p, AC)); g += 1
                assert g <= 47, g
                for j in range(3): put(opt.g_p0 + j, lambda j=j: pld(0, j))
        seen = set()
        for g, (ks, sl) in enumerate(seq):
            if ks not in seen:
                a.wait_vm(("o", n, ks)); seen.add(ks)
                if n == 0: a.wait_lg(("wo", ks))
            first = (ks == korder0[0]) if (n == 0 and sl) else (ks == 0)
            if n == 3 and sl == 0: first = False
            c = "0" if first else vr(AC+16*sl, 16)
            a(f"{MF} {vr(AC+16*sl,16)}, {ar(16*ks+4*sl,4)}, {vr(OF[n&1]+4*ks,4)}, {c}")
            for fn in at.get(g, []): fn()
            if n == opt.sst and g % 8 == 7 and g < 63: stamp(a, 32 + g // 8, opt)
        stamp(a, 22 + n, opt)
    for fn in left: fn()
    for j in range(4): fin(j)
    a(f"s_mov_b32 s{S_SEL[0]}, 0x01000c0c")
    a(f"s_mov_b32 s{S_SEL[1]}, 0x03020c0c")
    stamp(a, 26, opt)
    a(f"s_mov_b32 s{S_CNT}, 0")
    for k in (0, 1, 2):
        if k:
            a(f"s_bitcmp1_b32 s{S_DONE}, {k}")
            a(f"s_cbranch_scc1 L_skip{k}")
            a(f"s_branch L_rel{k}")
        else:
            a.wait_vm(("pp", 0))
        a.label(f"L_chk{k}")
        chk(k)
        a(f"s_add_u32 s{S_CNT}, s{S_CNT}, 1")
        a(f"s_cmp_gt_u32 s{S_CNT}, {SPIN_MAX}")
        a(f"s_cbranch_scc1 L_ok{k}")
        a("s_nop 1")
        a(f"s_cbranch_vccz L_ok{k}")
        a.label(f"L_rel{k}")
        for j in range(3): pld(k, j, track=False)
        a("s_waitcnt vmcnt(0)")
        a(f"s_branch L_chk{k}")
        a.label(f"L_ok{k}")
        for p in range(8): unp_add(k, p, TMP)
        a.label(f"L_skip{k}")
    stamp(a, 27, opt)
    for p in range(8):
        a(f"v_cvt_pk_bf16_f32 v{AC+p}, v{TMP+2*p}, v{TMP+2*p+1}")
    a(f"buffer_store_dwordx4 {vr(AC,4)}, v{VOUT}, {srd(SOUT)}, s{S_OUTB} offen")
    a(f"buffer_store_dwordx4 {vr(AC+4,4)}, v{VOUT}, {srd(SOUT)}, s{S_OUTB} offen offset:32")
    if opt.stamps:
        a("s_waitcnt vmcnt(0)")
        stamp(a, 28, opt)
        if opt.stamps:
            a(f"v_writelane_b32 v{VSTAMP}, s{S_CNT}, 63")
        dump_stamps(a, opt)
    a.label(end)
    a("s_endpgm")
    a.label("L_codeend")

Opt.init_o = 8
Opt.fsh = 7
Opt.fake16 = False
Opt.stag = False
Opt.hbit = 3
Opt.ab = ""
Opt.coff = 1
Opt.map = 0
Opt.nt_lq = ""
Opt.nt_lo = ""
Opt.pst = "sc1"
Opt.ostep = 1
Opt.g_o3 = 0
Opt.g_c1 = 28
Opt.bal = True
Opt.local = False
Opt.non_stage = 12
Opt.old = "sc1"
Opt.g_p1 = 0
Opt.g_p2 = 33
Opt.g_s1 = 39
Opt.pre_poll = 16
Opt.mq_num = 2
Opt.mq_den = 1
Opt.g_p0 = 56
Opt.ost = "sc1"
Opt.ofl = "sc1"
Opt.late_pst = True
Opt.g_mid = 54
Opt.g_pub = 62
Opt.sst = -1
Opt.g_pf2 = 58

def build(opt):
    nm = NAME + "_kernel"
    out = []
    out.append("; @launch grid=(256,1,1) block=(256,1,1) lds=163840")
    out.append('.amdgcn_target "amdgcn-amd-amdhsa--gfx950"')
    out.append(".text")
    a = Asm()
    gen(a, opt)
    out.append(f".globl {nm}\n.p2align 8\n.type {nm},@function\n{nm}:")
    out.append(a.text())
    out.append('.section .rodata,"a"')
    out.append(f""".p2align 6
.amdhsa_kernel {nm}
  .amdhsa_next_free_vgpr 512
  .amdhsa_next_free_sgpr 102
  .amdhsa_accum_offset 256
  .amdhsa_group_segment_fixed_size 0
  .amdhsa_kernarg_size 104
  .amdhsa_user_sgpr_count 2
  .amdhsa_user_sgpr_kernarg_segment_ptr 1
  .amdhsa_system_sgpr_workgroup_id_x 1
.end_amdhsa_kernel
""")
    return "\n".join(out)

if __name__ == "__main__":
    opt = Opt()
    for kv in sys.argv[2:]:
        k, v = kv.split("=")
        cur = getattr(opt, k)
        setattr(opt, k, (v == "1") if isinstance(cur, bool) else type(cur)(v))
    open(sys.argv[1], "w").write(build(opt))
```

```python
import sys, struct
from asmlib import *

NAME = "concat_heads__mha_block_cached__gqa_block_cached__near_ridge"
def f32(x): return "0x%08x" % struct.unpack("<I", struct.pack("<f", x))[0]

PART_BASE = 8 << 20
FO_BASE = 24 << 20
STAMP_BASE = 28 << 20
WS_USED = 32 << 20
SPIN_MAX = 20000

SX, SK, SV, SWQ, SWO, SWS, SOUT, SDBG = 32, 36, 40, 44, 48, 52, 56, 60
S_W, S_BR, S_G, S_HL, S_R, S_B = 64, 65, 66, 67, 68, 69
S_T = 70
S_MX, S_LAM, S_KV, S_MW, S_MK, S_C = 78, 79, 80, 81, 82, 83
S_NONCE, S_CNT, S_DONE = 84, 85, 86
S_SO = 87
S_QW = [88, 89, 90, 91]; S_QX = [92, 93, 94, 95]
S_HW, S_HX = 96, 97
S_U = 98
S_WOG = [4, 5, 6, 7]; S_OG = [8, 9, 10, 11]; S_Q = [12, 13, 14, 15]
S_OB, S_PB, S_FOW, S_FOR, S_OUTB, S_PR = 16, 17, 18, 19, 20, 21
S_OW = [22, 23]

class Opt:
    nt_kv = "nt"
    stamps = False
    clk = "s_memrealtime"
    ab = "1:K0,K1;4:V0;6:V1;8:W0;10:W1"
    n14 = 8; n15 = 8; natt = 8
    pre_flag = 8; pre_poll = 8; post_poll = 8
    codepf = True
    fill = 4
    coff = 1
    non_stage = 10
    init_o = 8
    mq_num = 2; mq_den = 1
    fmt = 2
    g_s1 = 39; g_p2 = 33; g_p1 = 0; g_c1 = 28; g_p0 = 56; g_o3 = 0
    sst = -1

VSTAMP = 1
def stamp(a, idx, opt):
    if opt.stamps:
        a(f"{opt.clk} s[30:31]")
        a("s_waitcnt lgkmcnt(0)"); a.lg = []
        a(f"v_writelane_b32 v{VSTAMP}, s30, {idx}")

def dump_stamps(a, opt):
    a(f"s_lshl_b32 s{S_T}, s2, 2")
    a(f"s_add_u32 s{S_T}, s{S_T}, s{S_W}")
    a(f"s_lshl_b32 s{S_T}, s{S_T}, 8")
    a(f"s_add_u32 s{S_T}, s{S_T}, {STAMP_BASE}")
    a("v_lshlrev_b32 v2, 2, v0")
    a(f"buffer_store_dword v{VSTAMP}, v2, s[{SWS}:{SWS+3}], s{S_T} offen")
    a("s_waitcnt vmcnt(0)")

def seg_src(a, dst, rowstride_shift, t1, t2):
    a(f"v_lshrrev_b32 v{t1}, 4, v0")
    a(f"v_bfe_u32 v{t2}, v0, 2, 2")
    a(f"v_xor_b32 v{t2}, v{t2}, v{t1}")
    a(f"v_lshlrev_b32 v{t2}, 6, v{t2}")
    a(f"v_lshl_add_u32 v{dst}, v{t1}, {rowstride_shift}, v{t2}")
    a(f"v_and_b32 v{t2}, 3, v0")
    a(f"v_lshl_add_u32 v{dst}, v{t2}, 4, v{dst}")

def tr_base(a, dst, r4, t1):
    a(f"v_bfe_u32 v{r4}, v0, 2, 2")
    a(f"v_lshrrev_b32 v{t1}, 5, v0")
    a(f"v_lshl_add_u32 v{t1}, v{t1}, 3, v{r4}")
    a(f"v_lshlrev_b32 v{dst}, 8, v{t1}")
    a(f"v_bfe_u32 v{t1}, v0, 4, 1")
    a(f"v_lshl_add_u32 v{dst}, v{t1}, 5, v{dst}")
    a(f"v_and_b32 v{t1}, 1, v0")
    a(f"v_lshl_add_u32 v{dst}, v{t1}, 4, v{dst}")
    a(f"v_bfe_u32 v{t1}, v0, 1, 1")
    a(f"v_lshl_add_u32 v{dst}, v{t1}, 3, v{dst}")

MF = "v_mfma_f32_32x32x16_bf16"
srd = lambda r: f"s[{r}:{r+3}]"

class Rec:
    def __init__(self): self.L = []
    def __call__(self, s): self.L.append(s)

def gen(a, opt):
    end = "L_end"
    T = S_T; U = S_U
    stamp(a, 0, opt)
    a("s_cmp_ge_u32 s2, 256")
    a(f"s_cbranch_scc1 {end}")
    a("s_load_dwordx16 s[4:19], s[0:1], 0")
    a("s_load_dwordx4 s[20:23], s[0:1], 64")
    a("s_load_dwordx4 s[24:27], s[0:1], 80")
    a("s_load_dwordx2 s[28:29], s[0:1], 96")
    if opt.codepf:
        a(f"s_getpc_b64 s[{U}:{U+1}]")
        a.label("L_pc")
        a(f"s_lshr_b32 s{T}, s2, 3")
        a(f"v_lshrrev_b32 v240, 5, v0")
        a(f"v_lshl_add_u32 v240, s{T}, 3, v240")
        a(f"v_lshlrev_b32 v240, 7, v240")
        a(f"v_min_u32 v240, L_codeend-L_pc-4, v240")
        a(f"v_mov_b32 v241, s{U+1}")
        a(f"v_add_co_u32 v240, vcc, s{U}, v240")
        a("s_nop 1")
        a(f"v_addc_co_u32 v241, vcc, 0, v241, vcc")
        a.vmem(f"global_load_dword v241, v[240:241], off", "cpf")
    a("v_lshrrev_b32 v2, 6, v0")
    a("v_and_b32 v0, 63, v0")
    a(f"v_readfirstlane_b32 s{S_W}, v2")
    a(f"s_and_b32 s{T}, s2, 7")
    a(f"s_lshr_b32 s{T+1}, s2, 3")
    a(f"s_lshr_b32 s{S_BR}, s{T}, 2")
    a(f"s_and_b32 s{S_G}, s{T}, 3")
    a(f"s_and_b32 s{S_HL}, s{T+1}, 7")
    a(f"s_lshr_b32 s{S_R}, s{T+1}, 3")
    VKS, VVS = 2, 3
    VWO = [4, 5, 6, 7]
    VA = [8, 9, 10, 11]; VB = [12, 13, 14, 15]
    ACC = 16
    FA = [80, 100]; FB = [96, 116]
    KF, VF, QP, SS, PP = 120, 152, 184, 216, 232
    VWQ = [232, 233, 234, 235]; VX = [236, 237, 238, 239]
    TT = 240
    VWT = [244, 245, 246, 247]
    VKA, VL16, VTB, VR4, VNON, VT2 = 248, 249, 250, 251, 252, 253
    F1, F2 = 254, 255
    XR, KR, VR = 49152, 98304, 131072
    a(f"s_lshl_b32 s{S_B}, s{S_R}, 2")
    a(f"s_add_u32 s{S_B}, s{S_B}, s{S_W}")
    a(f"s_lshl_b32 s{T+4}, s{S_G}, 3")
    a(f"s_add_u32 s{T+4}, s{T+4}, s{S_HL}")
    a(f"s_lshl_b32 s{T}, s{S_W}, 17")
    a(f"s_lshl_b32 s{T+1}, s{T+4}, 8")
    a(f"s_add_u32 s{T}, s{T}, s{T+1}")
    a(f"s_lshl_b32 s{T+1}, s{S_B}, 16")
    a(f"s_lshr_b32 s{T+2}, s{S_HL}, 2")
    a(f"s_lshl_b32 s{S_HW}, s{T+2}, 20")
    a(f"s_lshl_b32 s{S_HX}, s{T+2}, 8")
    a(f"s_add_u32 s{S_LAM}, s{S_R}, s{S_HL}")
    a(f"s_and_b32 s{S_LAM}, s{S_LAM}, 3")
    a(f"s_lshl_b32 s{T+3}, s{S_LAM}, 21")
    a(f"s_add_u32 s{S_QW[0]}, s{T}, s{T+3}")
    a(f"s_lshl_b32 s{T+3}, s{S_LAM}, 9")
    a(f"s_add_u32 s{S_QX[0]}, s{T+1}, s{T+3}")
    a(f"s_lshl_b32 s{S_MW}, s{S_W}, 12")
    a(f"s_mul_i32 s{S_MX}, s{S_W}, 12288")
    a(f"s_add_u32 s{S_MX}, s{S_MX}, {XR}")
    seg_src(a, VWQ[0], 13, 242, 243)
    for j in range(1, 4): a(f"v_add_u32 v{VWQ[j]}, {j*(32768-1024)}, v{VWQ[0]}")
    a("v_lshrrev_b32 v242, 3, v0")
    a("v_lshrrev_b32 v243, 4, v0")
    a(f"v_and_b32 v{F1}, 7, v0")
    a(f"v_xor_b32 v{F1}, v{F1}, v243")
    a(f"v_lshlrev_b32 v{F1}, 4, v{F1}")
    a(f"v_lshl_add_u32 v{VX[0]}, v242, 11, v{F1}")
    a(f"v_xor_b32 v{F1}, 64, v{VX[0]}")
    a(f"v_add_u32 v{VX[1]}, {16384-1024}, v{F1}")
    a(f"v_add_u32 v{VX[2]}, {2*(16384-1024)}, v{VX[0]}")
    a(f"v_add_u32 v{VX[3]}, {3*(16384-1024)}, v{F1}")
    for s_, n in [(SX, 1 << 20), (SWQ, 8 << 20)]:
        a(f"s_mov_b32 s{s_+2}, {n}")
        a(f"s_mov_b32 s{s_+3}, 0x20000")
    a("s_waitcnt lgkmcnt(0)")
    stamp(a, 29, opt)
    a(f"s_cmp_eq_u32 s{S_BR}, 0")
    for i, s_ in [(0, SX), (3, SWQ), (1, SK), (2, SV), (4, SWO)]:
        a(f"s_cselect_b32 s{s_}, s{4+2*i}, s{14+2*i}")
        a(f"s_cselect_b32 s{s_+1}, s{5+2*i}, s{15+2*i}")
    cur = [None]
    def group(key, m0_ins, so_ins):
        n = 0
        if cur[0] != key:
            a(m0_ins); n += 1
            for x in so_ins: a(x); n += 1
            cur[0] = key
        return n
    def chunk_so(Q, H, pos, unit):
        op = "s_sub_u32" if pos & 2 else "s_add_u32"
        r = [f"{op} s{S_SO}, s{Q[pos>>2]}, s{H}"]
        if pos & 3: r.append(f"s_add_u32 s{S_SO}, s{S_SO}, {(pos&3)*unit}")
        return r
    def dma_x(pos, j):
        group(("x", pos), f"s_add_u32 m0, s{S_MX}, {(pos%3)*4096}", chunk_so(S_QX, S_HX, pos, 128))
        a.vmem(f"buffer_load_dwordx4 v{VX[j]}, {srd(SX)}, s{S_SO} offen offset:{j*1024} lds", ("st", pos))
    def dma_wq(pos, j):
        group(("q", pos), f"s_add_u32 m0, s{S_MW}, {(pos%3)*16384}", chunk_so(S_QW, S_HW, pos, 1 << 19))
        a.vmem(f"buffer_load_dwordx4 v{VWQ[j]}, {srd(SWQ)}, s{S_SO} offen offset:{j*1024} lds", ("st", pos))
    for j in range(4): dma_x(0, j)
    for j in range(4): dma_wq(0, j)
    stamp(a, 30, opt)
    tr_base(a, VTB, VR4, 242)
    for i in range(4):
        a(f"v_xor_b32 v242, {i}, v{VR4}")
        a(f"v_lshl_add_u32 v{VA[i]}, v242, 6, v{VTB}")
    a("v_and_b32 v242, 31, v0")
    a("v_lshrrev_b32 v243, 5, v0")
    a(f"v_bfe_u32 v{F1}, v0, 1, 3")
    a(f"v_xor_b32 v243, v243, v{F1}")
    a("v_lshlrev_b32 v243, 4, v243")
    a("v_lshl_add_u32 v242, v242, 7, v243")
    for t in range(4):
        a(f"v_xor_b32 v243, {32*t}, v242")
        a(f"v_add_u32 v{VB[t]}, s{S_MX}, v243")
    for s_, lo in [(SOUT, 24), (SDBG, 26), (SWS, 28)]:
        a(f"s_mov_b32 s{s_}, s{lo}")
        a(f"s_mov_b32 s{s_+1}, s{lo+1}")
    for s_, n in [(SK, 4 << 20), (SV, 4 << 20), (SWO, 8 << 20), (SWS, WS_USED), (SOUT, 2 << 20), (SDBG, 256)]:
        a(f"s_mov_b32 s{s_+2}, {n}")
        a(f"s_mov_b32 s{s_+3}, 0x20000")
    for q in range(1, 4):
        a(f"s_add_u32 s{T+2}, s{S_LAM}, {q}")
        a(f"s_and_b32 s{T+2}, s{T+2}, 3")
        a(f"s_lshl_b32 s{T+3}, s{T+2}, 21")
        a(f"s_add_u32 s{S_QW[q]}, s{T}, s{T+3}")
        a(f"s_lshl_b32 s{T+3}, s{T+2}, 9")
        a(f"s_add_u32 s{S_QX[q]}, s{T+1}, s{T+3}")
    a(f"s_lshl_b32 s{S_KV}, s{S_B}, 5")
    a(f"s_add_u32 s{S_KV}, s{S_KV}, s{T+4}")
    a(f"s_lshl_b32 s{S_KV}, s{S_KV}, 13")
    a(f"s_lshl_b32 s{S_MK}, s{S_W}, 13")
    for j in range(4): dma_x(1, j)
    for j in range(4): dma_wq(1, j)
    a(f"s_or_b32 s{T}, s2, s{S_W}")
    a(f"s_cmp_lg_u32 s{T}, 0")
    a("s_cbranch_scc1 L_nononce")
    a(f"s_memrealtime s[{T+2}:{T+3}]")
    a("s_waitcnt lgkmcnt(0)")
    a(f"s_or_b32 s{T+2}, s{T+2}, 1")
    a(f"s_mul_i32 s{T+2}, s{T+2}, 0x9e3779b1")
    a(f"v_mov_b32 v242, s{T+2}")
    a("v_mov_b32 v243, 0")
    a(f"buffer_store_dword v242, v243, {srd(SDBG)}, 0 offen sc1")
    a("s_waitcnt vmcnt(0)")
    a.label("L_nononce")
    stamp(a, 31, opt)
    f = Rec()
    f(f"v_lshrrev_b32 v{F1}, 4, v0")
    f(f"v_and_b32 v{F2}, 15, v0")
    f(f"v_xor_b32 v{F2}, v{F2}, v{F1}")
    f(f"v_lshlrev_b32 v{F2}, 4, v{F2}")
    f(f"v_lshl_add_u32 v{VKS}, v{F1}, 8, v{F2}")
    seg_src(f, VVS, 8, F1, F2)
    seg_src(f, VWO[0], 11, F1, F2)
    for j in range(1, 4): f(f"v_add_u32 v{VWO[j]}, {j*(8192-1024)}, v{VWO[0]}")
    for i in range(4):
        f(f"s_add_u32 s{U+2}, s{S_W}, {i}")
        f(f"s_and_b32 s{U+2}, s{U+2}, 3")
        f(f"v_xor_b32 v{F1}, s{U+2}, v{VR4}")
        f(f"v_lshl_add_u32 v{VWT[i]}, v{F1}, 6, v{VTB}")
    f(f"v_and_b32 v{F1}, 0x13, v0")
    f(f"v_bfe_u32 v{F2}, v0, 2, 1")
    f(f"v_lshl_or_b32 v{F1}, v{F2}, 3, v{F1}")
    f(f"v_bfe_u32 v{F2}, v0, 3, 1")
    f(f"v_lshl_or_b32 v{F1}, v{F2}, 2, v{F1}")
    f(f"v_lshrrev_b32 v{VKA}, 5, v0")
    f(f"v_and_b32 v{F2}, 15, v{F1}")
    f(f"v_xor_b32 v{F2}, v{F2}, v{VKA}")
    f(f"v_lshlrev_b32 v{F2}, 4, v{F2}")
    f(f"v_lshl_add_u32 v{F1}, v{F1}, 8, v{F2}")
    f(f"s_add_u32 s{U+2}, s{S_MK}, {KR}")
    f(f"v_add_u32 v{VKA}, s{U+2}, v{F1}")
    f(f"v_lshlrev_b32 v{VL16}, 4, v0")
    f(f"v_mov_b32 v{TT+1}, 0")
    f(f"s_lshl_b32 s{U}, s{S_G}, 2")
    f(f"s_add_u32 s{U}, s{U}, s{S_W}")
    f(f"s_lshl_b32 s{U+1}, s{U}, 19")
    f(f"s_add_u32 s{S_C}, s{S_HL}, {opt.coff}")
    f(f"s_and_b32 s{S_C}, s{S_C}, 7")
    f(f"s_lshl_b32 s{U+2}, s{S_C}, 8")
    f(f"s_add_u32 s{U+1}, s{U+1}, s{U+2}")
    for jg in range(4):
        f(f"s_add_u32 s{U+2}, s{S_LAM}, {jg}")
        f(f"s_and_b32 s{U+2}, s{U+2}, 3")
        f(f"s_lshl_b32 s{U+3}, s{U+2}, 17")
        f(f"s_add_u32 s{S_WOG[jg]}, s{U+1}, s{U+3}")
        f(f"s_lshl_b32 s{S_OG[jg]}, s{U+2}, 12")
        f(f"s_add_u32 s{S_Q[jg]}, s{S_G}, {jg+1}")
        f(f"s_and_b32 s{S_Q[jg]}, s{S_Q[jg]}, 3")
    f(f"s_lshl_b32 s{U+1}, s{S_BR}, 2")
    f(f"s_add_u32 s{U+1}, s{U+1}, s{S_R}")
    f(f"s_lshl_b32 s{S_OB}, s{U+1}, 20")
    f(f"s_lshl_b32 s{U+2}, s{U}, 14")
    f(f"s_add_u32 s{S_OB}, s{S_OB}, s{U+2}")
    f(f"s_lshl_b32 s{S_OW[0]}, s{S_BR}, 22")
    f(f"s_add_u32 s{S_OW[0]}, s{S_OW[0]}, s{S_KV}")
    f(f"s_add_u32 s{S_OW[1]}, s{S_OW[0]}, 4096")
    f(f"s_lshl_b32 s{U+2}, s{U+1}, 2")
    f(f"s_add_u32 s{U+2}, s{U+2}, s{S_G}")
    f(f"s_lshl_b32 s{U+2}, s{U+2}, 12")
    f(f"s_add_u32 s{U+2}, s{U+2}, {FO_BASE}")
    f(f"s_lshl_b32 s{U+3}, s{S_W}, 10")
    f(f"s_add_u32 s{S_FOR}, s{U+2}, s{U+3}")
    f(f"s_lshl_b32 s{U+3}, s{S_HL}, 2")
    f(f"s_add_u32 s{U+3}, s{U+3}, s{S_W}")
    f(f"s_lshl_b32 s{U+3}, s{U+3}, 7")
    f(f"s_add_u32 s{S_FOW}, s{U+2}, s{U+3}")
    f(f"s_lshl_b32 s{U+1}, s{U+1}, 3")
    f(f"s_add_u32 s{U+1}, s{U+1}, s{S_C}")
    f(f"s_lshl_b32 s{U+2}, s{U+1}, 18")
    f(f"s_add_u32 s{U+2}, s{U+2}, {PART_BASE}")
    f(f"s_lshl_b32 s{U+3}, s{U}, 12")
    f(f"s_add_u32 s{S_PB}, s{U+2}, s{U+3}")
    f(f"s_lshl_b32 s{U+3}, s{S_G}, 16")
    f(f"s_add_u32 s{S_PR}, s{U+2}, s{U+3}")
    f(f"s_lshl_b32 s{U+3}, s{S_W}, 12")
    f(f"s_add_u32 s{S_PR}, s{S_PR}, s{U+3}")
    f(f"s_lshl_b32 s{U+2}, s{S_R}, 2")
    f(f"s_add_u32 s{U+2}, s{U+2}, s{S_G}")
    f(f"s_lshl_b32 s{U+2}, s{U+2}, 17")
    f(f"s_lshl_b32 s{U+3}, s{S_BR}, 11")
    f(f"s_add_u32 s{U+2}, s{U+2}, s{U+3}")
    f(f"s_lshl_b32 s{U+3}, s{S_C}, 8")
    f(f"s_add_u32 s{U+2}, s{U+2}, s{U+3}")
    f(f"s_lshl_b32 s{U+3}, s{S_W}, 6")
    f(f"s_add_u32 s{S_OUTB}, s{U+2}, s{U+3}")
    fill = f.L
    for _ in range(opt.fill0): a(fill.pop(0))

    SLOT = {"w0": (S_MW, 0), "w1": (S_MW, 16384), "w2": (S_MW, 32768),
            "x0": (S_MX, 0), "x1": (S_MX, 4096), "x2": (S_MX, 8192),
            "k0": (S_MK, KR), "k1": (S_MK, KR + 4096), "v0": (S_MK, VR), "v1": (S_MK, VR + 4096)}
    def dma_wo(pos, j, slot):
        sb, off = SLOT[slot]
        n = group(("wo", pos), f"s_add_u32 m0, s{sb}, {off}", [f"s_add_u32 s{S_SO}, s{S_WOG[pos>>2]}, {16*(pos&3)*2048}"])
        a.vmem(f"buffer_load_dwordx4 v{VWO[j]}, {srd(SWO)}, s{S_SO} offen offset:{j*1024} lds", ("wo", pos))
        return n + 1
    def tr_wo_items(pos, slot):
        sb, off = SLOT[slot]
        it = []
        for s4 in range(4):
            def g(s4=s4):
                if s4 == 0:
                    a.wait_vm(("wo", pos))
                    a(f"s_add_u32 s{T+1}, s{sb}, {off}")
                a(f"v_add_u32 v{VT2}, s{T+1}, v{VWT[s4]}")
                for h2 in range(2):
                    a.lds(f"ds_read_b64_tr_b16 {ar(16*pos+4*s4+2*h2,2)}, v{VT2} offset:{4*h2*256}", ("wo", pos))
            it.append(g)
        return it
    def dma_kv(pc, j):
        half = int(pc[1])
        group(pc, f"s_add_u32 m0, s{S_MK}, {(KR if pc[0] == 'K' else VR) + half*4096}", [f"s_add_u32 s{S_SO}, s{S_KV}, {half*4096}"])
        if pc[0] == "K":
            a(f"v_xor_b32 v{TT}, {64*j}, v{VKS}")
            a.vmem(f"buffer_load_dwordx4 v{TT}, {srd(SK)}, s{S_SO} offen offset:{j*1024} {opt.nt_kv} lds", "k")
        else:
            a.vmem(f"buffer_load_dwordx4 v{VVS}, {srd(SV)}, s{S_SO} offen offset:{j*1024} {opt.nt_kv} lds", ("v", half))
    def reads(n):
        s, t = n >> 2, n & 3
        slot = s % 3
        fs = n & 1
        r = [(f"ds_read_b128 {vr(FB[fs],4)}, v{VB[t]} offset:{slot*4096}", ("b", n))]
        for i in range(4):
            for h2 in range(2):
                r.append((f"ds_read_b64_tr_b16 {vr(FA[fs]+4*i+2*h2,2)}, v{VA[i]} offset:{slot*16384 + (16*t+4*h2)*256}", ("a", n, i)))
        return r
    def mfma(n, i):
        fs = n & 1
        c = "0" if n == 0 else vr(ACC+16*i, 16)
        a.wait_lg([("b", n), ("a", n, i)])
        a(f"{MF} {vr(ACC+16*i,16)}, {vr(FA[fs]+4*i,4)}, {vr(FB[fs],4)}, {c}")

    extras = {}
    for it in filter(None, opt.ab.split(";")):
        st, lst = it.split(":")
        for pc in lst.split(","): extras.setdefault(int(st), []).append(pc)
    allex = [p for l in extras.values() for p in l]
    w_early = sorted(int(p[1]) for p in allex if p[0] == "W")
    w_late = [p for p in range(4) if p not in w_early]
    hit_first = [4*g + k for k in w_early for g in (1, 2, 3)]
    hit_last = [4*g + k for k in w_late for g in (1, 2, 3)]
    rest = hit_first + w_late + hit_last
    if opt.rest: rest = [int(x) for x in opt.rest.split(",")]
    assert sorted(rest + w_early) == list(range(16))
    late_slots = ["w1", "x1", "w2", "x2", "k0", "k1", "v0", "v1", "x0", "w0"]
    avail = {"w1": 14, "x1": 14, "w2": 15, "x2": 15, "k0": 15, "k1": 15, "v0": 15, "v1": 15, "x0": 16, "w0": 17}
    lq = [(rest[i], j, late_slots[i]) for i in range(min(len(rest), len(late_slots))) for j in range(4)]
    def k_items():
        it = []
        for u in range(8):
            def g(u=u):
                if u == 0: a.wait_vm("k")
                a(f"v_xor_b32 v{VT2}, {32*u}, v{VKA}")
                a.lds(f"ds_read_b128 {vr(KF+4*u,4)}, v{VT2}", ("k", u))
            it.append(g)
        return it
    def v_items(u):
        it = []
        for i in range(4):
            def g(i=i):
                if i == 0:
                    a.wait_vm(("v", u))
                    a(f"s_add_u32 s{T+1}, s{S_MK}, {VR}")
                a(f"v_add_u32 v{VT2}, s{T+1}, v{VA[i]}")
                for h2 in range(2):
                    a.lds(f"ds_read_b64_tr_b16 {vr(VF+8*i+4*u+2*h2,2)}, v{VT2} offset:{(16*u+4*h2)*256}", ("v", i, u, h2))
            it.append(g)
        return it
    kv_issue = {pc.lower(): st for st, l in extras.items() for pc in l if pc[0] in "KV"}
    assert len(kv_issue) == 4 and max(extras) <= 11
    kc = max(kv_issue["k0"], kv_issue["k1"]) + 3
    occ = {"k0": [(kv_issue["k0"], kc)], "k1": [(kv_issue["k1"], kc)],
           "v0": [(kv_issue["v0"], kv_issue["v0"] + 3)], "v1": [(kv_issue["v1"], kv_issue["v1"] + 3)]}
    consume = {kc: ["K"]}
    for u in range(2): consume.setdefault(kv_issue[f"v{u}"] + 3, []).append(f"V{u}")
    wslot = {}
    for st in sorted(extras):
        for pc in extras[st]:
            if pc[0] == "W":
                cs = st + 3
                cand = [k for k in ("k0", "k1", "v0", "v1") if all(cs < b or st > e for b, e in occ[k])]
                assert cand, (pc, st, occ)
                wslot[pc] = cand[0]; occ[cand[0]].append((st, cs))
                consume.setdefault(cs, []).append(pc)
    for s in range(16):
        a.c(f"---- stage {s}")
        if a.lg: a.wait_lg_all()
        a.wait_vm(("st", s))
        a("s_barrier")
        stamp(a, 1 + s, opt)
        dm = []
        if s + 2 < 16:
            for j in range(4): dm.append(lambda j=j: dma_x(s + 2, j))
            for j in range(4): dm.append(lambda j=j: dma_wq(s + 2, j))
        else:
            for k in range(opt.n14 if s == 14 else opt.n15):
                pos, j, sl = lq.pop(0)
                assert avail[sl] <= s
                dm.append(lambda pos=pos, j=j, sl=sl: dma_wo(pos, j, sl))
        for pc in extras.get(s, []):
            if pc[0] == "W": assert not fill
            for j in range(4):
                if pc[0] == "W": dm.append(lambda pc=pc, j=j: dma_wo(int(pc[1]), j, wslot[pc]))
                else: dm.append(lambda pc=pc, j=j: dma_kv(pc, j))
        if s == opt.non_stage:
            dm.append(lambda: a.vmem(f"buffer_load_dword v{VNON}, v{TT+1}, {srd(SDBG)}, 0 offen sc1", "nonce"))
        lw = []
        for pc in consume.get(s, []):
            if pc == "K": lw += k_items()
            elif pc[0] == "V": lw += v_items(int(pc[1]))
            else: lw += tr_wo_items(int(pc[1]), wslot[pc])
        nlw = (len(lw) + 3) // 4
        nd = len(dm)
        gap = 0
        for t in range(4):
            n = 4 * s + t
            rd = reads(n)
            for i in range(4):
                if n > 0 and i == 0: mfma(n - 1, i)
                for (ins, tag) in rd[3*i:3*i+3]:
                    a.lds(ins, tag)
                if i == 3:
                    for _ in range(nlw):
                        if lw: lw.pop(0)()
                    for _ in range(opt.fill if n else 24):
                        if fill: a(fill.pop(0))
                elif fill: a(fill.pop(0))
                if n > 0 and i < 3: mfma(n - 1, i + 1)
                gap += 1
                want = (gap * nd + 15) // 16
                while nd - len(dm) < want: dm.pop(0)()
        assert not dm and not lw
    assert not fill
    natt = [opt.natt]
    def ad(lim=16):
        if natt[0] > 0 and lq and avail[lq[0][2]] <= lim:
            natt[0] -= 1
            return dma_wo(*lq.pop(0))
        return 0
    def pad(n):
        while n > 0:
            k = min(n, 8); a(f"s_nop {k-1}"); n -= k
    k = 0
    for i in range(4):
        mfma(63, i)
        if i in (0, 2): k += ad(15)
    if a.lg: a.wait_lg_all(); k += 1
    stamp(a, 17, opt)
    a.c("---- attention")
    assert "nonce" not in a.vm
    a(f"v_readfirstlane_b32 s{S_NONCE}, v{VNON}")
    CS = 128 ** -0.5 * 1.4426950408889634
    a(f"s_mov_b32 s{T+2}, {f32(CS)}")
    pad(12 - 3 - 3 - 2 - k)
    def cvq(i):
        for p in range(8):
            a(f"v_cvt_pk_bf16_f32 v{QP+8*i+p}, v{ACC+16*i+2*p}, v{ACC+16*i+2*p+1}")
    cvq(0)
    for u in range(8):
        c = "0" if u == 0 else vr(SS, 16)
        a(f"{MF} {vr(SS,16)}, {vr(KF+4*u,4)}, {vr(QP+4*u,4)}, {c}")
        if u in (0, 2, 4):
            for p in range(6): a(f"v_cvt_pk_bf16_f32 v{QP+4*u+8+p}, v{ACC+8*u+16+2*p}, v{ACC+8*u+16+2*p+1}")
        if u in (1, 3, 5):
            for p in range(6, 8): a(f"v_cvt_pk_bf16_f32 v{QP+4*(u-1)+8+p}, v{ACC+8*(u-1)+16+2*p}, v{ACC+8*(u-1)+16+2*p+1}")
            if not ad(): a("s_nop 0")
    pad(12 - ad())
    a(f"v_max3_f32 v240, v{SS}, v{SS+1}, v{SS+2}")
    a(f"v_max3_f32 v241, v{SS+3}, v{SS+4}, v{SS+5}")
    a(f"v_max3_f32 v242, v{SS+6}, v{SS+7}, v{SS+8}")
    a(f"v_max3_f32 v243, v{SS+9}, v{SS+10}, v{SS+11}")
    a(f"v_max3_f32 v240, v240, v{SS+12}, v{SS+13}")
    a(f"v_max3_f32 v241, v241, v{SS+14}, v{SS+15}")
    a(f"v_max3_f32 v240, v240, v242, v243")
    a(f"v_max_f32 v240, v240, v241")
    a("v_mov_b32 v241, v240")
    pad(2 - ad())
    a("v_permlane32_swap_b32 v240, v241")
    a("s_nop 1")
    a("v_max_f32 v240, v240, v241")
    a(f"v_mul_f32 v240, s{T+2}, v240")
    for k in range(16):
        a(f"v_fma_f32 v{SS+k}, v{SS+k}, s{T+2}, -v240")
    ad()
    for k in range(16):
        a(f"v_exp_f32 v{SS+k}, v{SS+k}")
        if k == 7: ad()
    pad(1 - ad())
    a(f"v_add_f32 v241, v{SS}, v{SS+1}")
    a(f"v_add_f32 v242, v{SS+2}, v{SS+3}")
    for k in range(4, 16, 2):
        a(f"v_add_f32 v241, v241, v{SS+k}")
        a(f"v_add_f32 v242, v242, v{SS+k+1}")
    a("v_add_f32 v241, v241, v242")
    a("v_mov_b32 v242, v241")
    pad(2 - ad())
    a("v_permlane32_swap_b32 v241, v242")
    a("s_nop 1")
    a("v_add_f32 v241, v241, v242")
    a("v_rcp_f32 v241, v241")
    a("s_nop 0")
    for k in range(16):
        a(f"v_mul_f32 v{SS+k}, v{SS+k}, v241")
    ad()
    for p in range(8):
        a(f"v_cvt_pk_bf16_f32 v{PP+p}, v{SS+2*p}, v{SS+2*p+1}")
    def pv(i, h):
        c = "0" if h == 0 else vr(ACC+16*i, 16)
        a(f"{MF} {vr(ACC+16*i,16)}, {vr(VF+8*i+4*h,4)}, {vr(PP+4*h,4)}, {c}")
    def ost(i):
        cvq(i)
        for u2 in range(2):
            u = 2 * i + u2
            a.vmem(f"buffer_store_dwordx4 {vr(QP+4*u,4)}, v{VL16}, {srd(SWS)}, s{S_OW[u>>2]} offen offset:{(u&3)*1024} sc1", "o")
    pv(0, 0)
    pad(1 - ad())
    pv(0, 1); pv(1, 0)
    k = ad()
    pv(1, 1); pv(2, 0)
    k += ad()
    pv(2, 1)
    pad(12 - 4 - k)
    ost(0)
    pv(3, 0); pv(3, 1)
    ost(1); ost(2); ost(3)
    stamp(a, 18, opt)
    a("s_barrier")
    VL = 2; VRR = 3; VRW = [8, 9, 10]; VOUT = 11; VZ = 12; VNV = 13; VFL = 14; VFA = 15
    nfirst = min(len(rest), len(late_slots))
    slot_of = {rest[i]: late_slots[i] for i in range(nfirst)}
    for _ in range(opt.pre_flag):
        if lq: dma_wo(*lq.pop(0))
    a(f"s_cmp_lg_u32 s{S_NONCE}, 0")
    a("s_cbranch_scc1 L_havenonce")
    a(f"s_mov_b32 s{S_CNT}, 0")
    a("v_mov_b32 v240, 0")
    a.label("L_nonce_spin")
    a(f"buffer_load_dword v{VNON}, v240, {srd(SDBG)}, 0 offen sc1")
    a("s_waitcnt vmcnt(0)")
    a(f"v_readfirstlane_b32 s{S_NONCE}, v{VNON}")
    a(f"s_add_u32 s{S_CNT}, s{S_CNT}, 1")
    a(f"s_cmp_gt_u32 s{S_CNT}, {SPIN_MAX}")
    a("s_cbranch_scc1 L_havenonce")
    a(f"s_cmp_eq_u32 s{S_NONCE}, 0")
    a("s_cbranch_scc1 L_nonce_spin")
    a.label("L_havenonce")
    a(f"v_mov_b32 v{VL}, v{VL16}")
    for sl in range(1, 4):
        a(f"s_add_u32 s{T}, s{S_W}, {sl}")
        a(f"s_and_b32 s{T}, s{T}, 3")
        a(f"s_mul_i32 s{T}, s{T}, 12288")
        a(f"s_add_u32 s{T}, s{T}, {(sl-1)*4096}")
        a(f"v_add_u32 v{VRW[sl-1]}, s{T}, v{VL16}")
    a(f"s_mul_i32 s{T}, s{S_W}, 12288")
    a(f"v_add_u32 v{VRR}, s{T}, v{VL16}")
    a(f"v_lshrrev_b32 v{VZ}, 5, v0")
    a(f"v_lshlrev_b32 v{VZ}, 25, v{VZ}")
    a(f"v_lshl_add_u32 v{VZ}, v0, 2, v{VZ}")
    a(f"v_mov_b32 v{VNV}, s{S_NONCE}")
    a(f"v_and_b32 v{VFA}, 7, v0")
    a(f"v_lshlrev_b32 v{VFA}, 7, v{VFA}")
    a(f"v_and_b32 v{VOUT}, 31, v0")
    a(f"v_lshlrev_b32 v{VOUT}, 12, v{VOUT}")
    a(f"v_lshrrev_b32 v240, 5, v0")
    a(f"v_lshl_add_u32 v{VOUT}, v240, 4, v{VOUT}")
    ri = nfirst
    resident = list(w_early)
    free_slots = []
    def issued_fully(pos): return pos in slot_of and not any(q[0] == pos for q in lq)
    def assign_more():
        nonlocal ri
        while ri < len(rest) and free_slots:
            sl = free_slots.pop(0); slot_of[rest[ri]] = sl
            for j in range(4): lq.append((rest[ri], j, sl))
            ri += 1
    def tr_piece(pos):
        for g in tr_wo_items(pos, slot_of[pos]): g()
        resident.append(pos); free_slots.append(slot_of[pos])
    todo = list(rest)
    while todo and issued_fully(todo[0]) and a._cnt(a.vm, ("wo", todo[0])) < a.vm.index("o"):
        tr_piece(todo.pop(0))
    if a.lg: a.wait_lg_all()
    assign_more()
    a.wait_vm("o")
    a.vmem(f"buffer_store_dword v{VNV}, v{VZ}, {srd(SWS)}, s{S_FOW} offen sc1", "flag")
    stamp(a, 19, opt)
    if opt.diag:
        a.wait_vm_all(); stamp(a, 32, opt)
        a(f"s_mov_b32 s{S_CNT}, 0")
        a.label("L_dp")
        a(f"buffer_load_dword v{VFL}, v{VFA}, {srd(SWS)}, s{S_FOR} offen sc1")
        a("s_waitcnt vmcnt(0)")
        a(f"v_cmp_ne_u32 vcc, s{S_NONCE}, v{VFL}")
        a(f"s_add_u32 s{S_CNT}, s{S_CNT}, 1")
        a(f"s_cmp_gt_u32 s{S_CNT}, {SPIN_MAX}")
        a(f"s_cbranch_scc1 L_dpd")
        a("s_nop 1")
        a(f"s_cbranch_vccnz L_dp")
        a.label("L_dpd")
        stamp(a, 33, opt)
        for k in range(5):
            for _ in range(8):
                if lq: dma_wo(*lq.pop(0))
            a("s_waitcnt vmcnt(0)")
            stamp(a, 34 + k, opt)
    for _ in range(opt.pre_poll):
        if lq: dma_wo(*lq.pop(0))
    a.vmem(f"buffer_load_dword v{VFL}, v{VFA}, {srd(SWS)}, s{S_FOR} offen sc1", "poll")
    for _ in range(opt.post_poll):
        if lq: dma_wo(*lq.pop(0))
    while todo and issued_fully(todo[0]) and a._cnt(a.vm, ("wo", todo[0])) < a.vm.index("poll"):
        tr_piece(todo.pop(0))
    if a.lg: a.wait_lg_all()
    assign_more()
    S_OS = S_QW
    def obase(n):
        a(f"s_lshl_b32 s{T+2}, s{S_Q[n]}, 18")
        a(f"s_add_u32 s{T+2}, s{T+2}, s{S_OB}")
        for jg in range(4): a(f"s_add_u32 s{S_OS[jg]}, s{T+2}, s{S_OG[jg]}")
    obase(0)
    stamp(a, 20, opt)
    a(f"s_mov_b32 s{S_CNT}, 0")
    a.wait_vm("poll")
    a.label("L_pollo")
    a(f"v_cmp_ne_u32 vcc, s{S_NONCE}, v{VFL}")
    a(f"s_add_u32 s{S_CNT}, s{S_CNT}, 1")
    a(f"s_cmp_gt_u32 s{S_CNT}, {SPIN_MAX}")
    a(f"s_cbranch_scc1 L_pollo_done")
    a("s_nop 1")
    a(f"s_cbranch_vccz L_pollo_done")
    a(f"buffer_load_dword v{VFL}, v{VFA}, {srd(SWS)}, s{S_FOR} offen sc1")
    a("s_waitcnt vmcnt(0)")
    a("s_branch L_pollo")
    a.label("L_pollo_done")
    if opt.stamps: a(f"v_writelane_b32 v{VSTAMP}, s{S_CNT}, 62")
    stamp(a, 21, opt)
    assert ri == len(rest)
    AC = 16; TMP = 80; OF = [128, 192]
    def load_o(n, f):
        a.vmem(f"buffer_load_dwordx4 {vr(OF[n&1]+4*f,4)}, v{VL}, {srd(SWS)}, s{S_OS[f>>2]} offen offset:{(f&3)*1024} sc1", ("o", n, f))
    korder0 = resident + todo
    assert sorted(korder0) == list(range(16))
    INIT = opt.init_o
    for f in korder0[:INIT]: load_o(0, f)
    while todo and issued_fully(todo[0]): tr_piece(todo.pop(0))
    NG = opt.fmt
    PT = OF[0]; PK = TMP + 16; PU = PT + 40
    S_SEL = [S_QX[0], S_QX[1]]; S_ZSEL = S_QX[2]; S_M3 = S_QX[3]; S_MSK = S_HW
    VBAD, VPL = 12, 14
    VTG = [4, 5, 6, 7]
    dslot = [0, 1, 2, 4, 5, 6, 8, 9] if NG == 3 else list(range(8))
    PL = 98304
    def wr(n, sl, j):
        a.lds(f"ds_write_b128 v{VRW[sl-1]}, {vr(AC+16*sl+4*j,4)} offset:{(n&1)*49152 + j*1024}", "rw")
    def rd(n, k):
        a.lds(f"ds_read_b128 {vr(TMP+4*k,4)}, v{VRR} offset:{(n&1)*49152 + k*1024}", ("rr", k))
    def presum(src, j):
        a.wait_lg([("rr", j), ("rr", 4*src+j)])
        for e in range(4): a(f"v_add_f32 v{TMP+4*j+e}, v{TMP+4*j+e}, v{TMP+16*src+4*j+e}")
    def fin(j):
        for e in range(4): a(f"v_add_f32 v{TMP+4*j+e}, v{TMP+4*j+e}, v{AC+4*j+e}")
    def pack_items(gr):
        if NG == 3:
            def g():
                for p in range(3*gr, min(3*gr+3, 8)):
                    a(f"v_cvt_pk_bf16_f32 v{PK+dslot[p]}, v{TMP+2*p}, v{TMP+2*p+1}")
                a(f"v_mov_b32 v{PK+4*gr+3}, s{S_NONCE}")
                if gr == 2: a(f"v_mov_b32 v{PK+10}, s{S_NONCE}")
            return [g]
        def g1():
            for p in range(4*gr, 4*gr+4): a(f"v_cvt_pk_bf16_f32 v{PK+p}, v{TMP+2*p}, v{TMP+2*p+1}")
        def g2():
            for p in range(4*gr, 4*gr+4): a(f"v_bfi_b32 v{PK+p}, s{S_MSK}, v{VTG[p&3]}, v{PK+p}")
        return [g1, g2]
    def pst(n, j):
        if j == 0:
            a(f"s_lshl_b32 s{T+3}, s{S_Q[n]}, 16")
            a(f"s_add_u32 s{T+3}, s{T+3}, s{S_PB}")
        a.vmem(f"buffer_store_dwordx4 {vr(PK+4*j,4)}, v{VL}, {srd(SWS)}, s{T+3} offen offset:{j*1024} sc1", ("p", n))
    def pld(k, j, track=True):
        if j == 0:
            a(f"s_lshl_b32 s{T+4}, s{S_Q[k]}, 14")
            a(f"s_add_u32 s{T+4}, s{T+4}, s{S_PR}")
        ins = f"buffer_load_dwordx4 {vr(PT+12*k+4*j,4)}, v{VL}, {srd(SWS)}, s{T+4} offen offset:{j*1024} sc1"
        if track: a.vmem(ins, ("pp", k))
        else: a(ins)
    def chk_items(k):
        b = PT + 12*k
        if NG == 3:
            def g():
                a(f"v_xor_b32 v{VBAD}, s{S_NONCE}, v{b+3}")
                a(f"v_bitop3_b32 v{VBAD}, v{VBAD}, v{b+7}, s{S_NONCE} bitop3:0xf6")
                a(f"v_bitop3_b32 v{VBAD}, v{VBAD}, v{b+11}, s{S_NONCE} bitop3:0xf6")
                a(f"v_cmp_ne_u32 vcc, 0, v{VBAD}")
            return [g]
        def g1():
            a(f"v_xor_b32 v{VBAD}, v{VTG[0]}, v{b}")
            for p in range(1, 5): a(f"v_bitop3_b32 v{VBAD}, v{VBAD}, v{b+p}, v{VTG[p&3]} bitop3:0xf6")
        def g2():
            for p in range(5, 8): a(f"v_bitop3_b32 v{VBAD}, v{VBAD}, v{b+p}, v{VTG[p&3]} bitop3:0xf6")
            a(f"v_and_b32 v{VBAD}, s{S_MSK}, v{VBAD}")
            a(f"v_cmp_ne_u32 vcc, 0, v{VBAD}")
        return [g1, g2]
    def sel(k):
        a("s_cmp_eq_u64 vcc, 0")
        a(f"s_cselect_b32 s{S_SEL[0]}, 0x01000c0c, s{S_ZSEL}")
        a(f"s_cselect_b32 s{S_SEL[1]}, 0x03020c0c, s{S_ZSEL}")
        a(f"s_cselect_b32 s{T+5}, {1<<k}, 0")
        a(f"s_or_b32 s{S_DONE}, s{S_DONE}, s{T+5}")
    def unp_set(k, p2):
        for p in (2*p2, 2*p2+1):
            for h in range(2):
                d = PT + 12*k + dslot[p]
                a(f"v_perm_b32 v{AC+2*p+h}, v{d}, v{d}, s{S_SEL[h]}")
    def unp_add(k, p, dst):
        d = PT + 12*k + dslot[p]
        for h in range(2): a(f"v_perm_b32 v{PU+h}, v{d}, v{d}, s{S_SEL[h]}")
        for h in range(2): a(f"v_add_f32 v{dst+2*p+h}, v{dst+2*p+h}, v{PU+h}")
    def bar():
        if a.lg: a.wait_lg_all()
        a("s_barrier")
    def consts():
        a(f"s_mov_b32 s{S_ZSEL}, 0x0c0c0c0c")
        a(f"s_mov_b32 s{S_DONE}, 0")
        a(f"s_add_u32 s{S_M3}, s{S_MK}, {PL}")
        a(f"v_add_u32 v{VPL}, s{S_M3}, v{VL}")
        a(f"s_mov_b32 s{S_MSK}, 0x00010001")
    def tags(h):
        if h == 0:
            a(f"v_and_b32 v{VTG[0]}, 3, v0")
            a(f"v_lshlrev_b32 v{VTG[0]}, 2, v{VTG[0]}")
            a(f"v_lshrrev_b32 v{VTG[0]}, v{VTG[0]}, v{VNV}")
        else:
            for p in range(1, 4): a(f"v_lshrrev_b32 v{VTG[p]}, {p}, v{VTG[0]}")
    consts()
    carry = []
    ro = [0, 4, 8, 1, 5, 9, 2, 6, 10, 3, 7, 11]
    ps = [(src, j) for j in range(4) for src in (1, 2)]
    packs = lambda: [g for gr in range(NG) for g in pack_items(gr)]
    for n in range(4):
        a.c(f"---- strip {n}")
        if n == 0: seq = [(ks, sl) for ks in korder0 for sl in (1, 2, 3)] + [(ks, 0) for ks in range(16)]
        elif n == 1: seq = [(ks, sl) for ks in range(16) for sl in (1, 2)] + [(ks, sl) for sl in (3, 0) for ks in range(16)]
        else: seq = [(ks, sl) for sl in (1, 2, 3, 0) for ks in range(16)]
        at = {}
        def put(g, fn): at.setdefault(g, []).append(fn)
        for g, fn in carry: put(g, fn)
        carry = []
        if n == 0:
            mq = []
            of = korder0[INIT:]
            wl = list(lq); lq.clear()
            while of or wl:
                for _ in range(2):
                    if wl: mq.append(lambda w=wl.pop(0): dma_wo(*w))
                if of: mq.append(lambda f=of.pop(0): load_o(0, f))
            g = 0
            for fn in mq:
                put(g // opt.mq_den, fn); g += opt.mq_num
            gq = g // opt.mq_den + 1
            for i, pos in enumerate(korder0):
                if pos in todo:
                    its = tr_wo_items(pos, slot_of[pos])
                    for k2, fn in enumerate(its): put(3 * i - 4 + (k2 >> 1), fn)
            if todo: gq = max(gq, 20)
            def place(g, fn):
                if g < 64: put(g, fn)
                else: carry.append((g - 64, fn))
            g = gq - 1
            place(g, lambda: obase(1)); g += 1
            for f in range(16): place(g, lambda f=f: load_o(1, f)); g += 2
            g = max(g, 65)
            g += (g & 1) ^ 1
            place(g, lambda: obase(2)); g += 1
            for f in range(16): place(g, lambda f=f: load_o(2, f)); g += 2
            place(g - 1, lambda: obase(3))
            gend = g - 64
            put(47, bar)
            put(48, lambda: tags(0) or a("s_nop 0"))
            put(49, lambda: tags(1))
            for i, (sl, j) in enumerate([(sl, j) for sl in (1, 2, 3) for j in range(4)]): put(50 + i, lambda sl=sl, j=j: wr(n, sl, j))
            put(63, bar)
            g = 1
            for i in range(6):
                carry.append((g, lambda i=i: (rd(0, ro[2*i]), rd(0, ro[2*i+1])))); g += 2
            work = [lambda i=i: presum(*ps[i]) for i in range(8)] + [lambda j=j: fin(j) for j in range(4)] + packs()
            for fn in work: carry.append((g, fn)); g += 2
            assert g <= 47
            gs = max(gend, g)
            assert gs + NG <= 58, gs
            for j in range(NG): carry.append((gs + j, lambda j=j: pst(0, j)))
            left = []
        else:
            fast = n >= 2
            if n == 1:
                for i, (sl, j) in enumerate([(sl, j) for sl in (1, 2) for j in range(4)]): put(36 + i + (i >> 1), lambda sl=sl, j=j: wr(n, sl, j))
            else:
                if n == 2:
                    for f in range(16): put(opt.g_o3 + 2 * f, lambda f=f: load_o(3, f))
                    def pdma(j):
                        if j == 0:
                            a(f"s_lshl_b32 s{T+4}, s{S_Q[2]}, 14")
                            a(f"s_mov_b32 m0, s{S_M3}")
                            a(f"s_add_u32 s{T+4}, s{T+4}, s{S_PR}")
                        a.vmem(f"buffer_load_dwordx4 v{VL}, {srd(SWS)}, s{T+4} offen offset:{j*1024} sc1 lds", "pdma")
                    for j in range(NG): put(opt.g_p2 + 2 * j, lambda j=j: pdma(j))
                for j in range(4): put(32 + 2 * j, lambda j=j: wr(n, 1, j))
                for j in range(4): put(41 + 2 * j, lambda j=j: wr(n, 2, j))
            put(48, lambda: a("s_nop 3"))
            put(49, lambda: a("s_nop 4" if n == 1 else "s_nop 3"))
            if fast:
                for j in range(4): put(50 + j, lambda j=j: wr(n, 3, j))
                gb = 55
            else:
                for j in range(4): put(50 + 2 * j, lambda j=j: wr(n, 3, j))
                gb = 58
            put(gb, bar)
            for i in range(6):
                put(gb + i, lambda i=i: (rd(n, ro[2*i]), rd(n, ro[2*i+1])))
            npre_s = 63 - (gb + 5)
            for i in range(npre_s): put(gb + 6 + i, lambda i=i: presum(*ps[i]))
            left = [lambda i=i: presum(*ps[i]) for i in range(npre_s, 8)]
            if n == 1:
                g = 1
                for fn in left + [lambda j=j: fin(j) for j in range(4)] + packs(): carry.append((g, fn)); g += 2
                assert opt.g_s1 >= g - 2, g
                for j in range(NG): carry.append((opt.g_s1 + 2 * j, lambda j=j: pst(1, j)))
            if n == 2:
                g = NG if opt.g_p1 == 0 else 0
                for fn in left + [lambda j=j: fin(j) for j in range(4)]: carry.append((g, fn)); g += 1
                for j in range(NG):
                    for fn in pack_items(j): carry.append((g, fn)); g += 1
                    carry.append((g, lambda j=j: pst(2, j))); g += 1
                gfree = g
            if n == 3:
                for j in range(NG): put(opt.g_p1 + j, lambda j=j: pld(1, j))
                def prd():
                    a.wait_vm("pdma")
                    for j in range(NG):
                        a.lds(f"ds_read_b128 {vr(PT+24+4*j,4)}, v{VPL} offset:{j*1024}", "prd")
                g = gfree
                put(g - 3, prd)
                put(g, lambda: a.wait_lg("prd"))
                for fn in chk_items(2): put(g, fn); g += 1
                put(g, lambda: sel(2)); g += 1
                for p2 in range(4): put(g, lambda p2=p2: unp_set(2, p2)); g += 1
                g = max(g, opt.g_c1)
                put(g, lambda: a.wait_vm(("pp", 1)))
                for fn in chk_items(1): put(g, fn); g += 1
                put(g, lambda: sel(1)); g += 1
                for p in range(8):
                    while g in (32, 34, 36, 38, 41, 43, 45): g += 1
                    put(g, lambda p=p: unp_add(1, p, AC)); g += 1
                assert g <= 47, g
                for j in range(NG): put(opt.g_p0 + j, lambda j=j: pld(0, j))
        seen = set()
        for g, (ks, sl) in enumerate(seq):
            if ks not in seen:
                a.wait_vm(("o", n, ks)); seen.add(ks)
                if n == 0: a.wait_lg(("wo", ks))
            first = (ks == korder0[0]) if (n == 0 and sl) else (ks == 0)
            if n == 3 and sl == 0: first = False
            c = "0" if first else vr(AC+16*sl, 16)
            a(f"{MF} {vr(AC+16*sl,16)}, {ar(16*ks+4*sl,4)}, {vr(OF[n&1]+4*ks,4)}, {c}")
            for fn in at.get(g, []): fn()
            if n == opt.sst and g % 8 == 7 and g < 63: stamp(a, 32 + g // 8, opt)
        stamp(a, 22 + n, opt)
    for fn in left: fn()
    for j in range(4): fin(j)
    a(f"s_mov_b32 s{S_SEL[0]}, 0x01000c0c")
    a(f"s_mov_b32 s{S_SEL[1]}, 0x03020c0c")
    stamp(a, 26, opt)
    a(f"s_mov_b32 s{S_CNT}, 0")
    for k in (0, 1, 2):
        if k:
            a(f"s_bitcmp1_b32 s{S_DONE}, {k}")
            a(f"s_cbranch_scc1 L_skip{k}")
            a(f"s_branch L_rel{k}")
        else:
            a.wait_vm(("pp", 0))
        a.label(f"L_chk{k}")
        for fn in chk_items(k): fn()
        a(f"s_add_u32 s{S_CNT}, s{S_CNT}, 1")
        a(f"s_cmp_gt_u32 s{S_CNT}, {SPIN_MAX}")
        a(f"s_cbranch_scc1 L_ok{k}")
        a("s_nop 1")
        a(f"s_cbranch_vccz L_ok{k}")
        a.label(f"L_rel{k}")
        for j in range(NG): pld(k, j, track=False)
        a("s_waitcnt vmcnt(0)")
        a(f"s_branch L_chk{k}")
        a.label(f"L_ok{k}")
        for p in range(8): unp_add(k, p, TMP)
        a.label(f"L_skip{k}")
    stamp(a, 27, opt)
    for p in range(8):
        a(f"v_cvt_pk_bf16_f32 v{AC+p}, v{TMP+2*p}, v{TMP+2*p+1}")
    a(f"buffer_store_dwordx4 {vr(AC,4)}, v{VOUT}, {srd(SOUT)}, s{S_OUTB} offen")
    a(f"buffer_store_dwordx4 {vr(AC+4,4)}, v{VOUT}, {srd(SOUT)}, s{S_OUTB} offen offset:32")
    if opt.stamps:
        a("s_waitcnt vmcnt(0)")
        stamp(a, 28, opt)
        a(f"v_writelane_b32 v{VSTAMP}, s{S_CNT}, 63")
        dump_stamps(a, opt)
    a.label(end)
    a("s_endpgm")
    a.label("L_codeend")

Opt.fill0 = 12
Opt.rest = ""
Opt.diag = False

def build(opt):
    nm = NAME + "_kernel"
    out = []
    out.append("; @launch grid=(256,1,1) block=(256,1,1) lds=163840")
    out.append('.amdgcn_target "amdgcn-amd-amdhsa--gfx950"')
    out.append(".text")
    a = Asm()
    gen(a, opt)
    out.append(f".globl {nm}\n.p2align 8\n.type {nm},@function\n{nm}:")
    out.append(a.text())
    out.append('.section .rodata,"a"')
    out.append(f""".p2align 6
.amdhsa_kernel {nm}
  .amdhsa_next_free_vgpr 512
  .amdhsa_next_free_sgpr 102
  .amdhsa_accum_offset 256
  .amdhsa_group_segment_fixed_size 0
  .amdhsa_kernarg_size 104
  .amdhsa_user_sgpr_count 2
  .amdhsa_user_sgpr_kernarg_segment_ptr 1
  .amdhsa_system_sgpr_workgroup_id_x 1
.end_amdhsa_kernel
""")
    return "\n".join(out)

if __name__ == "__main__":
    opt = Opt()
    for kv in sys.argv[2:]:
        k, v = kv.split("=")
        cur = getattr(opt, k)
        setattr(opt, k, (v == "1") if isinstance(cur, bool) else type(cur)(v))
    t = build(opt)
    open(sys.argv[1], "w").write(t)
```

```python
class Asm:
    def __init__(self):
        self.L = []
        self.vm = []
        self.lg = []
        self.ever = set()
        self.lg_low = 12
    def __call__(self, s):
        self.L.append("    " + s)
    def c(self, s):
        self.L.append("    ; " + s)
    def label(self, l):
        self.L.append(l + ":")
    def raw(self, s):
        self.L.append(s)
    def vmem(self, s, tag):
        self(s); self.vm.append(tag); self.ever.add(('vm', tag))
        assert len(self.vm) <= 63, "too many vmem outstanding"
    def lds(self, s, tag):
        if len(self.lg) >= 15:
            self(f"s_waitcnt lgkmcnt({self.lg_low})")
            self.lg = self.lg[-self.lg_low:]
        self(s); self.lg.append(tag); self.ever.add(('lg', tag))
    def _cnt(self, q, tags):
        if not isinstance(tags, (list, set)): tags = [tags]
        last = -1
        for i, t in enumerate(q):
            if t in tags: last = i
        return last
    def _chk(self, kind, tags):
        for t in (tags if isinstance(tags, (list, set)) else [tags]):
            assert (kind, t) in self.ever, ("waiting for something never issued", kind, t)
    def wait_vm(self, tags):
        self._chk('vm', tags)
        last = self._cnt(self.vm, tags)
        if last < 0: return
        n = len(self.vm) - 1 - last
        self(f"s_waitcnt vmcnt({n})")
        self.vm = self.vm[last + 1:]
    def wait_lg(self, tags):
        self._chk('lg', tags)
        last = self._cnt(self.lg, tags)
        if last < 0: return
        n = len(self.lg) - 1 - last
        self(f"s_waitcnt lgkmcnt({n})")
        self.lg = self.lg[last + 1:]
    def wait_vm_all(self):
        self("s_waitcnt vmcnt(0)"); self.vm = []
    def wait_lg_all(self):
        self("s_waitcnt lgkmcnt(0)"); self.lg = []
    def text(self):
        return "\n".join(self.L) + "\n"

def vr(a, n=1):
    return f"v{a}" if n == 1 else f"v[{a}:{a+n-1}]"
def ar(a, n=1):
    return f"a{a}" if n == 1 else f"a[{a}:{a+n-1}]"
def sr(a, n=1):
    return f"s{a}" if n == 1 else f"s[{a}:{a+n-1}]"
```

```python
import sys, struct
from asmlib import *

NAME = "concat_heads__mha_block_cached__gqa_block_cached__near_ridge"
def f32(x): return "0x%08x" % struct.unpack("<I", struct.pack("<f", x))[0]

PART_BASE = 8 << 20
FO_BASE = 24 << 20
STAMP_BASE = 28 << 20
WS_USED = 32 << 20
SPIN_MAX = 20000

SX, SK, SV, SWQ, SWO, SWS, SOUT, SDBG = 32, 36, 40, 44, 48, 52, 56, 60
S_W, S_BR, S_G, S_HL, S_R, S_B = 64, 65, 66, 67, 68, 69
S_T = 70
S_MX, S_LAM, S_KV, S_MW, S_MK, S_C = 78, 79, 80, 81, 82, 83
S_NONCE, S_CNT, S_DONE = 84, 85, 86
S_SO = 87
S_QW = [88, 89, 90, 91]; S_QX = [92, 93, 94, 95]
S_HW, S_HX = 96, 97
S_U = 98
S_WOG = [4, 5, 6, 7]; S_OG = [8, 9, 10, 11]; S_Q = [12, 13, 14, 15]
S_OB, S_PB, S_FOW, S_FOR, S_OUTB, S_PR = 16, 17, 18, 19, 20, 21
S_OW = [22, 23]

class Opt:
    nt_kv = "nt"
    stamps = False
    clk = "s_memrealtime"
    ab = ""
    ex = "K0,K1|V0,V1|W0,W1"
    mid = "||"
    lead = 2; bal = False; stag = False; hbit = 3
    n14 = 8; n15 = 8; natt = 8
    pre_flag = 8; pre_poll = 16; post_poll = 0
    codepf = True
    fill = 4
    coff = 1
    non_stage = 12
    init_o = 8
    mq_num = 2; mq_den = 1
    fmt = 2
    g_s1 = 39; g_p2 = 33; g_p1 = 0; g_c1 = 28; g_p0 = 56; g_o3 = 0
    sst = -1

VSTAMP = 1
def stamp(a, idx, opt):
    if opt.stamps:
        a(f"{opt.clk} s[30:31]")
        a("s_waitcnt lgkmcnt(0)"); a.lg = []
        a(f"v_writelane_b32 v{VSTAMP}, s30, {idx}")

def dump_stamps(a, opt):
    a(f"s_lshl_b32 s{S_T}, s2, 2")
    a(f"s_add_u32 s{S_T}, s{S_T}, s{S_W}")
    a(f"s_lshl_b32 s{S_T}, s{S_T}, 8")
    a(f"s_add_u32 s{S_T}, s{S_T}, {STAMP_BASE}")
    a("v_lshlrev_b32 v2, 2, v0")
    a(f"buffer_store_dword v{VSTAMP}, v2, s[{SWS}:{SWS+3}], s{S_T} offen")
    a("s_waitcnt vmcnt(0)")

def seg_src(a, dst, rowstride_shift, t1, t2):
    a(f"v_lshrrev_b32 v{t1}, 4, v0")
    a(f"v_bfe_u32 v{t2}, v0, 2, 2")
    a(f"v_xor_b32 v{t2}, v{t2}, v{t1}")
    a(f"v_lshlrev_b32 v{t2}, 6, v{t2}")
    a(f"v_lshl_add_u32 v{dst}, v{t1}, {rowstride_shift}, v{t2}")
    a(f"v_and_b32 v{t2}, 3, v0")
    a(f"v_lshl_add_u32 v{dst}, v{t2}, 4, v{dst}")

def tr_base(a, dst, r4, t1):
    a(f"v_bfe_u32 v{r4}, v0, 2, 2")
    a(f"v_lshrrev_b32 v{t1}, 5, v0")
    a(f"v_lshl_add_u32 v{t1}, v{t1}, 3, v{r4}")
    a(f"v_lshlrev_b32 v{dst}, 8, v{t1}")
    a(f"v_bfe_u32 v{t1}, v0, 4, 1")
    a(f"v_lshl_add_u32 v{dst}, v{t1}, 5, v{dst}")
    a(f"v_and_b32 v{t1}, 1, v0")
    a(f"v_lshl_add_u32 v{dst}, v{t1}, 4, v{dst}")
    a(f"v_bfe_u32 v{t1}, v0, 1, 1")
    a(f"v_lshl_add_u32 v{dst}, v{t1}, 3, v{dst}")

MF = "v_mfma_f32_32x32x16_bf16"
M16 = "v_mfma_f32_16x16x32_bf16"
srd = lambda r: f"s[{r}:{r+3}]"

def sched(lam, opt):
    order = list(range(16))
    mpos = []
    for c in range(lam, 16, 4):
        p = order.index(c)
        q = max(0, p - opt.lead)
        if c < 4 and opt.bal: q = 0
        order.pop(p); order.insert(q, c)
        if c >= 4: mpos.append(q)
    if opt.stag:
        order = [(4 * lam + i) & 15 for i in range(16)]
        mpos = [2 + lam, 6 + lam, 10 + lam]
    extras = {}
    for j, lst in enumerate(opt.ex.split("|")):
        for pc in filter(None, lst.split(",")):
            extras.setdefault(mpos[j] - 2, []).append(pc)
    for j, lst in enumerate(opt.mid.split("|")):
        for pc in filter(None, lst.split(",")):
            extras.setdefault(mpos[j], []).append(pc)
    for it in filter(None, opt.ab.split(";")):
        st, lst = it.split(":")
        for pc in lst.split(","): extras.setdefault(int(st), []).append(pc)
    return order, extras

class Rec:
    def __init__(self): self.L = []
    def __call__(self, s): self.L.append(s)

def gen(a, opt):
    end = "L_end"
    T = S_T; U = S_U
    stamp(a, 0, opt)
    a("s_cmp_ge_u32 s2, 256")
    a(f"s_cbranch_scc1 {end}")
    a("s_load_dwordx16 s[4:19], s[0:1], 0")
    a("s_load_dwordx4 s[20:23], s[0:1], 64")
    a("s_load_dwordx4 s[24:27], s[0:1], 80")
    a("s_load_dwordx2 s[28:29], s[0:1], 96")
    if opt.codepf:
        a(f"s_getpc_b64 s[{U}:{U+1}]")
        a.label("L_pc")
        a(f"s_lshr_b32 s{T}, s2, 3")
        a(f"v_lshrrev_b32 v240, 4, v0")
        a(f"v_lshl_add_u32 v240, s{T}, 4, v240")
        a(f"v_lshlrev_b32 v240, 7, v240")
        a(f"v_min_u32 v240, L_codeend-L_pc-4, v240")
        a(f"v_mov_b32 v241, s{U+1}")
        a(f"v_add_co_u32 v240, vcc, s{U}, v240")
        a("s_nop 1")
        a(f"v_addc_co_u32 v241, vcc, 0, v241, vcc")
        a.vmem(f"global_load_dword v241, v[240:241], off", "cpf")
    a("v_lshrrev_b32 v2, 6, v0")
    a("v_and_b32 v0, 63, v0")
    a(f"v_readfirstlane_b32 s{S_W}, v2")
    a(f"s_and_b32 s{T}, s2, 7")
    a(f"s_lshr_b32 s{T+1}, s2, 3")
    a(f"s_lshr_b32 s{S_BR}, s{T}, 2")
    a(f"s_and_b32 s{S_G}, s{T}, 3")
    a(f"s_and_b32 s{S_HL}, s{T+1}, 7")
    a(f"s_lshr_b32 s{S_R}, s{T+1}, 3")
    VKS, VVS = 2, 3
    VWO = [4, 5, 6, 7]
    VA = list(range(8, 16))
    ACC = 16
    FA = [80, 120]; FB = [112, 152]
    KF, VF = 160, 192
    QP, SS, PP = 80, 112, 128
    VWQ = [224, 225, 226, 227]; VX = [228, 229, 230, 231]; VB = [232, 233]
    TT = 240
    VWT = [244, 245, 246, 247]
    VKA, VL16, VTB, VR4, VNON, VT2 = 248, 249, 250, 251, 252, 253
    F1, F2 = 254, 255
    XR, KR, VR = 49152, 98304, 131072
    a(f"s_lshl_b32 s{S_B}, s{S_R}, 2")
    a(f"s_add_u32 s{S_B}, s{S_B}, s{S_W}")
    a(f"s_lshl_b32 s{T+4}, s{S_G}, 3")
    a(f"s_add_u32 s{T+4}, s{T+4}, s{S_HL}")
    a(f"s_lshl_b32 s{T}, s{S_W}, 17")
    a(f"s_lshl_b32 s{T+1}, s{T+4}, 8")
    a(f"s_add_u32 s{T}, s{T}, s{T+1}")
    a(f"s_lshl_b32 s{T+1}, s{S_B}, 16")
    a(f"s_lshr_b32 s{T+2}, s{S_HL}, 2")
    HB = opt.hbit
    S_WQB = S_QW[:2]; S_XB = S_QX[:2]
    a(f"s_lshl_b32 s{T+3}, s{T+2}, {19+HB}")
    a(f"s_add_u32 s{S_WQB[0]}, s{T}, s{T+3}")
    a(f"s_xor_b32 s{T+3}, s{T+3}, {1<<(19+HB)}")
    a(f"s_add_u32 s{S_WQB[1]}, s{T}, s{T+3}")
    a(f"s_lshl_b32 s{T+3}, s{T+2}, {7+HB}")
    a(f"s_add_u32 s{S_XB[0]}, s{T+1}, s{T+3}")
    a(f"s_xor_b32 s{T+3}, s{T+3}, {1<<(7+HB)}")
    a(f"s_add_u32 s{S_XB[1]}, s{T+1}, s{T+3}")
    a(f"s_add_u32 s{S_LAM}, s{S_R}, s{S_HL}")
    a(f"s_and_b32 s{S_LAM}, s{S_LAM}, 3")
    ords = [sched(l, opt)[0] for l in range(4)]
    for pos in range(2):
        assert all(not (o[pos] >> HB) & 1 for o in ords)
        pk = sum(ords[l][pos] << (4 * l) for l in range(4))
        a(f"s_lshl_b32 s{T+2}, s{S_LAM}, 2")
        a(f"s_lshr_b32 s{T+2}, {pk}, s{T+2}")
        a(f"s_and_b32 s{T+2}, s{T+2}, 15")
        a(f"s_lshl_b32 s{T+3}, s{T+2}, 19")
        a(f"s_add_u32 s{S_QW[2+pos]}, s{S_WQB[0]}, s{T+3}")
        a(f"s_lshl_b32 s{T+3}, s{T+2}, 7")
        a(f"s_add_u32 s{S_QX[2+pos]}, s{S_XB[0]}, s{T+3}")
    a(f"s_lshl_b32 s{S_MW}, s{S_W}, 12")
    a(f"s_mul_i32 s{S_MX}, s{S_W}, 12288")
    a(f"s_add_u32 s{S_MX}, s{S_MX}, {XR}")
    seg_src(a, VWQ[0], 13, 242, 243)
    a(f"v_add_u32 v{VWQ[1]}, {32768-1024}, v{VWQ[0]}")
    a(f"v_xor_b32 v242, 32, v{VWQ[0]}")
    for j in (2, 3): a(f"v_add_u32 v{VWQ[j]}, {j*(32768-1024)}, v242")
    a("v_lshrrev_b32 v242, 3, v0")
    a("v_lshrrev_b32 v243, 4, v0")
    a(f"v_and_b32 v{F1}, 7, v0")
    a(f"v_xor_b32 v{F1}, v{F1}, v243")
    a(f"v_lshlrev_b32 v{F1}, 4, v{F1}")
    a(f"v_lshl_add_u32 v{VX[0]}, v242, 11, v{F1}")
    a(f"v_xor_b32 v{F1}, 64, v{VX[0]}")
    a(f"v_add_u32 v{VX[1]}, {16384-1024}, v{F1}")
    a(f"v_add_u32 v{VX[2]}, {2*(16384-1024)}, v{VX[0]}")
    a(f"v_add_u32 v{VX[3]}, {3*(16384-1024)}, v{F1}")
    for s_, n in [(SX, 1 << 20), (SWQ, 8 << 20)]:
        a(f"s_mov_b32 s{s_+2}, {n}")
        a(f"s_mov_b32 s{s_+3}, 0x20000")
    a("s_waitcnt lgkmcnt(0)")
    stamp(a, 29, opt)
    a(f"s_cmp_eq_u32 s{S_BR}, 0")
    for i, s_ in [(0, SX), (3, SWQ), (1, SK), (2, SV), (4, SWO)]:
        a(f"s_cselect_b32 s{s_}, s{4+2*i}, s{14+2*i}")
        a(f"s_cselect_b32 s{s_+1}, s{5+2*i}, s{15+2*i}")
    cur = [None]
    def group(key, m0_ins, so_ins):
        n = 0
        if cur[0] != key:
            a(m0_ins); n += 1
            for x in so_ins: a(x); n += 1
            cur[0] = key
        return n
    def dma_x(pos, j, c=None):
        so = f"s_mov_b32 s{S_SO}, s{S_QX[2+pos]}" if c is None else f"s_add_u32 s{S_SO}, s{S_XB[(c>>HB)&1]}, {(c & ~(1<<HB))*128}"
        group(("x", pos), f"s_add_u32 m0, s{S_MX}, {(pos%3)*4096}", [so])
        a.vmem(f"buffer_load_dwordx4 v{VX[j]}, {srd(SX)}, s{S_SO} offen offset:{j*1024} lds", ("st", pos))
    def dma_wq(pos, j, c=None):
        so = f"s_mov_b32 s{S_SO}, s{S_QW[2+pos]}" if c is None else f"s_add_u32 s{S_SO}, s{S_WQB[(c>>HB)&1]}, {(c & ~(1<<HB))<<19}"
        group(("q", pos), f"s_add_u32 m0, s{S_MW}, {(pos%3)*16384}", [so])
        a.vmem(f"buffer_load_dwordx4 v{VWQ[j]}, {srd(SWQ)}, s{S_SO} offen offset:{j*1024} lds", ("st", pos))
    for j in range(4): dma_x(0, j)
    for j in range(4): dma_wq(0, j)
    stamp(a, 30, opt)
    a(f"v_bfe_u32 v{VR4}, v0, 2, 2")
    a("v_lshrrev_b32 v242, 4, v0")
    a(f"v_lshl_add_u32 v243, v242, 3, v{VR4}")
    a("v_lshlrev_b32 v243, 8, v243")
    a(f"v_and_b32 v{F1}, 1, v242")
    a(f"v_lshl_add_u32 v243, v{F1}, 5, v243")
    a(f"v_and_b32 v{F1}, 3, v0")
    a(f"v_lshl_add_u32 v243, v{F1}, 3, v243")
    a(f"v_lshl_add_u32 v{VA[0]}, v{VR4}, 6, v243")
    for i in range(1, 8): a(f"v_xor_b32 v{VA[i]}, {32*i}, v{VA[0]}")
    a(f"v_bfe_u32 v{F1}, v0, 1, 3")
    a(f"v_xor_b32 v242, v242, v{F1}")
    a("v_lshlrev_b32 v242, 4, v242")
    a("v_and_b32 v243, 15, v0")
    a("v_lshl_add_u32 v242, v243, 7, v242")
    a(f"v_add_u32 v{VB[0]}, s{S_MX}, v242")
    a("v_xor_b32 v242, 64, v242")
    a(f"v_add_u32 v{VB[1]}, s{S_MX}, v242")
    for s_, lo in [(SOUT, 24), (SDBG, 26), (SWS, 28)]:
        a(f"s_mov_b32 s{s_}, s{lo}")
        a(f"s_mov_b32 s{s_+1}, s{lo+1}")
    for s_, n in [(SK, 4 << 20), (SV, 4 << 20), (SWO, 8 << 20), (SWS, WS_USED), (SOUT, 2 << 20), (SDBG, 256)]:
        a(f"s_mov_b32 s{s_+2}, {n}")
        a(f"s_mov_b32 s{s_+3}, 0x20000")
    a(f"s_lshl_b32 s{S_KV}, s{S_B}, 5")
    a(f"s_add_u32 s{S_KV}, s{S_KV}, s{T+4}")
    a(f"s_lshl_b32 s{S_KV}, s{S_KV}, 13")
    a(f"s_lshl_b32 s{S_MK}, s{S_W}, 13")
    for j in range(4): dma_x(1, j)
    for j in range(4): dma_wq(1, j)
    a(f"s_or_b32 s{T}, s2, s{S_W}")
    a(f"s_cmp_lg_u32 s{T}, 0")
    a("s_cbranch_scc1 L_nononce")
    a(f"s_memrealtime s[{T+2}:{T+3}]")
    a("s_waitcnt lgkmcnt(0)")
    a(f"s_or_b32 s{T+2}, s{T+2}, 1")
    a(f"s_mul_i32 s{T+2}, s{T+2}, 0x9e3779b1")
    a(f"v_mov_b32 v242, s{T+2}")
    a("v_mov_b32 v243, 0")
    a(f"buffer_store_dword v242, v243, {srd(SDBG)}, 0 offen sc1")
    a("s_waitcnt vmcnt(0)")
    a.label("L_nononce")
    stamp(a, 31, opt)
    f = Rec()
    f(f"v_lshrrev_b32 v{F1}, 4, v0")
    f(f"v_and_b32 v{F2}, 15, v0")
    f(f"v_xor_b32 v{F2}, v{F2}, v{F1}")
    f(f"v_lshlrev_b32 v{F2}, 4, v{F2}")
    f(f"v_lshl_add_u32 v{VKS}, v{F1}, 8, v{F2}")
    seg_src(f, VVS, 8, F1, F2)
    seg_src(f, VWO[0], 11, F1, F2)
    for j in range(1, 4): f(f"v_add_u32 v{VWO[j]}, {(4*(j>>1) + 16*(j&1))*2048 - j*1024}, v{VWO[0]}")
    tr_base(f, VTB, VR4, F1)
    for i in range(4):
        f(f"s_add_u32 s{U+2}, s{S_W}, {i}")
        f(f"s_and_b32 s{U+2}, s{U+2}, 3")
        f(f"v_xor_b32 v{F1}, s{U+2}, v{VR4}")
        f(f"v_lshl_add_u32 v{VWT[i]}, v{F1}, 6, v{VTB}")
    f(f"v_and_b32 v{F1}, 3, v0")
    f(f"v_lshl_add_u32 v{F1}, v{VR4}, 3, v{F1}")
    f(f"v_and_b32 v{F2}, 15, v{F1}")
    f(f"v_lshrrev_b32 v{VKA}, 5, v0")
    f(f"v_xor_b32 v{F2}, v{F2}, v{VKA}")
    f(f"v_lshlrev_b32 v{F2}, 4, v{F2}")
    f(f"v_lshl_add_u32 v{F1}, v{F1}, 8, v{F2}")
    f(f"v_bfe_u32 v{F2}, v0, 4, 1")
    f(f"v_lshl_add_u32 v{F1}, v{F2}, 3, v{F1}")
    f(f"s_add_u32 s{U+2}, s{S_MK}, {KR}")
    f(f"v_add_u32 v{VKA}, s{U+2}, v{F1}")
    f(f"v_lshlrev_b32 v{VL16}, 4, v0")
    f(f"v_mov_b32 v{TT+1}, 0")
    f(f"s_lshl_b32 s{U}, s{S_G}, 2")
    f(f"s_add_u32 s{U}, s{U}, s{S_W}")
    f(f"s_lshl_b32 s{U+1}, s{U}, 19")
    f(f"s_add_u32 s{S_C}, s{S_HL}, {opt.coff}")
    f(f"s_and_b32 s{S_C}, s{S_C}, 7")
    f(f"s_lshl_b32 s{U+2}, s{S_C}, 8")
    f(f"s_add_u32 s{U+1}, s{U+1}, s{U+2}")
    for jg in range(4):
        f(f"s_add_u32 s{U+2}, s{S_LAM}, {jg}")
        f(f"s_and_b32 s{U+2}, s{U+2}, 3")
        f(f"s_lshl_b32 s{U+3}, s{U+2}, 17")
        f(f"s_add_u32 s{S_WOG[jg]}, s{U+1}, s{U+3}")
        f(f"s_lshl_b32 s{S_OG[jg]}, s{U+2}, 12")
        f(f"s_add_u32 s{S_Q[jg]}, s{S_G}, {jg+1}")
        f(f"s_and_b32 s{S_Q[jg]}, s{S_Q[jg]}, 3")
    f(f"s_lshl_b32 s{U+1}, s{S_BR}, 2")
    f(f"s_add_u32 s{U+1}, s{U+1}, s{S_R}")
    f(f"s_lshl_b32 s{S_OB}, s{U+1}, 20")
    f(f"s_lshl_b32 s{U+2}, s{U}, 14")
    f(f"s_add_u32 s{S_OB}, s{S_OB}, s{U+2}")
    f(f"s_lshl_b32 s{S_OW[0]}, s{S_BR}, 22")
    f(f"s_add_u32 s{S_OW[0]}, s{S_OW[0]}, s{S_KV}")
    f(f"s_add_u32 s{S_OW[1]}, s{S_OW[0]}, 4096")
    f(f"s_lshl_b32 s{U+2}, s{U+1}, 2")
    f(f"s_add_u32 s{U+2}, s{U+2}, s{S_G}")
    f(f"s_lshl_b32 s{U+2}, s{U+2}, 12")
    f(f"s_add_u32 s{U+2}, s{U+2}, {FO_BASE}")
    f(f"s_lshl_b32 s{U+3}, s{S_W}, 10")
    f(f"s_add_u32 s{S_FOR}, s{U+2}, s{U+3}")
    f(f"s_lshl_b32 s{U+3}, s{S_HL}, 2")
    f(f"s_add_u32 s{U+3}, s{U+3}, s{S_W}")
    f(f"s_lshl_b32 s{U+3}, s{U+3}, 7")
    f(f"s_add_u32 s{S_FOW}, s{U+2}, s{U+3}")
    f(f"s_lshl_b32 s{U+1}, s{U+1}, 3")
    f(f"s_add_u32 s{U+1}, s{U+1}, s{S_C}")
    f(f"s_lshl_b32 s{U+2}, s{U+1}, 18")
    f(f"s_add_u32 s{U+2}, s{U+2}, {PART_BASE}")
    f(f"s_lshl_b32 s{U+3}, s{U}, 12")
    f(f"s_add_u32 s{S_PB}, s{U+2}, s{U+3}")
    f(f"s_lshl_b32 s{U+3}, s{S_G}, 16")
    f(f"s_add_u32 s{S_PR}, s{U+2}, s{U+3}")
    f(f"s_lshl_b32 s{U+3}, s{S_W}, 12")
    f(f"s_add_u32 s{S_PR}, s{S_PR}, s{U+3}")
    f(f"s_lshl_b32 s{U+2}, s{S_R}, 2")
    f(f"s_add_u32 s{U+2}, s{U+2}, s{S_G}")
    f(f"s_lshl_b32 s{U+2}, s{U+2}, 17")
    f(f"s_lshl_b32 s{U+3}, s{S_BR}, 11")
    f(f"s_add_u32 s{U+2}, s{U+2}, s{U+3}")
    f(f"s_lshl_b32 s{U+3}, s{S_C}, 8")
    f(f"s_add_u32 s{U+2}, s{U+2}, s{U+3}")
    f(f"s_lshl_b32 s{U+3}, s{S_W}, 6")
    f(f"s_add_u32 s{S_OUTB}, s{U+2}, s{U+3}")
    FILL = f.L
    for _ in range(opt.fill0): a(FILL.pop(0))

    SLOT = {"w0": (S_MW, 0), "w1": (S_MW, 16384), "w2": (S_MW, 32768),
            "x0": (S_MX, 0), "x1": (S_MX, 4096), "x2": (S_MX, 8192),
            "k0": (S_MK, KR), "k1": (S_MK, KR + 4096), "v0": (S_MK, VR), "v1": (S_MK, VR + 4096)}
    def dma_wo(pos, j, slot):
        sb, off = SLOT[slot]
        n = group(("wo", pos), f"s_add_u32 m0, s{sb}, {off}", [f"s_add_u32 s{S_SO}, s{S_WOG[pos>>2]}, {(32*((pos&3)>>1) + 8*(pos&1))*2048}"])
        a.vmem(f"buffer_load_dwordx4 v{VWO[j]}, {srd(SWO)}, s{S_SO} offen offset:{j*1024} lds", ("wo", pos))
        a.ever.add(("woj", pos, j))
        return n + 1
    def tr_wo_items(pos, slot):
        sb, off = SLOT[slot]
        it = []
        for s4 in range(4):
            def g(s4=s4):
                if s4 == 0:
                    assert all(("woj", pos, j) in a.ever for j in range(4)), ("piece not fully issued", pos)
                    a.wait_vm(("wo", pos))
                    a(f"s_add_u32 s{T+1}, s{sb}, {off}")
                a(f"v_add_u32 v{VT2}, s{T+1}, v{VWT[s4]}")
                for h2 in range(2):
                    a.lds(f"ds_read_b64_tr_b16 {ar(16*pos+4*s4+2*h2,2)}, v{VT2} offset:{4*h2*256}", ("wo", pos))
            it.append(g)
        return it
    def dma_kv(pc, j):
        half = int(pc[1])
        group(pc, f"s_add_u32 m0, s{S_MK}, {(KR if pc[0] == 'K' else VR) + half*4096}", [f"s_add_u32 s{S_SO}, s{S_KV}, {half*4096}"])
        if pc[0] == "K":
            a(f"v_xor_b32 v{TT}, {64*j}, v{VKS}")
            a.vmem(f"buffer_load_dwordx4 v{TT}, {srd(SK)}, s{S_SO} offen offset:{j*1024} {opt.nt_kv} lds", "k")
        else:
            if j == 2: a(f"v_xor_b32 v{TT}, 32, v{VVS}")
            a.vmem(f"buffer_load_dwordx4 v{TT if j >= 2 else VVS}, {srd(SV)}, s{S_SO} offen offset:{j*1024} {opt.nt_kv} lds", "v")
    def reads(n):
        s, t = n >> 1, n & 1
        slot = s % 3
        fs = n & 1
        r = [(f"ds_read_b128 {vr(FB[fs]+4*nt,4)}, v{VB[t]} offset:{slot*4096 + nt*2048}", ("b", n)) for nt in range(2)]
        for i in range(8):
            for h2 in range(2):
                r.append((f"ds_read_b64_tr_b16 {vr(FA[fs]+4*i+2*h2,2)}, v{VA[i]} offset:{slot*16384 + (32*t+4*h2)*256}", ("a", n, i)))
        return r
    def mfma(n, k):
        fs = n & 1
        i, nt = k >> 1, k & 1
        d = vr(ACC + 8*i + 4*nt, 4)
        a.wait_lg([("b", n), ("a", n, i)])
        a(f"{M16} {d}, {vr(FA[fs]+4*i,4)}, {vr(FB[fs]+4*nt,4)}, {'0' if n == 0 else d}")

    allex = [p for l in sched(0, opt)[1].values() for p in l]
    w_early = sorted(int(p[1]) for p in allex if p[0] == "W")
    w_late = [p for p in range(4) if p not in w_early]
    hit_first = [4*g + k for k in w_early for g in (1, 2, 3)]
    hit_last = [4*g + k for k in w_late for g in (1, 2, 3)]
    rest = hit_first + w_late + hit_last
    if opt.rest: rest = [int(x) for x in opt.rest.split(",")]
    assert sorted(rest + w_early) == list(range(16))
    late_slots = ["w1", "x1", "w2", "x2", "k0", "k1", "v0", "v1", "x0", "w0"]
    avail = {"w1": 14, "x1": 14, "w2": 15, "x2": 15, "k0": 15, "k1": 15, "v0": 15, "v1": 15, "x0": 16, "w0": 17}
    lateq = [(rest[i], j, late_slots[i]) for i in range(min(len(rest), len(late_slots))) for j in range(4)]
    def k_items():
        it = []
        for kt in range(2):
            for u in range(4):
                for h in range(2):
                    def g(kt=kt, u=u, h=h):
                        if (kt, u, h) == (0, 0, 0): a.wait_vm("k")
                        a(f"v_xor_b32 v{VT2}, {((4*u+2*h) ^ (4*kt)) << 4}, v{VKA}")
                        a.lds(f"ds_read_b64 {vr(KF+16*kt+4*u+2*h,2)}, v{VT2} offset:{1024*kt}", "kf")
                    it.append(g)
        return it
    def v_items():
        it = []
        for i in range(8):
            def g(i=i):
                if i == 0:
                    a.wait_vm("v")
                    a(f"s_add_u32 s{T+1}, s{S_MK}, {VR}")
                a(f"v_add_u32 v{VT2}, s{T+1}, v{VA[i]}")
                for h2 in range(2):
                    a.lds(f"ds_read_b64_tr_b16 {vr(VF+4*i+2*h2,2)}, v{VT2} offset:{4*h2*256}", "vf")
            it.append(g)
        return it
    uniform = all(sched(l, opt) == sched(0, opt) for l in range(4))
    for lam in range(1, 4):
        a(f"s_cmp_eq_u32 s{S_LAM}, {lam}")
        a(f"s_cbranch_scc1 L_p1_{lam}")
    vm0, lg0, cur0, ever0 = list(a.vm), list(a.lg), cur[0], set(a.ever)
    end_state = None
    a.lg_low = 7
    for lam in range(4):
        a.vm, a.lg, cur[0], a.ever = list(vm0), list(lg0), cur0, set(ever0)
        a.label(f"L_p1_{lam}")
        order, extras = sched(lam, opt)
        kv_issue = {pc.lower(): st for st, l in extras.items() for pc in l if pc[0] in "KV"}
        assert len(kv_issue) == 4 and max(extras) <= 11
        kc = max(kv_issue["k0"], kv_issue["k1"]) + 3
        vc = max(kv_issue["v0"], kv_issue["v1"]) + 3
        occ = {"k0": [(kv_issue["k0"], kc)], "k1": [(kv_issue["k1"], kc)], "v0": [(kv_issue["v0"], vc)], "v1": [(kv_issue["v1"], vc)]}
        consume = {kc: ["K"]}
        consume.setdefault(vc, []).append("V")
        wslot = {}
        for st in sorted(extras):
            for pc in extras[st]:
                if pc[0] == "W":
                    cs = st + 3
                    cand = [k for k in ("k0", "k1", "v0", "v1") if all(cs < b or st > e for b, e in occ[k])]
                    assert cand, (pc, st, occ)
                    wslot[pc] = cand[0]; occ[cand[0]].append((st, cs))
                    consume.setdefault(cs, []).append(pc)
        fill = list(FILL)
        lq = list(lateq)
        for s in range(16):
            a.c(f"---- class {lam} stage {s} chunk {order[s]}")
            if a.lg: a.wait_lg_all()
            a.wait_vm(("st", s))
            a("s_barrier")
            stamp(a, 1 + s, opt)
            dm = []
            if s + 2 < 16:
                c = order[s + 2]
                for j in range(4): dm.append(lambda j=j, c=c: dma_x(s + 2, j, c))
                for j in range(4): dm.append(lambda j=j, c=c: dma_wq(s + 2, j, c))
            else:
                for k in range(opt.n14 if s == 14 else opt.n15):
                    pos, j, sl = lq.pop(0)
                    assert avail[sl] <= s
                    dm.append(lambda pos=pos, j=j, sl=sl: dma_wo(pos, j, sl))
            for pc in extras.get(s, []):
                if pc[0] == "W": assert not fill
                for j in range(4):
                    if pc[0] == "W": dm.append(lambda pc=pc, j=j: dma_wo(int(pc[1]), j, wslot[pc]))
                    else: dm.append(lambda pc=pc, j=j: dma_kv(pc, j))
            if s == opt.non_stage:
                dm.append(lambda: a.vmem(f"buffer_load_dword v{VNON}, v{TT+1}, {srd(SDBG)}, 0 offen sc1", "nonce"))
            lw = []
            for pc in consume.get(s, []):
                assert not fill or len(FILL) - len(fill) > 60
                if pc == "K": lw += k_items()
                elif pc == "V": lw += v_items()
                else: lw += tr_wo_items(int(pc[1]), wslot[pc])
            nd, nl = len(dm), len(lw)
            gap = 0
            for t in range(2):
                n = 2 * s + t
                rd = reads(n)
                for k in range(16):
                    if n > 0: mfma(n - 1, k)
                    span = 16 if t == 0 else opt.rspan
                    while rd and 18 - len(rd) < ((k + 1) * 18 + span - 1) // span: a.lds(*rd.pop(0))
                    gap += 1
                    want = (gap * nd + 29) // 32
                    did = False
                    while dm and nd - len(dm) < want: dm.pop(0)(); did = True
                    while lw and nl - len(lw) < (gap * nl) // 26: lw.pop(0)(); did = True
                    if fill and not did:
                        for _ in range(3 if n == 0 else 1):
                            if fill: a(fill.pop(0))
            assert not dm and not lw
        assert not fill
        st_ = (list(a.vm), list(a.lg), cur[0])
        if end_state is None: end_state = st_
        assert end_state == st_, (end_state, st_)
        if lam < 3: a("s_branch L_common")
    a.label("L_common")
    a.lg_low = 12
    natt = [opt.natt]
    def ad(lim=16):
        if natt[0] > 0 and lq and avail[lq[0][2]] <= lim:
            natt[0] -= 1
            return dma_wo(*lq.pop(0))
        return 0
    def pad(n):
        while n > 0:
            k = min(n, 8); a(f"s_nop {k-1}"); n -= k
    assert "nonce" not in a.vm
    def cvt4(dst, u, nt):
        for hh in range(2):
            t = ACC + 8*(2*u+hh) + 4*nt
            a(f"v_cvt_pk_bf16_f32 v{dst+2*hh}, v{t}, v{t+1}")
            a(f"v_cvt_pk_bf16_f32 v{dst+2*hh+1}, v{t+2}, v{t+3}")
    qp = lambda u, nt: QP + 8*u + 4*nt
    CS = 128 ** -0.5 * 1.4426950408889634
    for k in range(16):
        mfma(31, k)
        if k == 0: a(f"v_readfirstlane_b32 s{S_NONCE}, v{VNON}")
        if k == 1: a(f"s_mov_b32 s{T+2}, {f32(CS)}")
        if k in (2, 6): ad(15)
        if k == 11: cvt4(qp(0,0), 0, 0)
        if k == 13: cvt4(qp(0,1), 0, 1)
        if k == 15: cvt4(qp(1,0), 1, 0)
    if a.lg: a.wait_lg_all()
    stamp(a, 17, opt)
    a.c("---- attention")
    cvt4(qp(1,1), 1, 1)
    ss = lambda kt, nt: SS + 8*nt + 4*kt
    def smf(u, kt, nt):
        d = vr(ss(kt, nt), 4)
        a(f"{M16} {d}, {vr(KF+16*kt+4*u,4)}, {vr(qp(u,nt),4)}, {'0' if u == 0 else d}")
    def cvt2(dst, u, nt, hh):
        t = ACC + 8*(2*u+hh) + 4*nt
        a(f"v_cvt_pk_bf16_f32 v{dst+2*hh}, v{t}, v{t+1}")
        a(f"v_cvt_pk_bf16_f32 v{dst+2*hh+1}, v{t+2}, v{t+3}")
    cv = [(u, nt, hh) for u in (2, 3) for nt in range(2) for hh in range(2)]
    for u in range(4):
        for nt in range(2):
            for kt in range(2):
                smf(u, kt, nt)
                if cv:
                    uu, n2, hh = cv.pop(0); cvt2(qp(uu, n2), uu, n2, hh)
                elif (u, nt, kt) in ((2, 0, 1), (3, 0, 1)): ad()
    pad(8 - 2 - ad())
    for nt in range(2):
        b = SS + 8*nt
        a(f"v_max3_f32 v{240+nt}, v{b}, v{b+1}, v{b+2}")
        a(f"v_max3_f32 v{242+nt}, v{b+3}, v{b+4}, v{b+5}")
        a(f"v_max3_f32 v{240+nt}, v{240+nt}, v{b+6}, v{b+7}")
        a(f"v_max_f32 v{240+nt}, v{240+nt}, v{242+nt}")
    def xred(op):
        pad(2 - ad())
        a("v_permlane32_swap_b32 v240, v241")
        a("s_nop 0")
        a(f"{op} v240, v240, v241")
        a("v_mov_b32 v241, v240")
        a("s_nop 1")
        a("v_permlane16_swap_b32 v240, v241")
        a("s_nop 0")
        a(f"{op} v240, v240, v241")
    xred("v_max_f32")
    a(f"v_mul_f32 v240, s{T+2}, v240")
    a("v_mov_b32 v241, v240")
    a("s_nop 1")
    a("v_permlane32_swap_b32 v240, v241")
    a("s_nop 0")
    for k in range(16):
        a(f"v_fma_f32 v{SS+k}, v{SS+k}, s{T+2}, -v{240+(k>>3)}")
    ad()
    for k in range(16):
        a(f"v_exp_f32 v{SS+k}, v{SS+k}")
        if k == 7: ad()
    for k in range(1, 8):
        for nt in range(2):
            b = SS + 8*nt
            a(f"v_add_f32 v{240+nt}, v{b if k == 1 else 240+nt}, v{b+k}")
    xred("v_add_f32")
    a("v_rcp_f32 v240, v240")
    a("s_nop 0")
    a("v_mov_b32 v241, v240")
    a("s_nop 1")
    a("v_permlane32_swap_b32 v240, v241")
    a("s_nop 0")
    for nt in range(2):
        for k in range(8):
            a(f"v_mul_f32 v{SS+8*nt+k}, v{SS+8*nt+k}, v{240+nt}")
        for p in range(4):
            a(f"v_cvt_pk_bf16_f32 v{PP+4*nt+p}, v{SS+8*nt+2*p}, v{SS+8*nt+2*p+1}")
    def pv(i, nt):
        a(f"{M16} {vr(ACC+8*i+4*nt,4)}, {vr(VF+4*i,4)}, {vr(PP+4*nt,4)}, 0")
    def ost(u, nt):
        blk = 2*u + nt
        a.vmem(f"buffer_store_dwordx4 {vr(qp(u,nt),4)}, v{VL16}, {srd(SWS)}, s{S_OW[blk>>2]} offen offset:{(blk&3)*1024} sc1", "o")
    seq = [(i, nt) for nt in range(2) for i in range(8)]
    ev = [(u, nt, hh) for nt in range(2) for u in range(4) for hh in range(2)]
    for k, (i, nt) in enumerate(seq):
        pv(i, nt)
        if k in (1, 4): ad()
        if k >= 8:
            u, n2, hh = ev.pop(0); cvt2(qp(u, n2), u, n2, hh)
            if hh: ost(u, n2)
    while ev:
        u, n2, hh = ev.pop(0); cvt2(qp(u, n2), u, n2, hh)
        if hh: ost(u, n2)
    stamp(a, 18, opt)
    a("s_barrier")
    VL = 2; VRR = 3; VRW = [8, 9, 10]; VOUT = 11; VZ = 12; VNV = 13; VFL = 14; VFA = 15; VLO = 15
    nfirst = min(len(rest), len(late_slots))
    slot_of = {rest[i]: late_slots[i] for i in range(nfirst)}
    for _ in range(opt.pre_flag):
        if lq: dma_wo(*lq.pop(0))
    a(f"s_cmp_lg_u32 s{S_NONCE}, 0")
    a("s_cbranch_scc1 L_havenonce")
    a(f"s_mov_b32 s{S_CNT}, 0")
    a("v_mov_b32 v240, 0")
    a.label("L_nonce_spin")
    a(f"buffer_load_dword v{VNON}, v240, {srd(SDBG)}, 0 offen sc1")
    a("s_waitcnt vmcnt(0)")
    a(f"v_readfirstlane_b32 s{S_NONCE}, v{VNON}")
    a(f"s_add_u32 s{S_CNT}, s{S_CNT}, 1")
    a(f"s_cmp_gt_u32 s{S_CNT}, {SPIN_MAX}")
    a("s_cbranch_scc1 L_havenonce")
    a(f"s_cmp_eq_u32 s{S_NONCE}, 0")
    a("s_cbranch_scc1 L_nonce_spin")
    a.label("L_havenonce")
    a(f"v_mov_b32 v{VL}, v{VL16}")
    for sl in range(1, 4):
        a(f"s_add_u32 s{T}, s{S_W}, {sl}")
        a(f"s_and_b32 s{T}, s{T}, 3")
        a(f"s_mul_i32 s{T}, s{T}, 12288")
        a(f"s_add_u32 s{T}, s{T}, {(sl-1)*4096}")
        a(f"v_add_u32 v{VRW[sl-1]}, s{T}, v{VL16}")
    a(f"s_mul_i32 s{T}, s{S_W}, 12288")
    a(f"v_add_u32 v{VRR}, s{T}, v{VL16}")
    a(f"v_lshrrev_b32 v{VZ}, 5, v0")
    a(f"v_lshlrev_b32 v{VZ}, 25, v{VZ}")
    a(f"v_lshl_add_u32 v{VZ}, v0, 2, v{VZ}")
    a(f"v_mov_b32 v{VNV}, s{S_NONCE}")
    a(f"v_and_b32 v{VFA}, 7, v0")
    a(f"v_lshlrev_b32 v{VFA}, 7, v{VFA}")
    a(f"v_and_b32 v{VOUT}, 31, v0")
    a(f"v_lshlrev_b32 v{VOUT}, 12, v{VOUT}")
    a(f"v_lshrrev_b32 v240, 5, v0")
    a(f"v_lshl_add_u32 v{VOUT}, v240, 4, v{VOUT}")
    a(f"v_and_b32 v241, 15, v0")
    a(f"v_lshlrev_b32 v241, 4, v241")
    a(f"v_lshl_add_u32 v241, v240, 8, v241")
    a(f"v_bfe_u32 v240, v0, 4, 1")
    a(f"v_lshl_add_u32 v241, v240, 10, v241")
    ri = nfirst
    resident = list(w_early)
    free_slots = []
    def issued_fully(pos): return pos in slot_of and not any(q[0] == pos for q in lq)
    def assign_more():
        nonlocal ri
        while ri < len(rest) and free_slots:
            sl = free_slots.pop(0); slot_of[rest[ri]] = sl
            for j in range(4): lq.append((rest[ri], j, sl))
            ri += 1
    def tr_piece(pos):
        for g in tr_wo_items(pos, slot_of[pos]): g()
        resident.append(pos); free_slots.append(slot_of[pos])
    todo = list(rest)
    while todo and issued_fully(todo[0]) and a._cnt(a.vm, ("wo", todo[0])) < a.vm.index("o"):
        tr_piece(todo.pop(0))
    if a.lg: a.wait_lg_all()
    assign_more()
    a.wait_vm("o")
    a.vmem(f"buffer_store_dword v{VNV}, v{VZ}, {srd(SWS)}, s{S_FOW} offen sc1", "flag")
    stamp(a, 19, opt)
    if opt.diag:
        a.wait_vm_all(); stamp(a, 32, opt)
        a(f"s_mov_b32 s{S_CNT}, 0")
        a.label("L_dp")
        a(f"buffer_load_dword v{VFL}, v{VFA}, {srd(SWS)}, s{S_FOR} offen sc1")
        a("s_waitcnt vmcnt(0)")
        a(f"v_cmp_ne_u32 vcc, s{S_NONCE}, v{VFL}")
        a(f"s_add_u32 s{S_CNT}, s{S_CNT}, 1")
        a(f"s_cmp_gt_u32 s{S_CNT}, {SPIN_MAX}")
        a(f"s_cbranch_scc1 L_dpd")
        a("s_nop 1")
        a(f"s_cbranch_vccnz L_dp")
        a.label("L_dpd")
        stamp(a, 33, opt)
        for k in range(5):
            for _ in range(8):
                if lq: dma_wo(*lq.pop(0))
            a("s_waitcnt vmcnt(0)")
            stamp(a, 34 + k, opt)
    for _ in range(opt.pre_poll):
        if lq: dma_wo(*lq.pop(0))
    a.vmem(f"buffer_load_dword v{VFL}, v{VFA}, {srd(SWS)}, s{S_FOR} offen sc1", "poll")
    for _ in range(opt.post_poll):
        if lq: dma_wo(*lq.pop(0))
    while todo and issued_fully(todo[0]) and a._cnt(a.vm, ("wo", todo[0])) < a.vm.index("poll"):
        tr_piece(todo.pop(0))
    if a.lg: a.wait_lg_all()
    assign_more()
    S_OS = S_QW
    def obase(n):
        a(f"s_lshl_b32 s{T+2}, s{S_Q[n]}, 18")
        a(f"s_add_u32 s{T+2}, s{T+2}, s{S_OB}")
        for jg in range(4): a(f"s_add_u32 s{S_OS[jg]}, s{T+2}, s{S_OG[jg]}")
    obase(0)
    stamp(a, 20, opt)
    a(f"s_mov_b32 s{S_CNT}, 0")
    a.wait_vm("poll")
    a.label("L_pollo")
    a(f"v_cmp_ne_u32 vcc, s{S_NONCE}, v{VFL}")
    a(f"s_add_u32 s{S_CNT}, s{S_CNT}, 1")
    a(f"s_cmp_gt_u32 s{S_CNT}, {SPIN_MAX}")
    a(f"s_cbranch_scc1 L_pollo_done")
    a("s_nop 1")
    a(f"s_cbranch_vccz L_pollo_done")
    a(f"buffer_load_dword v{VFL}, v{VFA}, {srd(SWS)}, s{S_FOR} offen sc1")
    a("s_waitcnt vmcnt(0)")
    a("s_branch L_pollo")
    a.label("L_pollo_done")
    if opt.stamps: a(f"v_writelane_b32 v{VSTAMP}, s{S_CNT}, 62")
    stamp(a, 21, opt)
    assert ri == len(rest)
    AC = 16; TMP = 80; OF = [128, 192]
    def load_o(n, f):
        a.vmem(f"buffer_load_dwordx4 {vr(OF[n&1]+4*f,4)}, v{VLO}, {srd(SWS)}, s{S_OS[f>>2]} offen offset:{((f&3)>>1)*2048 + (f&1)*512} sc1", ("o", n, f))
    a(f"v_mov_b32 v{VLO}, v241")
    korder0 = resident + todo
    assert sorted(korder0) == list(range(16))
    INIT = opt.init_o
    for f in korder0[:INIT]: load_o(0, f)
    while todo and issued_fully(todo[0]): tr_piece(todo.pop(0))
    NG = opt.fmt
    PT = OF[0]; PK = TMP + 16; PU = PT + 40
    S_SEL = [S_QX[0], S_QX[1]]; S_ZSEL = S_QX[2]; S_M3 = S_QX[3]; S_MSK = S_HW
    VBAD, VPL = 12, 14
    VTG = [4, 5, 6, 7]
    dslot = [0, 1, 2, 4, 5, 6, 8, 9] if NG == 3 else list(range(8))
    PL = 98304
    def wr(n, sl, j):
        a.lds(f"ds_write_b128 v{VRW[sl-1]}, {vr(AC+16*sl+4*j,4)} offset:{(n&1)*49152 + j*1024}", "rw")
    def rd(n, k):
        a.lds(f"ds_read_b128 {vr(TMP+4*k,4)}, v{VRR} offset:{(n&1)*49152 + k*1024}", ("rr", k))
    def presum(src, j):
        a.wait_lg([("rr", j), ("rr", 4*src+j)])
        for e in range(4): a(f"v_add_f32 v{TMP+4*j+e}, v{TMP+4*j+e}, v{TMP+16*src+4*j+e}")
    def fin(j):
        for e in range(4): a(f"v_add_f32 v{TMP+4*j+e}, v{TMP+4*j+e}, v{AC+4*j+e}")
    def pack_items(gr):
        if NG == 3:
            def g():
                for p in range(3*gr, min(3*gr+3, 8)):
                    a(f"v_cvt_pk_bf16_f32 v{PK+dslot[p]}, v{TMP+2*p}, v{TMP+2*p+1}")
                a(f"v_mov_b32 v{PK+4*gr+3}, s{S_NONCE}")
                if gr == 2: a(f"v_mov_b32 v{PK+10}, s{S_NONCE}")
            return [g]
        def g1():
            for p in range(4*gr, 4*gr+4): a(f"v_cvt_pk_bf16_f32 v{PK+p}, v{TMP+2*p}, v{TMP+2*p+1}")
        def g2():
            for p in range(4*gr, 4*gr+4): a(f"v_bfi_b32 v{PK+p}, s{S_MSK}, v{VTG[p&3]}, v{PK+p}")
        return [g1, g2]
    def pst(n, j):
        if j == 0:
            a(f"s_lshl_b32 s{T+3}, s{S_Q[n]}, 16")
            a(f"s_add_u32 s{T+3}, s{T+3}, s{S_PB}")
        a.vmem(f"buffer_store_dwordx4 {vr(PK+4*j,4)}, v{VL}, {srd(SWS)}, s{T+3} offen offset:{j*1024} sc1", ("p", n))
    def pld(k, j, track=True):
        if j == 0:
            a(f"s_lshl_b32 s{T+4}, s{S_Q[k]}, 14")
            a(f"s_add_u32 s{T+4}, s{T+4}, s{S_PR}")
        ins = f"buffer_load_dwordx4 {vr(PT+12*k+4*j,4)}, v{VL}, {srd(SWS)}, s{T+4} offen offset:{j*1024} sc1"
        if track: a.vmem(ins, ("pp", k))
        else: a(ins)
    def chk_items(k):
        b = PT + 12*k
        if NG == 3:
            def g():
                a(f"v_xor_b32 v{VBAD}, s{S_NONCE}, v{b+3}")
                a(f"v_bitop3_b32 v{VBAD}, v{VBAD}, v{b+7}, s{S_NONCE} bitop3:0xf6")
                a(f"v_bitop3_b32 v{VBAD}, v{VBAD}, v{b+11}, s{S_NONCE} bitop3:0xf6")
                a(f"v_cmp_ne_u32 vcc, 0, v{VBAD}")
            return [g]
        def g1():
            a(f"v_xor_b32 v{VBAD}, v{VTG[0]}, v{b}")
            for p in range(1, 5): a(f"v_bitop3_b32 v{VBAD}, v{VBAD}, v{b+p}, v{VTG[p&3]} bitop3:0xf6")
        def g2():
            for p in range(5, 8): a(f"v_bitop3_b32 v{VBAD}, v{VBAD}, v{b+p}, v{VTG[p&3]} bitop3:0xf6")
            a(f"v_and_b32 v{VBAD}, s{S_MSK}, v{VBAD}")
            a(f"v_cmp_ne_u32 vcc, 0, v{VBAD}")
        return [g1, g2]
    def sel(k):
        a("s_cmp_eq_u64 vcc, 0")
        a(f"s_cselect_b32 s{S_SEL[0]}, 0x01000c0c, s{S_ZSEL}")
        a(f"s_cselect_b32 s{S_SEL[1]}, 0x03020c0c, s{S_ZSEL}")
        a(f"s_cselect_b32 s{T+5}, {1<<k}, 0")
        a(f"s_or_b32 s{S_DONE}, s{S_DONE}, s{T+5}")
    def unp_set(k, p2):
        for p in (2*p2, 2*p2+1):
            for h in range(2):
                d = PT + 12*k + dslot[p]
                a(f"v_perm_b32 v{AC+2*p+h}, v{d}, v{d}, s{S_SEL[h]}")
    def unp_add(k, p, dst):
        d = PT + 12*k + dslot[p]
        for h in range(2): a(f"v_perm_b32 v{PU+h}, v{d}, v{d}, s{S_SEL[h]}")
        for h in range(2): a(f"v_add_f32 v{dst+2*p+h}, v{dst+2*p+h}, v{PU+h}")
    def bar():
        if a.lg: a.wait_lg_all()
        a("s_barrier")
    def consts():
        a(f"s_mov_b32 s{S_ZSEL}, 0x0c0c0c0c")
        a(f"s_mov_b32 s{S_DONE}, 0")
        a(f"s_add_u32 s{S_M3}, s{S_MK}, {PL}")
        a(f"v_add_u32 v{VPL}, s{S_M3}, v{VL}")
        a(f"s_mov_b32 s{S_MSK}, 0x00010001")
    def tags(h):
        if h == 0:
            a(f"v_and_b32 v{VTG[0]}, 3, v0")
            a(f"v_lshlrev_b32 v{VTG[0]}, 2, v{VTG[0]}")
            a(f"v_lshrrev_b32 v{VTG[0]}, v{VTG[0]}, v{VNV}")
        else:
            for p in range(1, 4): a(f"v_lshrrev_b32 v{VTG[p]}, {p}, v{VTG[0]}")
    consts()
    carry = []
    ro = [0, 4, 8, 1, 5, 9, 2, 6, 10, 3, 7, 11]
    ps = [(src, j) for j in range(4) for src in (1, 2)]
    packs = lambda: [g for gr in range(NG) for g in pack_items(gr)]
    for n in range(4):
        a.c(f"---- strip {n}")
        if n == 0: seq = [(ks, sl) for ks in korder0 for sl in (1, 2, 3)] + [(ks, 0) for ks in range(16)]
        elif n == 1: seq = [(ks, sl) for ks in range(16) for sl in (1, 2)] + [(ks, sl) for sl in (3, 0) for ks in range(16)]
        else: seq = [(ks, sl) for sl in (1, 2, 3, 0) for ks in range(16)]
        at = {}
        def put(g, fn): at.setdefault(g, []).append(fn)
        for g, fn in carry: put(g, fn)
        carry = []
        if n == 0:
            mq = []
            of = korder0[INIT:]
            wl = list(lq); lq.clear()
            while of or wl:
                for _ in range(2):
                    if wl: mq.append(lambda w=wl.pop(0): dma_wo(*w))
                if of: mq.append(lambda f=of.pop(0): load_o(0, f))
            g = 0
            for fn in mq:
                put(g // opt.mq_den, fn); g += opt.mq_num
            gq = g // opt.mq_den + 1
            for i, pos in enumerate(korder0):
                if pos in todo:
                    its = tr_wo_items(pos, slot_of[pos])
                    for k2, fn in enumerate(its): put(3 * i - 4 + (k2 >> 1), fn)
            if todo: gq = max(gq, 20)
            def place(g, fn):
                if g < 64: put(g, fn)
                else: carry.append((g - 64, fn))
            g = gq - 1
            place(g, lambda: obase(1)); g += 1
            for f in range(16): place(g, lambda f=f: load_o(1, f)); g += 2
            g = max(g, 65)
            g += (g & 1) ^ 1
            place(g, lambda: obase(2)); g += 1
            for f in range(16): place(g, lambda f=f: load_o(2, f)); g += 2
            place(g - 1, lambda: obase(3))
            gend = g - 64
            put(47, bar)
            put(48, lambda: tags(0) or a("s_nop 0"))
            put(49, lambda: tags(1))
            for i, (sl, j) in enumerate([(sl, j) for sl in (1, 2, 3) for j in range(4)]): put(50 + i, lambda sl=sl, j=j: wr(n, sl, j))
            put(63, bar)
            g = 1
            for i in range(6):
                carry.append((g, lambda i=i: (rd(0, ro[2*i]), rd(0, ro[2*i+1])))); g += 2
            work = [lambda i=i: presum(*ps[i]) for i in range(8)] + [lambda j=j: fin(j) for j in range(4)] + packs()
            for fn in work: carry.append((g, fn)); g += 2
            assert g <= 47
            gs = max(gend, g)
            assert gs + NG <= 58, gs
            for j in range(NG): carry.append((gs + j, lambda j=j: pst(0, j)))
            left = []
        else:
            fast = n >= 2
            if n == 1:
                for i, (sl, j) in enumerate([(sl, j) for sl in (1, 2) for j in range(4)]): put(36 + i + (i >> 1), lambda sl=sl, j=j: wr(n, sl, j))
            else:
                if n == 2:
                    for f in range(16): put(opt.g_o3 + 2 * f, lambda f=f: load_o(3, f))
                    def pdma(j):
                        if j == 0:
                            a(f"s_lshl_b32 s{T+4}, s{S_Q[2]}, 14")
                            a(f"s_mov_b32 m0, s{S_M3}")
                            a(f"s_add_u32 s{T+4}, s{T+4}, s{S_PR}")
                        a.vmem(f"buffer_load_dwordx4 v{VL}, {srd(SWS)}, s{T+4} offen offset:{j*1024} sc1 lds", "pdma")
                    for j in range(NG): put(opt.g_p2 + 2 * j, lambda j=j: pdma(j))
                for j in range(4): put(32 + 2 * j, lambda j=j: wr(n, 1, j))
                for j in range(4): put(41 + 2 * j, lambda j=j: wr(n, 2, j))
            put(48, lambda: a("s_nop 3"))
            put(49, lambda: a("s_nop 4" if n == 1 else "s_nop 3"))
            if fast:
                for j in range(4): put(50 + j, lambda j=j: wr(n, 3, j))
                gb = 55
            else:
                for j in range(4): put(50 + 2 * j, lambda j=j: wr(n, 3, j))
                gb = 58
            put(gb, bar)
            for i in range(6):
                put(gb + i, lambda i=i: (rd(n, ro[2*i]), rd(n, ro[2*i+1])))
            npre_s = 63 - (gb + 5)
            for i in range(npre_s): put(gb + 6 + i, lambda i=i: presum(*ps[i]))
            left = [lambda i=i: presum(*ps[i]) for i in range(npre_s, 8)]
            if n == 1:
                g = 1
                for fn in left + [lambda j=j: fin(j) for j in range(4)] + packs(): carry.append((g, fn)); g += 2
                assert opt.g_s1 >= g - 2, g
                for j in range(NG): carry.append((opt.g_s1 + 2 * j, lambda j=j: pst(1, j)))
            if n == 2:
                g = NG if opt.g_p1 == 0 else 0
                for fn in left + [lambda j=j: fin(j) for j in range(4)]: carry.append((g, fn)); g += 1
                for j in range(NG):
                    for fn in pack_items(j): carry.append((g, fn)); g += 1
                    carry.append((g, lambda j=j: pst(2, j))); g += 1
                gfree = g
            if n == 3:
                for j in range(NG): put(opt.g_p1 + j, lambda j=j: pld(1, j))
                def prd():
                    a.wait_vm("pdma")
                    for j in range(NG):
                        a.lds(f"ds_read_b128 {vr(PT+24+4*j,4)}, v{VPL} offset:{j*1024}", "prd")
                g = gfree
                put(g - 3, prd)
                put(g, lambda: a.wait_lg("prd"))
                for fn in chk_items(2): put(g, fn); g += 1
                put(g, lambda: sel(2)); g += 1
                for p2 in range(4): put(g, lambda p2=p2: unp_set(2, p2)); g += 1
                g = max(g, opt.g_c1)
                put(g, lambda: a.wait_vm(("pp", 1)))
                for fn in chk_items(1): put(g, fn); g += 1
                put(g, lambda: sel(1)); g += 1
                for p in range(8):
                    while g in (32, 34, 36, 38, 41, 43, 45): g += 1
                    put(g, lambda p=p: unp_add(1, p, AC)); g += 1
                assert g <= 47, g
                for j in range(NG): put(opt.g_p0 + j, lambda j=j: pld(0, j))
        seen = set()
        for g, (ks, sl) in enumerate(seq):
            if ks not in seen:
                a.wait_vm(("o", n, ks)); seen.add(ks)
                if n == 0: a.wait_lg(("wo", ks))
            first = (ks == korder0[0]) if (n == 0 and sl) else (ks == 0)
            if n == 3 and sl == 0: first = False
            c = "0" if first else vr(AC+16*sl, 16)
            a(f"{MF} {vr(AC+16*sl,16)}, {ar(16*ks+4*sl,4)}, {vr(OF[n&1]+4*ks,4)}, {c}")
            for fn in at.get(g, []): fn()
            if n == opt.sst and g % 8 == 7 and g < 63: stamp(a, 32 + g // 8, opt)
        stamp(a, 22 + n, opt)
    for fn in left: fn()
    for j in range(4): fin(j)
    a(f"s_mov_b32 s{S_SEL[0]}, 0x01000c0c")
    a(f"s_mov_b32 s{S_SEL[1]}, 0x03020c0c")
    stamp(a, 26, opt)
    a(f"s_mov_b32 s{S_CNT}, 0")
    for k in (0, 1, 2):
        if k:
            a(f"s_bitcmp1_b32 s{S_DONE}, {k}")
            a(f"s_cbranch_scc1 L_skip{k}")
            a(f"s_branch L_rel{k}")
        else:
            a.wait_vm(("pp", 0))
        a.label(f"L_chk{k}")
        for fn in chk_items(k): fn()
        a(f"s_add_u32 s{S_CNT}, s{S_CNT}, 1")
        a(f"s_cmp_gt_u32 s{S_CNT}, {SPIN_MAX}")
        a(f"s_cbranch_scc1 L_ok{k}")
        a("s_nop 1")
        a(f"s_cbranch_vccz L_ok{k}")
        a.label(f"L_rel{k}")
        for j in range(NG): pld(k, j, track=False)
        a("s_waitcnt vmcnt(0)")
        a(f"s_branch L_chk{k}")
        a.label(f"L_ok{k}")
        for p in range(8): unp_add(k, p, TMP)
        a.label(f"L_skip{k}")
    stamp(a, 27, opt)
    for p in range(8):
        a(f"v_cvt_pk_bf16_f32 v{AC+p}, v{TMP+2*p}, v{TMP+2*p+1}")
    a(f"buffer_store_dwordx4 {vr(AC,4)}, v{VOUT}, {srd(SOUT)}, s{S_OUTB} offen")
    a(f"buffer_store_dwordx4 {vr(AC+4,4)}, v{VOUT}, {srd(SOUT)}, s{S_OUTB} offen offset:32")
    if opt.stamps:
        a("s_waitcnt vmcnt(0)")
        stamp(a, 28, opt)
        a(f"v_writelane_b32 v{VSTAMP}, s{S_CNT}, 63")
        dump_stamps(a, opt)
    a.label(end)
    a("s_endpgm")
    a.label("L_codeend")

Opt.fill0 = 12
Opt.rest = ""
Opt.rspan = 12
Opt.diag = False

def build(opt):
    nm = NAME + "_kernel"
    out = []
    out.append("; @launch grid=(256,1,1) block=(256,1,1) lds=163840")
    out.append('.amdgcn_target "amdgcn-amd-amdhsa--gfx950"')
    out.append(".text")
    a = Asm()
    gen(a, opt)
    out.append(f".globl {nm}\n.p2align 8\n.type {nm},@function\n{nm}:")
    out.append(a.text())
    out.append('.section .rodata,"a"')
    out.append(f""".p2align 6
.amdhsa_kernel {nm}
  .amdhsa_next_free_vgpr 512
  .amdhsa_next_free_sgpr 102
  .amdhsa_accum_offset 256
  .amdhsa_group_segment_fixed_size 0
  .amdhsa_kernarg_size 104
  .amdhsa_user_sgpr_count 2
  .amdhsa_user_sgpr_kernarg_segment_ptr 1
  .amdhsa_system_sgpr_workgroup_id_x 1
.end_amdhsa_kernel
""")
    return "\n".join(out)

if __name__ == "__main__":
    opt = Opt()
    for kv in sys.argv[2:]:
        k, v = kv.split("=")
        cur = getattr(opt, k)
        setattr(opt, k, (v == "1") if isinstance(cur, bool) else type(cur)(v))
    t = build(opt)
    open(sys.argv[1], "w").write(t)
```

```python
import sys, struct
from asmlib import *

NAME = "concat_heads__mha_block_cached__gqa_block_cached__near_ridge"
def f32(x): return "0x%08x" % struct.unpack("<I", struct.pack("<f", x))[0]

PART_BASE = 8 << 20
FO_BASE = 24 << 20
STAMP_BASE = 28 << 20
WS_USED = 32 << 20
SPIN_MAX = 20000

SX, SK, SV, SWQ, SWO, SWS, SOUT, SDBG = 32, 36, 40, 44, 48, 52, 56, 60
S_W, S_BR, S_G, S_HL, S_R, S_B = 64, 65, 66, 67, 68, 69
S_T = 70
S_MX, S_LAM, S_KV, S_MW, S_MK, S_C = 78, 79, 80, 81, 82, 83
S_NONCE, S_CNT, S_DONE = 84, 85, 86
S_SO = 87
S_QW = [88, 89, 90, 91]; S_QX = [92, 93, 94, 95]
S_HW, S_HX = 96, 97
S_U = 98
S_WOG = [4, 5, 6, 7]; S_OG = [8, 9, 10, 11]; S_Q = [12, 13, 14, 15]
S_OB, S_PB, S_FOW, S_FOR, S_OUTB, S_PR = 16, 17, 18, 19, 20, 21
S_OW = [22, 23]

class Opt:
    nt_kv = "nt"
    stamps = False
    clk = "s_memrealtime"
    ab = "11:W1"
    ex = "K0|V0|W0"
    mid = "K1|V1|"
    lead = 2; bal = False; stag = False; hbit = 3
    n14 = 8; n15 = 0; natt = 0
    pre_flag = 0; pre_poll = 40; post_poll = 0
    codepf = True
    fill = 4
    coff = 1
    non_stage = 11
    init_o = 8
    mq_num = 2; mq_den = 1
    fmt = 2
    g_s1 = 33; g_p2 = 44; g_p1 = 0; g_c1 = 28; g_p0 = 56; g_o3 = 0
    sst = -1

VSTAMP = 1
def stamp(a, idx, opt):
    if opt.stamps:
        a(f"{opt.clk} s[30:31]")
        a("s_waitcnt lgkmcnt(0)"); a.lg = []
        a(f"v_writelane_b32 v{VSTAMP}, s30, {idx}")

def dump_stamps(a, opt):
    a(f"s_lshl_b32 s{S_T}, s2, 2")
    a(f"s_add_u32 s{S_T}, s{S_T}, s{S_W}")
    a(f"s_lshl_b32 s{S_T}, s{S_T}, 8")
    a(f"s_add_u32 s{S_T}, s{S_T}, {STAMP_BASE}")
    a("v_lshlrev_b32 v2, 2, v0")
    a(f"buffer_store_dword v{VSTAMP}, v2, s[{SWS}:{SWS+3}], s{S_T} offen")
    a("s_waitcnt vmcnt(0)")

def seg_src(a, dst, rowstride_shift, t1, t2):
    a(f"v_lshrrev_b32 v{t1}, 4, v0")
    a(f"v_bfe_u32 v{t2}, v0, 2, 2")
    a(f"v_xor_b32 v{t2}, v{t2}, v{t1}")
    a(f"v_lshlrev_b32 v{t2}, 6, v{t2}")
    a(f"v_lshl_add_u32 v{dst}, v{t1}, {rowstride_shift}, v{t2}")
    a(f"v_and_b32 v{t2}, 3, v0")
    a(f"v_lshl_add_u32 v{dst}, v{t2}, 4, v{dst}")

def tr_base(a, dst, r4, t1):
    a(f"v_bfe_u32 v{r4}, v0, 2, 2")
    a(f"v_lshrrev_b32 v{t1}, 5, v0")
    a(f"v_lshl_add_u32 v{t1}, v{t1}, 3, v{r4}")
    a(f"v_lshlrev_b32 v{dst}, 8, v{t1}")
    a(f"v_bfe_u32 v{t1}, v0, 4, 1")
    a(f"v_lshl_add_u32 v{dst}, v{t1}, 5, v{dst}")
    a(f"v_and_b32 v{t1}, 1, v0")
    a(f"v_lshl_add_u32 v{dst}, v{t1}, 4, v{dst}")
    a(f"v_bfe_u32 v{t1}, v0, 1, 1")
    a(f"v_lshl_add_u32 v{dst}, v{t1}, 3, v{dst}")

MF = "v_mfma_f32_32x32x16_bf16"
M16 = "v_mfma_f32_16x16x32_bf16"
srd = lambda r: f"s[{r}:{r+3}]"

def sched(lam, opt):
    order = list(range(16))
    mpos = []
    for c in range(lam, 16, 4):
        p = order.index(c)
        q = max(0, p - opt.lead)
        if c < 4 and opt.bal: q = 0
        order.pop(p); order.insert(q, c)
        if c >= 4: mpos.append(q)
    if opt.stag:
        order = [(4 * lam + i) & 15 for i in range(16)]
        mpos = [2 + lam, 6 + lam, 10 + lam]
    extras = {}
    for j, lst in enumerate(opt.ex.split("|")):
        for pc in filter(None, lst.split(",")):
            extras.setdefault(mpos[j] - 2, []).append(pc)
    for j, lst in enumerate(opt.mid.split("|")):
        for pc in filter(None, lst.split(",")):
            extras.setdefault(mpos[j], []).append(pc)
    for it in filter(None, opt.ab.split(";")):
        st, lst = it.split(":")
        for pc in lst.split(","): extras.setdefault(int(st), []).append(pc)
    return order, extras

class Rec:
    def __init__(self): self.L = []
    def __call__(self, s): self.L.append(s)

def gen(a, opt):
    end = "L_end"
    T = S_T; U = S_U
    stamp(a, 0, opt)
    a("s_cmp_ge_u32 s2, 256")
    a(f"s_cbranch_scc1 {end}")
    a("s_load_dwordx16 s[4:19], s[0:1], 0")
    a("s_load_dwordx4 s[20:23], s[0:1], 64")
    a("s_load_dwordx4 s[24:27], s[0:1], 80")
    a("s_load_dwordx2 s[28:29], s[0:1], 96")
    if opt.codepf:
        a(f"s_getpc_b64 s[{U}:{U+1}]")
        a.label("L_pc")
        a(f"s_lshr_b32 s{T}, s2, 3")
        a(f"v_lshrrev_b32 v240, 4, v0")
        a(f"v_lshl_add_u32 v240, s{T}, 4, v240")
        a(f"v_lshlrev_b32 v240, 7, v240")
        a(f"v_min_u32 v240, L_codeend-L_pc-4, v240")
        a(f"v_mov_b32 v241, s{U+1}")
        a(f"v_add_co_u32 v240, vcc, s{U}, v240")
        a("s_nop 1")
        a(f"v_addc_co_u32 v241, vcc, 0, v241, vcc")
        a.vmem(f"global_load_dword v241, v[240:241], off", "cpf")
    a("v_lshrrev_b32 v2, 6, v0")
    a("v_and_b32 v0, 63, v0")
    a(f"v_readfirstlane_b32 s{S_W}, v2")
    a(f"s_and_b32 s{T}, s2, 7")
    a(f"s_lshr_b32 s{T+1}, s2, 3")
    a(f"s_lshr_b32 s{S_BR}, s{T}, 2")
    a(f"s_and_b32 s{S_G}, s{T}, 3")
    a(f"s_and_b32 s{S_HL}, s{T+1}, 7")
    a(f"s_lshr_b32 s{S_R}, s{T+1}, 3")
    VKS, VVS = 2, 3
    VWO = [4, 5, 6, 7]
    VA = list(range(8, 16))
    ACC = 16
    FA = [80, 120]; FB = [112, 152]
    KF, VF = 160, 192
    QP, SS, PP = 80, 112, 128
    VWQ = [224, 225, 226, 227]; VX = [228, 229, 230, 231]; VB = [232, 233]
    TT = 240
    VWT = [244, 245, 246, 247]
    VKA, VL16, VTB, VR4, VNON, VT2 = 248, 249, 250, 251, 252, 253
    F1, F2 = 254, 255
    XR, KR, VR = 49152, 98304, 131072
    a(f"s_lshl_b32 s{S_B}, s{S_R}, 2")
    a(f"s_add_u32 s{S_B}, s{S_B}, s{S_W}")
    a(f"s_lshl_b32 s{T+4}, s{S_G}, 3")
    a(f"s_add_u32 s{T+4}, s{T+4}, s{S_HL}")
    a(f"s_lshl_b32 s{T}, s{S_W}, 17")
    a(f"s_lshl_b32 s{T+1}, s{T+4}, 8")
    a(f"s_add_u32 s{T}, s{T}, s{T+1}")
    a(f"s_lshl_b32 s{T+1}, s{S_B}, 16")
    a(f"s_lshr_b32 s{T+2}, s{S_HL}, 2")
    HB = opt.hbit
    S_WQB = S_QW[:2]; S_XB = S_QX[:2]
    a(f"s_lshl_b32 s{T+3}, s{T+2}, {19+HB}")
    a(f"s_add_u32 s{S_WQB[0]}, s{T}, s{T+3}")
    a(f"s_xor_b32 s{T+3}, s{T+3}, {1<<(19+HB)}")
    a(f"s_add_u32 s{S_WQB[1]}, s{T}, s{T+3}")
    a(f"s_lshl_b32 s{T+3}, s{T+2}, {7+HB}")
    a(f"s_add_u32 s{S_XB[0]}, s{T+1}, s{T+3}")
    a(f"s_xor_b32 s{T+3}, s{T+3}, {1<<(7+HB)}")
    a(f"s_add_u32 s{S_XB[1]}, s{T+1}, s{T+3}")
    a(f"s_add_u32 s{S_LAM}, s{S_R}, s{S_HL}")
    a(f"s_and_b32 s{S_LAM}, s{S_LAM}, 3")
    ords = [sched(l, opt)[0] for l in range(4)]
    for pos in range(2):
        assert all(not (o[pos] >> HB) & 1 for o in ords)
        pk = sum(ords[l][pos] << (4 * l) for l in range(4))
        a(f"s_lshl_b32 s{T+2}, s{S_LAM}, 2")
        a(f"s_lshr_b32 s{T+2}, {pk}, s{T+2}")
        a(f"s_and_b32 s{T+2}, s{T+2}, 15")
        a(f"s_lshl_b32 s{T+3}, s{T+2}, 19")
        a(f"s_add_u32 s{S_QW[2+pos]}, s{S_WQB[0]}, s{T+3}")
        a(f"s_lshl_b32 s{T+3}, s{T+2}, 7")
        a(f"s_add_u32 s{S_QX[2+pos]}, s{S_XB[0]}, s{T+3}")
    a(f"s_lshl_b32 s{S_MW}, s{S_W}, 12")
    a(f"s_mul_i32 s{S_MX}, s{S_W}, 12288")
    a(f"s_add_u32 s{S_MX}, s{S_MX}, {XR}")
    seg_src(a, VWQ[0], 13, 242, 243)
    a(f"v_add_u32 v{VWQ[1]}, {32768-1024}, v{VWQ[0]}")
    a(f"v_xor_b32 v242, 32, v{VWQ[0]}")
    for j in (2, 3): a(f"v_add_u32 v{VWQ[j]}, {j*(32768-1024)}, v242")
    a("v_lshrrev_b32 v242, 3, v0")
    a("v_lshrrev_b32 v243, 4, v0")
    a(f"v_and_b32 v{F1}, 7, v0")
    a(f"v_xor_b32 v{F1}, v{F1}, v243")
    a(f"v_lshlrev_b32 v{F1}, 4, v{F1}")
    a(f"v_lshl_add_u32 v{VX[0]}, v242, 11, v{F1}")
    a(f"v_xor_b32 v{F1}, 64, v{VX[0]}")
    a(f"v_add_u32 v{VX[1]}, {16384-1024}, v{F1}")
    a(f"v_add_u32 v{VX[2]}, {2*(16384-1024)}, v{VX[0]}")
    a(f"v_add_u32 v{VX[3]}, {3*(16384-1024)}, v{F1}")
    for s_, n in [(SX, 1 << 20), (SWQ, 8 << 20)]:
        a(f"s_mov_b32 s{s_+2}, {n}")
        a(f"s_mov_b32 s{s_+3}, 0x20000")
    a("s_waitcnt lgkmcnt(0)")
    stamp(a, 29, opt)
    a(f"s_cmp_eq_u32 s{S_BR}, 0")
    for i, s_ in [(0, SX), (3, SWQ), (1, SK), (2, SV), (4, SWO)]:
        a(f"s_cselect_b32 s{s_}, s{4+2*i}, s{14+2*i}")
        a(f"s_cselect_b32 s{s_+1}, s{5+2*i}, s{15+2*i}")
    cur = [None]
    def group(key, m0_ins, so_ins):
        n = 0
        if cur[0] != key:
            a(m0_ins); n += 1
            for x in so_ins: a(x); n += 1
            cur[0] = key
        return n
    def dma_x(pos, j, c=None):
        so = f"s_mov_b32 s{S_SO}, s{S_QX[2+pos]}" if c is None else f"s_add_u32 s{S_SO}, s{S_XB[(c>>HB)&1]}, {(c & ~(1<<HB))*128}"
        group(("x", pos), f"s_add_u32 m0, s{S_MX}, {(pos%3)*4096}", [so])
        a.vmem(f"buffer_load_dwordx4 v{VX[j]}, {srd(SX)}, s{S_SO} offen offset:{j*1024} lds", ("st", pos))
    def dma_wq(pos, j, c=None):
        so = f"s_mov_b32 s{S_SO}, s{S_QW[2+pos]}" if c is None else f"s_add_u32 s{S_SO}, s{S_WQB[(c>>HB)&1]}, {(c & ~(1<<HB))<<19}"
        group(("q", pos), f"s_add_u32 m0, s{S_MW}, {(pos%3)*16384}", [so])
        a.vmem(f"buffer_load_dwordx4 v{VWQ[j]}, {srd(SWQ)}, s{S_SO} offen offset:{j*1024} lds", ("st", pos))
    for j in range(4): dma_x(0, j)
    for j in range(4): dma_wq(0, j)
    stamp(a, 30, opt)
    a(f"v_bfe_u32 v{VR4}, v0, 2, 2")
    a("v_lshrrev_b32 v242, 4, v0")
    a(f"v_lshl_add_u32 v243, v242, 3, v{VR4}")
    a("v_lshlrev_b32 v243, 8, v243")
    a(f"v_and_b32 v{F1}, 1, v242")
    a(f"v_lshl_add_u32 v243, v{F1}, 5, v243")
    a(f"v_and_b32 v{F1}, 3, v0")
    a(f"v_lshl_add_u32 v243, v{F1}, 3, v243")
    a(f"v_lshl_add_u32 v{VA[0]}, v{VR4}, 6, v243")
    for i in range(1, 8): a(f"v_xor_b32 v{VA[i]}, {32*i}, v{VA[0]}")
    a(f"v_bfe_u32 v{F1}, v0, 1, 3")
    a(f"v_xor_b32 v242, v242, v{F1}")
    a("v_lshlrev_b32 v242, 4, v242")
    a("v_and_b32 v243, 15, v0")
    a("v_lshl_add_u32 v242, v243, 7, v242")
    a(f"v_add_u32 v{VB[0]}, s{S_MX}, v242")
    a("v_xor_b32 v242, 64, v242")
    a(f"v_add_u32 v{VB[1]}, s{S_MX}, v242")
    for s_, lo in [(SOUT, 24), (SDBG, 26), (SWS, 28)]:
        a(f"s_mov_b32 s{s_}, s{lo}")
        a(f"s_mov_b32 s{s_+1}, s{lo+1}")
    for s_, n in [(SK, 4 << 20), (SV, 4 << 20), (SWO, 8 << 20), (SWS, WS_USED), (SOUT, 2 << 20), (SDBG, 256)]:
        a(f"s_mov_b32 s{s_+2}, {n}")
        a(f"s_mov_b32 s{s_+3}, 0x20000")
    a(f"s_lshl_b32 s{S_KV}, s{S_B}, 5")
    a(f"s_add_u32 s{S_KV}, s{S_KV}, s{T+4}")
    a(f"s_lshl_b32 s{S_KV}, s{S_KV}, 13")
    a(f"s_lshl_b32 s{S_MK}, s{S_W}, 13")
    def early_touch():
        a(f"v_and_b32 v242, 3, v0")
        a(f"v_lshlrev_b32 v242, 21, v242")
        a("v_mov_b32 v243, 0")
        a(f"s_lshl_b32 s{T+2}, s{S_BR}, 2")
        a(f"s_add_u32 s{T+2}, s{T+2}, s{S_R}")
        a(f"s_lshl_b32 s{T+2}, s{T+2}, 21")
        a(f"s_lshl_b32 s{T+3}, s{S_G}, 21")
        a(f"s_lshl_b32 s{T+5}, s{S_R}, 19")
        for k_, (vo, sd, so) in enumerate([(242, SWQ, "0"), (243, SK, f"s{S_KV}"), (243, SV, f"s{S_KV}"), (243, SWO, f"s{T+3}"), (243, SWS, f"s{T+2}"), (243, SOUT, f"s{T+5}")]):
            if opt.etm >> k_ & 1:
                a.vmem(f"buffer_load_dword v{234+k_}, v{vo}, {srd(sd)}, {so} offen", "touch")
    if opt.et == 1: early_touch()
    for j in range(4): dma_x(1, j)
    for j in range(4): dma_wq(1, j)
    if opt.et == 2: early_touch()
    a(f"s_or_b32 s{T}, s2, s{S_W}")
    a(f"s_cmp_lg_u32 s{T}, 0")
    a("s_cbranch_scc1 L_nononce")
    a(f"s_memrealtime s[{T+2}:{T+3}]")
    a("s_waitcnt lgkmcnt(0)")
    a(f"s_or_b32 s{T+2}, s{T+2}, 1")
    a(f"s_mul_i32 s{T+2}, s{T+2}, 0x9e3779b1")
    a(f"v_mov_b32 v242, s{T+2}")
    a("v_mov_b32 v243, 0")
    a(f"buffer_store_dword v242, v243, {srd(SDBG)}, 0 offen sc1")
    a("s_waitcnt vmcnt(0)")
    a.label("L_nononce")
    stamp(a, 31, opt)
    f = Rec()
    f(f"v_lshrrev_b32 v{F1}, 4, v0")
    f(f"v_and_b32 v{F2}, 15, v0")
    f(f"v_xor_b32 v{F2}, v{F2}, v{F1}")
    f(f"v_lshlrev_b32 v{F2}, 4, v{F2}")
    f(f"v_lshl_add_u32 v{VKS}, v{F1}, 8, v{F2}")
    seg_src(f, VVS, 8, F1, F2)
    seg_src(f, VWO[0], 11, F1, F2)
    for j in range(1, 4): f(f"v_add_u32 v{VWO[j]}, {(4*(j>>1) + 16*(j&1))*2048 - j*1024}, v{VWO[0]}")
    tr_base(f, VTB, VR4, F1)
    for i in range(4):
        f(f"s_add_u32 s{U+2}, s{S_W}, {i}")
        f(f"s_and_b32 s{U+2}, s{U+2}, 3")
        f(f"v_xor_b32 v{F1}, s{U+2}, v{VR4}")
        f(f"v_lshl_add_u32 v{VWT[i]}, v{F1}, 6, v{VTB}")
    f(f"v_and_b32 v{F1}, 3, v0")
    f(f"v_lshl_add_u32 v{F1}, v{VR4}, 3, v{F1}")
    f(f"v_and_b32 v{F2}, 15, v{F1}")
    f(f"v_lshrrev_b32 v{VKA}, 5, v0")
    f(f"v_xor_b32 v{F2}, v{F2}, v{VKA}")
    f(f"v_lshlrev_b32 v{F2}, 4, v{F2}")
    f(f"v_lshl_add_u32 v{F1}, v{F1}, 8, v{F2}")
    f(f"v_bfe_u32 v{F2}, v0, 4, 1")
    f(f"v_lshl_add_u32 v{F1}, v{F2}, 3, v{F1}")
    f(f"s_add_u32 s{U+2}, s{S_MK}, {KR}")
    f(f"v_add_u32 v{VKA}, s{U+2}, v{F1}")
    f(f"v_lshlrev_b32 v{VL16}, 4, v0")
    f(f"v_mov_b32 v{TT+1}, 0")
    f(f"s_lshl_b32 s{U}, s{S_G}, 2")
    f(f"s_add_u32 s{U}, s{U}, s{S_W}")
    f(f"s_lshl_b32 s{U+1}, s{U}, 19")
    f(f"s_add_u32 s{S_C}, s{S_HL}, {opt.coff}")
    f(f"s_and_b32 s{S_C}, s{S_C}, 7")
    f(f"s_lshl_b32 s{U+2}, s{S_C}, 8")
    f(f"s_add_u32 s{U+1}, s{U+1}, s{U+2}")
    for jg in range(4):
        f(f"s_add_u32 s{U+2}, s{S_LAM}, {jg}")
        f(f"s_and_b32 s{U+2}, s{U+2}, 3")
        f(f"s_lshl_b32 s{U+3}, s{U+2}, 17")
        f(f"s_add_u32 s{S_WOG[jg]}, s{U+1}, s{U+3}")
        f(f"s_lshl_b32 s{S_OG[jg]}, s{U+2}, 12")
        f(f"s_add_u32 s{S_Q[jg]}, s{S_G}, {jg+1}")
        f(f"s_and_b32 s{S_Q[jg]}, s{S_Q[jg]}, 3")
    f(f"s_lshl_b32 s{U+1}, s{S_BR}, 2")
    f(f"s_add_u32 s{U+1}, s{U+1}, s{S_R}")
    f(f"s_lshl_b32 s{U+1}, s{U+1}, 21")
    f(f"s_lshl_b32 s{U+2}, s{U}, 14")
    f(f"s_add_u32 s{S_OB}, s{U+1}, s{U+2}")
    f(f"s_and_b32 s{U+2}, s{S_KV}, 0xfffff")
    f(f"s_add_u32 s{S_OW[0]}, s{U+1}, s{U+2}")
    f(f"s_add_u32 s{S_OW[1]}, s{S_OW[0]}, 4096")
    f(f"s_add_u32 s{U+1}, s{U+1}, {1<<20}")
    f(f"s_mul_i32 s{U+2}, s{S_G}, {(1<<15) + (1<<13)}")
    f(f"s_add_u32 s{U+2}, s{U+2}, s{U+1}")
    f(f"s_lshl_b32 s{U+3}, s{S_W}, 10")
    f(f"s_add_u32 s{S_FOR}, s{U+2}, s{U+3}")
    f(f"s_lshl_b32 s{U+3}, s{S_HL}, 2")
    f(f"s_add_u32 s{U+3}, s{U+3}, s{S_W}")
    f(f"s_lshl_b32 s{U+3}, s{U+3}, 7")
    f(f"s_add_u32 s{S_FOW}, s{U+2}, s{U+3}")
    f(f"s_lshl_b32 s{U+2}, s{S_C}, 17")
    f(f"s_add_u32 s{U+2}, s{U+2}, s{U+1}")
    f(f"s_lshl_b32 s{U+3}, s{U}, 11")
    f(f"s_add_u32 s{S_PB}, s{U+2}, s{U+3}")
    f(f"s_lshl_b32 s{U+3}, s{S_G}, 15")
    f(f"s_add_u32 s{S_PR}, s{U+2}, s{U+3}")
    f(f"s_lshl_b32 s{U+3}, s{S_W}, 11")
    f(f"s_add_u32 s{S_PR}, s{S_PR}, s{U+3}")
    f(f"s_lshl_b32 s{U+2}, s{S_R}, 2")
    f(f"s_add_u32 s{U+2}, s{U+2}, s{S_G}")
    f(f"s_lshl_b32 s{U+2}, s{U+2}, 17")
    f(f"s_lshl_b32 s{U+3}, s{S_BR}, 11")
    f(f"s_add_u32 s{U+2}, s{U+2}, s{U+3}")
    f(f"s_lshl_b32 s{U+3}, s{S_C}, 8")
    f(f"s_add_u32 s{U+2}, s{U+2}, s{U+3}")
    f(f"s_lshl_b32 s{U+3}, s{S_W}, 6")
    f(f"s_add_u32 s{S_OUTB}, s{U+2}, s{U+3}")
    FILL = f.L
    for _ in range(opt.fill0): a(FILL.pop(0))

    SLOT = {"w0": (S_MW, 0), "w1": (S_MW, 16384), "w2": (S_MW, 32768),
            "x0": (S_MX, 0), "x1": (S_MX, 4096), "x2": (S_MX, 8192),
            "k0": (S_MK, KR), "k1": (S_MK, KR + 4096), "v0": (S_MK, VR), "v1": (S_MK, VR + 4096)}
    def dma_wo(pos, j, slot):
        sb, off = SLOT[slot]
        n = group(("wo", pos), f"s_add_u32 m0, s{sb}, {off}", [f"s_add_u32 s{S_SO}, s{S_WOG[pos>>2]}, {(32*((pos&3)>>1) + 8*(pos&1))*2048}"])
        a.vmem(f"buffer_load_dwordx4 v{VWO[j]}, {srd(SWO)}, s{S_SO} offen offset:{j*1024} lds", ("wo", pos))
        a.ever.add(("woj", pos, j))
        return n + 1
    def tr_wo_items(pos, slot):
        sb, off = SLOT[slot]
        it = []
        for s4 in range(4):
            def g(s4=s4):
                if s4 == 0:
                    assert all(("woj", pos, j) in a.ever for j in range(4)), ("piece not fully issued", pos)
                    a.wait_vm(("wo", pos))
                    a(f"s_add_u32 s{T+1}, s{sb}, {off}")
                a(f"v_add_u32 v{VT2}, s{T+1}, v{VWT[s4]}")
                for h2 in range(2):
                    a.lds(f"ds_read_b64_tr_b16 {ar(16*pos+4*s4+2*h2,2)}, v{VT2} offset:{4*h2*256}", ("wo", pos))
            it.append(g)
        return it
    def dma_kv(pc, j):
        half = int(pc[1])
        group(pc, f"s_add_u32 m0, s{S_MK}, {(KR if pc[0] == 'K' else VR) + half*4096}", [f"s_add_u32 s{S_SO}, s{S_KV}, {half*4096}"])
        if pc[0] == "K":
            a(f"v_xor_b32 v{TT}, {64*j}, v{VKS}")
            a.vmem(f"buffer_load_dwordx4 v{TT}, {srd(SK)}, s{S_SO} offen offset:{j*1024} {opt.nt_kv} lds", "k")
        else:
            if j == 2: a(f"v_xor_b32 v{TT}, 32, v{VVS}")
            a.vmem(f"buffer_load_dwordx4 v{TT if j >= 2 else VVS}, {srd(SV)}, s{S_SO} offen offset:{j*1024} {opt.nt_kv} lds", "v")
    def reads(n):
        s, t = n >> 1, n & 1
        slot = s % 3
        fs = n & 1
        r = [(f"ds_read_b128 {vr(FB[fs]+4*nt,4)}, v{VB[t]} offset:{slot*4096 + nt*2048}", ("b", n)) for nt in range(2)]
        for i in range(8):
            for h2 in range(2):
                r.append((f"ds_read_b64_tr_b16 {vr(FA[fs]+4*i+2*h2,2)}, v{VA[i]} offset:{slot*16384 + (32*t+4*h2)*256}", ("a", n, i)))
        return r
    def mfma(n, k):
        fs = n & 1
        i, nt = k >> 1, k & 1
        d = vr(ACC + 8*i + 4*nt, 4)
        a.wait_lg([("b", n), ("a", n, i)])
        a(f"{M16} {d}, {vr(FA[fs]+4*i,4)}, {vr(FB[fs]+4*nt,4)}, {'0' if n == 0 else d}")

    allex = [p for l in sched(0, opt)[1].values() for p in l]
    w_early = sorted(int(p[1]) for p in allex if p[0] == "W")
    w_late = [p for p in range(4) if p not in w_early]
    hit_first = [4*g + k for k in w_early for g in (1, 2, 3)]
    hit_last = [4*g + k for k in w_late for g in (1, 2, 3)]
    rest = w_late + hit_first + hit_last
    if opt.rest: rest = [int(x) for x in opt.rest.split(",")]
    assert sorted(rest + w_early) == list(range(16))
    late_slots = ["w1", "x1", "w2", "x2", "k0", "k1", "v0", "v1", "x0", "w0"]
    avail = {"w1": 14, "x1": 14, "w2": 15, "x2": 15, "k0": 15, "k1": 15, "v0": 15, "v1": 15, "x0": 16, "w0": 17}
    if max(max(sched(l, opt)[1]) for l in range(4)) > 11:
        for k_ in ("k0", "k1", "v0", "v1"): avail[k_] = 16
    lateq = [(rest[i], j, late_slots[i]) for i in range(min(len(rest), len(late_slots))) for j in range(4)]
    def k_items():
        it = []
        for kt in range(2):
            for u in range(4):
                for h in range(2):
                    def g(kt=kt, u=u, h=h):
                        if (kt, u, h) == (0, 0, 0): a.wait_vm("k")
                        a(f"v_xor_b32 v{VT2}, {((4*u+2*h) ^ (4*kt)) << 4}, v{VKA}")
                        a.lds(f"ds_read_b64 {vr(KF+16*kt+4*u+2*h,2)}, v{VT2} offset:{1024*kt}", "kf")
                    it.append(g)
        return it
    def v_items():
        it = []
        for i in range(8):
            def g(i=i):
                if i == 0:
                    a.wait_vm("v")
                    a(f"s_add_u32 s{T+1}, s{S_MK}, {VR}")
                a(f"v_add_u32 v{VT2}, s{T+1}, v{VA[i]}")
                for h2 in range(2):
                    a.lds(f"ds_read_b64_tr_b16 {vr(VF+4*i+2*h2,2)}, v{VT2} offset:{4*h2*256}", "vf")
            it.append(g)
        return it
    uniform = all(sched(l, opt) == sched(0, opt) for l in range(4))
    for lam in range(1, 4):
        a(f"s_cmp_eq_u32 s{S_LAM}, {lam}")
        a(f"s_cbranch_scc1 L_p1_{lam}")
    vm0, lg0, cur0, ever0 = list(a.vm), list(a.lg), cur[0], set(a.ever)
    end_state = None
    a.lg_low = 7
    for lam in range(4):
        a.vm, a.lg, cur[0], a.ever = list(vm0), list(lg0), cur0, set(ever0)
        a.label(f"L_p1_{lam}")
        order, extras = sched(lam, opt)
        kv_issue = {pc.lower(): st for st, l in extras.items() for pc in l if pc[0] in "KV"}
        assert len(kv_issue) == 4 and max(extras) <= 12
        kc = max(kv_issue["k0"], kv_issue["k1"]) + 3
        vc = max(kv_issue["v0"], kv_issue["v1"]) + 3
        occ = {"k0": [(kv_issue["k0"], kc)], "k1": [(kv_issue["k1"], kc)], "v0": [(kv_issue["v0"], vc)], "v1": [(kv_issue["v1"], vc)]}
        consume = {kc: ["K"]}
        consume.setdefault(vc, []).append("V")
        wslot = {}
        for st in sorted(extras):
            for pc in extras[st]:
                if pc[0] == "W":
                    cs = st + 3
                    cand = [k for k in ("k0", "k1", "v0", "v1") if all(cs < b or st > e for b, e in occ[k])]
                    assert cand, (pc, st, occ)
                    wslot[pc] = cand[0]; occ[cand[0]].append((st, cs))
                    consume.setdefault(cs, []).append(pc)
        fill = list(FILL)
        lq = list(lateq)
        for s in range(16):
            a.c(f"---- class {lam} stage {s} chunk {order[s]}")
            if a.lg: a.wait_lg_all()
            a.wait_vm(("st", s))
            a("s_barrier")
            stamp(a, 1 + s, opt)
            dm = []
            if s + 2 < 16:
                c = order[s + 2]
                for j in range(4): dm.append(lambda j=j, c=c: dma_x(s + 2, j, c))
                for j in range(4): dm.append(lambda j=j, c=c: dma_wq(s + 2, j, c))
            else:
                for k in range(opt.n14 if s == 14 else opt.n15):
                    pos, j, sl = lq.pop(0)
                    assert avail[sl] <= s
                    dm.append(lambda pos=pos, j=j, sl=sl: dma_wo(pos, j, sl))
            for pc in extras.get(s, []):
                if pc[0] == "W": assert not fill
                for j in range(4):
                    if pc[0] == "W": dm.append(lambda pc=pc, j=j: dma_wo(int(pc[1]), j, wslot[pc]))
                    else: dm.append(lambda pc=pc, j=j: dma_kv(pc, j))
            if s == opt.non_stage:
                dm.append(lambda: a.vmem(f"buffer_load_dword v{VNON}, v{TT+1}, {srd(SDBG)}, 0 offen sc1", "nonce"))
            if s == opt.non_stage and opt.touch:
                for sd, so in [(SWS, S_FOW), (SOUT, S_OUTB)][:opt.touch]:
                    dm.append(lambda sd=sd, so=so: a.vmem(f"buffer_load_dword v{TT+2}, v{TT+1}, {srd(sd)}, s{so} offen", "touch"))
            if s == opt.pt_stage and opt.ptouch:
                def pt():
                    a(f"v_lshrrev_b32 v{F1}, 4, v0")
                    a(f"v_sub_u32 v{F2}, s{S_G}, v{F1}")
                    a(f"v_add_u32 v{F2}, 3, v{F2}")
                    a(f"v_and_b32 v{F2}, 3, v{F2}")
                    a(f"v_lshlrev_b32 v{F2}, 15, v{F2}")
                    a(f"v_cmp_le_u32 vcc, {opt.ptouch}, v{F1}")
                    a(f"v_and_b32 v{F1}, 15, v0")
                    a(f"v_lshl_add_u32 v{F2}, v{F1}, 7, v{F2}")
                    a(f"v_mov_b32 v{F1}, 0x4000000")
                    a(f"v_cndmask_b32 v{F2}, v{F2}, v{F1}, vcc")
                    a.vmem(f"buffer_load_dword v235, v{F2}, {srd(SWS)}, s{S_PB} offen", "touch")
                dm.append(pt)
            if s == opt.otouch:
                def ot():
                    a(f"v_lshlrev_b32 v{F1}, 7, v0")
                    a.vmem(f"buffer_load_dword v234, v{F1}, {srd(SWS)}, s{S_OW[0]} offen", "touch")
                dm.append(ot)
            lw = []
            for pc in consume.get(s, []):
                assert not fill or len(FILL) - len(fill) > 60
                if pc == "K": lw += k_items()
                elif pc == "V": lw += v_items()
                else: lw += tr_wo_items(int(pc[1]), wslot[pc])
            nd, nl = len(dm), len(lw)
            gap = 0
            for t in range(2):
                n = 2 * s + t
                rd = reads(n)
                for k in range(16):
                    if n > 0: mfma(n - 1, k)
                    span = 16 if t == 0 else opt.rspan
                    while rd and 18 - len(rd) < ((k + 1) * 18 + span - 1) // span: a.lds(*rd.pop(0))
                    gap += 1
                    want = (gap * nd + 29) // 32
                    did = False
                    while dm and nd - len(dm) < want: dm.pop(0)(); did = True
                    while lw and nl - len(lw) < (gap * nl) // 26: lw.pop(0)(); did = True
                    if fill and not did:
                        for _ in range(3 if n == 0 else 1):
                            if fill: a(fill.pop(0))
            assert not dm and not lw
        assert not fill
        st_ = (list(a.vm), list(a.lg), cur[0])
        if end_state is None: end_state = st_
        assert end_state == st_, (end_state, st_)
        if lam < 3: a("s_branch L_common")
    a.label("L_common")
    a.lg_low = 12
    natt = [opt.natt]
    def ad(lim=16):
        if natt[0] > 0 and lq and avail[lq[0][2]] <= lim:
            natt[0] -= 1
            return dma_wo(*lq.pop(0))
        return 0
    def pad(n):
        while n > 0:
            k = min(n, 8); a(f"s_nop {k-1}"); n -= k
    assert "nonce" not in a.vm
    def cvt4(dst, u, nt):
        for hh in range(2):
            t = ACC + 8*(2*u+hh) + 4*nt
            a(f"v_cvt_pk_bf16_f32 v{dst+2*hh}, v{t}, v{t+1}")
            a(f"v_cvt_pk_bf16_f32 v{dst+2*hh+1}, v{t+2}, v{t+3}")
    qp = lambda u, nt: QP + 8*u + 4*nt
    CS = 128 ** -0.5 * 1.4426950408889634
    for k in range(16):
        mfma(31, k)
        if k == 0: a(f"v_readfirstlane_b32 s{S_NONCE}, v{VNON}")
        if k == 1: a(f"s_mov_b32 s{T+2}, {f32(CS)}")
        if k in (2, 6): ad(15)
        if k == 11: cvt4(qp(0,0), 0, 0)
        if k == 13: cvt4(qp(0,1), 0, 1)
        if k == 15: cvt4(qp(1,0), 1, 0)
    if a.lg: a.wait_lg_all()
    stamp(a, 17, opt)
    a.c("---- attention")
    cvt4(qp(1,1), 1, 1)
    ss = lambda kt, nt: SS + 8*nt + 4*kt
    def smf(u, kt, nt):
        d = vr(ss(kt, nt), 4)
        a(f"{M16} {d}, {vr(KF+16*kt+4*u,4)}, {vr(qp(u,nt),4)}, {'0' if u == 0 else d}")
    def cvt2(dst, u, nt, hh):
        t = ACC + 8*(2*u+hh) + 4*nt
        a(f"v_cvt_pk_bf16_f32 v{dst+2*hh}, v{t}, v{t+1}")
        a(f"v_cvt_pk_bf16_f32 v{dst+2*hh+1}, v{t+2}, v{t+3}")
    cv = [(u, nt, hh) for u in (2, 3) for nt in range(2) for hh in range(2)]
    for u in range(4):
        for nt in range(2):
            for kt in range(2):
                smf(u, kt, nt)
                if cv:
                    uu, n2, hh = cv.pop(0); cvt2(qp(uu, n2), uu, n2, hh)
                elif (u, nt, kt) in ((2, 0, 1), (3, 0, 1)): ad()
    pad(8 - 2 - ad())
    for nt in range(2):
        b = SS + 8*nt
        a(f"v_max3_f32 v{240+nt}, v{b}, v{b+1}, v{b+2}")
        a(f"v_max3_f32 v{242+nt}, v{b+3}, v{b+4}, v{b+5}")
        a(f"v_max3_f32 v{240+nt}, v{240+nt}, v{b+6}, v{b+7}")
        a(f"v_max_f32 v{240+nt}, v{240+nt}, v{242+nt}")
    def xred(op):
        pad(2 - ad())
        a("v_permlane32_swap_b32 v240, v241")
        a("s_nop 0")
        a(f"{op} v240, v240, v241")
        a("v_mov_b32 v241, v240")
        a("s_nop 1")
        a("v_permlane16_swap_b32 v240, v241")
        a("s_nop 0")
        a(f"{op} v240, v240, v241")
    xred("v_max_f32")
    a(f"v_mul_f32 v240, s{T+2}, v240")
    a("v_mov_b32 v241, v240")
    a("s_nop 1")
    a("v_permlane32_swap_b32 v240, v241")
    a("s_nop 0")
    for k in range(16):
        a(f"v_fma_f32 v{SS+k}, v{SS+k}, s{T+2}, -v{240+(k>>3)}")
    ad()
    for k in range(16):
        a(f"v_exp_f32 v{SS+k}, v{SS+k}")
        if k == 7: ad()
    for k in range(1, 8):
        for nt in range(2):
            b = SS + 8*nt
            a(f"v_add_f32 v{240+nt}, v{b if k == 1 else 240+nt}, v{b+k}")
    xred("v_add_f32")
    a("v_rcp_f32 v240, v240")
    a("s_nop 0")
    a("v_mov_b32 v241, v240")
    a("s_nop 1")
    a("v_permlane32_swap_b32 v240, v241")
    a("s_nop 0")
    for nt in range(2):
        for k in range(8):
            a(f"v_mul_f32 v{SS+8*nt+k}, v{SS+8*nt+k}, v{240+nt}")
        for p in range(4):
            a(f"v_cvt_pk_bf16_f32 v{PP+4*nt+p}, v{SS+8*nt+2*p}, v{SS+8*nt+2*p+1}")
    def pv(i, nt):
        a(f"{M16} {vr(ACC+8*i+4*nt,4)}, {vr(VF+4*i,4)}, {vr(PP+4*nt,4)}, 0")
    def ost(u, nt):
        blk = 2*u + nt
        a.vmem(f"buffer_store_dwordx4 {vr(qp(u,nt),4)}, v{VL16}, {srd(SWS)}, s{S_OW[blk>>2]} offen offset:{(blk&3)*1024} sc1", "o")
    seq = [(i, nt) for nt in range(2) for i in range(8)]
    ev = [(u, nt, hh) for nt in range(2) for u in range(4) for hh in range(2)]
    for k, (i, nt) in enumerate(seq):
        pv(i, nt)
        if k in (1, 4): ad()
        if k >= 8:
            u, n2, hh = ev.pop(0); cvt2(qp(u, n2), u, n2, hh)
            if hh: ost(u, n2)
    while ev:
        u, n2, hh = ev.pop(0); cvt2(qp(u, n2), u, n2, hh)
        if hh: ost(u, n2)
    stamp(a, 18, opt)
    a("s_barrier")
    VL = 2; VRR = 3; VRW = [8, 9, 10]; VOUT = 11; VZ = 12; VNV = 13; VFL = 14; VFA = 15; VLO = 15
    nfirst = min(len(rest), len(late_slots))
    slot_of = {rest[i]: late_slots[i] for i in range(nfirst)}
    for _ in range(opt.pre_flag):
        if lq: dma_wo(*lq.pop(0))
    a(f"s_cmp_lg_u32 s{S_NONCE}, 0")
    a("s_cbranch_scc1 L_havenonce")
    a(f"s_mov_b32 s{S_CNT}, 0")
    a("v_mov_b32 v240, 0")
    a.label("L_nonce_spin")
    a(f"buffer_load_dword v{VNON}, v240, {srd(SDBG)}, 0 offen sc1")
    a("s_waitcnt vmcnt(0)")
    a(f"v_readfirstlane_b32 s{S_NONCE}, v{VNON}")
    a(f"s_add_u32 s{S_CNT}, s{S_CNT}, 1")
    a(f"s_cmp_gt_u32 s{S_CNT}, {SPIN_MAX}")
    a("s_cbranch_scc1 L_havenonce")
    a(f"s_cmp_eq_u32 s{S_NONCE}, 0")
    a("s_cbranch_scc1 L_nonce_spin")
    a.label("L_havenonce")
    a(f"v_mov_b32 v{VL}, v{VL16}")
    for sl in range(1, 4):
        a(f"s_add_u32 s{T}, s{S_W}, {sl}")
        a(f"s_and_b32 s{T}, s{T}, 3")
        a(f"s_mul_i32 s{T}, s{T}, 12288")
        a(f"s_add_u32 s{T}, s{T}, {(sl-1)*4096}")
        a(f"v_add_u32 v{VRW[sl-1]}, s{T}, v{VL16}")
    a(f"s_mul_i32 s{T}, s{S_W}, 12288")
    a(f"v_add_u32 v{VRR}, s{T}, v{VL16}")
    if opt.fl4:
        a(f"v_lshrrev_b32 v{VZ}, 3, v0")
        a(f"v_lshlrev_b32 v{VZ}, 25, v{VZ}")
        a(f"v_lshl_add_u32 v{VZ}, v0, 4, v{VZ}")
        for e in range(4): a(f"v_mov_b32 v{236+e}, s{S_NONCE}")
    else:
        a(f"v_lshrrev_b32 v{VZ}, 5, v0")
        a(f"v_lshlrev_b32 v{VZ}, 25, v{VZ}")
        a(f"v_lshl_add_u32 v{VZ}, v0, 2, v{VZ}")
    a(f"v_mov_b32 v{VNV}, s{S_NONCE}")
    a(f"v_and_b32 v{VFA}, 7, v0")
    a(f"v_lshlrev_b32 v{VFA}, 7, v{VFA}")
    a(f"v_and_b32 v{VOUT}, 31, v0")
    a(f"v_lshlrev_b32 v{VOUT}, 12, v{VOUT}")
    a(f"v_lshrrev_b32 v240, 5, v0")
    a(f"v_lshl_add_u32 v{VOUT}, v240, 4, v{VOUT}")
    a(f"v_and_b32 v241, 15, v0")
    a(f"v_lshlrev_b32 v241, 4, v241")
    a(f"v_lshl_add_u32 v241, v240, 8, v241")
    a(f"v_bfe_u32 v240, v0, 4, 1")
    a(f"v_lshl_add_u32 v241, v240, 10, v241")
    ri = nfirst
    resident = list(w_early)
    free_slots = []
    def issued_fully(pos): return pos in slot_of and not any(q[0] == pos for q in lq)
    def assign_more():
        nonlocal ri
        while ri < len(rest) and free_slots:
            sl = free_slots.pop(0); slot_of[rest[ri]] = sl
            for j in range(4): lq.append((rest[ri], j, sl))
            ri += 1
    def tr_piece(pos):
        for g in tr_wo_items(pos, slot_of[pos]): g()
        resident.append(pos); free_slots.append(slot_of[pos])
    todo = list(rest)
    while todo and issued_fully(todo[0]) and a._cnt(a.vm, ("wo", todo[0])) < a.vm.index("o"):
        tr_piece(todo.pop(0))
    if a.lg: a.wait_lg_all()
    assign_more()
    a.wait_vm("o")
    if opt.fl4: a.vmem(f"buffer_store_dwordx4 v[236:239], v{VZ}, {srd(SWS)}, s{S_FOW} offen sc1", "flag")
    else: a.vmem(f"buffer_store_dword v{VNV}, v{VZ}, {srd(SWS)}, s{S_FOW} offen sc1", "flag")
    stamp(a, 19, opt)
    if opt.diag:
        a.wait_vm_all(); stamp(a, 32, opt)
        a(f"s_mov_b32 s{S_CNT}, 0")
        a.label("L_dp")
        a(f"buffer_load_dword v{VFL}, v{VFA}, {srd(SWS)}, s{S_FOR} offen sc1")
        a("s_waitcnt vmcnt(0)")
        a(f"v_cmp_ne_u32 vcc, s{S_NONCE}, v{VFL}")
        a(f"s_add_u32 s{S_CNT}, s{S_CNT}, 1")
        a(f"s_cmp_gt_u32 s{S_CNT}, {SPIN_MAX}")
        a(f"s_cbranch_scc1 L_dpd")
        a("s_nop 1")
        a(f"s_cbranch_vccnz L_dp")
        a.label("L_dpd")
        stamp(a, 33, opt)
        for k in range(5):
            for _ in range(8):
                if lq: dma_wo(*lq.pop(0))
            a("s_waitcnt vmcnt(0)")
            stamp(a, 34 + k, opt)
    for _ in range(opt.pre_poll):
        if lq: dma_wo(*lq.pop(0))
    a.vmem(f"buffer_load_dword v{VFL}, v{VFA}, {srd(SWS)}, s{S_FOR} offen sc1", "poll")
    for _ in range(opt.post_poll):
        if lq: dma_wo(*lq.pop(0))
    while todo and issued_fully(todo[0]) and a._cnt(a.vm, ("wo", todo[0])) < a.vm.index("poll"):
        tr_piece(todo.pop(0))
    if a.lg: a.wait_lg_all()
    assign_more()
    S_OS = S_QW
    def obase(n):
        a(f"s_lshl_b32 s{T+2}, s{S_Q[n]}, 18")
        a(f"s_add_u32 s{T+2}, s{T+2}, s{S_OB}")
        for jg in range(4): a(f"s_add_u32 s{S_OS[jg]}, s{T+2}, s{S_OG[jg]}")
    obase(0)
    stamp(a, 20, opt)
    a(f"s_mov_b32 s{S_CNT}, 0")
    a.wait_vm("poll")
    a.label("L_pollo")
    a(f"v_cmp_ne_u32 vcc, s{S_NONCE}, v{VFL}")
    a(f"s_add_u32 s{S_CNT}, s{S_CNT}, 1")
    a(f"s_cmp_gt_u32 s{S_CNT}, {SPIN_MAX}")
    a(f"s_cbranch_scc1 L_pollo_done")
    a("s_nop 1")
    a(f"s_cbranch_vccz L_pollo_done")
    a(f"buffer_load_dword v{VFL}, v{VFA}, {srd(SWS)}, s{S_FOR} offen sc1")
    a("s_waitcnt vmcnt(0)")
    a("s_branch L_pollo")
    a.label("L_pollo_done")
    if opt.stamps: a(f"v_writelane_b32 v{VSTAMP}, s{S_CNT}, 62")
    stamp(a, 21, opt)
    assert ri == len(rest)
    AC = 16; TMP = 80; OF = [128, 192]
    def load_o(n, f):
        a.vmem(f"buffer_load_dwordx4 {vr(OF[n&1]+4*f,4)}, v{VLO}, {srd(SWS)}, s{S_OS[f>>2]} offen offset:{((f&3)>>1)*2048 + (f&1)*512} sc1", ("o", n, f))
    a(f"v_mov_b32 v{VLO}, v241")
    korder0 = resident + todo
    assert sorted(korder0) == list(range(16))
    INIT = opt.init_o
    for f in korder0[:INIT]: load_o(0, f)
    while todo and issued_fully(todo[0]): tr_piece(todo.pop(0))
    NG = opt.fmt
    assert NG == 2
    PT = OF[0]; PK = TMP + 16; PU = PT + 40; PS = PT + 44; S_HSEL = S_HX
    S_SEL = [S_QX[0], S_QX[1]]; S_ZSEL = S_QX[2]; S_M3 = S_QX[3]; S_MSK = S_HW
    VBAD, VPL = 12, 14
    VTG = [4, 5, 6, 7]
    dslot = [0, 1, 2, 4, 5, 6, 8, 9] if NG == 3 else list(range(8))
    PL = 98304
    def wr(n, sl, j):
        a.lds(f"ds_write_b128 v{VRW[sl-1]}, {vr(AC+16*sl+4*j,4)} offset:{(n&1)*49152 + j*1024}", "rw")
    def rd(n, k):
        a.lds(f"ds_read_b128 {vr(TMP+4*k,4)}, v{VRR} offset:{(n&1)*49152 + k*1024}", ("rr", k))
    def presum(src, j):
        a.wait_lg([("rr", j), ("rr", 4*src+j)])
        for e in range(4): a(f"v_add_f32 v{TMP+4*j+e}, v{TMP+4*j+e}, v{TMP+16*src+4*j+e}")
    def fin(j):
        for e in range(4): a(f"v_add_f32 v{TMP+4*j+e}, v{TMP+4*j+e}, v{AC+4*j+e}")
    def pack_items(gr):
        if NG == 3:
            def g():
                for p in range(3*gr, min(3*gr+3, 8)):
                    a(f"v_cvt_pk_bf16_f32 v{PK+dslot[p]}, v{TMP+2*p}, v{TMP+2*p+1}")
                a(f"v_mov_b32 v{PK+4*gr+3}, s{S_NONCE}")
                if gr == 2: a(f"v_mov_b32 v{PK+10}, s{S_NONCE}")
            return [g]
        def g1():
            for p in range(4*gr, 4*gr+4): a(f"v_perm_b32 v{PK+p}, v{TMP+2*p+1}, v{TMP+2*p}, s{S_HSEL}")
        def g2():
            for p in range(4*gr, 4*gr+4): a(f"v_bfi_b32 v{PK+p}, s{S_MSK}, v{VTG[p&3]}, v{PK+p}")
        return [g1, g2]
    def pst(n, j):
        if j == 0:
            a(f"s_lshl_b32 s{T+3}, s{S_Q[n]}, 15")
            a(f"s_add_u32 s{T+3}, s{T+3}, s{S_PB}")
        a.vmem(f"buffer_store_dwordx4 {vr(PK+4*j,4)}, v{VL}, {srd(SWS)}, s{T+3} offen offset:{j*1024} sc1", ("p", n))
    def pld(k, j, track=True):
        if j == 0:
            a(f"s_lshl_b32 s{T+4}, s{S_Q[k]}, 13")
            a(f"s_add_u32 s{T+4}, s{T+4}, s{S_PR}")
        ins = f"buffer_load_dwordx4 {vr(PT+12*k+4*j,4)}, v{VL}, {srd(SWS)}, s{T+4} offen offset:{j*1024} sc1"
        if track: a.vmem(ins, ("pp", k))
        else: a(ins)
    def chk_items(k):
        b = PT + 12*k
        if NG == 3:
            def g():
                a(f"v_xor_b32 v{VBAD}, s{S_NONCE}, v{b+3}")
                a(f"v_bitop3_b32 v{VBAD}, v{VBAD}, v{b+7}, s{S_NONCE} bitop3:0xf6")
                a(f"v_bitop3_b32 v{VBAD}, v{VBAD}, v{b+11}, s{S_NONCE} bitop3:0xf6")
                a(f"v_cmp_ne_u32 vcc, 0, v{VBAD}")
            return [g]
        def g1():
            a(f"v_xor_b32 v{VBAD}, v{VTG[0]}, v{b}")
            for p in range(1, 5): a(f"v_bitop3_b32 v{VBAD}, v{VBAD}, v{b+p}, v{VTG[p&3]} bitop3:0xf6")
        def g2():
            for p in range(5, 8): a(f"v_bitop3_b32 v{VBAD}, v{VBAD}, v{b+p}, v{VTG[p&3]} bitop3:0xf6")
            a(f"v_and_b32 v{VBAD}, s{S_MSK}, v{VBAD}")
            a(f"v_cmp_ne_u32 vcc, 0, v{VBAD}")
        return [g1, g2]
    def mid_items(k):
        if NG == 3: return []
        def g(h):
            for p in range(4*h, 4*h+4): a(f"v_or_b32 v{PT+12*k+p}, s{S_MSK}, v{PT+12*k+p}")
        return [lambda: g(0), lambda: g(1)]
    def sel(k):
        a("s_cmp_eq_u64 vcc, 0")
        a(f"s_cselect_b32 s{S_SEL[0]}, 0x01000c0c, s{S_ZSEL}")
        a(f"s_cselect_b32 s{S_SEL[1]}, 0x03020c0c, s{S_ZSEL}")
        a(f"s_cselect_b32 s{T+5}, {1<<k}, 0")
        a(f"s_or_b32 s{S_DONE}, s{S_DONE}, s{T+5}")
    def unp_set(k, p2):
        for p in (2*p2, 2*p2+1):
            for h in range(2):
                d = PT + 12*k + dslot[p]
                a(f"v_perm_b32 v{PS+2*p+h}, v{d}, v{d}, s{S_SEL[h]}")
    def unp_add(k, p, dst):
        d = PT + 12*k + dslot[p]
        for h in range(2): a(f"v_perm_b32 v{PU+h}, v{d}, v{d}, s{S_SEL[h]}")
        for h in range(2): a(f"v_add_f32 v{dst+2*p+h}, v{dst+2*p+h}, v{PU+h}")
    def bar():
        if a.lg: a.wait_lg_all()
        a("s_barrier")
    def consts():
        a(f"s_mov_b32 s{S_ZSEL}, 0x0c0c0c0c")
        a(f"s_mov_b32 s{S_DONE}, 0")
        a(f"s_add_u32 s{S_M3}, s{S_MK}, {PL}")
        a(f"v_add_u32 v{VPL}, s{S_M3}, v{VL}")
        a(f"s_mov_b32 s{S_MSK}, 0x00010001")
        a(f"s_mov_b32 s{S_HSEL}, 0x07060302")
    def tags(h):
        if h == 0:
            a(f"v_and_b32 v{VTG[0]}, 3, v0")
            a(f"v_lshlrev_b32 v{VTG[0]}, 2, v{VTG[0]}")
            a(f"v_lshrrev_b32 v{VTG[0]}, v{VTG[0]}, v{VNV}")
        else:
            for p in range(1, 4): a(f"v_lshrrev_b32 v{VTG[p]}, {p}, v{VTG[0]}")
    consts()
    carry = []
    ro = [0, 4, 8, 1, 5, 9, 2, 6, 10, 3, 7, 11]
    ps = [(src, j) for j in range(4) for src in (1, 2)]
    packs = lambda: [g for gr in range(NG) for g in pack_items(gr)]
    for n in range(4):
        a.c(f"---- strip {n}")
        allres = not todo and not lq if n == 0 else allres
        if n == 0 and allres: seq = [(ks, sl) for ks in korder0 for sl in (1, 2)] + [(ks, sl) for sl in (3, 0) for ks in korder0]
        elif n == 0: seq = [(ks, sl) for ks in korder0 for sl in (1, 2, 3)] + [(ks, 0) for ks in korder0]
        elif n == 1: seq = [(ks, sl) for ks in range(16) for sl in (1, 2)] + [(ks, sl) for sl in (3, 0) for ks in range(16)]
        else: seq = [(ks, sl) for sl in (1, 2, 3, 0) for ks in range(16)]
        at = {}
        def put(g, fn): at.setdefault(g, []).append(fn)
        for g, fn in carry: put(g, fn)
        carry = []
        if n == 0:
            mq = []
            of = korder0[INIT:]
            wl = list(lq); lq.clear()
            while of or wl:
                for _ in range(opt.mq_w):
                    if wl: mq.append(lambda w=wl.pop(0): dma_wo(*w))
                if of: mq.append(lambda f=of.pop(0): load_o(0, f))
            g = 0
            for fn in mq:
                put(g // opt.mq_den, fn); g += opt.mq_num
            gq = g // opt.mq_den + 1
            for i, pos in enumerate(korder0):
                if pos in todo:
                    its = tr_wo_items(pos, slot_of[pos])
                    for k2, fn in enumerate(its): put(3 * i - 4 + (k2 >> 1), fn)
            if todo: gq = max(gq, 20)
            def place(g, fn):
                if g < 64: put(g, fn)
                else: carry.append((g - 64, fn))
            g = gq - 1
            place(g, lambda: obase(1)); g += 1
            for f in range(16): place(g, lambda f=f: load_o(1, f)); g += 2
            g = max(g, 65)
            g += (g & 1) ^ 1
            place(g, lambda: obase(2)); g += 1
            for f in range(16): place(g, lambda f=f: load_o(2, f)); g += 2
            place(g - 1, lambda: obase(3))
            gend = g - 64
            g = 1
            if allres:
                put(32, bar)
                put(33, lambda: tags(0) or a("s_nop 0"))
                put(34, lambda: tags(1))
                for i, (sl, j) in enumerate([(sl, j) for sl in (1, 2) for j in range(4)]): put(36 + i + (i >> 1), lambda sl=sl, j=j: wr(n, sl, j))
                put(48, lambda: a("s_nop 3"))
                put(49, lambda: a("s_nop 4"))
                for j in range(4): put(50 + 2 * j, lambda j=j: wr(n, 3, j))
                put(58, bar)
                for i in range(6): put(58 + i, lambda i=i: (rd(0, ro[2*i]), rd(0, ro[2*i+1])))
            else:
                put(47, bar)
                put(48, lambda: tags(0) or a("s_nop 0"))
                put(49, lambda: tags(1))
                for i, (sl, j) in enumerate([(sl, j) for sl in (1, 2) for j in range(4)]): put(50 + i + (i >> 1), lambda sl=sl, j=j: wr(n, sl, j))
                put(62, lambda: wr(0, 3, 0))
                put(63, lambda: a.wait_lg_all())
                for j in range(1, 4): carry.append((2 * j - 1, lambda j=j: wr(0, 3, j)))
                carry.append((7, bar))
                g = 7
                for i in range(6):
                    carry.append((g, lambda i=i: (rd(0, ro[2*i]), rd(0, ro[2*i+1])))); g += 1
            work = [lambda i=i: presum(*ps[i]) for i in range(8)] + [lambda j=j: fin(j) for j in range(4)] + packs()
            for fn in work: carry.append((g, fn)); g += 2
            assert g <= 47
            gs = max(gend, g)
            assert gs + NG <= 58, gs
            for j in range(NG): carry.append((gs + j, lambda j=j: pst(0, j)))
            left = []
        else:
            fast = n >= 2
            if n == 1:
                for i, (sl, j) in enumerate([(sl, j) for sl in (1, 2) for j in range(4)]): put(36 + i + (i >> 1), lambda sl=sl, j=j: wr(n, sl, j))
            else:
                if n == 2:
                    for f in range(16): put(opt.g_o3 + 2 * f, lambda f=f: load_o(3, f))
                    def pdma(j):
                        if j == 0:
                            a(f"s_lshl_b32 s{T+4}, s{S_Q[2]}, 13")
                            a(f"s_mov_b32 m0, s{S_M3}")
                            a(f"s_add_u32 s{T+4}, s{T+4}, s{S_PR}")
                        a.vmem(f"buffer_load_dwordx4 v{VL}, {srd(SWS)}, s{T+4} offen offset:{j*1024} sc1 lds", "pdma")
                    for j in range(NG): put(opt.g_p2 + 2 * j, lambda j=j: pdma(j))
                for j in range(4): put(32 + 2 * j, lambda j=j: wr(n, 1, j))
                for j in range(4): put(41 + 2 * j, lambda j=j: wr(n, 2, j))
            put(48, lambda: a("s_nop 3"))
            put(49, lambda: a("s_nop 4" if n == 1 else "s_nop 3"))
            if fast:
                for j in range(4): put(50 + j, lambda j=j: wr(n, 3, j))
                gb = 55
            else:
                for j in range(4): put(50 + 2 * j, lambda j=j: wr(n, 3, j))
                gb = 58
            put(gb, bar)
            for i in range(6):
                put(gb + i, lambda i=i: (rd(n, ro[2*i]), rd(n, ro[2*i+1])))
            npre_s = 63 - (gb + 5)
            for i in range(npre_s): put(gb + 6 + i, lambda i=i: presum(*ps[i]))
            left = [lambda i=i: presum(*ps[i]) for i in range(npre_s, 8)]
            if n == 1:
                g = 1
                for fn in left + [lambda j=j: fin(j) for j in range(4)] + packs(): carry.append((g, fn)); g += 2
                assert opt.g_s1 >= g - 2, g
                for j in range(NG): carry.append((opt.g_s1 + 2 * j, lambda j=j: pst(1, j)))
            if n == 2:
                g = NG if opt.g_p1 == 0 else 0
                for fn in left + [lambda j=j: fin(j) for j in range(4)]: carry.append((g, fn)); g += 1
                for j in range(NG):
                    for fn in pack_items(j): carry.append((g, fn)); g += 1
                    carry.append((g, lambda j=j: pst(2, j))); g += 1
                gfree = g
            if n == 3:
                for j in range(NG): put(opt.g_p1 + j, lambda j=j: pld(1, j))
                def prd():
                    a.wait_vm("pdma")
                    for j in range(NG):
                        a.lds(f"ds_read_b128 {vr(PT+24+4*j,4)}, v{VPL} offset:{j*1024}", "prd")
                g = gfree
                put(g - 3, prd)
                put(g, lambda: a.wait_lg("prd"))
                for fn in chk_items(2): put(g, fn); g += 1
                put(g, lambda: sel(2)); g += 1
                for fn in mid_items(2): put(g, fn); g += 1
                for p2 in range(4): put(g, lambda p2=p2: unp_set(2, p2)); g += 1
                g = max(g, opt.g_c1)
                put(g, lambda: a.wait_vm(("pp", 1)))
                for fn in chk_items(1): put(g, fn); g += 1
                put(g, lambda: sel(1)); g += 1
                for fn in mid_items(1) + [lambda p=p: unp_add(1, p, PS) for p in range(8)]:
                    while g in (32, 34, 36, 38, 41, 43, 45, 47) or 50 <= g <= 53: g += 1
                    put(g, fn); g += 1
                assert g <= 56, g
                for j in range(NG): put(opt.g_p0 + j, lambda j=j: pld(0, j))
        seen = set()
        if n >= 2: a.wait_vm(("o", n, 15))
        for g, (ks, sl) in enumerate(seq):
            if ks not in seen:
                a.wait_vm(("o", n, ks)); seen.add(ks)
                if n == 0: a.wait_lg(("wo", ks))
            first = (ks == korder0[0]) if n == 0 else (ks == 0)
            c = "0" if first else vr(AC+16*sl, 16)
            a(f"{MF} {vr(AC+16*sl,16)}, {ar(16*ks+4*sl,4)}, {vr(OF[n&1]+4*ks,4)}, {c}")
            for fn in at.get(g, []): fn()
            if n == opt.sst and g % 8 == 7 and g < 63: stamp(a, 32 + g // 8, opt)
        stamp(a, 22 + n, opt)
    for fn in left: fn()
    for j in range(4): fin(j)
    a(f"s_mov_b32 s{S_SEL[0]}, 0x01000c0c")
    a(f"s_mov_b32 s{S_SEL[1]}, 0x03020c0c")
    stamp(a, 26, opt)
    a(f"s_mov_b32 s{S_CNT}, 0")
    for k in (0, 1, 2):
        if k:
            a(f"s_bitcmp1_b32 s{S_DONE}, {k}")
            a(f"s_cbranch_scc1 L_skip{k}")
            a(f"s_branch L_rel{k}")
        else:
            a.wait_vm(("pp", 0))
        a.label(f"L_chk{k}")
        for fn in chk_items(k): fn()
        a(f"s_add_u32 s{S_CNT}, s{S_CNT}, 1")
        a(f"s_cmp_gt_u32 s{S_CNT}, {SPIN_MAX}")
        a(f"s_cbranch_scc1 L_ok{k}")
        a("s_nop 1")
        a(f"s_cbranch_vccz L_ok{k}")
        a.label(f"L_rel{k}")
        for j in range(NG): pld(k, j, track=False)
        a("s_waitcnt vmcnt(0)")
        a(f"s_branch L_chk{k}")
        a.label(f"L_ok{k}")
        for fn in mid_items(k): fn()
        for p in range(8): unp_add(k, p, PS)
        a.label(f"L_skip{k}")
    for e in range(16): a(f"v_add_f32 v{TMP+e}, v{TMP+e}, v{PS+e}")
    stamp(a, 27, opt)
    for p in range(8):
        a(f"v_cvt_pk_bf16_f32 v{AC+p}, v{TMP+2*p}, v{TMP+2*p+1}")
    a(f"buffer_store_dwordx4 {vr(AC,4)}, v{VOUT}, {srd(SOUT)}, s{S_OUTB} offen")
    a(f"buffer_store_dwordx4 {vr(AC+4,4)}, v{VOUT}, {srd(SOUT)}, s{S_OUTB} offen offset:32")
    if opt.stamps:
        a("s_waitcnt vmcnt(0)")
        stamp(a, 28, opt)
        a(f"v_writelane_b32 v{VSTAMP}, s{S_CNT}, 63")
        dump_stamps(a, opt)
    a.label(end)
    a("s_endpgm")
    a.label("L_codeend")

Opt.fill0 = 12
Opt.rest = ""
Opt.fl4 = False
Opt.ptouch = 0
Opt.pt_stage = 14
Opt.otouch = -1
Opt.et = 0
Opt.etm = 63
Opt.touch = 1
Opt.mq_w = 2
Opt.rspan = 12
Opt.diag = False

def build(opt):
    nm = NAME + "_kernel"
    out = []
    out.append("; @launch grid=(256,1,1) block=(256,1,1) lds=163840")
    out.append('.amdgcn_target "amdgcn-amd-amdhsa--gfx950"')
    out.append(".text")
    a = Asm()
    gen(a, opt)
    out.append(f".globl {nm}\n.p2align 8\n.type {nm},@function\n{nm}:")
    out.append(a.text())
    out.append('.section .rodata,"a"')
    out.append(f""".p2align 6
.amdhsa_kernel {nm}
  .amdhsa_next_free_vgpr 512
  .amdhsa_next_free_sgpr 102
  .amdhsa_accum_offset 256
  .amdhsa_group_segment_fixed_size 0
  .amdhsa_kernarg_size 104
  .amdhsa_user_sgpr_count 2
  .amdhsa_user_sgpr_kernarg_segment_ptr 1
  .amdhsa_system_sgpr_workgroup_id_x 1
.end_amdhsa_kernel
""")
    return "\n".join(out)

if __name__ == "__main__":
    opt = Opt()
    for kv in sys.argv[2:]:
        k, v = kv.split("=")
        cur = getattr(opt, k)
        setattr(opt, k, (v == "1") if isinstance(cur, bool) else type(cur)(v))
    t = build(opt)
    open(sys.argv[1], "w").write(t)
```

```python
import sys, struct
from asmlib import *

NAME = "concat_heads__mha_block_cached__gqa_block_cached__near_ridge"
def f32(x): return "0x%08x" % struct.unpack("<I", struct.pack("<f", x))[0]

PART_BASE = 8 << 20
FO_BASE = 24 << 20
STAMP_BASE = 28 << 20
WS_USED = 32 << 20
SPIN_MAX = 20000

SX, SK, SV, SWQ, SWO, SWS, SOUT, SDBG = 32, 36, 40, 44, 48, 52, 56, 60
S_W, S_BR, S_G, S_HL, S_R, S_B = 64, 65, 66, 67, 68, 69
S_T = 70
S_MX, S_LAM, S_KV, S_MW, S_MK, S_C = 78, 79, 80, 81, 82, 83
S_NONCE, S_CNT, S_DONE = 84, 85, 86
S_SO = 87
S_QW = [88, 89, 90, 91]; S_QX = [92, 93, 94, 95]
S_HW, S_HX = 96, 97
S_U = 98
S_WOG = [4, 5, 6, 7]; S_OG = [8, 9, 10, 11]; S_Q = [12, 13, 14, 15]
S_OB, S_PB, S_FOW, S_FOR, S_OUTB, S_PR = 16, 17, 18, 19, 20, 21
S_OW = [22, 23]

class Opt:
    nt_kv = "nt"
    stamps = False
    clk = "s_memrealtime"
    ab = ""
    ex = "K0,K1|V0,V1|W0,W1"
    mid = "||"
    lead = 2; bal = False; stag = False; hbit = 3
    n14 = 8; n15 = 0; natt = 0
    pre_flag = 0; pre_poll = 40; post_poll = 0
    codepf = True
    fill = 4
    coff = 1
    non_stage = -1
    init_o = 8
    mq_num = 2; mq_den = 1
    fmt = 2
    g_s1 = 33; g_p2 = 44; g_p1 = 0; g_c1 = 28; g_p0 = 56; g_o3 = 0
    sst = -1

VSTAMP = 1
def stamp(a, idx, opt):
    if opt.amp and str(idx) in opt.amp.split(","):
        a(f"s_memrealtime s[30:31]")
        a("s_waitcnt lgkmcnt(0)"); a.lg = []
        a(f"v_writelane_b32 v{VSTAMP}, s30, {opt.amp.split(',').index(str(idx))}")
    if opt.stamps:
        a(f"{opt.clk} s[30:31]")
        a("s_waitcnt lgkmcnt(0)"); a.lg = []
        a(f"v_writelane_b32 v{VSTAMP}, s30, {idx}")

def dump_stamps(a, opt):
    a(f"s_lshl_b32 s{S_T}, s2, 2")
    a(f"s_add_u32 s{S_T}, s{S_T}, s{S_W}")
    a(f"s_lshl_b32 s{S_T}, s{S_T}, 8")
    a(f"s_add_u32 s{S_T}, s{S_T}, {STAMP_BASE}")
    a("v_lshlrev_b32 v2, 2, v0")
    a(f"buffer_store_dword v{VSTAMP}, v2, s[{SWS}:{SWS+3}], s{S_T} offen")
    a("s_waitcnt vmcnt(0)")

def seg_src(a, dst, rowstride_shift, t1, t2):
    a(f"v_lshrrev_b32 v{t1}, 4, v0")
    a(f"v_bfe_u32 v{t2}, v0, 2, 2")
    a(f"v_xor_b32 v{t2}, v{t2}, v{t1}")
    a(f"v_lshlrev_b32 v{t2}, 6, v{t2}")
    a(f"v_lshl_add_u32 v{dst}, v{t1}, {rowstride_shift}, v{t2}")
    a(f"v_and_b32 v{t2}, 3, v0")
    a(f"v_lshl_add_u32 v{dst}, v{t2}, 4, v{dst}")

def tr_base(a, dst, r4, t1):
    a(f"v_bfe_u32 v{r4}, v0, 2, 2")
    a(f"v_lshrrev_b32 v{t1}, 5, v0")
    a(f"v_lshl_add_u32 v{t1}, v{t1}, 3, v{r4}")
    a(f"v_lshlrev_b32 v{dst}, 8, v{t1}")
    a(f"v_bfe_u32 v{t1}, v0, 4, 1")
    a(f"v_lshl_add_u32 v{dst}, v{t1}, 5, v{dst}")
    a(f"v_and_b32 v{t1}, 1, v0")
    a(f"v_lshl_add_u32 v{dst}, v{t1}, 4, v{dst}")
    a(f"v_bfe_u32 v{t1}, v0, 1, 1")
    a(f"v_lshl_add_u32 v{dst}, v{t1}, 3, v{dst}")

MF = "v_mfma_f32_32x32x16_bf16"
M16 = "v_mfma_f32_16x16x32_bf16"
srd = lambda r: f"s[{r}:{r+3}]"

def sched(lam, opt):
    order = list(range(16))
    mpos = []
    for c in range(lam, 16, 4):
        p = order.index(c)
        q = max(0, p - opt.lead)
        if c < 4 and opt.bal: q = 0
        order.pop(p); order.insert(q, c)
        if c >= 4: mpos.append(q)
    if opt.stag:
        order = [(4 * lam + i) & 15 for i in range(16)]
        mpos = [2 + lam, 6 + lam, 10 + lam]
    extras = {}
    for j, lst in enumerate(opt.ex.split("|")):
        for pc in filter(None, lst.split(",")):
            extras.setdefault(mpos[j] - 2, []).append(pc)
    for j, lst in enumerate(opt.mid.split("|")):
        for pc in filter(None, lst.split(",")):
            extras.setdefault(mpos[j], []).append(pc)
    for it in filter(None, opt.ab.split(";")):
        st, lst = it.split(":")
        for pc in lst.split(","): extras.setdefault(int(st), []).append(pc)
    return order, extras

class Rec:
    def __init__(self): self.L = []
    def __call__(self, s): self.L.append(s)

def gen(a, opt):
    end = "L_end"
    T = S_T; U = S_U
    stamp(a, 0, opt)
    a("s_cmp_ge_u32 s2, 256")
    a(f"s_cbranch_scc1 {end}")
    a("s_load_dwordx16 s[4:19], s[0:1], 0")
    a("s_load_dwordx4 s[20:23], s[0:1], 64")
    a("s_load_dwordx4 s[24:27], s[0:1], 80")
    a("s_load_dwordx2 s[28:29], s[0:1], 96")
    a(f"s_memrealtime s[{T+6}:{T+7}]")
    if opt.codepf:
        a(f"s_getpc_b64 s[{U}:{U+1}]")
        a.label("L_pc")
        a(f"s_lshr_b32 s{T}, s2, 3")
        a(f"v_lshrrev_b32 v240, 4, v0")
        a(f"v_lshl_add_u32 v240, s{T}, 4, v240")
        a(f"v_lshlrev_b32 v240, 7, v240")
        a(f"v_min_u32 v240, L_codeend-L_pc-4, v240")
        a(f"v_mov_b32 v241, s{U+1}")
        a(f"v_add_co_u32 v240, vcc, s{U}, v240")
        a("s_nop 1")
        a(f"v_addc_co_u32 v241, vcc, 0, v241, vcc")
        a.vmem(f"global_load_dword v241, v[240:241], off", "cpf")
    a("v_lshrrev_b32 v2, 6, v0")
    a("v_and_b32 v0, 63, v0")
    a(f"v_readfirstlane_b32 s{S_W}, v2")
    a(f"s_and_b32 s{T}, s2, 7")
    a(f"s_lshr_b32 s{T+1}, s2, 3")
    a(f"s_lshr_b32 s{S_BR}, s{T}, 2")
    a(f"s_and_b32 s{S_G}, s{T}, 3")
    a(f"s_and_b32 s{S_HL}, s{T+1}, 7")
    a(f"s_lshr_b32 s{S_R}, s{T+1}, 3")
    VKS, VVS = 2, 3
    VWO = [4, 5, 6, 7]
    VA = list(range(8, 16))
    ACC = 16
    FA = [80, 120]; FB = [112, 152]
    KF, VF = 160, 192
    QP, SS, PP = 80, 112, 128
    VWQ = [224, 225, 226, 227]; VX = [228, 229, 230, 231]; VB = [232, 233]
    TT = 240
    VWT = [244, 245, 246, 247]
    VKA, VL16, VTB, VR4, VNON, VT2 = 248, 249, 250, 251, 252, 253
    F1, F2 = 254, 255
    XR, KR, VR = 65536, 131072, 131072
    a(f"s_lshl_b32 s{S_B}, s{S_R}, 2")
    a(f"s_add_u32 s{S_B}, s{S_B}, s{S_W}")
    a(f"s_lshl_b32 s{T+4}, s{S_G}, 3")
    a(f"s_add_u32 s{T+4}, s{T+4}, s{S_HL}")
    a(f"s_lshl_b32 s{T}, s{S_W}, 17")
    a(f"s_lshl_b32 s{T+1}, s{T+4}, 8")
    a(f"s_add_u32 s{T}, s{T}, s{T+1}")
    a(f"s_lshl_b32 s{T+1}, s{S_B}, 16")
    a(f"s_lshr_b32 s{T+2}, s{S_HL}, 2")
    HB = opt.hbit
    S_WQB = S_QW[:2]; S_XB = S_QX[:2]
    a(f"s_lshl_b32 s{T+3}, s{T+2}, {19+HB}")
    a(f"s_add_u32 s{S_WQB[0]}, s{T}, s{T+3}")
    a(f"s_xor_b32 s{T+3}, s{T+3}, {1<<(19+HB)}")
    a(f"s_add_u32 s{S_WQB[1]}, s{T}, s{T+3}")
    a(f"s_lshl_b32 s{T+3}, s{T+2}, {7+HB}")
    a(f"s_add_u32 s{S_XB[0]}, s{T+1}, s{T+3}")
    a(f"s_xor_b32 s{T+3}, s{T+3}, {1<<(7+HB)}")
    a(f"s_add_u32 s{S_XB[1]}, s{T+1}, s{T+3}")
    a(f"s_add_u32 s{S_LAM}, s{S_R}, s{S_HL}")
    a(f"s_and_b32 s{S_LAM}, s{S_LAM}, 3")
    ords = [sched(l, opt)[0] for l in range(4)]
    for pos in range(2):
        assert all(not (o[pos] >> HB) & 1 for o in ords)
        pk = sum(ords[l][pos] << (4 * l) for l in range(4))
        a(f"s_lshl_b32 s{T+2}, s{S_LAM}, 2")
        a(f"s_lshr_b32 s{T+2}, {pk}, s{T+2}")
        a(f"s_and_b32 s{T+2}, s{T+2}, 15")
        a(f"s_lshl_b32 s{T+3}, s{T+2}, 19")
        a(f"s_add_u32 s{S_QW[2+pos]}, s{S_WQB[0]}, s{T+3}")
        a(f"s_lshl_b32 s{T+3}, s{T+2}, 7")
        a(f"s_add_u32 s{S_QX[2+pos]}, s{S_XB[0]}, s{T+3}")
    a(f"s_lshl_b32 s{S_MW}, s{S_W}, 12")
    a(f"s_lshl_b32 s{S_MX}, s{S_W}, 14")
    a(f"s_add_u32 s{S_MX}, s{S_MX}, {XR}")
    seg_src(a, VWQ[0], 13, 242, 243)
    a(f"v_add_u32 v{VWQ[1]}, {32768-1024}, v{VWQ[0]}")
    a(f"v_xor_b32 v242, 32, v{VWQ[0]}")
    for j in (2, 3): a(f"v_add_u32 v{VWQ[j]}, {j*(32768-1024)}, v242")
    a("v_lshrrev_b32 v242, 3, v0")
    a("v_lshrrev_b32 v243, 4, v0")
    a(f"v_and_b32 v{F1}, 7, v0")
    a(f"v_xor_b32 v{F1}, v{F1}, v243")
    a(f"v_lshlrev_b32 v{F1}, 4, v{F1}")
    a(f"v_lshl_add_u32 v{VX[0]}, v242, 11, v{F1}")
    a(f"v_xor_b32 v{F1}, 64, v{VX[0]}")
    a(f"v_add_u32 v{VX[1]}, {16384-1024}, v{F1}")
    a(f"v_add_u32 v{VX[2]}, {2*(16384-1024)}, v{VX[0]}")
    a(f"v_add_u32 v{VX[3]}, {3*(16384-1024)}, v{F1}")
    for s_, n in [(SX, 1 << 20), (SWQ, 8 << 20)]:
        a(f"s_mov_b32 s{s_+2}, {n}")
        a(f"s_mov_b32 s{s_+3}, 0x20000")
    a("s_waitcnt lgkmcnt(0)")
    stamp(a, 29, opt)
    a(f"s_cmp_eq_u32 s{S_BR}, 0")
    for i, s_ in [(0, SX), (3, SWQ), (1, SK), (2, SV), (4, SWO)]:
        a(f"s_cselect_b32 s{s_}, s{4+2*i}, s{14+2*i}")
        a(f"s_cselect_b32 s{s_+1}, s{5+2*i}, s{15+2*i}")
    cur = [None]
    def group(key, m0_ins, so_ins):
        n = 0
        if cur[0] != key:
            a(m0_ins); n += 1
            for x in so_ins: a(x); n += 1
            cur[0] = key
        return n
    def dma_x(pos, j, c=None):
        so = f"s_mov_b32 s{S_SO}, s{S_QX[2+pos]}" if c is None else f"s_add_u32 s{S_SO}, s{S_XB[(c>>HB)&1]}, {(c & ~(1<<HB))*128}"
        group(("x", pos), f"s_add_u32 m0, s{S_MX}, {(pos%4)*4096}", [so])
        a.vmem(f"buffer_load_dwordx4 v{VX[j]}, {srd(SX)}, s{S_SO} offen offset:{j*1024} lds", ("st", pos))
    def dma_wq(pos, j, c=None):
        so = f"s_mov_b32 s{S_SO}, s{S_QW[2+pos]}" if c is None else f"s_add_u32 s{S_SO}, s{S_WQB[(c>>HB)&1]}, {(c & ~(1<<HB))<<19}"
        group(("q", pos), f"s_add_u32 m0, s{S_MW}, {(pos%4)*16384}", [so])
        a.vmem(f"buffer_load_dwordx4 v{VWQ[j]}, {srd(SWQ)}, s{S_SO} offen offset:{j*1024} lds", ("st", pos))
    for j in range(4): dma_x(0, j)
    for j in range(4): dma_wq(0, j)
    stamp(a, 30, opt)
    a(f"v_bfe_u32 v{VR4}, v0, 2, 2")
    a("v_lshrrev_b32 v242, 4, v0")
    a(f"v_lshl_add_u32 v243, v242, 3, v{VR4}")
    a("v_lshlrev_b32 v243, 8, v243")
    a(f"v_and_b32 v{F1}, 1, v242")
    a(f"v_lshl_add_u32 v243, v{F1}, 5, v243")
    a(f"v_and_b32 v{F1}, 3, v0")
    a(f"v_lshl_add_u32 v243, v{F1}, 3, v243")
    a(f"v_lshl_add_u32 v{VA[0]}, v{VR4}, 6, v243")
    for i in range(1, 8): a(f"v_xor_b32 v{VA[i]}, {32*i}, v{VA[0]}")
    a(f"v_bfe_u32 v{F1}, v0, 1, 3")
    a(f"v_xor_b32 v242, v242, v{F1}")
    a("v_lshlrev_b32 v242, 4, v242")
    a("v_and_b32 v243, 15, v0")
    a("v_lshl_add_u32 v242, v243, 7, v242")
    a(f"v_add_u32 v{VB[0]}, s{S_MX}, v242")
    a("v_xor_b32 v242, 64, v242")
    a(f"v_add_u32 v{VB[1]}, s{S_MX}, v242")
    for s_, lo in [(SOUT, 24), (SDBG, 26), (SWS, 28)]:
        a(f"s_mov_b32 s{s_}, s{lo}")
        a(f"s_mov_b32 s{s_+1}, s{lo+1}")
    for s_, n in [(SK, 4 << 20), (SV, 4 << 20), (SWO, 8 << 20), (SWS, WS_USED), (SOUT, 2 << 20), (SDBG, 256)]:
        a(f"s_mov_b32 s{s_+2}, {n}")
        a(f"s_mov_b32 s{s_+3}, 0x20000")
    a(f"s_lshl_b32 s{S_KV}, s{S_B}, 5")
    a(f"s_add_u32 s{S_KV}, s{S_KV}, s{T+4}")
    a(f"s_lshl_b32 s{S_KV}, s{S_KV}, 13")
    a(f"s_lshl_b32 s{S_MK}, s{S_W}, 13")
    def early_touch():
        a(f"v_and_b32 v242, 3, v0")
        a(f"v_lshlrev_b32 v242, 21, v242")
        a("v_mov_b32 v243, 0")
        a(f"s_lshl_b32 s{T+2}, s{S_BR}, 2")
        a(f"s_add_u32 s{T+2}, s{T+2}, s{S_R}")
        a(f"s_lshl_b32 s{T+2}, s{T+2}, 21")
        a(f"s_lshl_b32 s{T+3}, s{S_G}, 21")
        a(f"s_lshl_b32 s{T+5}, s{S_R}, 19")
        for k_, (vo, sd, so) in enumerate([(242, SWQ, "0"), (243, SK, f"s{S_KV}"), (243, SV, f"s{S_KV}"), (243, SWO, f"s{T+3}"), (243, SWS, f"s{T+2}"), (243, SOUT, f"s{T+5}")]):
            if opt.etm >> k_ & 1:
                a.vmem(f"buffer_load_dword v{234+k_}, v{vo}, {srd(sd)}, {so} offen", "touch")
    if opt.et == 1: early_touch()
    for j in range(4): dma_x(1, j)
    for j in range(4): dma_wq(1, j)
    if opt.et == 2: early_touch()
    a(f"s_or_b32 s{T}, s2, s{S_W}")
    a(f"s_or_b32 s{T+6}, s{T+6}, 1")
    a(f"s_mul_i32 s{T+6}, s{T+6}, 0x9e3779b1")
    a(f"v_or_b32 v243, s{T}, v0")
    a(f"v_lshlrev_b32 v243, 8, v243")
    a(f"v_mov_b32 v242, s{T+6}")
    a.vmem(f"buffer_store_dword v242, v243, {srd(SDBG)}, 0 offen sc1", "tagst")
    stamp(a, 31, opt)
    f = Rec()
    f(f"v_lshrrev_b32 v{F1}, 4, v0")
    f(f"v_and_b32 v{F2}, 15, v0")
    f(f"v_xor_b32 v{F2}, v{F2}, v{F1}")
    f(f"v_lshlrev_b32 v{F2}, 4, v{F2}")
    f(f"v_lshl_add_u32 v{VKS}, v{F1}, 8, v{F2}")
    seg_src(f, VVS, 8, F1, F2)
    seg_src(f, VWO[0], 11, F1, F2)
    for j in range(1, 4): f(f"v_add_u32 v{VWO[j]}, {(4*(j>>1) + 16*(j&1))*2048 - j*1024}, v{VWO[0]}")
    tr_base(f, VTB, VR4, F1)
    for i in range(4):
        f(f"s_add_u32 s{U+2}, s{S_W}, {i}")
        f(f"s_and_b32 s{U+2}, s{U+2}, 3")
        f(f"v_xor_b32 v{F1}, s{U+2}, v{VR4}")
        f(f"v_lshl_add_u32 v{VWT[i]}, v{F1}, 6, v{VTB}")
    f(f"v_and_b32 v{F1}, 3, v0")
    f(f"v_lshl_add_u32 v{F1}, v{VR4}, 3, v{F1}")
    f(f"v_and_b32 v{F2}, 15, v{F1}")
    f(f"v_lshrrev_b32 v{VKA}, 5, v0")
    f(f"v_xor_b32 v{F2}, v{F2}, v{VKA}")
    f(f"v_lshlrev_b32 v{F2}, 4, v{F2}")
    f(f"v_lshl_add_u32 v{F1}, v{F1}, 8, v{F2}")
    f(f"v_bfe_u32 v{F2}, v0, 4, 1")
    f(f"v_lshl_add_u32 v{F1}, v{F2}, 3, v{F1}")
    f(f"s_add_u32 s{U+2}, s{S_MK}, {KR}")
    f(f"v_add_u32 v{VKA}, s{U+2}, v{F1}")
    f(f"v_lshlrev_b32 v{VL16}, 4, v0")
    f(f"v_mov_b32 v{TT+1}, 0")
    f(f"s_lshl_b32 s{U}, s{S_G}, 2")
    f(f"s_add_u32 s{U}, s{U}, s{S_W}")
    f(f"s_lshl_b32 s{U+1}, s{U}, 19")
    f(f"s_add_u32 s{S_C}, s{S_HL}, {opt.coff}")
    f(f"s_and_b32 s{S_C}, s{S_C}, 7")
    f(f"s_lshl_b32 s{U+2}, s{S_C}, 8")
    f(f"s_add_u32 s{U+1}, s{U+1}, s{U+2}")
    for jg in range(4):
        f(f"s_add_u32 s{U+2}, s{S_LAM}, {jg}")
        f(f"s_and_b32 s{U+2}, s{U+2}, 3")
        f(f"s_lshl_b32 s{U+3}, s{U+2}, 17")
        f(f"s_add_u32 s{S_WOG[jg]}, s{U+1}, s{U+3}")
        f(f"s_lshl_b32 s{S_OG[jg]}, s{U+2}, 12")
        f(f"s_add_u32 s{S_Q[jg]}, s{S_G}, {jg+1}")
        f(f"s_and_b32 s{S_Q[jg]}, s{S_Q[jg]}, 3")
    f(f"s_lshl_b32 s{U+1}, s{S_BR}, 2")
    f(f"s_add_u32 s{U+1}, s{U+1}, s{S_R}")
    f(f"s_lshl_b32 s{U+1}, s{U+1}, 21")
    f(f"s_lshl_b32 s{U+2}, s{U}, 14")
    f(f"s_add_u32 s{S_OB}, s{U+1}, s{U+2}")
    f(f"s_and_b32 s{U+2}, s{S_KV}, 0xfffff")
    f(f"s_add_u32 s{S_OW[0]}, s{U+1}, s{U+2}")
    f(f"s_add_u32 s{S_OW[1]}, s{S_OW[0]}, 4096")
    f(f"s_add_u32 s{U+1}, s{U+1}, {1<<20}")
    f(f"s_mul_i32 s{U+2}, s{S_G}, {(1<<15) + (1<<13)}")
    f(f"s_add_u32 s{U+2}, s{U+2}, s{U+1}")
    f(f"s_lshl_b32 s{U+3}, s{S_W}, 10")
    f(f"s_add_u32 s{S_FOR}, s{U+2}, s{U+3}")
    f(f"s_lshl_b32 s{U+3}, s{S_HL}, 2")
    f(f"s_add_u32 s{U+3}, s{U+3}, s{S_W}")
    f(f"s_lshl_b32 s{U+3}, s{U+3}, 7")
    f(f"s_add_u32 s{S_FOW}, s{U+2}, s{U+3}")
    f(f"s_lshl_b32 s{U+2}, s{S_C}, 17")
    f(f"s_add_u32 s{U+2}, s{U+2}, s{U+1}")
    f(f"s_lshl_b32 s{U+3}, s{U}, 11")
    f(f"s_add_u32 s{S_PB}, s{U+2}, s{U+3}")
    f(f"s_lshl_b32 s{U+3}, s{S_G}, 15")
    f(f"s_add_u32 s{S_PR}, s{U+2}, s{U+3}")
    f(f"s_lshl_b32 s{U+3}, s{S_W}, 11")
    f(f"s_add_u32 s{S_PR}, s{S_PR}, s{U+3}")
    f(f"s_lshl_b32 s{U+2}, s{S_R}, 2")
    f(f"s_add_u32 s{U+2}, s{U+2}, s{S_G}")
    f(f"s_lshl_b32 s{U+2}, s{U+2}, 17")
    f(f"s_lshl_b32 s{U+3}, s{S_BR}, 11")
    f(f"s_add_u32 s{U+2}, s{U+2}, s{U+3}")
    f(f"s_lshl_b32 s{U+3}, s{S_C}, 8")
    f(f"s_add_u32 s{U+2}, s{U+2}, s{U+3}")
    f(f"s_lshl_b32 s{U+3}, s{S_W}, 6")
    f(f"s_add_u32 s{S_OUTB}, s{U+2}, s{U+3}")
    FILL = f.L
    for _ in range(opt.fill0): a(FILL.pop(0))

    SLOT = {"k0": (S_MK, KR), "k1": (S_MK, KR + 4096)}
    for i_ in range(4):
        SLOT[f"w{i_}"] = (S_MW, 16384 * i_); SLOT[f"x{i_}"] = (S_MX, 4096 * i_)
    def dma_wo(pos, j, slot):
        sb, off = SLOT[slot]
        n = group(("wo", pos), f"s_add_u32 m0, s{sb}, {off}", [f"s_add_u32 s{S_SO}, s{S_WOG[pos>>2]}, {(32*((pos&3)>>1) + 8*(pos&1))*2048}"])
        a.vmem(f"buffer_load_dwordx4 v{VWO[j]}, {srd(SWO)}, s{S_SO} offen offset:{j*1024} lds", ("wo", pos))
        a.ever.add(("woj", pos, j))
        return n + 1
    def tr_wo_items(pos, slot):
        sb, off = SLOT[slot]
        it = []
        for s4 in range(4):
            def g(s4=s4):
                if s4 == 0:
                    assert all(("woj", pos, j) in a.ever for j in range(4)), ("piece not fully issued", pos)
                    a.wait_vm(("wo", pos))
                    a(f"s_add_u32 s{T+1}, s{sb}, {off}")
                a(f"v_add_u32 v{VT2}, s{T+1}, v{VWT[s4]}")
                for h2 in range(2):
                    a.lds(f"ds_read_b64_tr_b16 {ar(16*pos+4*s4+2*h2,2)}, v{VT2} offset:{4*h2*256}", ("wo", pos))
            it.append(g)
        return it
    def dma_kv(pc, j):
        half = int(pc[1])
        group(pc, f"s_add_u32 m0, s{S_MK}, {(KR if pc[0] == 'K' else VR) + half*4096}", [f"s_add_u32 s{S_SO}, s{S_KV}, {half*4096}"])
        if pc[0] == "K":
            a(f"v_xor_b32 v{TT}, {64*j}, v{VKS}")
            a.vmem(f"buffer_load_dwordx4 v{TT}, {srd(SK)}, s{S_SO} offen offset:{j*1024} {opt.nt_kv} lds", "k")
        else:
            if j == 2: a(f"v_xor_b32 v{TT}, 32, v{VVS}")
            a.vmem(f"buffer_load_dwordx4 v{TT if j >= 2 else VVS}, {srd(SV)}, s{S_SO} offen offset:{j*1024} {opt.nt_kv} lds", "v")
    def reads(n):
        s, t = n >> 1, n & 1
        slot = s % 4
        fs = n & 1
        r = [(f"ds_read_b128 {vr(FB[fs]+4*nt,4)}, v{VB[t]} offset:{slot*4096 + nt*2048}", ("b", n)) for nt in range(2)]
        for i in range(8):
            for h2 in range(2):
                r.append((f"ds_read_b64_tr_b16 {vr(FA[fs]+4*i+2*h2,2)}, v{VA[i]} offset:{slot*16384 + (32*t+4*h2)*256}", ("a", n, i)))
        if opt.fakeD:
            r = r[:10] + [(f"ds_read_b128 {vr(FA[fs]+16+4*nt,4)}, v{VB[t]} offset:{slot*4096 + nt*2048}", ("a", n, 4+nt)) for nt in range(2)]
            a.ever.add(("lg", ("a", n, 6))); a.ever.add(("lg", ("a", n, 7)))
        return r
    def mfma(n, k):
        fs = n & 1
        i, nt = k >> 1, k & 1
        d = vr(ACC + 8*i + 4*nt, 4)
        a.wait_lg([("b", n), ("a", n, i)])
        a(f"{M16} {d}, {vr(FA[fs]+4*i,4)}, {vr(FB[fs]+4*nt,4)}, {'0' if n == 0 else d}")

    allex = [p for l in sched(0, opt)[1].values() for p in l]
    w_early = sorted(int(p[1]) for p in allex if p[0] == "W")
    w_late = [p for p in range(4) if p not in w_early]
    hit_first = [4*g + k for k in w_early for g in (1, 2, 3)]
    hit_last = [4*g + k for k in w_late for g in (1, 2, 3)]
    rest = w_late + hit_first + hit_last
    if opt.rest: rest = [int(x) for x in opt.rest.split(",")]
    assert sorted(rest + w_early) == list(range(16))
    late_slots = ["w0", "x0", "w1", "x1", "w2", "x2", "k0", "k1", "x3", "w3"]
    avail = {"w0": 13, "x0": 13, "w1": 14, "x1": 14, "w2": 15, "x2": 15, "k0": 15, "k1": 15, "x3": 16, "w3": 17}
    lateq = [(rest[i], j, late_slots[i]) for i in range(min(len(rest), len(late_slots))) for j in range(4)]
    def k_items():
        it = []
        for kt in range(2):
            for u in range(4):
                for h in range(2):
                    def g(kt=kt, u=u, h=h):
                        if (kt, u, h) == (0, 0, 0): a.wait_vm("k")
                        a(f"v_xor_b32 v{VT2}, {((4*u+2*h) ^ (4*kt)) << 4}, v{VKA}")
                        a.lds(f"ds_read_b64 {vr(KF+16*kt+4*u+2*h,2)}, v{VT2} offset:{1024*kt}", "kf")
                    it.append(g)
        return it
    def v_items():
        it = []
        for i in range(8):
            def g(i=i):
                if i == 0:
                    a.wait_vm("v")
                    a(f"s_add_u32 s{T+1}, s{S_MK}, {VR}")
                a(f"v_add_u32 v{VT2}, s{T+1}, v{VA[i]}")
                for h2 in range(2):
                    a.lds(f"ds_read_b64_tr_b16 {vr(VF+4*i+2*h2,2)}, v{VT2} offset:{4*h2*256}", "vf")
            it.append(g)
        return it
    uniform = all(sched(l, opt) == sched(0, opt) for l in range(4))
    for lam in range(1, 4):
        a(f"s_cmp_eq_u32 s{S_LAM}, {lam}")
        a(f"s_cbranch_scc1 L_p1_{lam}")
    vm0, lg0, cur0, ever0 = list(a.vm), list(a.lg), cur[0], set(a.ever)
    end_state = None
    a.lg_low = 7
    for lam in range(4):
        a.vm, a.lg, cur[0], a.ever = list(vm0), list(lg0), cur0, set(ever0)
        a.label(f"L_p1_{lam}")
        order, extras = sched(lam, opt)
        consume = {}; wslot = {}; free_at = {"k0": -9, "k1": -9}
        stream = []
        pend = {}
        non_stage = max(extras)
        lq = list(lateq)
        for p in range(2, 16):
            c = order[p]
            lead = (c & 3) == lam
            for j in range(4): stream.append((lambda j=j, c=c, p=p: dma_x(p, j, c), opt.wm if lead and c < 8 else 1.0, p - 3, p - 2, None))
            for j in range(4): stream.append((lambda j=j, c=c, p=p: dma_wq(p, j, c), opt.wm if lead else 1.0, p - 3, p - 2, p))
            for pc in extras.get(p - 2, []):
                if pc[0] == "W":
                    sl = min(free_at, key=free_at.get); wslot[pc] = sl
                    cs = p + 1; consume.setdefault(cs, []).append(pc)
                else:
                    sl = "k" + pc[1]
                    other = [st for st, l in extras.items() for q in l if q[0] == pc[0]]
                    cs = max(other) + 3
                    if pc[1] == "1": consume.setdefault(cs, []).append(pc[0])
                e = free_at[sl]; assert e <= p - 2, (lam, pc, p, free_at)
                free_at[sl] = cs + 1
                for j in range(4):
                    fn = (lambda pc=pc, j=j: dma_wo(int(pc[1]), j, wslot[pc])) if pc[0] == "W" else (lambda pc=pc, j=j: dma_kv(pc, j))
                    stream.append((fn, opt.wm, max(e, 0 if pc[0] != "W" else 4), p - 2, None))
            if p - 2 == non_stage:
                stream.append((lambda: a.vmem(f"buffer_load_dword v{VNON}, v{TT+1}, {srd(SDBG)}, 0 offen sc1", "nonce"), 0.2, 4, p - 2, None))
                stream.append((lambda: a.vmem(f"buffer_load_dword v{TT+2}, v{TT+1}, {srd(SWS)}, s{S_FOW} offen", "touch"), 0.2, 4, p - 2, None))
        assert max(free_at.values()) <= 15
        for k in range(opt.n14):
            pos, j, sl = lq.pop(0)
            stream.append((lambda pos=pos, j=j, sl=sl: dma_wo(pos, j, sl), opt.wm, avail[sl], 14, None))
        fill = list(FILL)
        endidx = {}
        cnt = 0
        for it in stream:
            cnt += 1
            if it[4] is not None: endidx[it[4]] = cnt
        total = len(stream)
        unit = 32.0 / opt.bud
        clock = 0.0
        comp = [unit * opt.wm * (i + 1 - 8) for i in range(16)]
        posdone = {0: 0.0, 1: comp[15]}
        issued = 0
        def outstanding(): return sum(1 for c_ in comp if c_ > clock)
        def issue():
            nonlocal clock, issued
            fn, w, e, d, tagp = stream.pop(0); assert e <= s, (lam, s, e)
            if outstanding() >= opt.qmax: clock = comp[-opt.qmax]
            fn(); issued += 1
            comp.append(max(comp[-1], clock + opt.lat - unit * w) + unit * w)
            if tagp is not None: posdone[tagp] = comp[-1]
        for s in range(16):
            a.c(f"---- class {lam} stage {s} chunk {order[s]}")
            if a.lg: a.wait_lg_all()
            a.wait_vm(("st", s))
            a("s_barrier")
            stamp(a, 1 + s, opt)
            clock = max(clock, posdone[s])
            lw = []
            for pc in consume.get(s, []):
                assert not fill or len(FILL) - len(fill) > 60
                if pc == "K": lw += k_items()
                elif pc == "V": lw += v_items()
                else: lw += tr_wo_items(int(pc[1]), wslot[pc])
            nl = len(lw)
            target = min(total, (endidx.get(s + 1, 0) if s + 1 < 16 else total) + opt.ahead) if s < 14 else total
            while target > issued and stream[target - issued - 1][2] > s: target -= 1
            start = issued
            gap = 0
            for t in range(2):
                n = 2 * s + t
                rd = reads(n); nrd = len(rd)
                for k in range(16):
                    if n > 0: mfma(n - 1, k)
                    span = 16 if t == 0 else opt.rspan
                    while rd and nrd - len(rd) < ((k + 1) * nrd + span - 1) // span: a.lds(*rd.pop(0))
                    gap += 1
                    clock += 1
                    did = False
                    if stream and stream[0][2] <= s and outstanding() < opt.qopp:
                        issue(); did = True
                    while target - issued > 32 - gap:
                        issue(); did = True
                    while lw and nl - len(lw) < (gap * nl) // 26: lw.pop(0)(); did = True
                    if fill and not did:
                        for _ in range(3 if n == 0 else 1):
                            if fill: a(fill.pop(0))
            assert not lw
            if opt.verbose: print(f"class {lam} stage {s}: {issued - start} dma clock {clock:.0f}", file=sys.stderr)
        assert not stream
        assert not fill
        st_ = (list(a.vm), list(a.lg), cur[0])
        if end_state is None: end_state = st_
        assert end_state == st_, (end_state, st_)
        if lam < 3: a("s_branch L_common")
    a.label("L_common")
    a.lg_low = 12
    natt = [opt.natt]
    def ad(lim=16):
        if natt[0] > 0 and lq and avail[lq[0][2]] <= lim:
            natt[0] -= 1
            return dma_wo(*lq.pop(0))
        return 0
    def pad(n):
        while n > 0:
            k = min(n, 8); a(f"s_nop {k-1}"); n -= k
    assert "nonce" not in a.vm
    def cvt4(dst, u, nt):
        for hh in range(2):
            t = ACC + 8*(2*u+hh) + 4*nt
            a(f"v_cvt_pk_bf16_f32 v{dst+2*hh}, v{t}, v{t+1}")
            a(f"v_cvt_pk_bf16_f32 v{dst+2*hh+1}, v{t+2}, v{t+3}")
    qp = lambda u, nt: QP + 8*u + 4*nt
    CS = 128 ** -0.5 * 1.4426950408889634
    for k in range(16):
        mfma(31, k)
        if k == 0: a(f"v_readfirstlane_b32 s{S_NONCE}, v{VNON}")
        if k == 1: a(f"s_mov_b32 s{T+2}, {f32(CS)}")
        if k in (2, 6): ad(15)
        if k == 11: cvt4(qp(0,0), 0, 0)
        if k == 13: cvt4(qp(0,1), 0, 1)
        if k == 15: cvt4(qp(1,0), 1, 0)
    if a.lg: a.wait_lg_all()
    stamp(a, 17, opt)
    a.c("---- attention")
    cvt4(qp(1,1), 1, 1)
    ss = lambda kt, nt: SS + 8*nt + 4*kt
    def smf(u, kt, nt):
        d = vr(ss(kt, nt), 4)
        a(f"{M16} {d}, {vr(KF+16*kt+4*u,4)}, {vr(qp(u,nt),4)}, {'0' if u == 0 else d}")
    def cvt2(dst, u, nt, hh):
        t = ACC + 8*(2*u+hh) + 4*nt
        a(f"v_cvt_pk_bf16_f32 v{dst+2*hh}, v{t}, v{t+1}")
        a(f"v_cvt_pk_bf16_f32 v{dst+2*hh+1}, v{t+2}, v{t+3}")
    cv = [(u, nt, hh) for u in (2, 3) for nt in range(2) for hh in range(2)]
    for u in range(4):
        for nt in range(2):
            for kt in range(2):
                smf(u, kt, nt)
                if cv:
                    uu, n2, hh = cv.pop(0); cvt2(qp(uu, n2), uu, n2, hh)
                elif (u, nt, kt) in ((2, 0, 1), (3, 0, 1)): ad()
    pad(8 - 2 - ad())
    for nt in range(2):
        b = SS + 8*nt
        a(f"v_max3_f32 v{240+nt}, v{b}, v{b+1}, v{b+2}")
        a(f"v_max3_f32 v{242+nt}, v{b+3}, v{b+4}, v{b+5}")
        a(f"v_max3_f32 v{240+nt}, v{240+nt}, v{b+6}, v{b+7}")
        a(f"v_max_f32 v{240+nt}, v{240+nt}, v{242+nt}")
    def xred(op):
        pad(2 - ad())
        a("v_permlane32_swap_b32 v240, v241")
        a("s_nop 0")
        a(f"{op} v240, v240, v241")
        a("v_mov_b32 v241, v240")
        a("s_nop 1")
        a("v_permlane16_swap_b32 v240, v241")
        a("s_nop 0")
        a(f"{op} v240, v240, v241")
    xred("v_max_f32")
    a(f"v_mul_f32 v240, s{T+2}, v240")
    a("v_mov_b32 v241, v240")
    a("s_nop 1")
    a("v_permlane32_swap_b32 v240, v241")
    a("s_nop 0")
    for k in range(16):
        a(f"v_fma_f32 v{SS+k}, v{SS+k}, s{T+2}, -v{240+(k>>3)}")
    ad()
    for k in range(16):
        a(f"v_exp_f32 v{SS+k}, v{SS+k}")
        if k == 7: ad()
    for k in range(1, 8):
        for nt in range(2):
            b = SS + 8*nt
            a(f"v_add_f32 v{240+nt}, v{b if k == 1 else 240+nt}, v{b+k}")
    xred("v_add_f32")
    a("v_rcp_f32 v240, v240")
    a("s_nop 0")
    a("v_mov_b32 v241, v240")
    a("s_nop 1")
    a("v_permlane32_swap_b32 v240, v241")
    a("s_nop 0")
    for nt in range(2):
        for k in range(8):
            a(f"v_mul_f32 v{SS+8*nt+k}, v{SS+8*nt+k}, v{240+nt}")
        for p in range(4):
            a(f"v_cvt_pk_bf16_f32 v{PP+4*nt+p}, v{SS+8*nt+2*p}, v{SS+8*nt+2*p+1}")
    def pv(i, nt):
        a(f"{M16} {vr(ACC+8*i+4*nt,4)}, {vr(VF+4*i,4)}, {vr(PP+4*nt,4)}, 0")
    def ost(u, nt):
        blk = 2*u + nt
        a.vmem(f"buffer_store_dwordx4 {vr(qp(u,nt),4)}, v{VL16}, {srd(SWS)}, s{S_OW[blk>>2]} offen offset:{(blk&3)*1024} sc1", "o")
    seq = [(i, nt) for nt in range(2) for i in range(8)]
    ev = [(u, nt, hh) for nt in range(2) for u in range(4) for hh in range(2)]
    for k, (i, nt) in enumerate(seq):
        pv(i, nt)
        if k in (1, 4): ad()
        if k >= 8:
            u, n2, hh = ev.pop(0); cvt2(qp(u, n2), u, n2, hh)
            if hh: ost(u, n2)
    while ev:
        u, n2, hh = ev.pop(0); cvt2(qp(u, n2), u, n2, hh)
        if hh: ost(u, n2)
    stamp(a, 18, opt)
    a("s_barrier")
    VL = 2; VRR = 3; VRW = [8, 9, 10]; VOUT = 11; VZ = 12; VNV = 13; VFL = 14; VFA = 15; VLO = 15
    nfirst = min(len(rest), len(late_slots))
    slot_of = {rest[i]: late_slots[i] for i in range(nfirst)}
    for _ in range(opt.pre_flag):
        if lq: dma_wo(*lq.pop(0))
    a(f"s_cmp_lg_u32 s{S_NONCE}, 0")
    a("s_cbranch_scc1 L_havenonce")
    a(f"s_mov_b32 s{S_CNT}, 0")
    a("v_mov_b32 v240, 0")
    a.label("L_nonce_spin")
    a(f"buffer_load_dword v{VNON}, v240, {srd(SDBG)}, 0 offen sc1")
    a("s_waitcnt vmcnt(0)")
    a(f"v_readfirstlane_b32 s{S_NONCE}, v{VNON}")
    a(f"s_add_u32 s{S_CNT}, s{S_CNT}, 1")
    a(f"s_cmp_gt_u32 s{S_CNT}, {SPIN_MAX}")
    a("s_cbranch_scc1 L_havenonce")
    a(f"s_cmp_eq_u32 s{S_NONCE}, 0")
    a("s_cbranch_scc1 L_nonce_spin")
    a.label("L_havenonce")
    a(f"v_mov_b32 v{VL}, v{VL16}")
    for sl in range(1, 4):
        a(f"s_add_u32 s{T}, s{S_W}, {sl}")
        a(f"s_and_b32 s{T}, s{T}, 3")
        a(f"s_mul_i32 s{T}, s{T}, 12288")
        a(f"s_add_u32 s{T}, s{T}, {(sl-1)*4096}")
        a(f"v_add_u32 v{VRW[sl-1]}, s{T}, v{VL16}")
    a(f"s_mul_i32 s{T}, s{S_W}, 12288")
    a(f"v_add_u32 v{VRR}, s{T}, v{VL16}")
    if opt.fl4:
        a(f"v_lshrrev_b32 v{VZ}, 3, v0")
        a(f"v_lshlrev_b32 v{VZ}, 25, v{VZ}")
        a(f"v_lshl_add_u32 v{VZ}, v0, 4, v{VZ}")
        for e in range(4): a(f"v_mov_b32 v{236+e}, s{S_NONCE}")
    else:
        a(f"v_lshrrev_b32 v{VZ}, 5, v0")
        a(f"v_lshlrev_b32 v{VZ}, 25, v{VZ}")
        a(f"v_lshl_add_u32 v{VZ}, v0, 2, v{VZ}")
    a(f"v_mov_b32 v{VNV}, s{S_NONCE}")
    a(f"v_and_b32 v{VFA}, 7, v0")
    a(f"v_lshlrev_b32 v{VFA}, 7, v{VFA}")
    a(f"v_and_b32 v{VOUT}, 31, v0")
    a(f"v_lshlrev_b32 v{VOUT}, 12, v{VOUT}")
    a(f"v_lshrrev_b32 v240, 5, v0")
    a(f"v_lshl_add_u32 v{VOUT}, v240, 4, v{VOUT}")
    a(f"v_and_b32 v241, 15, v0")
    a(f"v_lshlrev_b32 v241, 4, v241")
    a(f"v_lshl_add_u32 v241, v240, 8, v241")
    a(f"v_bfe_u32 v240, v0, 4, 1")
    a(f"v_lshl_add_u32 v241, v240, 10, v241")
    ri = nfirst
    resident = list(w_early)
    free_slots = []
    def issued_fully(pos): return pos in slot_of and not any(q[0] == pos for q in lq)
    def assign_more():
        nonlocal ri
        while ri < len(rest) and free_slots:
            sl = free_slots.pop(0); slot_of[rest[ri]] = sl
            for j in range(4): lq.append((rest[ri], j, sl))
            ri += 1
    def tr_piece(pos):
        for g in tr_wo_items(pos, slot_of[pos]): g()
        resident.append(pos); free_slots.append(slot_of[pos])
    todo = list(rest)
    while todo and issued_fully(todo[0]) and a._cnt(a.vm, ("wo", todo[0])) < a.vm.index("o"):
        tr_piece(todo.pop(0))
    if a.lg: a.wait_lg_all()
    assign_more()
    a.wait_vm("o")
    if opt.fl4: a.vmem(f"buffer_store_dwordx4 v[236:239], v{VZ}, {srd(SWS)}, s{S_FOW} offen sc1", "flag")
    else: a.vmem(f"buffer_store_dword v{VNV}, v{VZ}, {srd(SWS)}, s{S_FOW} offen sc1", "flag")
    stamp(a, 19, opt)
    if opt.diag:
        a.wait_vm_all(); stamp(a, 32, opt)
        a(f"s_mov_b32 s{S_CNT}, 0")
        a.label("L_dp")
        a(f"buffer_load_dword v{VFL}, v{VFA}, {srd(SWS)}, s{S_FOR} offen sc1")
        a("s_waitcnt vmcnt(0)")
        a(f"v_cmp_ne_u32 vcc, s{S_NONCE}, v{VFL}")
        a(f"s_add_u32 s{S_CNT}, s{S_CNT}, 1")
        a(f"s_cmp_gt_u32 s{S_CNT}, {SPIN_MAX}")
        a(f"s_cbranch_scc1 L_dpd")
        a("s_nop 1")
        a(f"s_cbranch_vccnz L_dp")
        a.label("L_dpd")
        stamp(a, 33, opt)
        for k in range(5):
            for _ in range(8):
                if lq: dma_wo(*lq.pop(0))
            a("s_waitcnt vmcnt(0)")
            stamp(a, 34 + k, opt)
    if opt.pipe:
        nis = 0; polled = False
        def inflight(): return sum(1 for p in todo if issued_fully(p))
        while lq or ri < len(rest):
            if lq and inflight() < opt.pipe:
                for _ in range(4): dma_wo(*lq.pop(0))
                nis += 1
                if nis == opt.poll_at:
                    a.vmem(f"buffer_load_dword v{VFL}, v{VFA}, {srd(SWS)}, s{S_FOR} offen sc1", "poll"); polled = True
            else:
                tr_piece(todo.pop(0))
                if ri < len(rest) and len(lq) <= 4:
                    a.wait_lg_all(); assign_more()
        if not polled: a.vmem(f"buffer_load_dword v{VFL}, v{VFA}, {srd(SWS)}, s{S_FOR} offen sc1", "poll")
    else:
        for _ in range(opt.pre_poll):
            if lq: dma_wo(*lq.pop(0))
        a.vmem(f"buffer_load_dword v{VFL}, v{VFA}, {srd(SWS)}, s{S_FOR} offen sc1", "poll")
        for _ in range(opt.post_poll):
            if lq: dma_wo(*lq.pop(0))
        while todo and issued_fully(todo[0]) and a._cnt(a.vm, ("wo", todo[0])) < a.vm.index("poll"):
            tr_piece(todo.pop(0))
        if a.lg: a.wait_lg_all()
        assign_more()
    S_OS = S_QW
    def obase(n):
        a(f"s_lshl_b32 s{T+2}, s{S_Q[n]}, 18")
        a(f"s_add_u32 s{T+2}, s{T+2}, s{S_OB}")
        for jg in range(4): a(f"s_add_u32 s{S_OS[jg]}, s{T+2}, s{S_OG[jg]}")
    obase(0)
    stamp(a, 20, opt)
    a(f"s_mov_b32 s{S_CNT}, 0")
    a.wait_vm("poll")
    a.label("L_pollo")
    a(f"v_cmp_ne_u32 vcc, s{S_NONCE}, v{VFL}")
    a(f"s_add_u32 s{S_CNT}, s{S_CNT}, 1")
    a(f"s_cmp_gt_u32 s{S_CNT}, {SPIN_MAX}")
    a(f"s_cbranch_scc1 L_pollo_done")
    a("s_nop 1")
    a(f"s_cbranch_vccz L_pollo_done")
    a(f"buffer_load_dword v{VFL}, v{VFA}, {srd(SWS)}, s{S_FOR} offen sc1")
    a("s_waitcnt vmcnt(0)")
    a("s_branch L_pollo")
    a.label("L_pollo_done")
    if opt.stamps: a(f"v_writelane_b32 v{VSTAMP}, s{S_CNT}, 62")
    stamp(a, 21, opt)
    assert ri == len(rest)
    AC = 16; TMP = 80; OF = [128, 192]
    def load_o(n, f):
        a.vmem(f"buffer_load_dwordx4 {vr(OF[n&1]+4*f,4)}, v{VLO}, {srd(SWS)}, s{S_OS[f>>2]} offen offset:{((f&3)>>1)*2048 + (f&1)*512} sc1", ("o", n, f))
    a(f"v_mov_b32 v{VLO}, v241")
    korder0 = resident + todo
    assert sorted(korder0) == list(range(16))
    INIT = opt.init_o
    for f in korder0[:INIT]: load_o(0, f)
    while todo and issued_fully(todo[0]): tr_piece(todo.pop(0))
    NG = opt.fmt
    assert NG == 2
    PT = OF[0]; PK = TMP + 16; PU = PT + 40; PS = PT + 44; S_HSEL = S_HX
    S_SEL = [S_QX[0], S_QX[1]]; S_ZSEL = S_QX[2]; S_M3 = S_QX[3]; S_MSK = S_HW
    VBAD, VPL = 12, 14
    VTG = [4, 5, 6, 7]
    dslot = [0, 1, 2, 4, 5, 6, 8, 9] if NG == 3 else list(range(8))
    PL = 131072
    def wr(n, sl, j):
        a.lds(f"ds_write_b128 v{VRW[sl-1]}, {vr(AC+16*sl+4*j,4)} offset:{(n&1)*49152 + j*1024}", "rw")
    def rd(n, k):
        a.lds(f"ds_read_b128 {vr(TMP+4*k,4)}, v{VRR} offset:{(n&1)*49152 + k*1024}", ("rr", k))
    def presum(src, j):
        a.wait_lg([("rr", j), ("rr", 4*src+j)])
        for e in range(4): a(f"v_add_f32 v{TMP+4*j+e}, v{TMP+4*j+e}, v{TMP+16*src+4*j+e}")
    def fin(j):
        for e in range(4): a(f"v_add_f32 v{TMP+4*j+e}, v{TMP+4*j+e}, v{AC+4*j+e}")
    def pack_items(gr):
        if NG == 3:
            def g():
                for p in range(3*gr, min(3*gr+3, 8)):
                    a(f"v_cvt_pk_bf16_f32 v{PK+dslot[p]}, v{TMP+2*p}, v{TMP+2*p+1}")
                a(f"v_mov_b32 v{PK+4*gr+3}, s{S_NONCE}")
                if gr == 2: a(f"v_mov_b32 v{PK+10}, s{S_NONCE}")
            return [g]
        def g1():
            for p in range(4*gr, 4*gr+4): a(f"v_perm_b32 v{PK+p}, v{TMP+2*p+1}, v{TMP+2*p}, s{S_HSEL}")
        def g2():
            for p in range(4*gr, 4*gr+4): a(f"v_bfi_b32 v{PK+p}, s{S_MSK}, v{VTG[p&3]}, v{PK+p}")
        return [g1, g2]
    def pst(n, j):
        if j == 0:
            a(f"s_lshl_b32 s{T+3}, s{S_Q[n]}, 15")
            a(f"s_add_u32 s{T+3}, s{T+3}, s{S_PB}")
        a.vmem(f"buffer_store_dwordx4 {vr(PK+4*j,4)}, v{VL}, {srd(SWS)}, s{T+3} offen offset:{j*1024} sc1", ("p", n))
    def pld(k, j, track=True):
        if j == 0:
            a(f"s_lshl_b32 s{T+4}, s{S_Q[k]}, 13")
            a(f"s_add_u32 s{T+4}, s{T+4}, s{S_PR}")
        ins = f"buffer_load_dwordx4 {vr(PT+12*k+4*j,4)}, v{VL}, {srd(SWS)}, s{T+4} offen offset:{j*1024} sc1"
        if track: a.vmem(ins, ("pp", k))
        else: a(ins)
    def chk_items(k):
        b = PT + 12*k
        if NG == 3:
            def g():
                a(f"v_xor_b32 v{VBAD}, s{S_NONCE}, v{b+3}")
                a(f"v_bitop3_b32 v{VBAD}, v{VBAD}, v{b+7}, s{S_NONCE} bitop3:0xf6")
                a(f"v_bitop3_b32 v{VBAD}, v{VBAD}, v{b+11}, s{S_NONCE} bitop3:0xf6")
                a(f"v_cmp_ne_u32 vcc, 0, v{VBAD}")
            return [g]
        def g1():
            a(f"v_xor_b32 v{VBAD}, v{VTG[0]}, v{b}")
            for p in range(1, 5): a(f"v_bitop3_b32 v{VBAD}, v{VBAD}, v{b+p}, v{VTG[p&3]} bitop3:0xf6")
        def g2():
            for p in range(5, 8): a(f"v_bitop3_b32 v{VBAD}, v{VBAD}, v{b+p}, v{VTG[p&3]} bitop3:0xf6")
            a(f"v_and_b32 v{VBAD}, s{S_MSK}, v{VBAD}")
            a(f"v_cmp_ne_u32 vcc, 0, v{VBAD}")
        return [g1, g2]
    def mid_items(k):
        if NG == 3: return []
        def g(h):
            for p in range(4*h, 4*h+4): a(f"v_or_b32 v{PT+12*k+p}, s{S_MSK}, v{PT+12*k+p}")
        return [lambda: g(0), lambda: g(1)]
    def sel(k):
        a("s_cmp_eq_u64 vcc, 0")
        a(f"s_cselect_b32 s{S_SEL[0]}, 0x01000c0c, s{S_ZSEL}")
        a(f"s_cselect_b32 s{S_SEL[1]}, 0x03020c0c, s{S_ZSEL}")
        a(f"s_cselect_b32 s{T+5}, {1<<k}, 0")
        a(f"s_or_b32 s{S_DONE}, s{S_DONE}, s{T+5}")
    def unp_set(k, p2):
        for p in (2*p2, 2*p2+1):
            for h in range(2):
                d = PT + 12*k + dslot[p]
                a(f"v_perm_b32 v{PS+2*p+h}, v{d}, v{d}, s{S_SEL[h]}")
    def unp_add(k, p, dst):
        d = PT + 12*k + dslot[p]
        for h in range(2): a(f"v_perm_b32 v{PU+h}, v{d}, v{d}, s{S_SEL[h]}")
        for h in range(2): a(f"v_add_f32 v{dst+2*p+h}, v{dst+2*p+h}, v{PU+h}")
    def bar():
        if a.lg: a.wait_lg_all()
        a("s_barrier")
    def consts():
        a(f"s_mov_b32 s{S_ZSEL}, 0x0c0c0c0c")
        a(f"s_mov_b32 s{S_DONE}, 0")
        a(f"s_add_u32 s{S_M3}, s{S_MK}, {PL}")
        a(f"v_add_u32 v{VPL}, s{S_M3}, v{VL}")
        a(f"s_mov_b32 s{S_MSK}, 0x00010001")
        a(f"s_mov_b32 s{S_HSEL}, 0x07060302")
    def tags(h):
        if h == 0:
            a(f"v_and_b32 v{VTG[0]}, 3, v0")
            a(f"v_lshlrev_b32 v{VTG[0]}, 2, v{VTG[0]}")
            a(f"v_lshrrev_b32 v{VTG[0]}, v{VTG[0]}, v{VNV}")
        else:
            for p in range(1, 4): a(f"v_lshrrev_b32 v{VTG[p]}, {p}, v{VTG[0]}")
    consts()
    carry = []
    ro = [0, 4, 8, 1, 5, 9, 2, 6, 10, 3, 7, 11]
    ps = [(src, j) for j in range(4) for src in (1, 2)]
    packs = lambda: [g for gr in range(NG) for g in pack_items(gr)]
    for n in range(4):
        a.c(f"---- strip {n}")
        allres = not todo and not lq if n == 0 else allres
        if n == 0 and allres: seq = [(ks, sl) for ks in korder0 for sl in (1, 2)] + [(ks, sl) for sl in (3, 0) for ks in korder0]
        elif n == 0: seq = [(ks, sl) for ks in korder0 for sl in (1, 2, 3)] + [(ks, 0) for ks in korder0]
        elif n == 1: seq = [(ks, sl) for ks in range(16) for sl in (1, 2)] + [(ks, sl) for sl in (3, 0) for ks in range(16)]
        else: seq = [(ks, sl) for sl in (1, 2, 3, 0) for ks in range(16)]
        at = {}
        def put(g, fn): at.setdefault(g, []).append(fn)
        for g, fn in carry: put(g, fn)
        carry = []
        if n == 0:
            mq = []
            of = korder0[INIT:]
            wl = list(lq); lq.clear()
            while of or wl:
                for _ in range(opt.mq_w):
                    if wl: mq.append(lambda w=wl.pop(0): dma_wo(*w))
                if of: mq.append(lambda f=of.pop(0): load_o(0, f))
            g = 0
            for fn in mq:
                put(g // opt.mq_den, fn); g += opt.mq_num
            gq = g // opt.mq_den + 1
            for i, pos in enumerate(korder0):
                if pos in todo:
                    its = tr_wo_items(pos, slot_of[pos])
                    for k2, fn in enumerate(its): put(3 * i - 4 + (k2 >> 1), fn)
            if todo: gq = max(gq, 20)
            def place(g, fn):
                if g < 64: put(g, fn)
                else: carry.append((g - 64, fn))
            g = gq - 1
            place(g, lambda: obase(1)); g += 1
            for f in range(16): place(g, lambda f=f: load_o(1, f)); g += 2
            g = max(g, 65)
            g += (g & 1) ^ 1
            place(g, lambda: obase(2)); g += 1
            for f in range(16): place(g, lambda f=f: load_o(2, f)); g += 2
            place(g - 1, lambda: obase(3))
            gend = g - 64
            g = 1
            if allres:
                put(32, bar)
                put(33, lambda: tags(0) or a("s_nop 0"))
                put(34, lambda: tags(1))
                for i, (sl, j) in enumerate([(sl, j) for sl in (1, 2) for j in range(4)]): put(36 + i + (i >> 1), lambda sl=sl, j=j: wr(n, sl, j))
                put(48, lambda: a("s_nop 3"))
                put(49, lambda: a("s_nop 4"))
                for j in range(4): put(50 + 2 * j, lambda j=j: wr(n, 3, j))
                put(58, bar)
                for i in range(6): put(58 + i, lambda i=i: (rd(0, ro[2*i]), rd(0, ro[2*i+1])))
            else:
                put(47, bar)
                put(48, lambda: tags(0) or a("s_nop 0"))
                put(49, lambda: tags(1))
                for i, (sl, j) in enumerate([(sl, j) for sl in (1, 2) for j in range(4)]): put(50 + i + (i >> 1), lambda sl=sl, j=j: wr(n, sl, j))
                put(62, lambda: wr(0, 3, 0))
                put(63, lambda: a.wait_lg_all())
                for j in range(1, 4): carry.append((2 * j - 1, lambda j=j: wr(0, 3, j)))
                carry.append((7, bar))
                g = 7
                for i in range(6):
                    carry.append((g, lambda i=i: (rd(0, ro[2*i]), rd(0, ro[2*i+1])))); g += 1
            work = [lambda i=i: presum(*ps[i]) for i in range(8)] + [lambda j=j: fin(j) for j in range(4)] + packs()
            for fn in work: carry.append((g, fn)); g += 2
            assert g <= 47
            gs = max(gend, g)
            assert gs + NG <= 58, gs
            for j in range(NG): carry.append((gs + j, lambda j=j: pst(0, j)))
            left = []
        else:
            fast = n >= 2
            if n == 1:
                for i, (sl, j) in enumerate([(sl, j) for sl in (1, 2) for j in range(4)]): put(36 + i + (i >> 1), lambda sl=sl, j=j: wr(n, sl, j))
            else:
                if n == 2:
                    for f in range(16): put(opt.g_o3 + 2 * f, lambda f=f: load_o(3, f))
                    def pdma(j):
                        if j == 0:
                            a(f"s_lshl_b32 s{T+4}, s{S_Q[2]}, 13")
                            a(f"s_mov_b32 m0, s{S_M3}")
                            a(f"s_add_u32 s{T+4}, s{T+4}, s{S_PR}")
                        a.vmem(f"buffer_load_dwordx4 v{VL}, {srd(SWS)}, s{T+4} offen offset:{j*1024} sc1 lds", "pdma")
                    for j in range(NG): put(opt.g_p2 + 2 * j, lambda j=j: pdma(j))
                for j in range(4): put(32 + 2 * j, lambda j=j: wr(n, 1, j))
                for j in range(4): put(41 + 2 * j, lambda j=j: wr(n, 2, j))
            put(48, lambda: a("s_nop 3"))
            put(49, lambda: a("s_nop 4" if n == 1 else "s_nop 3"))
            if fast:
                for j in range(4): put(50 + j, lambda j=j: wr(n, 3, j))
                gb = 55
            else:
                for j in range(4): put(50 + 2 * j, lambda j=j: wr(n, 3, j))
                gb = 58
            put(gb, bar)
            for i in range(6):
                put(gb + i, lambda i=i: (rd(n, ro[2*i]), rd(n, ro[2*i+1])))
            npre_s = 63 - (gb + 5)
            for i in range(npre_s): put(gb + 6 + i, lambda i=i: presum(*ps[i]))
            left = [lambda i=i: presum(*ps[i]) for i in range(npre_s, 8)]
            if n == 1:
                g = 1
                for fn in left + [lambda j=j: fin(j) for j in range(4)] + packs(): carry.append((g, fn)); g += 2
                assert opt.g_s1 >= g - 2, g
                for j in range(NG): carry.append((opt.g_s1 + 2 * j, lambda j=j: pst(1, j)))
            if n == 2:
                g = NG if opt.g_p1 == 0 else 0
                for fn in left + [lambda j=j: fin(j) for j in range(4)]: carry.append((g, fn)); g += 1
                for j in range(NG):
                    for fn in pack_items(j): carry.append((g, fn)); g += 1
                    carry.append((g, lambda j=j: pst(2, j))); g += 1
                gfree = g
            if n == 3:
                for j in range(NG): put(opt.g_p1 + j, lambda j=j: pld(1, j))
                def prd():
                    a.wait_vm("pdma")
                    for j in range(NG):
                        a.lds(f"ds_read_b128 {vr(PT+24+4*j,4)}, v{VPL} offset:{j*1024}", "prd")
                g = gfree
                put(g - 3, prd)
                put(g, lambda: a.wait_lg("prd"))
                for fn in chk_items(2): put(g, fn); g += 1
                put(g, lambda: sel(2)); g += 1
                for fn in mid_items(2): put(g, fn); g += 1
                for p2 in range(4): put(g, lambda p2=p2: unp_set(2, p2)); g += 1
                g = max(g, opt.g_c1)
                put(g, lambda: a.wait_vm(("pp", 1)))
                for fn in chk_items(1): put(g, fn); g += 1
                put(g, lambda: sel(1)); g += 1
                for fn in mid_items(1) + [lambda p=p: unp_add(1, p, PS) for p in range(8)]:
                    while g in (32, 34, 36, 38, 41, 43, 45, 47) or 50 <= g <= 53: g += 1
                    put(g, fn); g += 1
                assert g <= 56, g
                for j in range(NG): put(opt.g_p0 + j, lambda j=j: pld(0, j))
        seen = set()
        if n >= 2: a.wait_vm(("o", n, 15))
        for g, (ks, sl) in enumerate(seq):
            if ks not in seen:
                a.wait_vm(("o", n, ks)); seen.add(ks)
                if n == 0: a.wait_lg(("wo", ks))
            first = (ks == korder0[0]) if n == 0 else (ks == 0)
            c = "0" if first else vr(AC+16*sl, 16)
            if opt.fakeB:
                q = 8 * (g & 1)
                k2 = (ks ^ 1) if (ks ^ 1) in seen else ks
                d0, d1 = vr(AC+16*sl+q, 4), vr(AC+16*sl+q+4, 4)
                z = g % 16 < 2 and n > 0 and False
                a(f"{M16} {d0}, {ar(16*ks+4*sl,4)}, {vr(OF[n&1]+4*ks,4)}, {'0' if first else d0}")
                p0 = len(a.L)
                for fn in at.get(g, []): fn()
                mid = p0 + (len(a.L) - p0) // 2
                a.L.insert(mid, f"    {M16} {d1}, {ar(16*ks+4*sl,4)}, {vr(OF[n&1]+4*k2,4)}, {'0' if first else d1}")
            else:
                a(f"{MF} {vr(AC+16*sl,16)}, {ar(16*ks+4*sl,4)}, {vr(OF[n&1]+4*ks,4)}, {c}")
                for fn in at.get(g, []): fn()
            if n == opt.sst and g % 8 == 7 and g < 63: stamp(a, 32 + g // 8, opt)
        stamp(a, 22 + n, opt)
    for fn in left: fn()
    for j in range(4): fin(j)
    a(f"s_mov_b32 s{S_SEL[0]}, 0x01000c0c")
    a(f"s_mov_b32 s{S_SEL[1]}, 0x03020c0c")
    stamp(a, 26, opt)
    a(f"s_mov_b32 s{S_CNT}, 0")
    for k in (0, 1, 2):
        if k:
            a(f"s_bitcmp1_b32 s{S_DONE}, {k}")
            a(f"s_cbranch_scc1 L_skip{k}")
            a(f"s_branch L_rel{k}")
        else:
            a.wait_vm(("pp", 0))
        a.label(f"L_chk{k}")
        for fn in chk_items(k): fn()
        a(f"s_add_u32 s{S_CNT}, s{S_CNT}, 1")
        a(f"s_cmp_gt_u32 s{S_CNT}, {SPIN_MAX}")
        a(f"s_cbranch_scc1 L_ok{k}")
        a("s_nop 1")
        a(f"s_cbranch_vccz L_ok{k}")
        a.label(f"L_rel{k}")
        for j in range(NG): pld(k, j, track=False)
        a("s_waitcnt vmcnt(0)")
        a(f"s_branch L_chk{k}")
        a.label(f"L_ok{k}")
        for fn in mid_items(k): fn()
        for p in range(8): unp_add(k, p, PS)
        a.label(f"L_skip{k}")
    for e in range(16): a(f"v_add_f32 v{TMP+e}, v{TMP+e}, v{PS+e}")
    stamp(a, 27, opt)
    for p in range(8):
        a(f"v_cvt_pk_bf16_f32 v{AC+p}, v{TMP+2*p}, v{TMP+2*p+1}")
    a(f"buffer_store_dwordx4 {vr(AC,4)}, v{VOUT}, {srd(SOUT)}, s{S_OUTB} offen")
    a(f"buffer_store_dwordx4 {vr(AC+4,4)}, v{VOUT}, {srd(SOUT)}, s{S_OUTB} offen offset:32")
    if opt.stamps:
        a("s_waitcnt vmcnt(0)")
        stamp(a, 28, opt)
        a(f"v_writelane_b32 v{VSTAMP}, s{S_CNT}, 63")
        dump_stamps(a, opt)
    if opt.amp:
        a("s_waitcnt vmcnt(0)")
        stamp(a, 28, opt)
        a("s_nop 1")
        a(f"v_readlane_b32 s4, v{VSTAMP}, 0")
        a(f"v_readlane_b32 s5, v{VSTAMP}, 1")
        a("s_memrealtime s[30:31]")
        a("s_waitcnt lgkmcnt(0)")
        a("s_sub_u32 s5, s5, s4")
        a("s_min_u32 s5, s5, 10000")
        a("s_lshl_b32 s5, s5, 3")
        a("s_add_u32 s6, s30, s5")
        a.label("L_amp")
        a("s_sleep 1")
        a("s_memrealtime s[30:31]")
        a("s_waitcnt lgkmcnt(0)")
        a("s_sub_u32 s7, s30, s6")
        a("s_cmp_lt_i32 s7, 0")
        a("s_cbranch_scc1 L_amp")
    a.label(end)
    a("s_endpgm")
    a.label("L_codeend")

Opt.fill0 = 12
Opt.rest = ""
Opt.wm = 2.2
Opt.bud = 9.6
Opt.ahead = 8
Opt.qmax = 10
Opt.qopp = 8
Opt.lat = 20.0
Opt.verbose = False
Opt.pipe = 3
Opt.poll_at = 10
Opt.fakeB = False
Opt.fakeD = False
Opt.amp = ""
Opt.fl4 = False
Opt.ptouch = 0
Opt.pt_stage = 14
Opt.otouch = -1
Opt.et = 0
Opt.etm = 63
Opt.touch = 1
Opt.mq_w = 2
Opt.rspan = 12
Opt.diag = False

def build(opt):
    nm = NAME + "_kernel"
    out = []
    out.append("; @launch grid=(256,1,1) block=(256,1,1) lds=163840")
    out.append('.amdgcn_target "amdgcn-amd-amdhsa--gfx950"')
    out.append(".text")
    a = Asm()
    gen(a, opt)
    out.append(f".globl {nm}\n.p2align 8\n.type {nm},@function\n{nm}:")
    out.append(a.text())
    out.append('.section .rodata,"a"')
    out.append(f""".p2align 6
.amdhsa_kernel {nm}
  .amdhsa_next_free_vgpr 512
  .amdhsa_next_free_sgpr 102
  .amdhsa_accum_offset 256
  .amdhsa_group_segment_fixed_size 0
  .amdhsa_kernarg_size 104
  .amdhsa_user_sgpr_count 2
  .amdhsa_user_sgpr_kernarg_segment_ptr 1
  .amdhsa_system_sgpr_workgroup_id_x 1
.end_amdhsa_kernel
""")
    return "\n".join(out)

if __name__ == "__main__":
    opt = Opt()
    for kv in sys.argv[2:]:
        k, v = kv.split("=")
        cur = getattr(opt, k)
        setattr(opt, k, (v == "1") if isinstance(cur, bool) else type(cur)(v))
    t = build(opt)
    open(sys.argv[1], "w").write(t)
```

```python
import sys, struct
from asmlib import *

NAME = "concat_heads__mha_block_cached__gqa_block_cached__near_ridge"
def f32(x): return "0x%08x" % struct.unpack("<I", struct.pack("<f", x))[0]

PART_BASE = 8 << 20
FO_BASE = 24 << 20
STAMP_BASE = 28 << 20
WS_USED = 32 << 20
SPIN_MAX = 20000

SX, SK, SV, SWQ, SWO, SWS, SOUT, SDBG = 32, 36, 40, 44, 48, 52, 56, 60
S_W, S_BR, S_G, S_HL, S_R, S_B = 64, 65, 66, 67, 68, 69
S_T = 70
S_MX, S_LAM, S_KV, S_MW, S_MK, S_C = 78, 79, 80, 81, 82, 83
S_NONCE, S_CNT, S_DONE = 84, 85, 86
S_SO = 87
S_QW = [88, 89, 90, 91]; S_QX = [92, 93, 94, 95]
S_HW, S_HX = 96, 97
S_U = 98
S_WOG = [4, 5, 6, 7]; S_OG = [8, 9, 10, 11]; S_Q = [12, 13, 14, 15]
S_OB, S_PB, S_FOW, S_FOR, S_OUTB, S_PR = 16, 17, 18, 19, 20, 21
S_OW = [22, 23]

class Opt:
    nt_kv = "nt"
    stamps = False
    clk = "s_memrealtime"
    ab = ""
    ex = "K0,K1|V0,V1|W0,W1"
    mid = "||"
    lead = 2; bal = False; stag = False; hbit = 3
    n14 = 8; n15 = 0; natt = 0
    pre_flag = 0; pre_poll = 40; post_poll = 0
    codepf = True
    fill = 4
    coff = 1
    non_stage = -1
    init_o = 8
    mq_num = 2; mq_den = 1
    fmt = 2
    g_s1 = 33; g_p2 = 44; g_p1 = 0; g_c1 = 28; g_p0 = 56; g_o3 = 0
    sst = -1

VSTAMP = 1
def stamp(a, idx, opt):
    if opt.amp and str(idx) in opt.amp.split(","):
        a(f"s_memrealtime s[30:31]")
        a("s_waitcnt lgkmcnt(0)"); a.lg = []
        a(f"v_writelane_b32 v{VSTAMP}, s30, {opt.amp.split(',').index(str(idx))}")
    if opt.stamps:
        a(f"{opt.clk} s[30:31]")
        a("s_waitcnt lgkmcnt(0)"); a.lg = []
        a(f"v_writelane_b32 v{VSTAMP}, s30, {idx}")

def dump_stamps(a, opt):
    a(f"s_lshl_b32 s{S_T}, s2, 2")
    a(f"s_add_u32 s{S_T}, s{S_T}, s{S_W}")
    a(f"s_lshl_b32 s{S_T}, s{S_T}, 8")
    a(f"s_add_u32 s{S_T}, s{S_T}, {STAMP_BASE}")
    a("v_lshlrev_b32 v2, 2, v0")
    a(f"buffer_store_dword v{VSTAMP}, v2, s[{SWS}:{SWS+3}], s{S_T} offen")
    a("s_waitcnt vmcnt(0)")

def seg_src(a, dst, rowstride_shift, t1, t2):
    a(f"v_lshrrev_b32 v{t1}, 4, v0")
    a(f"v_bfe_u32 v{t2}, v0, 2, 2")
    a(f"v_xor_b32 v{t2}, v{t2}, v{t1}")
    a(f"v_lshlrev_b32 v{t2}, 6, v{t2}")
    a(f"v_lshl_add_u32 v{dst}, v{t1}, {rowstride_shift}, v{t2}")
    a(f"v_and_b32 v{t2}, 3, v0")
    a(f"v_lshl_add_u32 v{dst}, v{t2}, 4, v{dst}")

def tr_base(a, dst, r4, t1):
    a(f"v_bfe_u32 v{r4}, v0, 2, 2")
    a(f"v_lshrrev_b32 v{t1}, 5, v0")
    a(f"v_lshl_add_u32 v{t1}, v{t1}, 3, v{r4}")
    a(f"v_lshlrev_b32 v{dst}, 8, v{t1}")
    a(f"v_bfe_u32 v{t1}, v0, 4, 1")
    a(f"v_lshl_add_u32 v{dst}, v{t1}, 5, v{dst}")
    a(f"v_and_b32 v{t1}, 1, v0")
    a(f"v_lshl_add_u32 v{dst}, v{t1}, 4, v{dst}")
    a(f"v_bfe_u32 v{t1}, v0, 1, 1")
    a(f"v_lshl_add_u32 v{dst}, v{t1}, 3, v{dst}")

MF = "v_mfma_f32_32x32x16_bf16"
M16 = "v_mfma_f32_16x16x32_bf16"
srd = lambda r: f"s[{r}:{r+3}]"

def sched(lam, opt):
    order = list(range(16))
    mpos = []
    for c in range(lam, 16, 4):
        p = order.index(c)
        q = max(0, p - opt.lead)
        if c < 4 and opt.bal: q = 0
        order.pop(p); order.insert(q, c)
        if c >= 4: mpos.append(q)
    if opt.stag:
        order = [(4 * lam + i) & 15 for i in range(16)]
        mpos = [2 + lam, 6 + lam, 10 + lam]
    extras = {}
    for j, lst in enumerate(opt.ex.split("|")):
        for pc in filter(None, lst.split(",")):
            extras.setdefault(mpos[j] - 2, []).append(pc)
    for j, lst in enumerate(opt.mid.split("|")):
        for pc in filter(None, lst.split(",")):
            extras.setdefault(mpos[j], []).append(pc)
    for it in filter(None, opt.ab.split(";")):
        st, lst = it.split(":")
        for pc in lst.split(","): extras.setdefault(int(st), []).append(pc)
    return order, extras

class Rec:
    def __init__(self): self.L = []
    def __call__(self, s): self.L.append(s)

def gen(a, opt):
    end = "L_end"
    T = S_T; U = S_U
    stamp(a, 0, opt)
    a("s_cmp_ge_u32 s2, 256")
    a(f"s_cbranch_scc1 {end}")
    a("s_load_dwordx16 s[4:19], s[0:1], 0")
    a("s_load_dwordx4 s[20:23], s[0:1], 64")
    a("s_load_dwordx4 s[24:27], s[0:1], 80")
    a("s_load_dwordx2 s[28:29], s[0:1], 96")
    a(f"s_memrealtime s[{T+6}:{T+7}]")
    if opt.codepf:
        a(f"s_getpc_b64 s[{U}:{U+1}]")
        a.label("L_pc")
        a(f"s_lshr_b32 s{T}, s2, 3")
        a(f"v_lshrrev_b32 v240, 4, v0")
        a(f"v_lshl_add_u32 v240, s{T}, 4, v240")
        a(f"v_lshlrev_b32 v240, 7, v240")
        a(f"v_min_u32 v240, L_codeend-L_pc-4, v240")
        a(f"v_mov_b32 v241, s{U+1}")
        a(f"v_add_co_u32 v240, vcc, s{U}, v240")
        a("s_nop 1")
        a(f"v_addc_co_u32 v241, vcc, 0, v241, vcc")
        a.vmem(f"global_load_dword v241, v[240:241], off", "cpf")
    a("v_lshrrev_b32 v2, 6, v0")
    a("v_and_b32 v0, 63, v0")
    a(f"v_readfirstlane_b32 s{S_W}, v2")
    a(f"s_and_b32 s{T}, s2, 7")
    a(f"s_lshr_b32 s{T+1}, s2, 3")
    a(f"s_lshr_b32 s{S_BR}, s{T}, 2")
    a(f"s_and_b32 s{S_G}, s{T}, 3")
    a(f"s_and_b32 s{S_HL}, s{T+1}, 7")
    a(f"s_lshr_b32 s{S_R}, s{T+1}, 3")
    VKS, VVS = 2, 3
    VWO = [4, 5, 6, 7]
    VA = list(range(8, 16))
    ACC = 16
    FA = [80, 120]; FB = [112, 152]
    KF, VF = 160, 192
    QP, SS, PP = 80, 112, 128
    VWQ = [224, 225, 226, 227]; VX = [228, 229, 230, 231]; VB = [232, 233]
    TT = 240
    VWT = [244, 245, 246, 247]
    VKA, VL16, VTB, VR4, VNON, VT2 = 248, 249, 250, 251, 252, 253
    F1, F2 = 254, 255
    XR, KR, VR = 65536, 131072, 131072
    a(f"s_lshl_b32 s{S_B}, s{S_R}, 2")
    a(f"s_add_u32 s{S_B}, s{S_B}, s{S_W}")
    a(f"s_lshl_b32 s{T+4}, s{S_G}, 3")
    a(f"s_add_u32 s{T+4}, s{T+4}, s{S_HL}")
    a(f"s_lshl_b32 s{T}, s{S_W}, 17")
    a(f"s_lshl_b32 s{T+1}, s{T+4}, 8")
    a(f"s_add_u32 s{T}, s{T}, s{T+1}")
    a(f"s_lshl_b32 s{T+1}, s{S_B}, 16")
    a(f"s_lshr_b32 s{T+2}, s{S_HL}, {2 if opt.half else 3}")
    HB = opt.hbit
    S_WQB = S_QW[:2]; S_XB = S_QX[:2]
    a(f"s_lshl_b32 s{T+3}, s{T+2}, {19+HB}")
    a(f"s_add_u32 s{S_WQB[0]}, s{T}, s{T+3}")
    a(f"s_xor_b32 s{T+3}, s{T+3}, {1<<(19+HB)}")
    a(f"s_add_u32 s{S_WQB[1]}, s{T}, s{T+3}")
    a(f"s_lshl_b32 s{T+3}, s{T+2}, {7+HB}")
    a(f"s_add_u32 s{S_XB[0]}, s{T+1}, s{T+3}")
    a(f"s_xor_b32 s{T+3}, s{T+3}, {1<<(7+HB)}")
    a(f"s_add_u32 s{S_XB[1]}, s{T+1}, s{T+3}")
    a(f"s_add_u32 s{S_LAM}, s{S_R}, s{S_HL}")
    a(f"s_and_b32 s{S_LAM}, s{S_LAM}, 3")
    ords = [sched(l, opt)[0] for l in range(4)]
    for pos in range(2):
        assert all(not (o[pos] >> HB) & 1 for o in ords)
        pk = sum(ords[l][pos] << (4 * l) for l in range(4))
        a(f"s_lshl_b32 s{T+2}, s{S_LAM}, 2")
        a(f"s_lshr_b32 s{T+2}, {pk}, s{T+2}")
        a(f"s_and_b32 s{T+2}, s{T+2}, 15")
        a(f"s_lshl_b32 s{T+3}, s{T+2}, 19")
        a(f"s_add_u32 s{S_QW[2+pos]}, s{S_WQB[0]}, s{T+3}")
        a(f"s_lshl_b32 s{T+3}, s{T+2}, 7")
        a(f"s_add_u32 s{S_QX[2+pos]}, s{S_XB[0]}, s{T+3}")
    a(f"s_lshl_b32 s{S_MW}, s{S_W}, 12")
    a(f"s_lshl_b32 s{S_MX}, s{S_W}, 14")
    a(f"s_add_u32 s{S_MX}, s{S_MX}, {XR}")
    seg_src(a, VWQ[0], 13, 242, 243)
    a(f"v_add_u32 v{VWQ[1]}, {32768-1024}, v{VWQ[0]}")
    a(f"v_xor_b32 v242, 32, v{VWQ[0]}")
    for j in (2, 3): a(f"v_add_u32 v{VWQ[j]}, {j*(32768-1024)}, v242")
    a("v_lshrrev_b32 v242, 3, v0")
    a("v_lshrrev_b32 v243, 4, v0")
    a(f"v_and_b32 v{F1}, 7, v0")
    a(f"v_xor_b32 v{F1}, v{F1}, v243")
    a(f"v_lshlrev_b32 v{F1}, 4, v{F1}")
    a(f"v_lshl_add_u32 v{VX[0]}, v242, 11, v{F1}")
    a(f"v_xor_b32 v{F1}, 64, v{VX[0]}")
    a(f"v_add_u32 v{VX[1]}, {16384-1024}, v{F1}")
    a(f"v_add_u32 v{VX[2]}, {2*(16384-1024)}, v{VX[0]}")
    a(f"v_add_u32 v{VX[3]}, {3*(16384-1024)}, v{F1}")
    for s_, n in [(SX, 1 << 20), (SWQ, 8 << 20)]:
        a(f"s_mov_b32 s{s_+2}, {n}")
        a(f"s_mov_b32 s{s_+3}, 0x20000")
    a("s_waitcnt lgkmcnt(0)")
    stamp(a, 29, opt)
    a(f"s_cmp_eq_u32 s{S_BR}, 0")
    for i, s_ in [(0, SX), (3, SWQ), (1, SK), (2, SV), (4, SWO)]:
        a(f"s_cselect_b32 s{s_}, s{4+2*i}, s{14+2*i}")
        a(f"s_cselect_b32 s{s_+1}, s{5+2*i}, s{15+2*i}")
    cur = [None]
    def group(key, m0_ins, so_ins):
        n = 0
        if cur[0] != key:
            a(m0_ins); n += 1
            for x in so_ins: a(x); n += 1
            cur[0] = key
        return n
    def dma_x(pos, j, c=None):
        so = f"s_mov_b32 s{S_SO}, s{S_QX[2+pos]}" if c is None else f"s_add_u32 s{S_SO}, s{S_XB[(c>>HB)&1]}, {(c & ~(1<<HB))*128}"
        group(("x", pos), f"s_add_u32 m0, s{S_MX}, {(pos%4)*4096}", [so])
        a.vmem(f"buffer_load_dwordx4 v{VX[j]}, {srd(SX)}, s{S_SO} offen offset:{j*1024} lds", ("st", pos))
    def dma_wq(pos, j, c=None):
        so = f"s_mov_b32 s{S_SO}, s{S_QW[2+pos]}" if c is None else f"s_add_u32 s{S_SO}, s{S_WQB[(c>>HB)&1]}, {(c & ~(1<<HB))<<19}"
        group(("q", pos), f"s_add_u32 m0, s{S_MW}, {(pos%4)*16384}", [so])
        a.vmem(f"buffer_load_dwordx4 v{VWQ[j]}, {srd(SWQ)}, s{S_SO} offen offset:{j*1024} lds", ("st", pos))
    for j in range(4): dma_x(0, j)
    for j in range(4): dma_wq(0, j)
    stamp(a, 30, opt)
    a(f"v_bfe_u32 v{VR4}, v0, 2, 2")
    a("v_lshrrev_b32 v242, 4, v0")
    a(f"v_lshl_add_u32 v243, v242, 3, v{VR4}")
    a("v_lshlrev_b32 v243, 8, v243")
    a(f"v_and_b32 v{F1}, 1, v242")
    a(f"v_lshl_add_u32 v243, v{F1}, 5, v243")
    a(f"v_and_b32 v{F1}, 3, v0")
    a(f"v_lshl_add_u32 v243, v{F1}, 3, v243")
    a(f"v_lshl_add_u32 v{VA[0]}, v{VR4}, 6, v243")
    for i in range(1, 8): a(f"v_xor_b32 v{VA[i]}, {32*i}, v{VA[0]}")
    a(f"v_bfe_u32 v{F1}, v0, 1, 3")
    a(f"v_xor_b32 v242, v242, v{F1}")
    a("v_lshlrev_b32 v242, 4, v242")
    a("v_and_b32 v243, 15, v0")
    a("v_lshl_add_u32 v242, v243, 7, v242")
    a(f"v_add_u32 v{VB[0]}, s{S_MX}, v242")
    a("v_xor_b32 v242, 64, v242")
    a(f"v_add_u32 v{VB[1]}, s{S_MX}, v242")
    for s_, lo in [(SOUT, 24), (SDBG, 26), (SWS, 28)]:
        a(f"s_mov_b32 s{s_}, s{lo}")
        a(f"s_mov_b32 s{s_+1}, s{lo+1}")
    for s_, n in [(SK, 4 << 20), (SV, 4 << 20), (SWO, 8 << 20), (SWS, WS_USED), (SOUT, 2 << 20), (SDBG, 256)]:
        a(f"s_mov_b32 s{s_+2}, {n}")
        a(f"s_mov_b32 s{s_+3}, 0x20000")
    a(f"s_lshl_b32 s{S_KV}, s{S_B}, 5")
    a(f"s_add_u32 s{S_KV}, s{S_KV}, s{T+4}")
    a(f"s_lshl_b32 s{S_KV}, s{S_KV}, 13")
    a(f"s_lshl_b32 s{S_MK}, s{S_W}, 13")
    def early_touch():
        a(f"v_and_b32 v242, 3, v0")
        a(f"v_lshlrev_b32 v242, 21, v242")
        a("v_mov_b32 v243, 0")
        a(f"s_lshl_b32 s{T+2}, s{S_BR}, 2")
        a(f"s_add_u32 s{T+2}, s{T+2}, s{S_R}")
        a(f"s_lshl_b32 s{T+2}, s{T+2}, 21")
        a(f"s_lshl_b32 s{T+3}, s{S_G}, 21")
        a(f"s_lshl_b32 s{T+5}, s{S_R}, 19")
        for k_, (vo, sd, so) in enumerate([(242, SWQ, "0"), (243, SK, f"s{S_KV}"), (243, SV, f"s{S_KV}"), (243, SWO, f"s{T+3}"), (243, SWS, f"s{T+2}"), (243, SOUT, f"s{T+5}")]):
            if opt.etm >> k_ & 1:
                a.vmem(f"buffer_load_dword v{234+k_}, v{vo}, {srd(sd)}, {so} offen", "touch")
    if opt.et == 1: early_touch()
    for j in range(4): dma_x(1, j)
    for j in range(4): dma_wq(1, j)
    if opt.et == 2: early_touch()
    a(f"s_or_b32 s{T}, s2, s{S_W}")
    a(f"s_or_b32 s{T+6}, s{T+6}, 1")
    a(f"s_mul_i32 s{T+6}, s{T+6}, 0x9e3779b1")
    a(f"v_or_b32 v243, s{T}, v0")
    a(f"v_lshlrev_b32 v243, 8, v243")
    a(f"v_mov_b32 v242, s{T+6}")
    a.vmem(f"buffer_store_dword v242, v243, {srd(SDBG)}, 0 offen sc1", "tagst")
    stamp(a, 31, opt)
    f = Rec()
    f(f"v_lshrrev_b32 v{F1}, 4, v0")
    f(f"v_and_b32 v{F2}, 15, v0")
    f(f"v_xor_b32 v{F2}, v{F2}, v{F1}")
    f(f"v_lshlrev_b32 v{F2}, 4, v{F2}")
    f(f"v_lshl_add_u32 v{VKS}, v{F1}, 8, v{F2}")
    seg_src(f, VVS, 8, F1, F2)
    seg_src(f, VWO[0], 11, F1, F2)
    for j in range(1, 4): f(f"v_add_u32 v{VWO[j]}, {(4*(j>>1) + 16*(j&1))*2048 - j*1024}, v{VWO[0]}")
    tr_base(f, VTB, VR4, F1)
    for i in range(4):
        f(f"s_add_u32 s{U+2}, s{S_W}, {i}")
        f(f"s_and_b32 s{U+2}, s{U+2}, 3")
        f(f"v_xor_b32 v{F1}, s{U+2}, v{VR4}")
        f(f"v_lshl_add_u32 v{VWT[i]}, v{F1}, 6, v{VTB}")
    f(f"v_and_b32 v{F1}, 3, v0")
    f(f"v_lshl_add_u32 v{F1}, v{VR4}, 3, v{F1}")
    f(f"v_and_b32 v{F2}, 15, v{F1}")
    f(f"v_lshrrev_b32 v{VKA}, 5, v0")
    f(f"v_xor_b32 v{F2}, v{F2}, v{VKA}")
    f(f"v_lshlrev_b32 v{F2}, 4, v{F2}")
    f(f"v_lshl_add_u32 v{F1}, v{F1}, 8, v{F2}")
    f(f"v_bfe_u32 v{F2}, v0, 4, 1")
    f(f"v_lshl_add_u32 v{F1}, v{F2}, 3, v{F1}")
    f(f"s_add_u32 s{U+2}, s{S_MK}, {KR}")
    f(f"v_add_u32 v{VKA}, s{U+2}, v{F1}")
    f(f"v_lshlrev_b32 v{VL16}, 4, v0")
    f(f"v_mov_b32 v{TT+1}, 0")
    f(f"s_lshl_b32 s{U}, s{S_G}, 2")
    f(f"s_add_u32 s{U}, s{U}, s{S_W}")
    f(f"s_lshl_b32 s{U+1}, s{U}, 19")
    f(f"s_add_u32 s{S_C}, s{S_HL}, {opt.coff}")
    f(f"s_and_b32 s{S_C}, s{S_C}, 7")
    f(f"s_lshl_b32 s{U+2}, s{S_C}, 8")
    f(f"s_add_u32 s{U+1}, s{U+1}, s{U+2}")
    for jg in range(4):
        f(f"s_add_u32 s{U+2}, s{S_LAM}, {jg}")
        f(f"s_and_b32 s{U+2}, s{U+2}, 3")
        f(f"s_lshl_b32 s{U+3}, s{U+2}, 17")
        f(f"s_add_u32 s{S_WOG[jg]}, s{U+1}, s{U+3}")
        f(f"s_lshl_b32 s{S_OG[jg]}, s{U+2}, 12")
        f(f"s_add_u32 s{S_Q[jg]}, s{S_G}, {jg+1}")
        f(f"s_and_b32 s{S_Q[jg]}, s{S_Q[jg]}, 3")
    f(f"s_lshl_b32 s{U+1}, s{S_BR}, 2")
    f(f"s_add_u32 s{U+1}, s{U+1}, s{S_R}")
    f(f"s_lshl_b32 s{U+1}, s{U+1}, 21")
    f(f"s_lshl_b32 s{U+2}, s{U}, 14")
    f(f"s_add_u32 s{S_OB}, s{U+1}, s{U+2}")
    f(f"s_and_b32 s{U+2}, s{S_KV}, 0xfffff")
    f(f"s_add_u32 s{S_OW[0]}, s{U+1}, s{U+2}")
    f(f"s_add_u32 s{S_OW[1]}, s{S_OW[0]}, 4096")
    f(f"s_add_u32 s{U+1}, s{U+1}, {1<<20}")
    f(f"s_mul_i32 s{U+2}, s{S_G}, {(1<<15) + (1<<13)}")
    f(f"s_add_u32 s{U+2}, s{U+2}, s{U+1}")
    f(f"s_lshl_b32 s{U+3}, s{S_W}, 10")
    f(f"s_add_u32 s{S_FOR}, s{U+2}, s{U+3}")
    f(f"s_lshl_b32 s{U+3}, s{S_HL}, 2")
    f(f"s_add_u32 s{U+3}, s{U+3}, s{S_W}")
    f(f"s_lshl_b32 s{U+3}, s{U+3}, 7")
    f(f"s_add_u32 s{S_FOW}, s{U+2}, s{U+3}")
    f(f"s_lshl_b32 s{U+2}, s{S_C}, 17")
    f(f"s_add_u32 s{U+2}, s{U+2}, s{U+1}")
    f(f"s_lshl_b32 s{U+3}, s{U}, 11")
    f(f"s_add_u32 s{S_PB}, s{U+2}, s{U+3}")
    f(f"s_lshl_b32 s{U+3}, s{S_G}, 15")
    f(f"s_add_u32 s{S_PR}, s{U+2}, s{U+3}")
    f(f"s_lshl_b32 s{U+3}, s{S_W}, 11")
    f(f"s_add_u32 s{S_PR}, s{S_PR}, s{U+3}")
    f(f"s_lshl_b32 s{U+2}, s{S_R}, 2")
    f(f"s_add_u32 s{U+2}, s{U+2}, s{S_G}")
    f(f"s_lshl_b32 s{U+2}, s{U+2}, 17")
    f(f"s_lshl_b32 s{U+3}, s{S_BR}, 11")
    f(f"s_add_u32 s{U+2}, s{U+2}, s{U+3}")
    f(f"s_lshl_b32 s{U+3}, s{S_C}, 8")
    f(f"s_add_u32 s{U+2}, s{U+2}, s{U+3}")
    f(f"s_lshl_b32 s{U+3}, s{S_W}, 6")
    f(f"s_add_u32 s{S_OUTB}, s{U+2}, s{U+3}")
    FILL = f.L
    for _ in range(opt.fill0): a(FILL.pop(0))

    SLOT = {"k0": (S_MK, KR), "k1": (S_MK, KR + 4096)}
    for i_ in range(4):
        SLOT[f"w{i_}"] = (S_MW, 16384 * i_); SLOT[f"x{i_}"] = (S_MX, 4096 * i_)
    def dma_wo(pos, j, slot):
        sb, off = SLOT[slot]
        n = group(("wo", pos), f"s_add_u32 m0, s{sb}, {off}", [f"s_add_u32 s{S_SO}, s{S_WOG[pos>>2]}, {(32*((pos&3)>>1) + 8*(pos&1))*2048}"])
        a.vmem(f"buffer_load_dwordx4 v{VWO[j]}, {srd(SWO)}, s{S_SO} offen offset:{j*1024} lds", ("wo", pos))
        a.ever.add(("woj", pos, j))
        return n + 1
    def tr_wo_items(pos, slot):
        sb, off = SLOT[slot]
        it = []
        for s4 in range(4):
            def g(s4=s4):
                if s4 == 0:
                    assert all(("woj", pos, j) in a.ever for j in range(4)), ("piece not fully issued", pos)
                    a.wait_vm(("wo", pos))
                    a(f"s_add_u32 s{T+1}, s{sb}, {off}")
                a(f"v_add_u32 v{VT2}, s{T+1}, v{VWT[s4]}")
                for h2 in range(2):
                    a.lds(f"ds_read_b64_tr_b16 {ar(16*pos+4*s4+2*h2,2)}, v{VT2} offset:{4*h2*256}", ("wo", pos))
            it.append(g)
        return it
    def dma_kv(pc, j):
        half = int(pc[1])
        group(pc, f"s_add_u32 m0, s{S_MK}, {(KR if pc[0] == 'K' else VR) + half*4096}", [f"s_add_u32 s{S_SO}, s{S_KV}, {half*4096}"])
        if pc[0] == "K":
            a(f"v_xor_b32 v{TT}, {64*j}, v{VKS}")
            a.vmem(f"buffer_load_dwordx4 v{TT}, {srd(SK)}, s{S_SO} offen offset:{j*1024} {opt.nt_kv} lds", "k")
        else:
            if j == 2: a(f"v_xor_b32 v{TT}, 32, v{VVS}")
            a.vmem(f"buffer_load_dwordx4 v{TT if j >= 2 else VVS}, {srd(SV)}, s{S_SO} offen offset:{j*1024} {opt.nt_kv} lds", "v")
    def reads(n):
        s, t = n >> 1, n & 1
        slot = s % 4
        fs = n & 1
        r = [(f"ds_read_b128 {vr(FB[fs]+4*nt,4)}, v{VB[t]} offset:{slot*4096 + nt*2048}", ("b", n)) for nt in range(2)]
        for i in range(8):
            for h2 in range(2):
                r.append((f"ds_read_b64_tr_b16 {vr(FA[fs]+4*i+2*h2,2)}, v{VA[i]} offset:{slot*16384 + (32*t+4*h2)*256}", ("a", n, i)))
        if opt.fakeD:
            r = r[:10] + [(f"ds_read_b128 {vr(FA[fs]+16+4*nt,4)}, v{VB[t]} offset:{slot*4096 + nt*2048}", ("a", n, 4+nt)) for nt in range(2)]
            a.ever.add(("lg", ("a", n, 6))); a.ever.add(("lg", ("a", n, 7)))
        return r
    def mfma(n, k):
        fs = n & 1
        i, nt = k >> 1, k & 1
        d = vr(ACC + 8*i + 4*nt, 4)
        a.wait_lg([("b", n), ("a", n, i)])
        a(f"{M16} {d}, {vr(FA[fs]+4*i,4)}, {vr(FB[fs]+4*nt,4)}, {'0' if n == 0 else d}")

    allex = [p for l in sched(0, opt)[1].values() for p in l]
    w_early = sorted(int(p[1]) for p in allex if p[0] == "W")
    w_late = [p for p in range(4) if p not in w_early]
    hit_first = [4*g + k for k in w_early for g in (1, 2, 3)]
    hit_last = [4*g + k for k in w_late for g in (1, 2, 3)]
    rest = w_late + hit_first + hit_last
    if opt.rest: rest = [int(x) for x in opt.rest.split(",")]
    assert sorted(rest + w_early) == list(range(16))
    late_slots = ["w0", "x0", "w1", "x1", "w2", "x2", "k0", "k1", "x3", "w3"]
    avail = {"w0": 13, "x0": 13, "w1": 14, "x1": 14, "w2": 15, "x2": 15, "k0": 15, "k1": 15, "x3": 16, "w3": 17}
    lateq = [(rest[i], j, late_slots[i]) for i in range(min(len(rest), len(late_slots))) for j in range(4)]
    def k_items():
        it = []
        for kt in range(2):
            for u in range(4):
                for h in range(2):
                    def g(kt=kt, u=u, h=h):
                        if (kt, u, h) == (0, 0, 0): a.wait_vm("k")
                        a(f"v_xor_b32 v{VT2}, {((4*u+2*h) ^ (4*kt)) << 4}, v{VKA}")
                        a.lds(f"ds_read_b64 {vr(KF+16*kt+4*u+2*h,2)}, v{VT2} offset:{1024*kt}", "kf")
                    it.append(g)
        return it
    def v_items():
        it = []
        for i in range(8):
            def g(i=i):
                if i == 0:
                    a.wait_vm("v")
                    a(f"s_add_u32 s{T+1}, s{S_MK}, {VR}")
                a(f"v_add_u32 v{VT2}, s{T+1}, v{VA[i]}")
                for h2 in range(2):
                    a.lds(f"ds_read_b64_tr_b16 {vr(VF+4*i+2*h2,2)}, v{VT2} offset:{4*h2*256}", "vf")
            it.append(g)
        return it
    uniform = all(sched(l, opt) == sched(0, opt) for l in range(4))
    for lam in range(1, 4):
        a(f"s_cmp_eq_u32 s{S_LAM}, {lam}")
        a(f"s_cbranch_scc1 L_p1_{lam}")
    vm0, lg0, cur0, ever0 = list(a.vm), list(a.lg), cur[0], set(a.ever)
    end_state = None
    a.lg_low = 7
    for lam in range(4):
        a.vm, a.lg, cur[0], a.ever = list(vm0), list(lg0), cur0, set(ever0)
        a.label(f"L_p1_{lam}")
        order, extras = sched(lam, opt)
        consume = {}; wslot = {}; free_at = {"k0": -9, "k1": -9}
        stream = []
        pend = {}
        non_stage = max(extras)
        assert min(extras) >= 0
        lq = list(lateq)
        for p in range(2, 16):
            c = order[p]
            lead = (c & 3) == lam
            for j in range(4): stream.append((lambda j=j, c=c, p=p: dma_x(p, j, c), opt.wm if lead and (not opt.half or not (c >> HB) & 1) else 1.0, p - 3, p - 2, None))
            for j in range(4): stream.append((lambda j=j, c=c, p=p: dma_wq(p, j, c), opt.wm if lead else 1.0, p - 3, p - 2, p))
            for pc in extras.get(p - 2, []):
                if pc[0] == "W":
                    sl = min(free_at, key=free_at.get); wslot[pc] = sl
                    cs = p + 1; consume.setdefault(cs, []).append(pc)
                else:
                    sl = "k" + pc[1]
                    other = [st for st, l in extras.items() for q in l if q[0] == pc[0]]
                    cs = max(other) + 3
                    if pc[1] == "1": consume.setdefault(cs, []).append(pc[0])
                e = free_at[sl]; assert e <= p - 2, (lam, pc, p, free_at)
                free_at[sl] = cs + 1
                for j in range(4):
                    fn = (lambda pc=pc, j=j: dma_wo(int(pc[1]), j, wslot[pc])) if pc[0] == "W" else (lambda pc=pc, j=j: dma_kv(pc, j))
                    stream.append((fn, opt.wm, max(e, 0 if pc[0] != "W" else 4), p - 2, None))
            if p - 2 == non_stage:
                stream.append((lambda: a.vmem(f"buffer_load_dword v{VNON}, v{TT+1}, {srd(SDBG)}, 0 offen sc1", "nonce"), 0.2, 4, p - 2, None))
                stream.append((lambda: a.vmem(f"buffer_load_dword v{TT+2}, v{TT+1}, {srd(SWS)}, s{S_FOW} offen", "touch"), 0.2, 4, p - 2, None))
        assert max(free_at.values()) <= 15
        for k in range(opt.n14):
            pos, j, sl = lq.pop(0)
            stream.append((lambda pos=pos, j=j, sl=sl: dma_wo(pos, j, sl), opt.wm, avail[sl], 14, None))
        fill = list(FILL)
        endidx = {}
        cnt = 0
        for it in stream:
            cnt += 1
            if it[4] is not None: endidx[it[4]] = cnt
        total = len(stream)
        unit = 32.0 / opt.bud
        clock = 0.0
        comp = [unit * opt.wm * (i + 1 - 8) for i in range(16)]
        posdone = {0: 0.0, 1: comp[15]}
        issued = 0
        def outstanding(): return sum(1 for c_ in comp if c_ > clock)
        def issue():
            nonlocal clock, issued
            fn, w, e, d, tagp = stream.pop(0); assert e <= s, (lam, s, e)
            if outstanding() >= opt.qmax: clock = comp[-opt.qmax]
            fn(); issued += 1
            comp.append(max(comp[-1], clock + opt.lat - unit * w) + unit * w)
            if tagp is not None: posdone[tagp] = comp[-1]
        for s in range(16):
            a.c(f"---- class {lam} stage {s} chunk {order[s]}")
            if a.lg: a.wait_lg_all()
            a.wait_vm(("st", s))
            a("s_barrier")
            stamp(a, 1 + s, opt)
            clock = max(clock, posdone[s])
            lw = []
            for pc in consume.get(s, []):
                assert not fill or len(FILL) - len(fill) > 60
                if pc == "K": lw += k_items()
                elif pc == "V": lw += v_items()
                else: lw += tr_wo_items(int(pc[1]), wslot[pc])
            nl = len(lw)
            target = min(total, (endidx.get(s + 1, 0) if s + 1 < 16 else total) + opt.ahead) if s < 14 else total
            while target > issued and stream[target - issued - 1][2] > s: target -= 1
            start = issued
            gap = 0
            for t in range(2):
                n = 2 * s + t
                rd = reads(n); nrd = len(rd)
                for k in range(16):
                    if n > 0: mfma(n - 1, k)
                    span = 16 if t == 0 else opt.rspan
                    while rd and nrd - len(rd) < ((k + 1) * nrd + span - 1) // span: a.lds(*rd.pop(0))
                    gap += 1
                    clock += 1
                    did = False
                    if stream and stream[0][2] <= s and outstanding() < opt.qopp:
                        issue(); did = True
                    while target - issued > 32 - gap:
                        issue(); did = True
                    while lw and nl - len(lw) < (gap * nl) // 26: lw.pop(0)(); did = True
                    if fill and not did:
                        for _ in range(3 if n == 0 else 1):
                            if fill: a(fill.pop(0))
            assert not lw
            if opt.verbose: print(f"class {lam} stage {s}: {issued - start} dma clock {clock:.0f}", file=sys.stderr)
        assert not stream
        assert not fill
        st_ = (list(a.vm), list(a.lg), cur[0])
        if end_state is None: end_state = st_
        assert end_state == st_, (end_state, st_)
        if lam < 3: a("s_branch L_common")
    a.label("L_common")
    a.lg_low = 12
    natt = [opt.natt]
    def ad(lim=16):
        if natt[0] > 0 and lq and avail[lq[0][2]] <= lim:
            natt[0] -= 1
            return dma_wo(*lq.pop(0))
        return 0
    def pad(n):
        while n > 0:
            k = min(n, 8); a(f"s_nop {k-1}"); n -= k
    assert "nonce" not in a.vm
    def cvt4(dst, u, nt):
        for hh in range(2):
            t = ACC + 8*(2*u+hh) + 4*nt
            a(f"v_cvt_pk_bf16_f32 v{dst+2*hh}, v{t}, v{t+1}")
            a(f"v_cvt_pk_bf16_f32 v{dst+2*hh+1}, v{t+2}, v{t+3}")
    qp = lambda u, nt: QP + 8*u + 4*nt
    CS = 128 ** -0.5 * 1.4426950408889634
    for k in range(16):
        mfma(31, k)
        if k == 0: a(f"v_readfirstlane_b32 s{S_NONCE}, v{VNON}")
        if k == 1: a(f"s_mov_b32 s{T+2}, {f32(CS)}")
        if k in (2, 6): ad(15)
        if k == 11: cvt4(qp(0,0), 0, 0)
        if k == 13: cvt4(qp(0,1), 0, 1)
        if k == 15: cvt4(qp(1,0), 1, 0)
    if a.lg: a.wait_lg_all()
    stamp(a, 17, opt)
    a.c("---- attention")
    cvt4(qp(1,1), 1, 1)
    ss = lambda kt, nt: SS + 8*nt + 4*kt
    def smf(u, kt, nt):
        d = vr(ss(kt, nt), 4)
        a(f"{M16} {d}, {vr(KF+16*kt+4*u,4)}, {vr(qp(u,nt),4)}, {'0' if u == 0 else d}")
    def cvt2(dst, u, nt, hh):
        t = ACC + 8*(2*u+hh) + 4*nt
        a(f"v_cvt_pk_bf16_f32 v{dst+2*hh}, v{t}, v{t+1}")
        a(f"v_cvt_pk_bf16_f32 v{dst+2*hh+1}, v{t+2}, v{t+3}")
    cv = [(u, nt, hh) for u in (2, 3) for nt in range(2) for hh in range(2)]
    for u in range(4):
        for nt in range(2):
            for kt in range(2):
                smf(u, kt, nt)
                if cv:
                    uu, n2, hh = cv.pop(0); cvt2(qp(uu, n2), uu, n2, hh)
                elif (u, nt, kt) in ((2, 0, 1), (3, 0, 1)): ad()
    pad(8 - 2 - ad())
    for nt in range(2):
        b = SS + 8*nt
        a(f"v_max3_f32 v{240+nt}, v{b}, v{b+1}, v{b+2}")
        a(f"v_max3_f32 v{242+nt}, v{b+3}, v{b+4}, v{b+5}")
        a(f"v_max3_f32 v{240+nt}, v{240+nt}, v{b+6}, v{b+7}")
        a(f"v_max_f32 v{240+nt}, v{240+nt}, v{242+nt}")
    def xred(op):
        pad(2 - ad())
        a("v_permlane32_swap_b32 v240, v241")
        a("s_nop 0")
        a(f"{op} v240, v240, v241")
        a("v_mov_b32 v241, v240")
        a("s_nop 1")
        a("v_permlane16_swap_b32 v240, v241")
        a("s_nop 0")
        a(f"{op} v240, v240, v241")
    xred("v_max_f32")
    a(f"v_mul_f32 v240, s{T+2}, v240")
    a("v_mov_b32 v241, v240")
    a("s_nop 1")
    a("v_permlane32_swap_b32 v240, v241")
    a("s_nop 0")
    for k in range(16):
        a(f"v_fma_f32 v{SS+k}, v{SS+k}, s{T+2}, -v{240+(k>>3)}")
    ad()
    for k in range(16):
        a(f"v_exp_f32 v{SS+k}, v{SS+k}")
        if k == 7: ad()
    for k in range(1, 8):
        for nt in range(2):
            b = SS + 8*nt
            a(f"v_add_f32 v{240+nt}, v{b if k == 1 else 240+nt}, v{b+k}")
    xred("v_add_f32")
    a("v_rcp_f32 v240, v240")
    a("s_nop 0")
    a("v_mov_b32 v241, v240")
    a("s_nop 1")
    a("v_permlane32_swap_b32 v240, v241")
    a("s_nop 0")
    for nt in range(2):
        for k in range(8):
            a(f"v_mul_f32 v{SS+8*nt+k}, v{SS+8*nt+k}, v{240+nt}")
        for p in range(4):
            a(f"v_cvt_pk_bf16_f32 v{PP+4*nt+p}, v{SS+8*nt+2*p}, v{SS+8*nt+2*p+1}")
    def pv(i, nt):
        a(f"{M16} {vr(ACC+8*i+4*nt,4)}, {vr(VF+4*i,4)}, {vr(PP+4*nt,4)}, 0")
    def ost(u, nt):
        blk = 2*u + nt
        a.vmem(f"buffer_store_dwordx4 {vr(qp(u,nt),4)}, v{VL16}, {srd(SWS)}, s{S_OW[blk>>2]} offen offset:{(blk&3)*1024} sc1", "o")
    seq = [(i, nt) for nt in range(2) for i in range(8)]
    ev = [(u, nt, hh) for nt in range(2) for u in range(4) for hh in range(2)]
    for k, (i, nt) in enumerate(seq):
        pv(i, nt)
        if k in (1, 4): ad()
        if k >= 8:
            u, n2, hh = ev.pop(0); cvt2(qp(u, n2), u, n2, hh)
            if hh: ost(u, n2)
    while ev:
        u, n2, hh = ev.pop(0); cvt2(qp(u, n2), u, n2, hh)
        if hh: ost(u, n2)
    stamp(a, 18, opt)
    a("s_barrier")
    VL = 2; VRR = 3; VRW = [8, 9, 10]; VOUT = 11; VZ = 12; VNV = 13; VFL = 14; VFA = 15; VLO = 15
    nfirst = min(len(rest), len(late_slots))
    slot_of = {rest[i]: late_slots[i] for i in range(nfirst)}
    for _ in range(opt.pre_flag):
        if lq: dma_wo(*lq.pop(0))
    a(f"s_cmp_lg_u32 s{S_NONCE}, 0")
    a("s_cbranch_scc1 L_havenonce")
    a(f"s_mov_b32 s{S_CNT}, 0")
    a("v_mov_b32 v240, 0")
    a.label("L_nonce_spin")
    a(f"buffer_load_dword v{VNON}, v240, {srd(SDBG)}, 0 offen sc1")
    a("s_waitcnt vmcnt(0)")
    a(f"v_readfirstlane_b32 s{S_NONCE}, v{VNON}")
    a(f"s_add_u32 s{S_CNT}, s{S_CNT}, 1")
    a(f"s_cmp_gt_u32 s{S_CNT}, {SPIN_MAX}")
    a("s_cbranch_scc1 L_havenonce")
    a(f"s_cmp_eq_u32 s{S_NONCE}, 0")
    a("s_cbranch_scc1 L_nonce_spin")
    a.label("L_havenonce")
    a(f"v_mov_b32 v{VL}, v{VL16}")
    for sl in range(1, 4):
        a(f"s_add_u32 s{T}, s{S_W}, {sl}")
        a(f"s_and_b32 s{T}, s{T}, 3")
        a(f"s_mul_i32 s{T}, s{T}, 12288")
        a(f"s_add_u32 s{T}, s{T}, {(sl-1)*4096}")
        a(f"v_add_u32 v{VRW[sl-1]}, s{T}, v{VL16}")
    a(f"s_mul_i32 s{T}, s{S_W}, 12288")
    a(f"v_add_u32 v{VRR}, s{T}, v{VL16}")
    if opt.fl4:
        a(f"v_lshrrev_b32 v{VZ}, 3, v0")
        a(f"v_lshlrev_b32 v{VZ}, 25, v{VZ}")
        a(f"v_lshl_add_u32 v{VZ}, v0, 4, v{VZ}")
        for e in range(4): a(f"v_mov_b32 v{236+e}, s{S_NONCE}")
    else:
        a(f"v_lshrrev_b32 v{VZ}, 5, v0")
        a(f"v_lshlrev_b32 v{VZ}, 25, v{VZ}")
        a(f"v_lshl_add_u32 v{VZ}, v0, 2, v{VZ}")
    a(f"v_mov_b32 v{VNV}, s{S_NONCE}")
    a(f"v_and_b32 v{VFA}, 7, v0")
    a(f"v_lshlrev_b32 v{VFA}, 7, v{VFA}")
    a(f"v_and_b32 v{VOUT}, 31, v0")
    a(f"v_lshlrev_b32 v{VOUT}, 12, v{VOUT}")
    a(f"v_lshrrev_b32 v240, 5, v0")
    a(f"v_lshl_add_u32 v{VOUT}, v240, 4, v{VOUT}")
    a(f"v_and_b32 v241, 15, v0")
    a(f"v_lshlrev_b32 v241, 4, v241")
    a(f"v_lshl_add_u32 v241, v240, 8, v241")
    a(f"v_bfe_u32 v240, v0, 4, 1")
    a(f"v_lshl_add_u32 v241, v240, 10, v241")
    ri = nfirst
    resident = list(w_early)
    free_slots = []
    def issued_fully(pos): return pos in slot_of and not any(q[0] == pos for q in lq)
    def assign_more():
        nonlocal ri
        while ri < len(rest) and free_slots:
            sl = free_slots.pop(0); slot_of[rest[ri]] = sl
            for j in range(4): lq.append((rest[ri], j, sl))
            ri += 1
    def tr_piece(pos):
        for g in tr_wo_items(pos, slot_of[pos]): g()
        resident.append(pos); free_slots.append(slot_of[pos])
    todo = list(rest)
    while todo and issued_fully(todo[0]) and a._cnt(a.vm, ("wo", todo[0])) < a.vm.index("o"):
        tr_piece(todo.pop(0))
    if a.lg: a.wait_lg_all()
    assign_more()
    a.wait_vm("o")
    if opt.fl4: a.vmem(f"buffer_store_dwordx4 v[236:239], v{VZ}, {srd(SWS)}, s{S_FOW} offen sc1", "flag")
    else: a.vmem(f"buffer_store_dword v{VNV}, v{VZ}, {srd(SWS)}, s{S_FOW} offen sc1", "flag")
    stamp(a, 19, opt)
    if opt.diag:
        a.wait_vm_all(); stamp(a, 32, opt)
        a(f"s_mov_b32 s{S_CNT}, 0")
        a.label("L_dp")
        a(f"buffer_load_dword v{VFL}, v{VFA}, {srd(SWS)}, s{S_FOR} offen sc1")
        a("s_waitcnt vmcnt(0)")
        a(f"v_cmp_ne_u32 vcc, s{S_NONCE}, v{VFL}")
        a(f"s_add_u32 s{S_CNT}, s{S_CNT}, 1")
        a(f"s_cmp_gt_u32 s{S_CNT}, {SPIN_MAX}")
        a(f"s_cbranch_scc1 L_dpd")
        a("s_nop 1")
        a(f"s_cbranch_vccnz L_dp")
        a.label("L_dpd")
        stamp(a, 33, opt)
        for k in range(5):
            for _ in range(8):
                if lq: dma_wo(*lq.pop(0))
            a("s_waitcnt vmcnt(0)")
            stamp(a, 34 + k, opt)
    if opt.pipe:
        nis = 0; polled = False
        def inflight(): return sum(1 for p in todo if issued_fully(p))
        while lq or ri < len(rest):
            if lq and inflight() < opt.pipe:
                for _ in range(4): dma_wo(*lq.pop(0))
                nis += 1
                if nis == opt.poll_at:
                    a.vmem(f"buffer_load_dword v{VFL}, v{VFA}, {srd(SWS)}, s{S_FOR} offen sc1", "poll"); polled = True
            else:
                tr_piece(todo.pop(0))
                if ri < len(rest) and len(lq) <= 4:
                    a.wait_lg_all(); assign_more()
        if not polled: a.vmem(f"buffer_load_dword v{VFL}, v{VFA}, {srd(SWS)}, s{S_FOR} offen sc1", "poll")
    else:
        for _ in range(opt.pre_poll):
            if lq: dma_wo(*lq.pop(0))
        a.vmem(f"buffer_load_dword v{VFL}, v{VFA}, {srd(SWS)}, s{S_FOR} offen sc1", "poll")
        for _ in range(opt.post_poll):
            if lq: dma_wo(*lq.pop(0))
        while todo and issued_fully(todo[0]) and a._cnt(a.vm, ("wo", todo[0])) < a.vm.index("poll"):
            tr_piece(todo.pop(0))
        if a.lg: a.wait_lg_all()
        assign_more()
    S_OS = S_QW
    def obase(n):
        a(f"s_lshl_b32 s{T+2}, s{S_Q[n]}, 18")
        a(f"s_add_u32 s{T+2}, s{T+2}, s{S_OB}")
        for jg in range(4): a(f"s_add_u32 s{S_OS[jg]}, s{T+2}, s{S_OG[jg]}")
    obase(0)
    stamp(a, 20, opt)
    a(f"s_mov_b32 s{S_CNT}, 0")
    a.wait_vm("poll")
    a.label("L_pollo")
    a(f"v_cmp_ne_u32 vcc, s{S_NONCE}, v{VFL}")
    a(f"s_add_u32 s{S_CNT}, s{S_CNT}, 1")
    a(f"s_cmp_gt_u32 s{S_CNT}, {SPIN_MAX}")
    a(f"s_cbranch_scc1 L_pollo_done")
    a("s_nop 1")
    a(f"s_cbranch_vccz L_pollo_done")
    a(f"buffer_load_dword v{VFL}, v{VFA}, {srd(SWS)}, s{S_FOR} offen sc1")
    a("s_waitcnt vmcnt(0)")
    a("s_branch L_pollo")
    a.label("L_pollo_done")
    if opt.stamps: a(f"v_writelane_b32 v{VSTAMP}, s{S_CNT}, 62")
    stamp(a, 21, opt)
    assert ri == len(rest)
    AC = 16; TMP = 80; OF = [128, 192]
    def load_o(n, f):
        a.vmem(f"buffer_load_dwordx4 {vr(OF[n&1]+4*f,4)}, v{VLO}, {srd(SWS)}, s{S_OS[f>>2]} offen offset:{((f&3)>>1)*2048 + (f&1)*512} sc1", ("o", n, f))
    a(f"v_mov_b32 v{VLO}, v241")
    korder0 = resident + todo
    assert sorted(korder0) == list(range(16))
    INIT = opt.init_o
    for f in korder0[:INIT]: load_o(0, f)
    while todo and issued_fully(todo[0]): tr_piece(todo.pop(0))
    NG = opt.fmt
    assert NG == 2
    PT = OF[0]; PK = TMP + 16; PU = PT + 40; PS = PT + 44; S_HSEL = S_HX
    S_SEL = [S_QX[0], S_QX[1]]; S_ZSEL = S_QX[2]; S_M3 = S_QX[3]; S_MSK = S_HW
    VBAD, VPL = 12, 14
    VTG = [4, 5, 6, 7]
    dslot = [0, 1, 2, 4, 5, 6, 8, 9] if NG == 3 else list(range(8))
    PL = 131072
    def wr(n, sl, j):
        a.lds(f"ds_write_b128 v{VRW[sl-1]}, {vr(AC+16*sl+4*j,4)} offset:{(n&1)*49152 + j*1024}", "rw")
    def rd(n, k):
        a.lds(f"ds_read_b128 {vr(TMP+4*k,4)}, v{VRR} offset:{(n&1)*49152 + k*1024}", ("rr", k))
    def presum(src, j):
        a.wait_lg([("rr", j), ("rr", 4*src+j)])
        for e in range(4): a(f"v_add_f32 v{TMP+4*j+e}, v{TMP+4*j+e}, v{TMP+16*src+4*j+e}")
    def fin(j):
        for e in range(4): a(f"v_add_f32 v{TMP+4*j+e}, v{TMP+4*j+e}, v{AC+4*j+e}")
    def pack_items(gr):
        if NG == 3:
            def g():
                for p in range(3*gr, min(3*gr+3, 8)):
                    a(f"v_cvt_pk_bf16_f32 v{PK+dslot[p]}, v{TMP+2*p}, v{TMP+2*p+1}")
                a(f"v_mov_b32 v{PK+4*gr+3}, s{S_NONCE}")
                if gr == 2: a(f"v_mov_b32 v{PK+10}, s{S_NONCE}")
            return [g]
        def g1():
            for p in range(4*gr, 4*gr+4): a(f"v_perm_b32 v{PK+p}, v{TMP+2*p+1}, v{TMP+2*p}, s{S_HSEL}")
        def g2():
            for p in range(4*gr, 4*gr+4): a(f"v_bfi_b32 v{PK+p}, s{S_MSK}, v{VTG[p&3]}, v{PK+p}")
        return [g1, g2]
    def pst(n, j):
        if j == 0:
            a(f"s_lshl_b32 s{T+3}, s{S_Q[n]}, 15")
            a(f"s_add_u32 s{T+3}, s{T+3}, s{S_PB}")
        a.vmem(f"buffer_store_dwordx4 {vr(PK+4*j,4)}, v{VL}, {srd(SWS)}, s{T+3} offen offset:{j*1024} sc1", ("p", n))
    def pld(k, j, track=True):
        if j == 0:
            a(f"s_lshl_b32 s{T+4}, s{S_Q[k]}, 13")
            a(f"s_add_u32 s{T+4}, s{T+4}, s{S_PR}")
        ins = f"buffer_load_dwordx4 {vr(PT+12*k+4*j,4)}, v{VL}, {srd(SWS)}, s{T+4} offen offset:{j*1024} sc1"
        if track: a.vmem(ins, ("pp", k))
        else: a(ins)
    def chk_items(k):
        b = PT + 12*k
        if NG == 3:
            def g():
                a(f"v_xor_b32 v{VBAD}, s{S_NONCE}, v{b+3}")
                a(f"v_bitop3_b32 v{VBAD}, v{VBAD}, v{b+7}, s{S_NONCE} bitop3:0xf6")
                a(f"v_bitop3_b32 v{VBAD}, v{VBAD}, v{b+11}, s{S_NONCE} bitop3:0xf6")
                a(f"v_cmp_ne_u32 vcc, 0, v{VBAD}")
            return [g]
        def g1():
            a(f"v_xor_b32 v{VBAD}, v{VTG[0]}, v{b}")
            for p in range(1, 5): a(f"v_bitop3_b32 v{VBAD}, v{VBAD}, v{b+p}, v{VTG[p&3]} bitop3:0xf6")
        def g2():
            for p in range(5, 8): a(f"v_bitop3_b32 v{VBAD}, v{VBAD}, v{b+p}, v{VTG[p&3]} bitop3:0xf6")
            a(f"v_and_b32 v{VBAD}, s{S_MSK}, v{VBAD}")
            a(f"v_cmp_ne_u32 vcc, 0, v{VBAD}")
        return [g1, g2]
    def mid_items(k):
        if NG == 3: return []
        def g(h):
            for p in range(4*h, 4*h+4): a(f"v_or_b32 v{PT+12*k+p}, s{S_MSK}, v{PT+12*k+p}")
        return [lambda: g(0), lambda: g(1)]
    def sel(k):
        a("s_cmp_eq_u64 vcc, 0")
        a(f"s_cselect_b32 s{S_SEL[0]}, 0x01000c0c, s{S_ZSEL}")
        a(f"s_cselect_b32 s{S_SEL[1]}, 0x03020c0c, s{S_ZSEL}")
        a(f"s_cselect_b32 s{T+5}, {1<<k}, 0")
        a(f"s_or_b32 s{S_DONE}, s{S_DONE}, s{T+5}")
    def unp_set(k, p2):
        for p in (2*p2, 2*p2+1):
            for h in range(2):
                d = PT + 12*k + dslot[p]
                a(f"v_perm_b32 v{PS+2*p+h}, v{d}, v{d}, s{S_SEL[h]}")
    def unp_add(k, p, dst):
        d = PT + 12*k + dslot[p]
        for h in range(2): a(f"v_perm_b32 v{PU+h}, v{d}, v{d}, s{S_SEL[h]}")
        for h in range(2): a(f"v_add_f32 v{dst+2*p+h}, v{dst+2*p+h}, v{PU+h}")
    def bar():
        if a.lg: a.wait_lg_all()
        a("s_barrier")
    def consts():
        a(f"s_mov_b32 s{S_ZSEL}, 0x0c0c0c0c")
        a(f"s_mov_b32 s{S_DONE}, 0")
        a(f"s_add_u32 s{S_M3}, s{S_MK}, {PL}")
        a(f"v_add_u32 v{VPL}, s{S_M3}, v{VL}")
        a(f"s_mov_b32 s{S_MSK}, 0x00010001")
        a(f"s_mov_b32 s{S_HSEL}, 0x07060302")
    def tags(h):
        if h == 0:
            a(f"v_and_b32 v{VTG[0]}, 3, v0")
            a(f"v_lshlrev_b32 v{VTG[0]}, 2, v{VTG[0]}")
            a(f"v_lshrrev_b32 v{VTG[0]}, v{VTG[0]}, v{VNV}")
        else:
            for p in range(1, 4): a(f"v_lshrrev_b32 v{VTG[p]}, {p}, v{VTG[0]}")
    consts()
    carry = []
    ro = [0, 4, 8, 1, 5, 9, 2, 6, 10, 3, 7, 11]
    ps = [(src, j) for j in range(4) for src in (1, 2)]
    packs = lambda: [g for gr in range(NG) for g in pack_items(gr)]
    for n in range(4):
        a.c(f"---- strip {n}")
        allres = not todo and not lq if n == 0 else allres
        if n == 0 and allres: seq = [(ks, sl) for ks in korder0 for sl in (1, 2)] + [(ks, sl) for sl in (3, 0) for ks in korder0]
        elif n == 0: seq = [(ks, sl) for ks in korder0 for sl in (1, 2, 3)] + [(ks, 0) for ks in korder0]
        elif n == 1: seq = [(ks, sl) for ks in range(16) for sl in (1, 2)] + [(ks, sl) for sl in (3, 0) for ks in range(16)]
        else: seq = [(ks, sl) for sl in (1, 2, 3, 0) for ks in range(16)]
        at = {}
        def put(g, fn): at.setdefault(g, []).append(fn)
        for g, fn in carry: put(g, fn)
        carry = []
        if n == 0:
            mq = []
            of = korder0[INIT:]
            wl = list(lq); lq.clear()
            while of or wl:
                for _ in range(opt.mq_w):
                    if wl: mq.append(lambda w=wl.pop(0): dma_wo(*w))
                if of: mq.append(lambda f=of.pop(0): load_o(0, f))
            g = 0
            for fn in mq:
                put(g // opt.mq_den, fn); g += opt.mq_num
            gq = g // opt.mq_den + 1
            for i, pos in enumerate(korder0):
                if pos in todo:
                    its = tr_wo_items(pos, slot_of[pos])
                    for k2, fn in enumerate(its): put(3 * i - 4 + (k2 >> 1), fn)
            if todo: gq = max(gq, 20)
            def place(g, fn):
                if g < 64: put(g, fn)
                else: carry.append((g - 64, fn))
            g = gq - 1
            place(g, lambda: obase(1)); g += 1
            for f in range(16): place(g, lambda f=f: load_o(1, f)); g += 2
            g = max(g, 65)
            g += (g & 1) ^ 1
            place(g, lambda: obase(2)); g += 1
            for f in range(16): place(g, lambda f=f: load_o(2, f)); g += 2
            place(g - 1, lambda: obase(3))
            gend = g - 64
            g = 1
            if allres:
                put(32, bar)
                put(33, lambda: tags(0) or a("s_nop 0"))
                put(34, lambda: tags(1))
                for i, (sl, j) in enumerate([(sl, j) for sl in (1, 2) for j in range(4)]): put(36 + i + (i >> 1), lambda sl=sl, j=j: wr(n, sl, j))
                put(48, lambda: a("s_nop 3"))
                put(49, lambda: a("s_nop 4"))
                for j in range(4): put(50 + 2 * j, lambda j=j: wr(n, 3, j))
                put(58, bar)
                for i in range(6): put(58 + i, lambda i=i: (rd(0, ro[2*i]), rd(0, ro[2*i+1])))
            else:
                put(47, bar)
                put(48, lambda: tags(0) or a("s_nop 0"))
                put(49, lambda: tags(1))
                for i, (sl, j) in enumerate([(sl, j) for sl in (1, 2) for j in range(4)]): put(50 + i + (i >> 1), lambda sl=sl, j=j: wr(n, sl, j))
                put(62, lambda: wr(0, 3, 0))
                put(63, lambda: a.wait_lg_all())
                for j in range(1, 4): carry.append((2 * j - 1, lambda j=j: wr(0, 3, j)))
                carry.append((7, bar))
                g = 7
                for i in range(6):
                    carry.append((g, lambda i=i: (rd(0, ro[2*i]), rd(0, ro[2*i+1])))); g += 1
            work = [lambda i=i: presum(*ps[i]) for i in range(8)] + [lambda j=j: fin(j) for j in range(4)] + packs()
            for fn in work: carry.append((g, fn)); g += 2
            assert g <= 47
            gs = max(gend, g)
            assert gs + NG <= 58, gs
            for j in range(NG): carry.append((gs + j, lambda j=j: pst(0, j)))
            left = []
        else:
            fast = n >= 2
            if n == 1:
                for i, (sl, j) in enumerate([(sl, j) for sl in (1, 2) for j in range(4)]): put(36 + i + (i >> 1), lambda sl=sl, j=j: wr(n, sl, j))
            else:
                if n == 2:
                    for f in range(16): put(opt.g_o3 + 2 * f, lambda f=f: load_o(3, f))
                    def pdma(j):
                        if j == 0:
                            a(f"s_lshl_b32 s{T+4}, s{S_Q[2]}, 13")
                            a(f"s_mov_b32 m0, s{S_M3}")
                            a(f"s_add_u32 s{T+4}, s{T+4}, s{S_PR}")
                        a.vmem(f"buffer_load_dwordx4 v{VL}, {srd(SWS)}, s{T+4} offen offset:{j*1024} sc1 lds", "pdma")
                    for j in range(NG): put(opt.g_p2 + 2 * j, lambda j=j: pdma(j))
                for j in range(4): put(32 + 2 * j, lambda j=j: wr(n, 1, j))
                for j in range(4): put(41 + 2 * j, lambda j=j: wr(n, 2, j))
            put(48, lambda: a("s_nop 3"))
            put(49, lambda: a("s_nop 4" if n == 1 else "s_nop 3"))
            if fast:
                for j in range(4): put(50 + j, lambda j=j: wr(n, 3, j))
                gb = 55
            else:
                for j in range(4): put(50 + 2 * j, lambda j=j: wr(n, 3, j))
                gb = 58
            put(gb, bar)
            for i in range(6):
                put(gb + i, lambda i=i: (rd(n, ro[2*i]), rd(n, ro[2*i+1])))
            npre_s = 63 - (gb + 5)
            for i in range(npre_s): put(gb + 6 + i, lambda i=i: presum(*ps[i]))
            left = [lambda i=i: presum(*ps[i]) for i in range(npre_s, 8)]
            if n == 1:
                g = 1
                for fn in left + [lambda j=j: fin(j) for j in range(4)] + packs(): carry.append((g, fn)); g += 2
                assert opt.g_s1 >= g - 2, g
                for j in range(NG): carry.append((opt.g_s1 + 2 * j, lambda j=j: pst(1, j)))
            if n == 2:
                g = NG if opt.g_p1 == 0 else 0
                for fn in left + [lambda j=j: fin(j) for j in range(4)]: carry.append((g, fn)); g += 1
                for j in range(NG):
                    for fn in pack_items(j): carry.append((g, fn)); g += 1
                    carry.append((g, lambda j=j: pst(2, j))); g += 1
                gfree = g
            if n == 3:
                for j in range(NG): put(opt.g_p1 + j, lambda j=j: pld(1, j))
                def prd():
                    a.wait_vm("pdma")
                    for j in range(NG):
                        a.lds(f"ds_read_b128 {vr(PT+24+4*j,4)}, v{VPL} offset:{j*1024}", "prd")
                g = gfree
                put(g - 3, prd)
                put(g, lambda: a.wait_lg("prd"))
                for fn in chk_items(2): put(g, fn); g += 1
                put(g, lambda: sel(2)); g += 1
                for fn in mid_items(2): put(g, fn); g += 1
                for p2 in range(4): put(g, lambda p2=p2: unp_set(2, p2)); g += 1
                g = max(g, opt.g_c1)
                put(g, lambda: a.wait_vm(("pp", 1)))
                for fn in chk_items(1): put(g, fn); g += 1
                put(g, lambda: sel(1)); g += 1
                for fn in mid_items(1) + [lambda p=p: unp_add(1, p, PS) for p in range(8)]:
                    while g in (32, 34, 36, 38, 41, 43, 45, 47) or 50 <= g <= 53: g += 1
                    put(g, fn); g += 1
                assert g <= 56, g
                for j in range(NG): put(opt.g_p0 + j, lambda j=j: pld(0, j))
        seen = set()
        if n >= 2: a.wait_vm(("o", n, 15))
        for g, (ks, sl) in enumerate(seq):
            if ks not in seen:
                a.wait_vm(("o", n, ks)); seen.add(ks)
                if n == 0: a.wait_lg(("wo", ks))
            first = (ks == korder0[0]) if n == 0 else (ks == 0)
            c = "0" if first else vr(AC+16*sl, 16)
            if opt.fakeB:
                q = 8 * (g & 1)
                k2 = (ks ^ 1) if (ks ^ 1) in seen else ks
                d0, d1 = vr(AC+16*sl+q, 4), vr(AC+16*sl+q+4, 4)
                z = g % 16 < 2 and n > 0 and False
                a(f"{M16} {d0}, {ar(16*ks+4*sl,4)}, {vr(OF[n&1]+4*ks,4)}, {'0' if first else d0}")
                p0 = len(a.L)
                for fn in at.get(g, []): fn()
                mid = p0 + (len(a.L) - p0) // 2
                a.L.insert(mid, f"    {M16} {d1}, {ar(16*ks+4*sl,4)}, {vr(OF[n&1]+4*k2,4)}, {'0' if first else d1}")
            else:
                a(f"{MF} {vr(AC+16*sl,16)}, {ar(16*ks+4*sl,4)}, {vr(OF[n&1]+4*ks,4)}, {c}")
                for fn in at.get(g, []): fn()
            if n == opt.sst and g % 8 == 7 and g < 63: stamp(a, 32 + g // 8, opt)
        stamp(a, 22 + n, opt)
    for fn in left: fn()
    for j in range(4): fin(j)
    a(f"s_mov_b32 s{S_SEL[0]}, 0x01000c0c")
    a(f"s_mov_b32 s{S_SEL[1]}, 0x03020c0c")
    stamp(a, 26, opt)
    a(f"s_mov_b32 s{S_CNT}, 0")
    for k in (0, 1, 2):
        if k:
            a(f"s_bitcmp1_b32 s{S_DONE}, {k}")
            a(f"s_cbranch_scc1 L_skip{k}")
            a(f"s_branch L_rel{k}")
        else:
            a.wait_vm(("pp", 0))
        a.label(f"L_chk{k}")
        for fn in chk_items(k): fn()
        a(f"s_add_u32 s{S_CNT}, s{S_CNT}, 1")
        a(f"s_cmp_gt_u32 s{S_CNT}, {SPIN_MAX}")
        a(f"s_cbranch_scc1 L_ok{k}")
        a("s_nop 1")
        a(f"s_cbranch_vccz L_ok{k}")
        a.label(f"L_rel{k}")
        for j in range(NG): pld(k, j, track=False)
        a("s_waitcnt vmcnt(0)")
        a(f"s_branch L_chk{k}")
        a.label(f"L_ok{k}")
        for fn in mid_items(k): fn()
        for p in range(8): unp_add(k, p, PS)
        a.label(f"L_skip{k}")
    for e in range(16): a(f"v_add_f32 v{TMP+e}, v{TMP+e}, v{PS+e}")
    stamp(a, 27, opt)
    for p in range(8):
        a(f"v_cvt_pk_bf16_f32 v{AC+p}, v{TMP+2*p}, v{TMP+2*p+1}")
    a(f"buffer_store_dwordx4 {vr(AC,4)}, v{VOUT}, {srd(SOUT)}, s{S_OUTB} offen")
    a(f"buffer_store_dwordx4 {vr(AC+4,4)}, v{VOUT}, {srd(SOUT)}, s{S_OUTB} offen offset:32")
    if opt.stamps:
        a("s_waitcnt vmcnt(0)")
        stamp(a, 28, opt)
        a(f"v_writelane_b32 v{VSTAMP}, s{S_CNT}, 63")
        dump_stamps(a, opt)
    if opt.amp:
        a("s_waitcnt vmcnt(0)")
        stamp(a, 28, opt)
        a("s_nop 1")
        a(f"v_readlane_b32 s4, v{VSTAMP}, 0")
        a(f"v_readlane_b32 s5, v{VSTAMP}, 1")
        a("s_memrealtime s[30:31]")
        a("s_waitcnt lgkmcnt(0)")
        a("s_sub_u32 s5, s5, s4")
        a("s_min_u32 s5, s5, 10000")
        a("s_lshl_b32 s5, s5, 3")
        a("s_add_u32 s6, s30, s5")
        a.label("L_amp")
        a("s_sleep 1")
        a("s_memrealtime s[30:31]")
        a("s_waitcnt lgkmcnt(0)")
        a("s_sub_u32 s7, s30, s6")
        a("s_cmp_lt_i32 s7, 0")
        a("s_cbranch_scc1 L_amp")
    a.label(end)
    a("s_endpgm")
    a.label("L_codeend")

Opt.fill0 = 12
Opt.rest = ""
Opt.half = True
Opt.wm = 2.2
Opt.bud = 9.6
Opt.ahead = 8
Opt.qmax = 12
Opt.qopp = 10
Opt.lat = 20.0
Opt.verbose = False
Opt.pipe = 3
Opt.poll_at = 10
Opt.fakeB = False
Opt.fakeD = False
Opt.amp = ""
Opt.fl4 = False
Opt.ptouch = 0
Opt.pt_stage = 14
Opt.otouch = -1
Opt.et = 0
Opt.etm = 63
Opt.touch = 1
Opt.mq_w = 2
Opt.rspan = 12
Opt.diag = False

def build(opt):
    nm = NAME + "_kernel"
    out = []
    out.append("; @launch grid=(256,1,1) block=(256,1,1) lds=163840")
    out.append('.amdgcn_target "amdgcn-amd-amdhsa--gfx950"')
    out.append(".text")
    a = Asm()
    gen(a, opt)
    out.append(f".globl {nm}\n.p2align 8\n.type {nm},@function\n{nm}:")
    out.append(a.text())
    out.append('.section .rodata,"a"')
    out.append(f""".p2align 6
.amdhsa_kernel {nm}
  .amdhsa_next_free_vgpr 512
  .amdhsa_next_free_sgpr 102
  .amdhsa_accum_offset 256
  .amdhsa_group_segment_fixed_size 0
  .amdhsa_kernarg_size 104
  .amdhsa_user_sgpr_count 2
  .amdhsa_user_sgpr_kernarg_segment_ptr 1
  .amdhsa_system_sgpr_workgroup_id_x 1
.end_amdhsa_kernel
""")
    return "\n".join(out)

if __name__ == "__main__":
    opt = Opt()
    for kv in sys.argv[2:]:
        k, v = kv.split("=")
        cur = getattr(opt, k)
        setattr(opt, k, (v == "1") if isinstance(cur, bool) else type(cur)(v))
    t = build(opt)
    open(sys.argv[1], "w").write(t)
```

```python
import sys, struct
from asmlib import *

NAME = "concat_heads__mha_block_cached__gqa_block_cached__near_ridge"
def f32(x): return "0x%08x" % struct.unpack("<I", struct.pack("<f", x))[0]

PART_BASE = 8 << 20
FO_BASE = 24 << 20
STAMP_BASE = 28 << 20
WS_USED = 32 << 20
SPIN_MAX = 20000

SX, SK, SV, SWQ, SWO, SWS, SOUT, SDBG = 32, 36, 40, 44, 48, 52, 56, 60
S_W, S_BR, S_G, S_HL, S_R, S_B = 64, 65, 66, 67, 68, 69
S_T = 70
S_MX, S_LAM, S_KV, S_MW, S_MK, S_C = 78, 79, 80, 81, 82, 83
S_NONCE, S_CNT, S_DONE = 84, 85, 86
S_SO = 87
S_QW = [88, 89, 90, 91]; S_QX = [92, 93, 94, 95]
S_HW, S_HX = 96, 97
S_U = 98
S_HO = [4, 5, 6, 7, 8, 9, 10]; S_BO = 11; S_Q = [12, 13, 14, 15]
S_BL = [24, 25]; S_WOB, S_OST, S_HOWN = 26, 27, 28
S_OB, S_PB, S_FOW, S_FOR, S_OUTB, S_PR = 16, 17, 18, 19, 20, 21
S_OW = [22, 23]

class Opt:
    nt_kv = "nt"
    stamps = False
    clk = "s_memrealtime"
    ab = ""
    ex = "K0,K1|V0,V1|W0,W1"
    mid = "||"
    lead = 2; bal = False; stag = False; hbit = 3
    n14 = 8; n15 = 0; natt = 0
    pre_flag = 0; pre_poll = 40; post_poll = 0
    codepf = True
    fill = 4
    coff = 1
    non_stage = -1
    init_o = 8
    mq_num = 2; mq_den = 1
    fmt = 2
    g_s1 = 33; g_p2 = 38; g_p1 = 0; g_c1 = 28; g_p0 = 48; g_o3 = 0
    sst = -1

VSTAMP = 1
def stamp(a, idx, opt):
    if opt.amp and str(idx) in opt.amp.split(","):
        a(f"s_memrealtime s[30:31]")
        a("s_waitcnt lgkmcnt(0)"); a.lg = []
        a(f"v_writelane_b32 v{VSTAMP}, s30, {opt.amp.split(',').index(str(idx))}")
    if opt.stamps:
        a(f"{opt.clk} s[30:31]")
        a("s_waitcnt lgkmcnt(0)"); a.lg = []
        a(f"v_writelane_b32 v{VSTAMP}, s30, {idx}")

def dump_stamps(a, opt):
    a(f"s_lshl_b32 s{S_T}, s2, 2")
    a(f"s_add_u32 s{S_T}, s{S_T}, s{S_W}")
    a(f"s_lshl_b32 s{S_T}, s{S_T}, 8")
    a(f"s_add_u32 s{S_T}, s{S_T}, {STAMP_BASE}")
    a("v_lshlrev_b32 v2, 2, v0")
    a(f"buffer_store_dword v{VSTAMP}, v2, s[{SWS}:{SWS+3}], s{S_T} offen")
    a("s_waitcnt vmcnt(0)")

def seg_src(a, dst, rowstride_shift, t1, t2):
    a(f"v_lshrrev_b32 v{t1}, 4, v0")
    a(f"v_bfe_u32 v{t2}, v0, 2, 2")
    a(f"v_xor_b32 v{t2}, v{t2}, v{t1}")
    a(f"v_lshlrev_b32 v{t2}, 6, v{t2}")
    a(f"v_lshl_add_u32 v{dst}, v{t1}, {rowstride_shift}, v{t2}")
    a(f"v_and_b32 v{t2}, 3, v0")
    a(f"v_lshl_add_u32 v{dst}, v{t2}, 4, v{dst}")

def tr_base(a, dst, r4, t1):
    a(f"v_bfe_u32 v{r4}, v0, 2, 2")
    a(f"v_lshrrev_b32 v{t1}, 5, v0")
    a(f"v_lshl_add_u32 v{t1}, v{t1}, 3, v{r4}")
    a(f"v_lshlrev_b32 v{dst}, 8, v{t1}")
    a(f"v_bfe_u32 v{t1}, v0, 4, 1")
    a(f"v_lshl_add_u32 v{dst}, v{t1}, 5, v{dst}")
    a(f"v_and_b32 v{t1}, 1, v0")
    a(f"v_lshl_add_u32 v{dst}, v{t1}, 4, v{dst}")
    a(f"v_bfe_u32 v{t1}, v0, 1, 1")
    a(f"v_lshl_add_u32 v{dst}, v{t1}, 3, v{dst}")

MF = "v_mfma_f32_32x32x16_bf16"
M16 = "v_mfma_f32_16x16x32_bf16"
srd = lambda r: f"s[{r}:{r+3}]"

def sched(lam, opt):
    order = list(range(16))
    mpos = []
    for c in range(lam, 16, 4):
        p = order.index(c)
        q = max(0, p - opt.lead)
        if c < 4 and opt.bal: q = 0
        order.pop(p); order.insert(q, c)
        if c >= 4: mpos.append(q)
    if opt.stag:
        order = [(4 * lam + i) & 15 for i in range(16)]
        mpos = [2 + lam, 6 + lam, 10 + lam]
    extras = {}
    for j, lst in enumerate(opt.ex.split("|")):
        for pc in filter(None, lst.split(",")):
            extras.setdefault(mpos[j] - 2, []).append(pc)
    for j, lst in enumerate(opt.mid.split("|")):
        for pc in filter(None, lst.split(",")):
            extras.setdefault(mpos[j], []).append(pc)
    for it in filter(None, opt.ab.split(";")):
        st, lst = it.split(":")
        for pc in lst.split(","): extras.setdefault(int(st), []).append(pc)
    return order, extras

class Rec:
    def __init__(self): self.L = []
    def __call__(self, s): self.L.append(s)

def gen(a, opt):
    end = "L_end"
    T = S_T; U = S_U
    stamp(a, 0, opt)
    a("s_cmp_ge_u32 s2, 256")
    a(f"s_cbranch_scc1 {end}")
    a("s_load_dwordx16 s[4:19], s[0:1], 0")
    a("s_load_dwordx4 s[20:23], s[0:1], 64")
    a("s_load_dwordx4 s[24:27], s[0:1], 80")
    a("s_load_dwordx2 s[28:29], s[0:1], 96")
    a(f"s_memrealtime s[{T+6}:{T+7}]")
    if opt.codepf:
        a(f"s_getpc_b64 s[{U}:{U+1}]")
        a.label("L_pc")
        a(f"s_lshr_b32 s{T}, s2, 3")
        a(f"v_lshrrev_b32 v240, 4, v0")
        a(f"v_lshl_add_u32 v240, s{T}, 4, v240")
        a(f"v_lshlrev_b32 v240, 7, v240")
        a(f"v_min_u32 v240, L_codeend-L_pc-4, v240")
        a(f"v_mov_b32 v241, s{U+1}")
        a(f"v_add_co_u32 v240, vcc, s{U}, v240")
        a("s_nop 1")
        a(f"v_addc_co_u32 v241, vcc, 0, v241, vcc")
        a.vmem(f"global_load_dword v241, v[240:241], off", "cpf")
    a("v_lshrrev_b32 v2, 6, v0")
    a("v_and_b32 v0, 63, v0")
    a(f"v_readfirstlane_b32 s{S_W}, v2")
    a(f"s_and_b32 s{T}, s2, 7")
    a(f"s_lshr_b32 s{T+1}, s2, 3")
    a(f"s_lshr_b32 s{S_BR}, s{T}, 2")
    a(f"s_and_b32 s{S_G}, s{T}, 3")
    a(f"s_and_b32 s{S_HL}, s{T+1}, 7")
    a(f"s_lshr_b32 s{S_R}, s{T+1}, 3")
    VKS, VVS = 2, 3
    VWO = [4, 5, 6, 7]
    VA = list(range(8, 16))
    ACC = 16
    FA = [80, 120]; FB = [112, 152]
    KF, VF = 160, 192
    QP, SS, PP = 80, 112, 128
    VWQ = [224, 225, 226, 227]; VX = [228, 229, 230, 231]; VB = [232, 233]
    TT = 240
    VWT = [244, 245, 246, 247]
    VKA, VL16, VTB, VR4, VNON, VT2 = 248, 249, 250, 251, 252, 253
    F1, F2 = 254, 255
    XR, KR, VR = 65536, 131072, 131072
    a(f"s_lshl_b32 s{S_B}, s{S_R}, 2")
    a(f"s_add_u32 s{S_B}, s{S_B}, s{S_W}")
    a(f"s_lshl_b32 s{T+4}, s{S_G}, 3")
    a(f"s_add_u32 s{T+4}, s{T+4}, s{S_HL}")
    a(f"s_lshl_b32 s{T}, s{S_W}, 17")
    a(f"s_lshl_b32 s{T+1}, s{T+4}, 8")
    a(f"s_add_u32 s{T}, s{T}, s{T+1}")
    a(f"s_lshl_b32 s{T+1}, s{S_B}, 16")
    a(f"s_lshr_b32 s{T+2}, s{S_HL}, {2 if opt.half else 3}")
    HB = opt.hbit
    S_WQB = S_QW[:2]; S_XB = S_QX[:2]
    a(f"s_lshl_b32 s{T+3}, s{T+2}, {19+HB}")
    a(f"s_add_u32 s{S_WQB[0]}, s{T}, s{T+3}")
    a(f"s_xor_b32 s{T+3}, s{T+3}, {1<<(19+HB)}")
    a(f"s_add_u32 s{S_WQB[1]}, s{T}, s{T+3}")
    a(f"s_lshl_b32 s{T+3}, s{T+2}, {7+HB}")
    a(f"s_add_u32 s{S_XB[0]}, s{T+1}, s{T+3}")
    a(f"s_xor_b32 s{T+3}, s{T+3}, {1<<(7+HB)}")
    a(f"s_add_u32 s{S_XB[1]}, s{T+1}, s{T+3}")
    a(f"s_add_u32 s{S_LAM}, s{S_R}, s{S_HL}")
    a(f"s_and_b32 s{S_LAM}, s{S_LAM}, 3")
    ords = [sched(l, opt)[0] for l in range(4)]
    for pos in range(2):
        assert all(not (o[pos] >> HB) & 1 for o in ords)
        pk = sum(ords[l][pos] << (4 * l) for l in range(4))
        a(f"s_lshl_b32 s{T+2}, s{S_LAM}, 2")
        a(f"s_lshr_b32 s{T+2}, {pk}, s{T+2}")
        a(f"s_and_b32 s{T+2}, s{T+2}, 15")
        a(f"s_lshl_b32 s{T+3}, s{T+2}, 19")
        a(f"s_add_u32 s{S_QW[2+pos]}, s{S_WQB[0]}, s{T+3}")
        a(f"s_lshl_b32 s{T+3}, s{T+2}, 7")
        a(f"s_add_u32 s{S_QX[2+pos]}, s{S_XB[0]}, s{T+3}")
    a(f"s_lshl_b32 s{S_MW}, s{S_W}, 12")
    a(f"s_lshl_b32 s{S_MX}, s{S_W}, 14")
    a(f"s_add_u32 s{S_MX}, s{S_MX}, {XR}")
    seg_src(a, VWQ[0], 13, 242, 243)
    a(f"v_add_u32 v{VWQ[1]}, {32768-1024}, v{VWQ[0]}")
    a(f"v_xor_b32 v242, 32, v{VWQ[0]}")
    for j in (2, 3): a(f"v_add_u32 v{VWQ[j]}, {j*(32768-1024)}, v242")
    a("v_lshrrev_b32 v242, 3, v0")
    a("v_lshrrev_b32 v243, 4, v0")
    a(f"v_and_b32 v{F1}, 7, v0")
    a(f"v_xor_b32 v{F1}, v{F1}, v243")
    a(f"v_lshlrev_b32 v{F1}, 4, v{F1}")
    a(f"v_lshl_add_u32 v{VX[0]}, v242, 11, v{F1}")
    a(f"v_xor_b32 v{F1}, 64, v{VX[0]}")
    a(f"v_add_u32 v{VX[1]}, {16384-1024}, v{F1}")
    a(f"v_add_u32 v{VX[2]}, {2*(16384-1024)}, v{VX[0]}")
    a(f"v_add_u32 v{VX[3]}, {3*(16384-1024)}, v{F1}")
    for s_, n in [(SX, 1 << 20), (SWQ, 8 << 20)]:
        a(f"s_mov_b32 s{s_+2}, {n}")
        a(f"s_mov_b32 s{s_+3}, 0x20000")
    a("s_waitcnt lgkmcnt(0)")
    stamp(a, 29, opt)
    a(f"s_cmp_eq_u32 s{S_BR}, 0")
    for i, s_ in [(0, SX), (3, SWQ), (1, SK), (2, SV), (4, SWO)]:
        a(f"s_cselect_b32 s{s_}, s{4+2*i}, s{14+2*i}")
        a(f"s_cselect_b32 s{s_+1}, s{5+2*i}, s{15+2*i}")
    cur = [None]
    def group(key, m0_ins, so_ins):
        n = 0
        if cur[0] != key:
            a(m0_ins); n += 1
            for x in so_ins: a(x); n += 1
            cur[0] = key
        return n
    def dma_x(pos, j, c=None):
        so = f"s_mov_b32 s{S_SO}, s{S_QX[2+pos]}" if c is None else f"s_add_u32 s{S_SO}, s{S_XB[(c>>HB)&1]}, {(c & ~(1<<HB))*128}"
        group(("x", pos), f"s_add_u32 m0, s{S_MX}, {(pos%4)*4096}", [so])
        a.vmem(f"buffer_load_dwordx4 v{VX[j]}, {srd(SX)}, s{S_SO} offen offset:{j*1024} lds", ("st", pos))
    def dma_wq(pos, j, c=None):
        so = f"s_mov_b32 s{S_SO}, s{S_QW[2+pos]}" if c is None else f"s_add_u32 s{S_SO}, s{S_WQB[(c>>HB)&1]}, {(c & ~(1<<HB))<<19}"
        group(("q", pos), f"s_add_u32 m0, s{S_MW}, {(pos%4)*16384}", [so])
        a.vmem(f"buffer_load_dwordx4 v{VWQ[j]}, {srd(SWQ)}, s{S_SO} offen offset:{j*1024} lds", ("st", pos))
    for j in range(4): dma_x(0, j)
    for j in range(4): dma_wq(0, j)
    stamp(a, 30, opt)
    a(f"v_bfe_u32 v{VR4}, v0, 2, 2")
    a("v_lshrrev_b32 v242, 4, v0")
    a(f"v_lshl_add_u32 v243, v242, 3, v{VR4}")
    a("v_lshlrev_b32 v243, 8, v243")
    a(f"v_and_b32 v{F1}, 1, v242")
    a(f"v_lshl_add_u32 v243, v{F1}, 5, v243")
    a(f"v_and_b32 v{F1}, 3, v0")
    a(f"v_lshl_add_u32 v243, v{F1}, 3, v243")
    a(f"v_lshl_add_u32 v{VA[0]}, v{VR4}, 6, v243")
    for i in range(1, 8): a(f"v_xor_b32 v{VA[i]}, {32*i}, v{VA[0]}")
    a(f"v_bfe_u32 v{F1}, v0, 1, 3")
    a(f"v_xor_b32 v242, v242, v{F1}")
    a("v_lshlrev_b32 v242, 4, v242")
    a("v_and_b32 v243, 15, v0")
    a("v_lshl_add_u32 v242, v243, 7, v242")
    a(f"v_add_u32 v{VB[0]}, s{S_MX}, v242")
    a("v_xor_b32 v242, 64, v242")
    a(f"v_add_u32 v{VB[1]}, s{S_MX}, v242")
    for s_, lo in [(SOUT, 24), (SDBG, 26), (SWS, 28)]:
        a(f"s_mov_b32 s{s_}, s{lo}")
        a(f"s_mov_b32 s{s_+1}, s{lo+1}")
    for s_, n in [(SK, 4 << 20), (SV, 4 << 20), (SWO, 8 << 20), (SWS, WS_USED), (SOUT, 2 << 20), (SDBG, 256)]:
        a(f"s_mov_b32 s{s_+2}, {n}")
        a(f"s_mov_b32 s{s_+3}, 0x20000")
    a(f"s_lshl_b32 s{S_KV}, s{S_B}, 5")
    a(f"s_add_u32 s{S_KV}, s{S_KV}, s{T+4}")
    a(f"s_lshl_b32 s{S_KV}, s{S_KV}, 13")
    a(f"s_lshl_b32 s{S_MK}, s{S_W}, 13")
    def early_touch():
        a(f"v_and_b32 v242, 3, v0")
        a(f"v_lshlrev_b32 v242, 21, v242")
        a("v_mov_b32 v243, 0")
        a(f"s_lshl_b32 s{T+2}, s{S_BR}, 2")
        a(f"s_add_u32 s{T+2}, s{T+2}, s{S_R}")
        a(f"s_lshl_b32 s{T+2}, s{T+2}, 21")
        a(f"s_lshl_b32 s{T+3}, s{S_G}, 21")
        a(f"s_lshl_b32 s{T+5}, s{S_R}, 19")
        for k_, (vo, sd, so) in enumerate([(242, SWQ, "0"), (243, SK, f"s{S_KV}"), (243, SV, f"s{S_KV}"), (243, SWO, f"s{T+3}"), (243, SWS, f"s{T+2}"), (243, SOUT, f"s{T+5}")]):
            if opt.etm >> k_ & 1:
                a.vmem(f"buffer_load_dword v{234+k_}, v{vo}, {srd(sd)}, {so} offen", "touch")
    if opt.et == 1: early_touch()
    for j in range(4): dma_x(1, j)
    for j in range(4): dma_wq(1, j)
    if opt.et == 2: early_touch()
    a(f"s_or_b32 s{T}, s2, s{S_W}")
    a(f"s_or_b32 s{T+6}, s{T+6}, 1")
    a(f"s_mul_i32 s{T+6}, s{T+6}, 0x9e3779b1")
    a(f"v_or_b32 v243, s{T}, v0")
    a(f"v_lshlrev_b32 v243, 8, v243")
    a(f"v_mov_b32 v242, s{T+6}")
    a.vmem(f"buffer_store_dword v242, v243, {srd(SDBG)}, 0 offen sc1", "tagst")
    stamp(a, 31, opt)
    f = Rec()
    f(f"v_lshrrev_b32 v{F1}, 4, v0")
    f(f"v_and_b32 v{F2}, 15, v0")
    f(f"v_xor_b32 v{F2}, v{F2}, v{F1}")
    f(f"v_lshlrev_b32 v{F2}, 4, v{F2}")
    f(f"v_lshl_add_u32 v{VKS}, v{F1}, 8, v{F2}")
    seg_src(f, VVS, 8, F1, F2)
    seg_src(f, VWO[0], 11, F1, F2)
    for j in range(1, 4): f(f"v_add_u32 v{VWO[j]}, {(4*(j>>1) + 16*(j&1))*2048 - j*1024}, v{VWO[0]}")
    tr_base(f, VTB, VR4, F1)
    for i in range(4):
        f(f"s_add_u32 s{U+2}, s{S_W}, {i}")
        f(f"s_and_b32 s{U+2}, s{U+2}, 3")
        f(f"v_xor_b32 v{F1}, s{U+2}, v{VR4}")
        f(f"v_lshl_add_u32 v{VWT[i]}, v{F1}, 6, v{VTB}")
    f(f"v_and_b32 v{F1}, 3, v0")
    f(f"v_lshl_add_u32 v{F1}, v{VR4}, 3, v{F1}")
    f(f"v_and_b32 v{F2}, 15, v{F1}")
    f(f"v_lshrrev_b32 v{VKA}, 5, v0")
    f(f"v_xor_b32 v{F2}, v{F2}, v{VKA}")
    f(f"v_lshlrev_b32 v{F2}, 4, v{F2}")
    f(f"v_lshl_add_u32 v{F1}, v{F1}, 8, v{F2}")
    f(f"v_bfe_u32 v{F2}, v0, 4, 1")
    f(f"v_lshl_add_u32 v{F1}, v{F2}, 3, v{F1}")
    f(f"s_add_u32 s{U+2}, s{S_MK}, {KR}")
    f(f"v_add_u32 v{VKA}, s{U+2}, v{F1}")
    f(f"v_lshlrev_b32 v{VL16}, 4, v0")
    f(f"v_mov_b32 v{TT+1}, 0")
    f(f"s_lshl_b32 s{U}, s{S_G}, 2")
    f(f"s_add_u32 s{U}, s{U}, s{S_W}")
    f(f"s_add_u32 s{S_C}, s{S_HL}, {opt.coff}")
    f(f"s_and_b32 s{S_C}, s{S_C}, 7")
    f(f"s_lshl_b32 s{U+1}, s{S_G}, 21")
    f(f"s_lshl_b32 s{U+2}, s{S_W}, 16")
    f(f"s_add_u32 s{U+1}, s{U+1}, s{U+2}")
    f(f"s_lshl_b32 s{U+2}, s{S_C}, 8")
    f(f"s_add_u32 s{S_WOB}, s{U+1}, s{U+2}")
    f(f"s_lshl_b32 s{S_HOWN}, s{S_HL}, 13")
    for jg in range(4):
        f(f"s_add_u32 s{S_Q[jg]}, s{S_G}, {jg+1}")
        f(f"s_and_b32 s{S_Q[jg]}, s{S_Q[jg]}, 3")
    f(f"s_lshl_b32 s{U+1}, s{S_BR}, 2")
    f(f"s_add_u32 s{U+1}, s{U+1}, s{S_R}")
    f(f"s_lshl_b32 s{U+1}, s{U+1}, 21")
    f(f"s_lshl_b32 s{U+2}, s{S_G}, 16")
    f(f"s_add_u32 s{S_OB}, s{U+1}, s{U+2}")
    f(f"s_lshl_b32 s{U+2}, s{S_W}, 11")
    f(f"s_add_u32 s{S_OB}, s{S_OB}, s{U+2}")
    f(f"s_and_b32 s{U+2}, s{S_KV}, 0xfffff")
    f(f"s_add_u32 s{S_OW[0]}, s{U+1}, s{U+2}")
    f(f"s_add_u32 s{S_OW[1]}, s{S_OW[0]}, 4096")
    f(f"s_add_u32 s{U+1}, s{U+1}, {1<<20}")
    f(f"s_mul_i32 s{U+2}, s{S_G}, {(1<<15) + (1<<13)}")
    f(f"s_add_u32 s{U+2}, s{U+2}, s{U+1}")
    f(f"s_mov_b32 s{S_FOR}, s{U+2}")
    f(f"s_lshl_b32 s{U+3}, s{S_HL}, 2")
    f(f"s_add_u32 s{U+3}, s{U+3}, s{S_W}")
    f(f"s_lshl_b32 s{U+3}, s{U+3}, 7")
    f(f"s_add_u32 s{S_FOW}, s{U+2}, s{U+3}")
    f(f"s_lshl_b32 s{U+2}, s{S_C}, 17")
    f(f"s_add_u32 s{U+2}, s{U+2}, s{U+1}")
    f(f"s_lshl_b32 s{U+3}, s{U}, 11")
    f(f"s_add_u32 s{S_PB}, s{U+2}, s{U+3}")
    f(f"s_lshl_b32 s{U+3}, s{S_G}, 15")
    f(f"s_add_u32 s{S_PR}, s{U+2}, s{U+3}")
    f(f"s_lshl_b32 s{U+3}, s{S_W}, 11")
    f(f"s_add_u32 s{S_PR}, s{S_PR}, s{U+3}")
    f(f"s_lshl_b32 s{U+2}, s{S_R}, 2")
    f(f"s_add_u32 s{U+2}, s{U+2}, s{S_G}")
    f(f"s_lshl_b32 s{U+2}, s{U+2}, 17")
    f(f"s_lshl_b32 s{U+3}, s{S_BR}, 11")
    f(f"s_add_u32 s{U+2}, s{U+2}, s{U+3}")
    f(f"s_lshl_b32 s{U+3}, s{S_C}, 8")
    f(f"s_add_u32 s{U+2}, s{U+2}, s{U+3}")
    f(f"s_lshl_b32 s{U+3}, s{S_W}, 6")
    f(f"s_add_u32 s{S_OUTB}, s{U+2}, s{U+3}")
    FILL = f.L
    for _ in range(opt.fill0): a(FILL.pop(0))

    SLOT = {"k0": (S_MK, KR), "k1": (S_MK, KR + 4096)}
    for i_ in range(4):
        SLOT[f"w{i_}"] = (S_MW, 16384 * i_); SLOT[f"x{i_}"] = (S_MX, 4096 * i_)
    def dma_gen(key, m0_ins, hreg, gp, j, tag):
        so = [f"s_lshl_b32 s{S_SO}, s{hreg}, 5", f"s_add_u32 s{S_SO}, s{S_SO}, s{S_WOB}"]
        if gp: so.append(f"s_add_u32 s{S_SO}, s{S_SO}, {8*2048}")
        n = group(key, m0_ins, so)
        a.vmem(f"buffer_load_dwordx4 v{VWO[j]}, {srd(SWO)}, s{S_SO} offen offset:{j*1024} lds", tag)
        return n + 1
    def dma_wo(pos, j, slot, tag=None):
        sb, off = SLOT[slot]
        a.ever.add(("woj", pos, j))
        return dma_gen(("wo", pos), f"s_add_u32 m0, s{sb}, {off}", S_HO[pos >> 1], pos & 1, j, tag or ("wo", pos))
    def tr_wo_items(pos, slot, tag=None):
        sb, off = SLOT[slot]
        it = []
        for s4 in range(4):
            def g(s4=s4):
                if s4 == 0:
                    assert all(("woj", pos, j) in a.ever for j in range(4)), ("piece not fully issued", pos)
                    a.wait_vm(tag or ("wo", pos))
                    a(f"s_add_u32 s{T+1}, s{sb}, {off}")
                a(f"v_add_u32 v{VT2}, s{T+1}, v{VWT[s4]}")
                for h2 in range(2):
                    a.lds(f"ds_read_b64_tr_b16 {ar(16*pos+4*s4+2*h2,2)}, v{VT2} offset:{4*h2*256}", ("wo", pos))
            it.append(g)
        return it
    def dma_kv(pc, j):
        half = int(pc[1])
        group(pc, f"s_add_u32 m0, s{S_MK}, {(KR if pc[0] == 'K' else VR) + half*4096}", [f"s_add_u32 s{S_SO}, s{S_KV}, {half*4096}"])
        if pc[0] == "K":
            a(f"v_xor_b32 v{TT}, {64*j}, v{VKS}")
            a.vmem(f"buffer_load_dwordx4 v{TT}, {srd(SK)}, s{S_SO} offen offset:{j*1024} {opt.nt_kv} lds", "k")
        else:
            if j == 2: a(f"v_xor_b32 v{TT}, 32, v{VVS}")
            a.vmem(f"buffer_load_dwordx4 v{TT if j >= 2 else VVS}, {srd(SV)}, s{S_SO} offen offset:{j*1024} {opt.nt_kv} lds", "v")
    def reads(n):
        s, t = n >> 1, n & 1
        slot = s % 4
        fs = n & 1
        r = [(f"ds_read_b128 {vr(FB[fs]+4*nt,4)}, v{VB[t]} offset:{slot*4096 + nt*2048}", ("b", n)) for nt in range(2)]
        for i in range(8):
            for h2 in range(2):
                r.append((f"ds_read_b64_tr_b16 {vr(FA[fs]+4*i+2*h2,2)}, v{VA[i]} offset:{slot*16384 + (32*t+4*h2)*256}", ("a", n, i)))
        if opt.fakeD:
            r = r[:10] + [(f"ds_read_b128 {vr(FA[fs]+16+4*nt,4)}, v{VB[t]} offset:{slot*4096 + nt*2048}", ("a", n, 4+nt)) for nt in range(2)]
            a.ever.add(("lg", ("a", n, 6))); a.ever.add(("lg", ("a", n, 7)))
        return r
    def mfma(n, k):
        fs = n & 1
        i, nt = k >> 1, k & 1
        d = vr(ACC + 8*i + 4*nt, 4)
        a.wait_lg([("b", n), ("a", n, i)])
        a(f"{M16} {d}, {vr(FA[fs]+4*i,4)}, {vr(FB[fs]+4*nt,4)}, {'0' if n == 0 else d}")

    NP = 14
    def etab(lam):
        first = [max(lam, 1), 4 + lam]
        return first + [e for e in (1, 2, 3, 4, 5, 6, 7) if e not in first]
    def k_items():
        it = []
        for kt in range(2):
            for u in range(4):
                for h in range(2):
                    def g(kt=kt, u=u, h=h):
                        if (kt, u, h) == (0, 0, 0): a.wait_vm("k")
                        a(f"v_xor_b32 v{VT2}, {((4*u+2*h) ^ (4*kt)) << 4}, v{VKA}")
                        a.lds(f"ds_read_b64 {vr(KF+16*kt+4*u+2*h,2)}, v{VT2} offset:{1024*kt}", "kf")
                    it.append(g)
        return it
    def v_items():
        it = []
        for i in range(8):
            def g(i=i):
                if i == 0:
                    a.wait_vm("v")
                    a(f"s_add_u32 s{T+1}, s{S_MK}, {VR}")
                a(f"v_add_u32 v{VT2}, s{T+1}, v{VA[i]}")
                for h2 in range(2):
                    a.lds(f"ds_read_b64_tr_b16 {vr(VF+4*i+2*h2,2)}, v{VT2} offset:{4*h2*256}", "vf")
            it.append(g)
        return it
    uniform = all(sched(l, opt) == sched(0, opt) for l in range(4))
    for lam in range(1, 4):
        a(f"s_cmp_eq_u32 s{S_LAM}, {lam}")
        a(f"s_cbranch_scc1 L_p1_{lam}")
    vm0, lg0, cur0, ever0 = list(a.vm), list(a.lg), cur[0], set(a.ever)
    end_state = None
    a.lg_low = 7
    for lam in range(4):
        a.vm, a.lg, cur[0], a.ever = list(vm0), list(lg0), cur0, set(ever0)
        a.label(f"L_p1_{lam}")
        order, extras = sched(lam, opt)
        if lam == 0:
            extras = {st: [("X" + q[1] if q[0] == "W" else q) for q in l] for st, l in extras.items()}
        consume = {}; wslot = {}; free_at = {"k0": -9, "k1": -9}
        stream = []
        pend = {}
        non_stage = max(extras)
        if lam == 0: extras[opt.c0w] = ["W0", "W1"]
        assert min(extras) >= 0
        for p in range(2, 16):
            c = order[p]
            lead = (c & 3) == lam
            for j in range(4): stream.append((lambda j=j, c=c, p=p: dma_x(p, j, c), opt.wm if lead and (not opt.half or not (c >> HB) & 1) else 1.0, p - 3, p - 2, None))
            for j in range(4): stream.append((lambda j=j, c=c, p=p: dma_wq(p, j, c), opt.wm if lead else 1.0, p - 3, p - 2, p))
            for pc in extras.get(p - 2, []):
                if pc[0] in "WX":
                    sl = min(free_at, key=free_at.get); wslot[pc] = sl
                    cs = p + 1
                    if pc[0] == "W": consume.setdefault(cs, []).append(pc)
                    else: cs = p
                else:
                    sl = "k" + pc[1]
                    other = [st for st, l in extras.items() for q in l if q[0] == pc[0]]
                    cs = max(other) + 3
                    if pc[1] == "1": consume.setdefault(cs, []).append(pc[0])
                e = free_at[sl]; assert e <= p - 2, (lam, pc, p, free_at)
                free_at[sl] = cs + 1
                for j in range(4):
                    if pc[0] == "W": fn = lambda pc=pc, j=j: dma_wo(int(pc[1]), j, wslot[pc])
                    elif pc[0] == "X": fn = lambda pc=pc, j=j: dma_gen(pc, f"s_add_u32 m0, s{SLOT[wslot[pc]][0]}, {SLOT[wslot[pc]][1]}", S_HOWN, int(pc[1]), j, "X")
                    else: fn = lambda pc=pc, j=j: dma_kv(pc, j)
                    stream.append((fn, 1.0 if (lam == 0 and pc[0] == "W") else opt.wm, max(e, 6 if pc[0] in "WX" else 0), p - 2, None))
            if p - 2 == non_stage:
                stream.append((lambda: a.vmem(f"buffer_load_dword v{VNON}, v{TT+1}, {srd(SDBG)}, 0 offen sc1", "nonce"), 0.2, 6, p - 2, None))
                stream.append((lambda: a.vmem(f"buffer_load_dword v{TT+2}, v{TT+1}, {srd(SWS)}, s{S_FOW} offen", "touch"), 0.2, 6, p - 2, None))
        assert max(free_at.values()) <= 16
        for gp in range(2):
            for j in range(4):
                stream.append((lambda gp=gp, j=j: dma_gen(("B", gp), f"s_add_u32 m0, s{S_MW}, {16384*gp}", S_HOWN, gp, j, "B"), 1.0, 13 + gp, 14, None))
        for gp in range(2):
            for j in range(4):
                stream.append((lambda gp=gp, j=j: dma_wo(2 + gp, j, f"x{gp}"), opt.wm, 13 + gp, 14, None))
        fill = list(FILL)
        for k_, e_ in enumerate(etab(lam)):
            fill += [f"s_add_u32 s{U+2}, s{S_HL}, {e_}", f"s_and_b32 s{U+2}, s{U+2}, 7", f"s_lshl_b32 s{S_HO[k_]}, s{U+2}, 13"]
        nfill = len(fill)
        endidx = {}
        cnt = 0
        for it in stream:
            cnt += 1
            if it[4] is not None: endidx[it[4]] = cnt
        total = len(stream)
        unit = 32.0 / opt.bud
        clock = 0.0
        comp = [unit * opt.wm * (i + 1 - 8) for i in range(16)]
        posdone = {0: 0.0, 1: comp[15]}
        issued = 0
        def outstanding(): return sum(1 for c_ in comp if c_ > clock)
        def issue():
            nonlocal clock, issued
            fn, w, e, d, tagp = stream.pop(0); assert e <= s, (lam, s, e)
            if outstanding() >= opt.qmax: clock = comp[-opt.qmax]
            fn(); issued += 1
            comp.append(max(comp[-1], clock + opt.lat - unit * w) + unit * w)
            if tagp is not None: posdone[tagp] = comp[-1]
        for s in range(16):
            a.c(f"---- class {lam} stage {s} chunk {order[s]}")
            if a.lg: a.wait_lg_all()
            a.wait_vm(("st", s))
            a("s_barrier")
            stamp(a, 1 + s, opt)
            clock = max(clock, posdone[s])
            lw = []
            for pc in consume.get(s, []):
                assert not fill or nfill - len(fill) > 60
                if pc == "K": lw += k_items()
                elif pc == "V": lw += v_items()
                else: lw += tr_wo_items(int(pc[1]), wslot[pc])
            nl = len(lw)
            target = min(total, (endidx.get(s + 1, 0) if s + 1 < 16 else total) + opt.ahead) if s < opt.lastst else total
            while target > issued and stream[target - issued - 1][2] > s: target -= 1
            start = issued
            gap = 0
            for t in range(2):
                n = 2 * s + t
                rd = reads(n); nrd = len(rd)
                for k in range(16):
                    if n > 0: mfma(n - 1, k)
                    span = 16 if t == 0 else opt.rspan
                    while rd and nrd - len(rd) < ((k + 1) * nrd + span - 1) // span: a.lds(*rd.pop(0))
                    gap += 1
                    clock += 1
                    did = False
                    if stream and stream[0][2] <= s and outstanding() < opt.qopp:
                        issue(); did = True
                    while target - issued > 32 - gap:
                        issue(); did = True
                    while lw and nl - len(lw) < (gap * nl) // 26: lw.pop(0)(); did = True
                    if fill and not did:
                        for _ in range(3 if n == 0 else 1):
                            if fill: a(fill.pop(0))
            assert not lw
            if s == 5: assert not fill
            if opt.verbose: print(f"class {lam} stage {s}: {issued - start} dma clock {clock:.0f}", file=sys.stderr)
        assert not stream
        assert not fill
        st_ = (list(a.vm), list(a.lg), cur[0])
        if end_state is None: end_state = st_
        assert end_state == st_, (end_state, st_)
        if lam < 3: a("s_branch L_common")
    a.label("L_common")
    a.lg_low = 12
    def ad(lim=16): return 0
    def pad(n):
        while n > 0:
            k = min(n, 8); a(f"s_nop {k-1}"); n -= k
    assert "nonce" not in a.vm
    def cvt4(dst, u, nt):
        for hh in range(2):
            t = ACC + 8*(2*u+hh) + 4*nt
            a(f"v_cvt_pk_bf16_f32 v{dst+2*hh}, v{t}, v{t+1}")
            a(f"v_cvt_pk_bf16_f32 v{dst+2*hh+1}, v{t+2}, v{t+3}")
    qp = lambda u, nt: QP + 8*u + 4*nt
    CS = 128 ** -0.5 * 1.4426950408889634
    for k in range(16):
        mfma(31, k)
        if k == 0: a(f"v_readfirstlane_b32 s{S_NONCE}, v{VNON}")
        if k == 1: a(f"s_mov_b32 s{T+2}, {f32(CS)}")
        if k in (2, 6): ad(15)
        if k == 11: cvt4(qp(0,0), 0, 0)
        if k == 13: cvt4(qp(0,1), 0, 1)
        if k == 15: cvt4(qp(1,0), 1, 0)
    if a.lg: a.wait_lg_all()
    stamp(a, 17, opt)
    a.c("---- attention")
    cvt4(qp(1,1), 1, 1)
    ss = lambda kt, nt: SS + 8*nt + 4*kt
    def smf(u, kt, nt):
        d = vr(ss(kt, nt), 4)
        a(f"{M16} {d}, {vr(KF+16*kt+4*u,4)}, {vr(qp(u,nt),4)}, {'0' if u == 0 else d}")
    def cvt2(dst, u, nt, hh):
        t = ACC + 8*(2*u+hh) + 4*nt
        a(f"v_cvt_pk_bf16_f32 v{dst+2*hh}, v{t}, v{t+1}")
        a(f"v_cvt_pk_bf16_f32 v{dst+2*hh+1}, v{t+2}, v{t+3}")
    cv = [(u, nt, hh) for u in (2, 3) for nt in range(2) for hh in range(2)]
    for u in range(4):
        for nt in range(2):
            for kt in range(2):
                smf(u, kt, nt)
                if cv:
                    uu, n2, hh = cv.pop(0); cvt2(qp(uu, n2), uu, n2, hh)
                elif (u, nt, kt) in ((2, 0, 1), (3, 0, 1)): ad()
    pad(8 - 2 - ad())
    for nt in range(2):
        b = SS + 8*nt
        a(f"v_max3_f32 v{240+nt}, v{b}, v{b+1}, v{b+2}")
        a(f"v_max3_f32 v{242+nt}, v{b+3}, v{b+4}, v{b+5}")
        a(f"v_max3_f32 v{240+nt}, v{240+nt}, v{b+6}, v{b+7}")
        a(f"v_max_f32 v{240+nt}, v{240+nt}, v{242+nt}")
    def xred(op):
        pad(2 - ad())
        a("v_permlane32_swap_b32 v240, v241")
        a("s_nop 0")
        a(f"{op} v240, v240, v241")
        a("v_mov_b32 v241, v240")
        a("s_nop 1")
        a("v_permlane16_swap_b32 v240, v241")
        a("s_nop 0")
        a(f"{op} v240, v240, v241")
    xred("v_max_f32")
    a(f"v_mul_f32 v240, s{T+2}, v240")
    a("v_mov_b32 v241, v240")
    a("s_nop 1")
    a("v_permlane32_swap_b32 v240, v241")
    a("s_nop 0")
    for k in range(16):
        a(f"v_fma_f32 v{SS+k}, v{SS+k}, s{T+2}, -v{240+(k>>3)}")
    ad()
    for k in range(16):
        a(f"v_exp_f32 v{SS+k}, v{SS+k}")
        if k == 7: ad()
    for k in range(1, 8):
        for nt in range(2):
            b = SS + 8*nt
            a(f"v_add_f32 v{240+nt}, v{b if k == 1 else 240+nt}, v{b+k}")
    xred("v_add_f32")
    a("v_rcp_f32 v240, v240")
    a("s_nop 0")
    a("v_mov_b32 v241, v240")
    a("s_nop 1")
    a("v_permlane32_swap_b32 v240, v241")
    a("s_nop 0")
    for nt in range(2):
        for k in range(8):
            a(f"v_mul_f32 v{SS+8*nt+k}, v{SS+8*nt+k}, v{240+nt}")
        for p in range(4):
            a(f"v_cvt_pk_bf16_f32 v{PP+4*nt+p}, v{SS+8*nt+2*p}, v{SS+8*nt+2*p+1}")
    def pv(i, nt):
        a(f"{M16} {vr(ACC+8*i+4*nt,4)}, {vr(VF+4*i,4)}, {vr(PP+4*nt,4)}, 0")
    def ost(u, nt):
        blk = 2*u + nt
        a.vmem(f"buffer_store_dwordx4 {vr(qp(u,nt),4)}, v{VL16}, {srd(SWS)}, s{S_OW[blk>>2]} offen offset:{(blk&3)*1024} sc1", "o")
    seq = [(i, nt) for nt in range(2) for i in range(8)]
    ev = [(u, nt, hh) for nt in range(2) for u in range(4) for hh in range(2)]
    for k, (i, nt) in enumerate(seq):
        pv(i, nt)
        if k in (1, 4): ad()
        if k >= 8:
            u, n2, hh = ev.pop(0); cvt2(qp(u, n2), u, n2, hh)
            if hh: ost(u, n2)
    while ev:
        u, n2, hh = ev.pop(0); cvt2(qp(u, n2), u, n2, hh)
        if hh: ost(u, n2)
    stamp(a, 18, opt)
    a.wait_vm("B")
    a("s_barrier")
    VL = 2; VRR = 3; VRW = [8, 9, 10]; VOUT = 11; VZ = 12; VNV = 13; VFL = 14; VFA = 15; VLO = 15
    a(f"s_cmp_lg_u32 s{S_NONCE}, 0")
    a("s_cbranch_scc1 L_havenonce")
    a(f"s_mov_b32 s{S_CNT}, 0")
    a("v_mov_b32 v240, 0")
    a.label("L_nonce_spin")
    a(f"buffer_load_dword v{VNON}, v240, {srd(SDBG)}, 0 offen sc1")
    a("s_waitcnt vmcnt(0)")
    a(f"v_readfirstlane_b32 s{S_NONCE}, v{VNON}")
    a(f"s_add_u32 s{S_CNT}, s{S_CNT}, 1")
    a(f"s_cmp_gt_u32 s{S_CNT}, {SPIN_MAX}")
    a("s_cbranch_scc1 L_havenonce")
    a(f"s_cmp_eq_u32 s{S_NONCE}, 0")
    a("s_cbranch_scc1 L_nonce_spin")
    a.label("L_havenonce")
    a_real = a; a = Rec()
    a(f"v_mov_b32 v{VL}, v{VL16}")
    for sl in range(1, 4):
        a(f"s_add_u32 s{T}, s{S_W}, {sl}")
        a(f"s_and_b32 s{T}, s{T}, 3")
        a(f"s_mul_i32 s{T}, s{T}, 12288")
        a(f"s_add_u32 s{T}, s{T}, {(sl-1)*4096}")
        a(f"v_add_u32 v{VRW[sl-1]}, s{T}, v{VL16}")
    a(f"s_mul_i32 s{T}, s{S_W}, 12288")
    a(f"v_add_u32 v{VRR}, s{T}, v{VL16}")
    if opt.fl4:
        a(f"v_lshrrev_b32 v{VZ}, 3, v0")
        a(f"v_lshlrev_b32 v{VZ}, 25, v{VZ}")
        a(f"v_lshl_add_u32 v{VZ}, v0, 4, v{VZ}")
        for e in range(4): a(f"v_mov_b32 v{236+e}, s{S_NONCE}")
    else:
        a(f"v_lshrrev_b32 v{VZ}, 5, v0")
        a(f"v_lshlrev_b32 v{VZ}, 25, v{VZ}")
        a(f"v_lshl_add_u32 v{VZ}, v0, 2, v{VZ}")
    a(f"v_mov_b32 v{VNV}, s{S_NONCE}")
    a(f"v_and_b32 v{VFA}, 31, v0")
    a(f"v_lshlrev_b32 v{VFA}, 7, v{VFA}")
    a(f"v_and_b32 v{VOUT}, 31, v0")
    a(f"v_lshlrev_b32 v{VOUT}, 12, v{VOUT}")
    a(f"v_lshrrev_b32 v242, 5, v0")
    a(f"v_lshl_add_u32 v{VOUT}, v242, 4, v{VOUT}")
    a(f"v_and_b32 v241, 15, v0")
    a(f"v_lshlrev_b32 v241, 4, v241")
    a(f"v_lshl_add_u32 v241, v242, 8, v241")
    a(f"v_bfe_u32 v242, v0, 4, 1")
    a(f"v_lshl_add_u32 v241, v242, 10, v241")
    late_consts = a.L; a = a_real
    VG, VGW = 234, 235
    a(f"v_bfe_u32 v240, v0, 4, 1")
    a(f"v_lshl_add_u32 v240, v240, 3, v{VR4}")
    a(f"v_lshlrev_b32 v{VG}, 8, v240")
    a(f"v_lshl_add_u32 v{VG}, v{VR4}, 6, v{VG}")
    a(f"v_and_b32 v240, 3, v0")
    a(f"v_lshl_add_u32 v{VG}, v240, 3, v{VG}")
    a(f"v_lshrrev_b32 v240, 5, v0")
    a(f"v_lshl_add_u32 v{VG}, v240, 14, v{VG}")
    a(f"v_and_b32 v{VGW}, 15, v0")
    a(f"v_lshlrev_b32 v{VGW}, 4, v{VGW}")
    a(f"v_lshl_add_u32 v{VGW}, v240, 9, v{VGW}")
    a(f"v_bfe_u32 v240, v0, 4, 1")
    a(f"v_lshl_add_u32 v{VGW}, v240, 10, v{VGW}")
    a(f"s_xor_b32 s{T}, s{S_W}, 2")
    a(f"s_lshl_b32 s{T}, s{T}, 14")
    a(f"s_add_u32 s{T}, s{T}, 98304")
    a(f"v_add_u32 v{VGW}, s{T}, v{VGW}")
    VGA = [224, 225, 226, 227]
    for i in range(4): a(f"v_xor_b32 v{VGA[i]}, {64*i}, v{VG}")
    def bar():
        if a.lg: a.wait_lg_all()
        a("s_barrier")
    ring = ["w2", "w3", "x2", "x3", "x0", "x1"]
    def gacc(k):
        return vr(64 + 4*k, 4) if k < 4 else vr(112 + 4*(k-4), 4) if k < 8 else ar(224 + 4*(k-8), 4)
    slot_of = {2: "x0", 3: "x1"}
    for p_ in range(4, NP): slot_of[p_] = ring[(p_ - 4) % 6]
    def iss(pos): return [lambda j=j: dma_wo(pos, j, slot_of[pos]) for j in range(4)]
    def trp(pos): return tr_wo_items(pos, slot_of[pos])
    GA = [160, 192]
    def g_reads(u):
        r = []
        for mt in range(8):
            for h2 in range(2):
                r.append((f"ds_read_b64_tr_b16 {vr(GA[u&1]+4*mt+2*h2,2)}, v{VGA[mt>>1]} offset:{u*4096 + h2*1024 + (mt&1)*32}", ("ga", u, mt)))
        return r
    a.lg_low = 7
    for x in g_reads(0): a.lds(*x)
    for x in late_consts[:12]: a(x)
    late_consts = late_consts[12:]
    for u in range(4):
        rd_ = g_reads(u + 1) if u < 3 else []
        for k in range(16):
            mt, nt = k >> 1, k & 1
            d = gacc(k)
            a.wait_lg(("ga", u, mt))
            a(f"{M16} {d}, {vr(GA[u&1]+4*mt,4)}, {vr(qp(u,nt),4)}, {'0' if u == 0 else d}")
            if rd_: a.lds(*rd_.pop(0))
            for _ in range(1 if rd_ else 2):
                if late_consts: a(late_consts.pop(0))
    assert not late_consts
    a.lg_low = 12
    a.wait_vm("o")
    a.vmem(f"buffer_store_dword v{VNV}, v{VZ}, {srd(SWS)}, s{S_FOW} offen sc1", "flag")
    stamp(a, 19, opt)
    gw = [lambda k=k: a.lds(f"ds_write_b128 v{VGW}, {gacc(k)} offset:{(k>>2)*4096 + ((k>>1)&1)*2048 + (k&1)*256}", "gw") for k in range(16)]
    nxt_tr = 4
    for p_ in range(4, NP):
        if p_ >= 8: a.wait_lg(("wo", p_ - 6))
        for fn in iss(p_): fn()
        if p_ == opt.poll_at: a.vmem(f"buffer_load_dword v{VFL}, v{VFA}, {srd(SWS)}, s{S_FOR} offen sc1", "poll")
        if p_ == 5:
            for fn in trp(2) + trp(3): fn()
        if p_ - nxt_tr + 1 >= opt.pipe + 1 or (p_ - nxt_tr + 1 >= opt.pipe and p_ < NP - 1):
            for fn in trp(nxt_tr): fn()
            nxt_tr += 1
    def obase(n):
        a(f"s_lshl_b32 s{S_OST}, s{S_Q[n]}, 18")
        a(f"s_add_u32 s{S_OST}, s{S_OST}, s{S_OB}")
    obase(0)
    stamp(a, 20, opt)
    a(f"s_mov_b32 s{S_CNT}, 0")
    a.wait_vm("poll")
    a.label("L_pollo")
    a(f"v_cmp_ne_u32 vcc, s{S_NONCE}, v{VFL}")
    a(f"s_add_u32 s{S_CNT}, s{S_CNT}, 1")
    a(f"s_cmp_gt_u32 s{S_CNT}, {SPIN_MAX}")
    a(f"s_cbranch_scc1 L_pollo_done")
    a("s_nop 1")
    a(f"s_cbranch_vccz L_pollo_done")
    a(f"buffer_load_dword v{VFL}, v{VFA}, {srd(SWS)}, s{S_FOR} offen sc1")
    a("s_waitcnt vmcnt(0)")
    a("s_branch L_pollo")
    a.label("L_pollo_done")
    if opt.stamps: a(f"v_writelane_b32 v{VSTAMP}, s{S_CNT}, 62")
    stamp(a, 21, opt)
    AC = 16; TMP = 80; OF = [128, 192]
    def load_o(n, f):
        if f % 2 == 0: a(f"s_add_u32 s{T+2}, s{S_OST}, s{S_HO[f>>1]}")
        a.vmem(f"buffer_load_dwordx4 {vr(OF[n&1]+4*f,4)}, v{VLO}, {srd(SWS)}, s{T+2} offen offset:{(f&1)*512} sc1", ("o", n, f))
    a(f"v_mov_b32 v{VLO}, v241")
    INIT = opt.init_o
    for f in range(INIT): load_o(0, f)
    for p_ in range(nxt_tr, NP):
        for fn in trp(p_): fn()
    a.wait_lg_all()
    NG = opt.fmt
    assert NG == 2
    PT = OF[0]; PK = TMP + 16; PU = PT + 40; PS = PT + 44; S_HSEL = S_HX
    S_SEL = [S_QX[0], S_QX[1]]; S_ZSEL = S_QX[2]; S_M3 = S_QX[3]; S_MSK = S_HW
    VBAD, VPL = 12, 14
    VTG = [4, 5, 6, 7]
    dslot = [0, 1, 2, 4, 5, 6, 8, 9] if NG == 3 else list(range(8))
    def wr(n, sl, j):
        a.lds(f"ds_write_b128 v{VRW[sl-1]}, {vr(AC+16*sl+4*j,4)} offset:{(n&1)*49152 + j*1024}", "rw")
    def rd(n, k):
        a.lds(f"ds_read_b128 {vr(TMP+4*k,4)}, v{VRR} offset:{(n&1)*49152 + k*1024}", ("rr", k))
    def presum(src, j):
        a.wait_lg([("rr", j), ("rr", 4*src+j)])
        for e in range(4): a(f"v_add_f32 v{TMP+4*j+e}, v{TMP+4*j+e}, v{TMP+16*src+4*j+e}")
    def fin(j):
        for e in range(4): a(f"v_add_f32 v{TMP+4*j+e}, v{TMP+4*j+e}, v{AC+4*j+e}")
    def pack_items(gr):
        if NG == 3:
            def g():
                for p in range(3*gr, min(3*gr+3, 8)):
                    a(f"v_cvt_pk_bf16_f32 v{PK+dslot[p]}, v{TMP+2*p}, v{TMP+2*p+1}")
                a(f"v_mov_b32 v{PK+4*gr+3}, s{S_NONCE}")
                if gr == 2: a(f"v_mov_b32 v{PK+10}, s{S_NONCE}")
            return [g]
        def g1():
            for p in range(4*gr, 4*gr+4): a(f"v_perm_b32 v{PK+p}, v{TMP+2*p+1}, v{TMP+2*p}, s{S_HSEL}")
        def g2():
            for p in range(4*gr, 4*gr+4): a(f"v_bfi_b32 v{PK+p}, s{S_MSK}, v{VTG[p&3]}, v{PK+p}")
        return [g1, g2]
    def pst(n, j):
        if j == 0:
            a(f"s_lshl_b32 s{T+3}, s{S_Q[n]}, 15")
            a(f"s_add_u32 s{T+3}, s{T+3}, s{S_PB}")
        a.vmem(f"buffer_store_dwordx4 {vr(PK+4*j,4)}, v{VL}, {srd(SWS)}, s{T+3} offen offset:{j*1024} sc1", ("p", n))
    def pld(k, j, track=True):
        if j == 0:
            a(f"s_lshl_b32 s{T+4}, s{S_Q[k]}, 13")
            a(f"s_add_u32 s{T+4}, s{T+4}, s{S_PR}")
        ins = f"buffer_load_dwordx4 {vr(PT+12*k+4*j,4)}, v{VL}, {srd(SWS)}, s{T+4} offen offset:{j*1024} sc1"
        if track: a.vmem(ins, ("pp", k))
        else: a(ins)
    def chk_items(k):
        b = PT + 12*k
        if NG == 3:
            def g():
                a(f"v_xor_b32 v{VBAD}, s{S_NONCE}, v{b+3}")
                a(f"v_bitop3_b32 v{VBAD}, v{VBAD}, v{b+7}, s{S_NONCE} bitop3:0xf6")
                a(f"v_bitop3_b32 v{VBAD}, v{VBAD}, v{b+11}, s{S_NONCE} bitop3:0xf6")
                a(f"v_cmp_ne_u32 vcc, 0, v{VBAD}")
            return [g]
        def g1():
            a(f"v_xor_b32 v{VBAD}, v{VTG[0]}, v{b}")
            for p in range(1, 5): a(f"v_bitop3_b32 v{VBAD}, v{VBAD}, v{b+p}, v{VTG[p&3]} bitop3:0xf6")
        def g2():
            for p in range(5, 8): a(f"v_bitop3_b32 v{VBAD}, v{VBAD}, v{b+p}, v{VTG[p&3]} bitop3:0xf6")
            a(f"v_and_b32 v{VBAD}, s{S_MSK}, v{VBAD}")
            a(f"v_cmp_ne_u32 vcc, 0, v{VBAD}")
        return [g1, g2]
    def mid_items(k):
        if NG == 3: return []
        def g(h):
            for p in range(4*h, 4*h+4): a(f"v_or_b32 v{PT+12*k+p}, s{S_MSK}, v{PT+12*k+p}")
        return [lambda: g(0), lambda: g(1)]
    def sel(k):
        a("s_cmp_eq_u64 vcc, 0")
        a(f"s_cselect_b32 s{S_SEL[0]}, 0x01000c0c, s{S_ZSEL}")
        a(f"s_cselect_b32 s{S_SEL[1]}, 0x03020c0c, s{S_ZSEL}")
        a(f"s_cselect_b32 s{T+5}, {1<<k}, 0")
        a(f"s_or_b32 s{S_DONE}, s{S_DONE}, s{T+5}")
    def unp_set(k, p2):
        for p in (2*p2, 2*p2+1):
            for h in range(2):
                d = PT + 12*k + dslot[p]
                a(f"v_perm_b32 v{PS+2*p+h}, v{d}, v{d}, s{S_SEL[h]}")
    def unp_add(k, p, dst):
        d = PT + 12*k + dslot[p]
        for h in range(2): a(f"v_perm_b32 v{PU+h}, v{d}, v{d}, s{S_SEL[h]}")
        for h in range(2): a(f"v_add_f32 v{dst+2*p+h}, v{dst+2*p+h}, v{PU+h}")
    def consts():
        a(f"s_mov_b32 s{S_ZSEL}, 0x0c0c0c0c")
        a(f"s_mov_b32 s{S_DONE}, 0")
        a(f"s_xor_b32 s{S_M3}, s{S_Q[0]}, 2")
        a(f"s_lshl_b32 s{S_M3}, s{S_M3}, 14")
        a(f"s_add_u32 s{S_M3}, s{S_M3}, s{S_MW}")
        a(f"s_add_u32 s{S_M3}, s{S_M3}, 98304")
        a(f"v_add_u32 v{VPL}, s{S_M3}, v{VL}")
        a(f"s_mov_b32 s{S_MSK}, 0x00010001")
        a(f"s_mov_b32 s{S_HSEL}, 0x07060302")
    def tags(h):
        if h == 0:
            a(f"v_and_b32 v{VTG[0]}, 3, v0")
            a(f"v_lshlrev_b32 v{VTG[0]}, 2, v{VTG[0]}")
            a(f"v_lshrrev_b32 v{VTG[0]}, v{VTG[0]}, v{VNV}")
        else:
            for p in range(1, 4): a(f"v_lshrrev_b32 v{VTG[p]}, {p}, v{VTG[0]}")
    consts()
    carry = []
    ro = [0, 4, 8, 1, 5, 9, 2, 6, 10, 3, 7, 11]
    ps = [(src, j) for j in range(4) for src in (1, 2)]
    packs = lambda: [g for gr in range(NG) for g in pack_items(gr)]
    def own_addr(n):
        a(f"s_xor_b32 s{T+1}, s{S_Q[n]}, 2")
        a(f"s_lshl_b32 s{T+1}, s{T+1}, 14")
        a(f"s_add_u32 s{T+1}, s{T+1}, s{S_MW}")
        a(f"s_add_u32 s{T+1}, s{T+1}, 98304")
        a(f"v_add_u32 v{VBAD}, s{T+1}, v{VL}")
    def own_rd(j2):
        for j in (2*j2, 2*j2+1): a.lds(f"ds_read_b128 {vr(AC+4*j,4)}, v{VBAD} offset:{j*1024}", "own")
    NM = 4 * NP
    for n in range(4):
        a.c(f"---- strip {n}")
        if n == 0: seq = [(ks, sl) for ks in range(NP) for sl in (1, 2)] + [(ks, sl) for sl in (3, 0) for ks in range(NP)]
        else: seq = [(ks, sl) for sl in (1, 2, 3, 0) for ks in range(NP)]
        at = {}
        def put(g, fn): at.setdefault(g, []).append(fn)
        for g, fn in carry: put(g, fn)
        carry = []
        fast = n >= 2
        if n == 0:
            g = 0
            for f in range(INIT, NP): put(g, lambda f=f: load_o(0, f)); g += 2
            put(g - 1, lambda: obase(1))
            for f in range(NP): put(g, lambda f=f: load_o(1, f)); g += 2
            assert g <= NM
            for k in range(opt.gw_pre): gw[k]()
            for i, k in enumerate(range(opt.gw_pre, 16)): put(1 + (i * 24) // (16 - opt.gw_pre) // 2 * 2 if opt.gw_pre >= 4 else 1 + k + (k >> 1), gw[k])
            put(27, bar)
            put(29, lambda: tags(0) or a("s_nop 0"))
            put(30, lambda: tags(1))
            for i, (sl, j) in enumerate([(sl, j) for sl in (1, 2) for j in range(4)]): put(31 + i + (i >> 1), lambda sl=sl, j=j: wr(n, sl, j))
            go = 28
        else:
            if n < 3:
                for f in range(NP): put(2 * f, lambda f=f: load_o(n + 1, f))
            if n == 2:
                def pdma(j):
                    if j == 0:
                        a(f"s_lshl_b32 s{T+4}, s{S_Q[2]}, 13")
                        a(f"s_mov_b32 m0, s{S_M3}")
                        a(f"s_add_u32 s{T+4}, s{T+4}, s{S_PR}")
                    a.vmem(f"buffer_load_dwordx4 v{VL}, {srd(SWS)}, s{T+4} offen offset:{j*1024} sc1 lds", "pdma")
                for j in range(NG): put(opt.g_p2 + 2 * j, lambda j=j: pdma(j))
            for j in range(4): put(28 + 2 * j, lambda j=j: wr(n, 1, j))
            for j in range(4): put(35 + 2 * j, lambda j=j: wr(n, 2, j))
            go = 36
        put(go, lambda: own_addr(n))
        put(go + (5 if n == 0 else 2), lambda: own_rd(0))
        put(go + (8 if n == 0 else 4), lambda: own_rd(1))
        put(42, lambda: a("s_nop 3"))
        put(43, lambda: a("s_nop 3"))
        if fast:
            for j in range(4): put(44 + j, lambda j=j: wr(n, 3, j))
            gb = 49
        else:
            for j in range(4): put(44 + j + (j >> 1), lambda j=j: wr(n, 3, j))
            gb = 50
        put(gb, bar)
        for i in range(6):
            put(gb + i, lambda i=i: (rd(n, ro[2*i]), rd(n, ro[2*i+1])))
        npre_s = NM - 1 - (gb + 5)
        for i in range(npre_s): put(gb + 6 + i, lambda i=i: presum(*ps[i]))
        left = [lambda i=i: presum(*ps[i]) for i in range(npre_s, 8)]
        if n < 2:
            put(NM - 1, lambda: obase(n + 2))
            g = 1
            for fn in left + [lambda j=j: fin(j) for j in range(4)] + packs(): carry.append((g, fn)); g += 2
            assert g <= 35, g
            for j in range(NG): carry.append((g + 2 * j - 1 + (1 - (g & 1)) , lambda j=j, n=n: pst(n, j)))
        if n == 2:
            if opt.dense:
                rem = list(range(npre_s, 8))
                pre = lambda js: [(lambda i=i: presum(*ps[i])) for i in rem if ps[i][1] in js]
                its = pre((0, 1)) + [lambda: fin(0), lambda: fin(1)] + pack_items(0) + ["s0"] + pre((2, 3)) + [lambda: fin(2), lambda: fin(3)] + pack_items(1) + ["s1"]
                h = 0
                for it in its:
                    if isinstance(it, str):
                        carry.append((h // 3, lambda j=int(it[1]): pst(2, j))); h += 2
                    else:
                        carry.append((h // 3, it)); h += opt.dense
                g = h // 3 + 1
            else:
                g = NG if opt.g_p1 == 0 else 0
                for fn in left + [lambda j=j: fin(j) for j in range(4)]: carry.append((g, fn)); g += 1
                for j in range(NG):
                    for fn in pack_items(j): carry.append((g, fn)); g += 1
                    carry.append((g, lambda j=j: pst(2, j))); g += 1
            gfree = g
        if n == 3:
            for j in range(NG): put(opt.g_p1 + j, lambda j=j: pld(1, j))
            def prd():
                a.wait_vm("pdma")
                for j in range(NG):
                    a.lds(f"ds_read_b128 {vr(PT+24+4*j,4)}, v{VPL} offset:{j*1024}", "prd")
            g = gfree
            put(g - 3, prd)
            put(g, lambda: a.wait_lg("prd"))
            for fn in chk_items(2): put(g, fn); g += 1
            put(g, lambda: sel(2)); g += 1
            for fn in mid_items(2): put(g, fn); g += 1
            for p2 in range(4): put(g, lambda p2=p2: unp_set(2, p2)); g += 1
            put(g, lambda: a.wait_vm(("pp", 1)))
            for fn in chk_items(1): put(g, fn); g += 1
            assert g < go
            put(g, lambda: sel(1)); g += 1
            for fn in mid_items(1) + [lambda p=p: unp_add(1, p, PS) for p in range(8)]:
                while g == go or 44 <= g <= 47: g += 1
                put(g, fn); g += 1
            assert g <= gb, g
            for j in range(NG): put(opt.g_p0 + j, lambda j=j: pld(0, j))
        seen = set()
        if n >= 1: a.wait_vm(("o", n, NP - 1))
        for g, (ks, sl) in enumerate(seq):
            if ks not in seen:
                a.wait_vm(("o", n, ks)); seen.add(ks)
            if sl == 0 and ks == 0: a.wait_lg("own")
            c = "0" if (ks == 0 and sl) else vr(AC+16*sl, 16)
            a(f"{MF} {vr(AC+16*sl,16)}, {ar(16*ks+4*sl,4)}, {vr(OF[n&1]+4*ks,4)}, {c}")
            for fn in at.get(g, []): fn()
            if n == opt.sst and g % 7 == 6 and g < NM - 1: stamp(a, 32 + g // 7, opt)
        stamp(a, 22 + n, opt)
    for fn in left: fn()
    for j in range(4): fin(j)
    if opt.lean:
        a(f"s_mov_b32 s{S_SEL[0]}, 0x00010000")
        a(f"v_mov_b32 v{AC+48}, 0xffff0000")
    else:
        a(f"s_mov_b32 s{S_SEL[0]}, 0x01000c0c")
        a(f"s_mov_b32 s{S_SEL[1]}, 0x03020c0c")
    if opt.outtr == 2:
        a(f"v_and_b32 v{PU+2}, 31, v0")
        a(f"v_mul_u32_u24 v{PU+2}, 272, v{PU+2}")
        a(f"v_lshrrev_b32 v{PU+3}, 5, v0")
        a(f"v_lshl_add_u32 v{PU+2}, v{PU+3}, 4, v{PU+2}")
        a(f"s_lshl_b32 s{T+6}, s{S_W}, 6")
        a(f"s_add_u32 s{T+7}, s{T+6}, 0")
        a(f"v_add_u32 v{PU+2}, s{T+7}, v{PU+2}")
        a(f"v_lshrrev_b32 v{PU}, 4, v0")
        a(f"v_and_b32 v{PU+1}, 15, v0")
        a(f"v_lshlrev_b32 v{PU+1}, 4, v{PU+1}")
        a(f"v_lshl_add_u32 v{PU+3}, v{PU}, 12, v{PU+1}")
        a(f"v_mul_u32_u24 v{VPL}, 272, v{PU}")
        a(f"v_add_u32 v{VPL}, v{VPL}, v{PU+1}")
        a(f"s_mul_i32 s{T+7}, s{S_W}, {8*272}")
        a(f"s_add_u32 s{T+7}, s{T+7}, 0")
        a(f"v_add_u32 v{VPL}, s{T+7}, v{VPL}")
        a(f"s_sub_u32 s{T+6}, s{S_OUTB}, s{T+6}")
        a(f"s_lshl_b32 s{T+7}, s{S_W}, 15")
        a(f"s_add_u32 s{T+6}, s{T+6}, s{T+7}")
        a(f"s_add_u32 s{T+7}, s{T+6}, 16384")
    elif opt.outtr:
        a(f"v_and_b32 v{PU+2}, 31, v0")
        a(f"v_lshlrev_b32 v{PU+2}, 6, v{PU+2}")
        a(f"v_lshrrev_b32 v{PU+3}, 5, v0")
        a(f"v_lshl_add_u32 v{PU+2}, v{PU+3}, 4, v{PU+2}")
        a(f"v_add_u32 v{PU+2}, s{S_M3}, v{PU+2}")
        a(f"v_lshrrev_b32 v{PU+3}, 2, v0")
        a(f"v_lshlrev_b32 v{PU+3}, 12, v{PU+3}")
        a(f"v_and_b32 v{PU}, 3, v0")
        a(f"v_lshl_add_u32 v{PU+3}, v{PU}, 4, v{PU+3}")
        a(f"s_add_u32 s{T+6}, s{S_OUTB}, 65536")
    stamp(a, 26, opt)
    a(f"s_mov_b32 s{S_CNT}, 0")
    for k in (0, 1, 2):
        if k:
            a(f"s_bitcmp1_b32 s{S_DONE}, {k}")
            a(f"s_cbranch_scc1 L_skip{k}")
            a(f"s_branch L_rel{k}")
        else:
            a.wait_vm(("pp", 0))
        a.label(f"L_chk{k}")
        for fn in chk_items(k): fn()
        a(f"s_add_u32 s{S_CNT}, s{S_CNT}, 1")
        a(f"s_cmp_gt_u32 s{S_CNT}, {SPIN_MAX}")
        a(f"s_cbranch_scc1 L_ok{k}")
        a("s_nop 1")
        a(f"s_cbranch_vccz L_ok{k}")
        a.label(f"L_rel{k}")
        for j in range(NG): pld(k, j, track=False)
        a("s_waitcnt vmcnt(0)")
        a(f"s_branch L_chk{k}")
        a.label(f"L_ok{k}")
        if opt.lean:
            for p in range(8):
                d = PT + 12*k + p; t = AC + 32 + 2*p
                a(f"v_lshl_or_b32 v{t}, v{d}, 16, s{S_SEL[0]}")
                a(f"v_and_or_b32 v{t+1}, v{d}, v{AC+48}, s{S_SEL[0]}")
            for p in range(8): a(f"v_pk_add_f32 {vr(PS+2*p,2)}, {vr(PS+2*p,2)}, {vr(AC+32+2*p,2)}")
        else:
            for fn in mid_items(k): fn()
            for p in range(8): unp_add(k, p, PS)
        a.label(f"L_skip{k}")
    if opt.lean:
        for p in range(8): a(f"v_pk_add_f32 {vr(TMP+2*p,2)}, {vr(TMP+2*p,2)}, {vr(PS+2*p,2)}")
    else:
        for e in range(16): a(f"v_add_f32 v{TMP+e}, v{TMP+e}, v{PS+e}")
    stamp(a, 27, opt)
    for p in range(8):
        a(f"v_cvt_pk_bf16_f32 v{AC+p}, v{TMP+2*p}, v{TMP+2*p+1}")
    if opt.outtr == 2:
        a(f"ds_write_b128 v{PU+2}, {vr(AC,4)}")
        a(f"ds_write_b128 v{PU+2}, {vr(AC+4,4)} offset:32")
        a("s_waitcnt lgkmcnt(0)")
        a("s_barrier")
        a(f"ds_read_b128 {vr(AC+8,4)}, v{VPL}")
        a(f"ds_read_b128 {vr(AC+12,4)}, v{VPL} offset:{4*272}")
        a("s_waitcnt lgkmcnt(1)")
        a(f"buffer_store_dwordx4 {vr(AC+8,4)}, v{PU+3}, {srd(SOUT)}, s{T+6} offen {opt.outaux}")
        a("s_waitcnt lgkmcnt(0)")
        a(f"buffer_store_dwordx4 {vr(AC+12,4)}, v{PU+3}, {srd(SOUT)}, s{T+7} offen {opt.outaux}")
    elif opt.outtr:
        a(f"ds_write_b128 v{PU+2}, {vr(AC,4)}")
        a(f"ds_write_b128 v{PU+2}, {vr(AC+4,4)} offset:32")
        a("s_waitcnt lgkmcnt(0)")
        a(f"ds_read_b128 {vr(AC+8,4)}, v{VPL}")
        a(f"ds_read_b128 {vr(AC+12,4)}, v{VPL} offset:1024")
        a("s_waitcnt lgkmcnt(1)")
        a(f"buffer_store_dwordx4 {vr(AC+8,4)}, v{PU+3}, {srd(SOUT)}, s{S_OUTB} offen {opt.outaux}")
        a("s_waitcnt lgkmcnt(0)")
        a(f"buffer_store_dwordx4 {vr(AC+12,4)}, v{PU+3}, {srd(SOUT)}, s{T+6} offen {opt.outaux}")
    else:
        a(f"buffer_store_dwordx4 {vr(AC,4)}, v{VOUT}, {srd(SOUT)}, s{S_OUTB} offen")
        a(f"buffer_store_dwordx4 {vr(AC+4,4)}, v{VOUT}, {srd(SOUT)}, s{S_OUTB} offen offset:32")
    if opt.stamps:
        a("s_waitcnt vmcnt(0)")
        stamp(a, 28, opt)
        a(f"v_writelane_b32 v{VSTAMP}, s{S_CNT}, 63")
        dump_stamps(a, opt)
    if opt.amp:
        a("s_waitcnt vmcnt(0)")
        stamp(a, 28, opt)
        a("s_nop 1")
        a(f"v_readlane_b32 s4, v{VSTAMP}, 0")
        a(f"v_readlane_b32 s5, v{VSTAMP}, 1")
        a("s_memrealtime s[30:31]")
        a("s_waitcnt lgkmcnt(0)")
        a("s_sub_u32 s5, s5, s4")
        a("s_min_u32 s5, s5, 10000")
        a("s_lshl_b32 s5, s5, 3")
        a("s_add_u32 s6, s30, s5")
        a.label("L_amp")
        a("s_sleep 1")
        a("s_memrealtime s[30:31]")
        a("s_waitcnt lgkmcnt(0)")
        a("s_sub_u32 s7, s30, s6")
        a("s_cmp_lt_i32 s7, 0")
        a("s_cbranch_scc1 L_amp")
    a.label(end)
    a("s_endpgm")
    a.label("L_codeend")

Opt.fill0 = 12
Opt.rest = ""
Opt.half = True
Opt.wm = 2.2
Opt.bud = 9.6
Opt.ahead = 8
Opt.qmax = 12
Opt.qopp = 10
Opt.lat = 20.0
Opt.verbose = False
Opt.pipe = 3
Opt.poll_at = 11
Opt.c0w = 11
Opt.gw_pre = 0
Opt.lastst = 15
Opt.fakeB = False
Opt.fakeD = False
Opt.amp = ""
Opt.fl4 = False
Opt.ptouch = 0
Opt.pt_stage = 14
Opt.otouch = -1
Opt.et = 0
Opt.etm = 63
Opt.touch = 1
Opt.mq_w = 2
Opt.rspan = 12
Opt.diag = False

def build(opt):
    nm = NAME + "_kernel"
    out = []
    out.append("; @launch grid=(256,1,1) block=(256,1,1) lds=163840")
    out.append('.amdgcn_target "amdgcn-amd-amdhsa--gfx950"')
    out.append(".text")
    a = Asm()
    gen(a, opt)
    out.append(f".globl {nm}\n.p2align 8\n.type {nm},@function\n{nm}:")
    out.append(a.text())
    out.append('.section .rodata,"a"')
    out.append(f""".p2align 6
.amdhsa_kernel {nm}
  .amdhsa_next_free_vgpr 512
  .amdhsa_next_free_sgpr 102
  .amdhsa_accum_offset 256
  .amdhsa_group_segment_fixed_size 0
  .amdhsa_kernarg_size 104
  .amdhsa_user_sgpr_count 2
  .amdhsa_user_sgpr_kernarg_segment_ptr 1
  .amdhsa_system_sgpr_workgroup_id_x 1
.end_amdhsa_kernel
""")
    return "\n".join(out)

if __name__ == "__main__":
    opt = Opt()
    for kv in sys.argv[2:]:
        k, v = kv.split("=")
        cur = getattr(opt, k)
        setattr(opt, k, (v == "1") if isinstance(cur, bool) else type(cur)(v))
    t = build(opt)
    open(sys.argv[1], "w").write(t)
```

```python
import re, sys
def regs(op):
    op = op.strip().lstrip('-')
    m = re.fullmatch(r'([vas])(\d+)', op)
    if m: return {(m.group(1), int(m.group(2)))}
    m = re.fullmatch(r'([vas])\[(\d+):(\d+)\]', op)
    if m: return {(m.group(1), i) for i in range(int(m.group(2)), int(m.group(3)) + 1)}
    if op in ('vcc', 'vcc_lo', 'vcc_hi'): return {('s', 'vcc')}
    if op == 'm0': return {('s', 'm0')}
    if op == 'exec': return {('s', 'exec')}
    return set()
TRANS = ('v_exp_f32', 'v_rcp_f32', 'v_log_f32', 'v_rsq_f32', 'v_sqrt_f32')
class I: pass
def parse(line):
    line = line.split(';')[0].strip()
    if not line or line.endswith(':') or line.startswith('.'): return None
    p = line.split(None, 1)
    mn = p[0]; rest = p[1] if len(p) > 1 else ''
    ops = [o.strip() for o in rest.split(',')]
    if ops:
        last = ops[-1].split()
        mods = last[1:]; ops[-1] = last[0] if last else ''
    else: mods = []
    i = I(); i.mn = mn; i.txt = line; i.w = set(); i.r = set(); i.kind = 'other'; i.states = 1; i.c = set(); i.ab = set(); i.sdata = set()
    if mn == 's_nop': i.states = int(ops[0], 0) + 1; i.kind = 'nop'
    elif mn.startswith('v_mfma'):
        i.kind = 'mfma'; i.w = regs(ops[0]); i.ab = regs(ops[1]) | regs(ops[2]); i.c = regs(ops[3]); i.r = i.ab | i.c
        i.passes = 8 if '32x32' in mn else 4
    elif mn.startswith('ds_read'): i.kind = 'ds'; i.w = regs(ops[0]); i.r = regs(ops[1])
    elif mn.startswith('ds_write'): i.kind = 'ds'; i.r = regs(ops[0]) | regs(ops[1])
    elif mn.startswith('buffer_load'):
        i.kind = 'vmem'
        if 'lds' in mods: i.r = regs(ops[0]) | regs(ops[1]) | regs(ops[2]) | {('s', 'm0')}; i.ldsdma = True
        else: i.w = regs(ops[0]); i.r = regs(ops[1]) | regs(ops[2]) | regs(ops[3])
    elif mn.startswith('buffer_store'):
        i.kind = 'vmem'; i.r = set().union(*[regs(o) for o in ops]);
        if 'x4' in mn or 'x3' in mn: i.sdata = regs(ops[0])
    elif mn.startswith('v_permlane'): i.kind = 'valu'; i.w = regs(ops[0]) | regs(ops[1]); i.r = set(i.w); i.perm = True
    elif mn.startswith('v_'):
        i.kind = 'valu'; i.w = regs(ops[0]); i.r = set().union(*[regs(o) for o in ops[1:]]) if len(ops) > 1 else set()
        if mn.startswith('v_writelane') or mn.startswith('v_fmac'): i.r |= i.w
        if mn.startswith('v_cndmask') and len(ops) == 3: i.r |= {('s', 'vcc')}
    elif mn.startswith('s_'):
        i.kind = 'salu'
        if not (mn.startswith('s_cmp') or mn.startswith('s_cbranch') or mn.startswith('s_bitcmp') or mn in ('s_waitcnt', 's_barrier', 's_branch', 's_endpgm', 's_sleep', 's_setprio')):
            i.w = regs(ops[0]); i.r = set().union(*[regs(o) for o in ops[1:]]) if len(ops) > 1 else set()
        else:
            i.r = set().union(*[regs(o) for o in ops])
    return i
def check(seq):
    errs = []
    for k, c in enumerate(seq):
        d = 0
        for j in range(k - 1, max(-1, k - 40), -1):
            p = seq[j]
            need = 0; why = ''
            vw = {x for x in p.w if x[0] in 'va'}; sw = {x for x in p.w if x[0] == 's'}
            if p.kind == 'mfma':
                n_ab = {8: 12, 4: 8}[p.passes]
                if c.kind == 'mfma':
                    if vw & c.ab: need, why = n_ab, 'mfma D->A/B'
                    elif vw & c.c and not (c.c == p.w and c.passes == p.passes): need, why = {8: 10, 4: 6}[p.passes], 'mfma D->overlap C'
                    elif vw & c.w and not (c.c == p.w): need, why = 0, ''
                elif c.kind in ('valu', 'ds', 'vmem') and vw & (c.r | c.w): need, why = n_ab, 'mfma D->valu/mem'
                if c.kind == 'valu' and p.c & c.w: need, why = max(need, {8: 7, 4: 3}[p.passes]), why or 'mfma C WAR'
            if p.kind == 'valu':
                if c.kind == 'mfma' and vw & c.r: need, why = 2, 'valu->mfma'
                if getattr(c, 'perm', False) and vw & c.r: need, why = 2, 'valu->permlane'
                if c.mn.startswith(('v_readfirstlane', 'v_readlane')) and vw & c.r: need, why = max(need, 1), 'valu->readlane'
                if p.mn in TRANS and c.kind == 'valu' and c.mn not in TRANS and vw & c.r: need, why = max(need, 1), 'trans->valu'
                if sw and c.kind == 'vmem' and sw & c.r: need, why = 5, 'valu sgpr->vmem'
                if sw and c.kind == 'valu' and sw & c.r: need, why = max(need, 2), 'valu sgpr->valu'
            if p.kind == 'salu' and ('s', 'm0') in p.w and getattr(c, 'ldsdma', False): need, why = 1, 'm0->dma'
            if p.sdata and c.kind == 'valu' and p.sdata & c.w: need, why = 2, 'store data WAR'
            if p.sdata and c.kind in ('ds', 'vmem', 'mfma') and p.sdata & c.w: need, why = 1, 'store data WAR'
            if need > d: errs.append((why, need, d, p.txt, c.txt))
            d += p.states
            if d >= 20: break
    return errs
def main(path):
    lines = open(path).read().split('\n')
    labels = {}
    prog = []
    for ln in lines:
        s = ln.split(';')[0].strip()
        if s.endswith(':') and not s.startswith('.'): labels[s[:-1]] = len(prog); continue
        i = parse(ln)
        if i: prog.append(i)
    errs = set()
    for e in check(prog): errs.add(e)
    for k, i in enumerate(prog):
        if i.mn.startswith(('s_branch', 's_cbranch')):
            tgt = labels[i.txt.split()[-1]]
            seq = prog[max(0, k - 30):k + 1] + prog[tgt:tgt + 30]
            for e in check(seq): errs.add(e)
    for e in sorted(errs): print("HAZARD", e)
    print(f"{path}: {len(prog)} instrs, {len(errs)} hazards")
    return len(errs)
if __name__ == "__main__":
    sys.exit(1 if sum(main(p) for p in sys.argv[1:]) else 0)
```

```python
import sys, struct
from asmlib import *

NAME = "concat_heads__mha_block_cached__gqa_block_cached__near_ridge"
def f32(x): return "0x%08x" % struct.unpack("<I", struct.pack("<f", x))[0]

PART_BASE = 8 << 20
FO_BASE = 24 << 20
STAMP_BASE = 28 << 20
WS_USED = 32 << 20
SPIN_MAX = 100000

SX, SK, SV, SWQ, SWO, SWS, SOUT, SDBG = 32, 36, 40, 44, 48, 52, 56, 60
S_W, S_BR, S_G, S_HL, S_R, S_B = 64, 65, 66, 67, 68, 69
S_T = 70
S_MX, S_LAM, S_KV, S_MW, S_MK, S_C = 78, 79, 80, 81, 82, 83
S_NONCE, S_CNT, S_DONE = 84, 85, 86
S_SO = 87
S_QW = [88, 89, 90, 91]; S_QX = [92, 93, 94, 95]
S_HW, S_HX = 96, 97
S_U = 98
S_WOG = [4, 5, 6, 7]; S_OG = [8, 9, 10, 11]; S_Q = [12, 13, 14, 15]
S_OB, S_PB, S_FOW, S_FOR, S_OUTB, S_PR = 16, 17, 18, 19, 20, 21
S_OW = [22, 23]

class Opt:
    nt_kv = "nt"
    stamps = False
    clk = "s_memrealtime"
    ab = ""
    ex = "K0,K1|V0,V1|W0,W1"
    mid = "||"
    lead = 2; bal = False; stag = False; hbit = 3
    n14 = 8; n15 = 0; natt = 0
    pre_flag = 0; pre_poll = 40; post_poll = 0
    codepf = True
    fill = 4
    coff = 1
    non_stage = -1
    init_o = 8
    mq_num = 2; mq_den = 1
    fmt = 2
    g_s1 = 33; g_p2 = 44; g_p1 = 0; g_c1 = 28; g_p0 = 56; g_o3 = 0
    sst = -1

VSTAMP = 1
def stamp(a, idx, opt):
    if opt.amp and str(idx) in opt.amp.split(","):
        a(f"s_memrealtime s[30:31]")
        a("s_waitcnt lgkmcnt(0)"); a.lg = []
        a(f"v_writelane_b32 v{VSTAMP}, s30, {opt.amp.split(',').index(str(idx))}")
    if opt.stamps and (not opt.light or idx in (0, 5, 9, 13, 17, 19, 21, 23, 25, 28)):
        a(f"{opt.clk} s[30:31]")
        a("s_waitcnt lgkmcnt(0)"); a.lg = []
        a(f"v_writelane_b32 v{VSTAMP}, s30, {idx}")

def dump_stamps(a, opt):
    a(f"s_lshl_b32 s{S_T}, s2, 2")
    a(f"s_add_u32 s{S_T}, s{S_T}, s{S_W}")
    a(f"s_lshl_b32 s{S_T}, s{S_T}, 8")
    a(f"s_add_u32 s{S_T}, s{S_T}, {STAMP_BASE}")
    a("v_lshlrev_b32 v2, 2, v0")
    a(f"buffer_store_dword v{VSTAMP}, v2, s[{SWS}:{SWS+3}], s{S_T} offen")
    a("s_waitcnt vmcnt(0)")

def seg_src(a, dst, rowstride_shift, t1, t2):
    a(f"v_lshrrev_b32 v{t1}, 4, v0")
    a(f"v_bfe_u32 v{t2}, v0, 2, 2")
    a(f"v_xor_b32 v{t2}, v{t2}, v{t1}")
    a(f"v_lshlrev_b32 v{t2}, 6, v{t2}")
    a(f"v_lshl_add_u32 v{dst}, v{t1}, {rowstride_shift}, v{t2}")
    a(f"v_and_b32 v{t2}, 3, v0")
    a(f"v_lshl_add_u32 v{dst}, v{t2}, 4, v{dst}")

def tr_base(a, dst, r4, t1):
    a(f"v_bfe_u32 v{r4}, v0, 2, 2")
    a(f"v_lshrrev_b32 v{t1}, 5, v0")
    a(f"v_lshl_add_u32 v{t1}, v{t1}, 3, v{r4}")
    a(f"v_lshlrev_b32 v{dst}, 8, v{t1}")
    a(f"v_bfe_u32 v{t1}, v0, 4, 1")
    a(f"v_lshl_add_u32 v{dst}, v{t1}, 5, v{dst}")
    a(f"v_and_b32 v{t1}, 1, v0")
    a(f"v_lshl_add_u32 v{dst}, v{t1}, 4, v{dst}")
    a(f"v_bfe_u32 v{t1}, v0, 1, 1")
    a(f"v_lshl_add_u32 v{dst}, v{t1}, 3, v{dst}")

MF = "v_mfma_f32_32x32x16_bf16"
M16 = "v_mfma_f32_16x16x32_bf16"
srd = lambda r: f"s[{r}:{r+3}]"

def sched(lam, opt):
    order = list(range(16))
    mpos = []
    for c in range(lam, 16, 4):
        p = order.index(c)
        q = max(0, p - opt.lead)
        if c < 4 and opt.bal: q = 0
        order.pop(p); order.insert(q, c)
        if c >= 4: mpos.append(q)
    if opt.stag:
        order = [(4 * lam + i) & 15 for i in range(16)]
        mpos = [2 + lam, 6 + lam, 10 + lam]
    extras = {}
    for j, lst in enumerate(opt.ex.split("|")):
        for pc in filter(None, lst.split(",")):
            extras.setdefault(mpos[j] - 2, []).append(pc)
    for j, lst in enumerate(opt.mid.split("|")):
        for pc in filter(None, lst.split(",")):
            extras.setdefault(mpos[j], []).append(pc)
    for it in filter(None, opt.ab.split(";")):
        st, lst = it.split(":")
        for pc in lst.split(","): extras.setdefault(int(st), []).append(pc)
    return order, extras

class Rec:
    def __init__(self): self.L = []
    def __call__(self, s): self.L.append(s)

def gen(a, opt):
    end = "L_end"
    T = S_T; U = S_U
    stamp(a, 0, opt)
    a("s_cmp_ge_u32 s2, 256")
    a(f"s_cbranch_scc1 {end}")
    a("s_load_dwordx16 s[4:19], s[0:1], 0")
    a("s_load_dwordx4 s[20:23], s[0:1], 64")
    a("s_load_dwordx4 s[24:27], s[0:1], 80")
    a("s_load_dwordx2 s[28:29], s[0:1], 96")
    a(f"s_memrealtime s[{T+6}:{T+7}]")
    if opt.codepf:
        a(f"s_getpc_b64 s[{U}:{U+1}]")
        a.label("L_pc")
        a(f"s_lshr_b32 s{T}, s2, 3")
        a(f"v_lshrrev_b32 v240, 4, v0")
        a(f"v_lshl_add_u32 v240, s{T}, 4, v240")
        a(f"v_lshlrev_b32 v240, 7, v240")
        a(f"v_min_u32 v240, L_codeend-L_pc-4, v240")
        a(f"v_mov_b32 v241, s{U+1}")
        a(f"v_add_co_u32 v240, vcc, s{U}, v240")
        a("s_nop 1")
        a(f"v_addc_co_u32 v241, vcc, 0, v241, vcc")
        a.vmem(f"global_load_dword v241, v[240:241], off", "cpf")
    a("v_lshrrev_b32 v2, 6, v0")
    a("v_and_b32 v0, 63, v0")
    a(f"v_readfirstlane_b32 s{S_W}, v2")
    a(f"s_and_b32 s{T}, s2, 7")
    a(f"s_lshr_b32 s{T+1}, s2, 3")
    a(f"s_lshr_b32 s{S_BR}, s{T}, 2")
    a(f"s_and_b32 s{S_G}, s{T}, 3")
    a(f"s_and_b32 s{S_HL}, s{T+1}, 7")
    a(f"s_lshr_b32 s{S_R}, s{T+1}, 3")
    VKS, VVS = 2, 3
    VWO = [4, 5, 6, 7]
    VA = list(range(8, 16))
    ACC = 16
    FA = [80, 120]; FB = [112, 152]
    KF, VF = 160, 192
    QP, SS, PP = 80, 112, 128
    VWQ = [224, 225, 226, 227]; VX = [228, 229, 230, 231]; VB = [232, 233]
    TT = 240
    VWT = [244, 245, 246, 247]
    VKA, VL16, VTB, VR4, VNON, VT2 = 248, 249, 250, 251, 252, 253
    F1, F2 = 254, 255
    XR, KR, VR = 65536, 131072, 131072
    a(f"s_lshl_b32 s{S_B}, s{S_R}, 2")
    a(f"s_add_u32 s{S_B}, s{S_B}, s{S_W}")
    a(f"s_lshl_b32 s{T+4}, s{S_G}, 3")
    a(f"s_add_u32 s{T+4}, s{T+4}, s{S_HL}")
    a(f"s_lshl_b32 s{T}, s{S_W}, 17")
    a(f"s_lshl_b32 s{T+1}, s{T+4}, 8")
    a(f"s_add_u32 s{T}, s{T}, s{T+1}")
    a(f"s_lshl_b32 s{T+1}, s{S_B}, 16")
    a(f"s_lshr_b32 s{T+2}, s{S_HL}, {2 if opt.half else 3}")
    HB = opt.hbit
    S_WQB = S_QW[:2]; S_XB = S_QX[:2]
    a(f"s_lshl_b32 s{T+3}, s{T+2}, {19+HB}")
    a(f"s_add_u32 s{S_WQB[0]}, s{T}, s{T+3}")
    a(f"s_xor_b32 s{T+3}, s{T+3}, {1<<(19+HB)}")
    a(f"s_add_u32 s{S_WQB[1]}, s{T}, s{T+3}")
    a(f"s_lshl_b32 s{T+3}, s{T+2}, {7+HB}")
    a(f"s_add_u32 s{S_XB[0]}, s{T+1}, s{T+3}")
    a(f"s_xor_b32 s{T+3}, s{T+3}, {1<<(7+HB)}")
    a(f"s_add_u32 s{S_XB[1]}, s{T+1}, s{T+3}")
    a(f"s_add_u32 s{S_LAM}, s{S_R}, s{S_HL}")
    a(f"s_and_b32 s{S_LAM}, s{S_LAM}, 3")
    ords = [sched(l, opt)[0] for l in range(4)]
    for pos in range(2):
        assert all(not (o[pos] >> HB) & 1 for o in ords)
        pk = sum(ords[l][pos] << (4 * l) for l in range(4))
        a(f"s_lshl_b32 s{T+2}, s{S_LAM}, 2")
        a(f"s_lshr_b32 s{T+2}, {pk}, s{T+2}")
        a(f"s_and_b32 s{T+2}, s{T+2}, 15")
        a(f"s_lshl_b32 s{T+3}, s{T+2}, 19")
        a(f"s_add_u32 s{S_QW[2+pos]}, s{S_WQB[0]}, s{T+3}")
        a(f"s_lshl_b32 s{T+3}, s{T+2}, 7")
        a(f"s_add_u32 s{S_QX[2+pos]}, s{S_XB[0]}, s{T+3}")
    a(f"s_lshl_b32 s{S_MW}, s{S_W}, 12")
    a(f"s_lshl_b32 s{S_MX}, s{S_W}, 14")
    a(f"s_add_u32 s{S_MX}, s{S_MX}, {XR}")
    seg_src(a, VWQ[0], 13, 242, 243)
    a(f"v_add_u32 v{VWQ[1]}, {32768-1024}, v{VWQ[0]}")
    a(f"v_xor_b32 v242, 32, v{VWQ[0]}")
    for j in (2, 3): a(f"v_add_u32 v{VWQ[j]}, {j*(32768-1024)}, v242")
    a("v_lshrrev_b32 v242, 3, v0")
    a("v_lshrrev_b32 v243, 4, v0")
    a(f"v_and_b32 v{F1}, 7, v0")
    a(f"v_xor_b32 v{F1}, v{F1}, v243")
    a(f"v_lshlrev_b32 v{F1}, 4, v{F1}")
    a(f"v_lshl_add_u32 v{VX[0]}, v242, 11, v{F1}")
    a(f"v_xor_b32 v{F1}, 64, v{VX[0]}")
    a(f"v_add_u32 v{VX[1]}, {16384-1024}, v{F1}")
    a(f"v_add_u32 v{VX[2]}, {2*(16384-1024)}, v{VX[0]}")
    a(f"v_add_u32 v{VX[3]}, {3*(16384-1024)}, v{F1}")
    for s_, n in [(SX, 1 << 20), (SWQ, 8 << 20)]:
        a(f"s_mov_b32 s{s_+2}, {n}")
        a(f"s_mov_b32 s{s_+3}, 0x20000")
    a("s_waitcnt lgkmcnt(0)")
    stamp(a, 29, opt)
    a(f"s_cmp_eq_u32 s{S_BR}, 0")
    for i, s_ in [(0, SX), (3, SWQ), (1, SK), (2, SV), (4, SWO)]:
        a(f"s_cselect_b32 s{s_}, s{4+2*i}, s{14+2*i}")
        a(f"s_cselect_b32 s{s_+1}, s{5+2*i}, s{15+2*i}")
    cur = [None]
    def group(key, m0_ins, so_ins):
        n = 0
        if cur[0] != key:
            a(m0_ins); n += 1
            for x in so_ins: a(x); n += 1
            cur[0] = key
        return n
    def dma_x(pos, j, c=None):
        so = f"s_mov_b32 s{S_SO}, s{S_QX[2+pos]}" if c is None else f"s_add_u32 s{S_SO}, s{S_XB[(c>>HB)&1]}, {(c & ~(1<<HB))*128}"
        group(("x", pos), f"s_add_u32 m0, s{S_MX}, {(pos%4)*4096}", [so])
        a.vmem(f"buffer_load_dwordx4 v{VX[j]}, {srd(SX)}, s{S_SO} offen offset:{j*1024} lds", ("st", pos))
    def dma_wq(pos, j, c=None):
        so = f"s_mov_b32 s{S_SO}, s{S_QW[2+pos]}" if c is None else f"s_add_u32 s{S_SO}, s{S_WQB[(c>>HB)&1]}, {(c & ~(1<<HB))<<19}"
        group(("q", pos), f"s_add_u32 m0, s{S_MW}, {(pos%4)*16384}", [so])
        a.vmem(f"buffer_load_dwordx4 v{VWQ[j]}, {srd(SWQ)}, s{S_SO} offen offset:{j*1024} lds", ("st", pos))
    for j in range(4): dma_x(0, j)
    for j in range(4): dma_wq(0, j)
    stamp(a, 30, opt)
    a(f"v_bfe_u32 v{VR4}, v0, 2, 2")
    a("v_lshrrev_b32 v242, 4, v0")
    a(f"v_lshl_add_u32 v243, v242, 3, v{VR4}")
    a("v_lshlrev_b32 v243, 8, v243")
    a(f"v_and_b32 v{F1}, 1, v242")
    a(f"v_lshl_add_u32 v243, v{F1}, 5, v243")
    a(f"v_and_b32 v{F1}, 3, v0")
    a(f"v_lshl_add_u32 v243, v{F1}, 3, v243")
    a(f"v_lshl_add_u32 v{VA[0]}, v{VR4}, 6, v243")
    for i in range(1, 8): a(f"v_xor_b32 v{VA[i]}, {32*i}, v{VA[0]}")
    a(f"v_bfe_u32 v{F1}, v0, 1, 3")
    a(f"v_xor_b32 v242, v242, v{F1}")
    a("v_lshlrev_b32 v242, 4, v242")
    a("v_and_b32 v243, 15, v0")
    a("v_lshl_add_u32 v242, v243, 7, v242")
    a(f"v_add_u32 v{VB[0]}, s{S_MX}, v242")
    a("v_xor_b32 v242, 64, v242")
    a(f"v_add_u32 v{VB[1]}, s{S_MX}, v242")
    for s_, lo in [(SOUT, 24), (SDBG, 26), (SWS, 28)]:
        a(f"s_mov_b32 s{s_}, s{lo}")
        a(f"s_mov_b32 s{s_+1}, s{lo+1}")
    for s_, n in [(SK, 4 << 20), (SV, 4 << 20), (SWO, 8 << 20), (SWS, WS_USED), (SOUT, 2 << 20), (SDBG, 256)]:
        a(f"s_mov_b32 s{s_+2}, {n}")
        a(f"s_mov_b32 s{s_+3}, 0x20000")
    a(f"s_lshl_b32 s{S_KV}, s{S_B}, 5")
    a(f"s_add_u32 s{S_KV}, s{S_KV}, s{T+4}")
    a(f"s_lshl_b32 s{S_KV}, s{S_KV}, 13")
    a(f"s_lshl_b32 s{S_MK}, s{S_W}, 13")
    def early_touch():
        a(f"v_and_b32 v242, 3, v0")
        a(f"v_lshlrev_b32 v242, 21, v242")
        a("v_mov_b32 v243, 0")
        a(f"s_lshl_b32 s{T+2}, s{S_BR}, 2")
        a(f"s_add_u32 s{T+2}, s{T+2}, s{S_R}")
        a(f"s_lshl_b32 s{T+2}, s{T+2}, 21")
        a(f"s_lshl_b32 s{T+3}, s{S_G}, 21")
        a(f"s_lshl_b32 s{T+5}, s{S_R}, 19")
        for k_, (vo, sd, so) in enumerate([(242, SWQ, "0"), (243, SK, f"s{S_KV}"), (243, SV, f"s{S_KV}"), (243, SWO, f"s{T+3}"), (243, SWS, f"s{T+2}"), (243, SOUT, f"s{T+5}")]):
            if opt.etm >> k_ & 1:
                a.vmem(f"buffer_load_dword v{234+k_}, v{vo}, {srd(sd)}, {so} offen", "touch")
    if opt.et == 1: early_touch()
    for j in range(4): dma_x(1, j)
    for j in range(4): dma_wq(1, j)
    if opt.et == 2: early_touch()
    a(f"s_or_b32 s{T}, s2, s{S_W}")
    a(f"s_or_b32 s{T+6}, s{T+6}, 1")
    a(f"s_mul_i32 s{T+6}, s{T+6}, 0x9e3779b1")
    a(f"v_or_b32 v243, s{T}, v0")
    a(f"v_lshlrev_b32 v243, 8, v243")
    a(f"v_mov_b32 v242, s{T+6}")
    a.vmem(f"buffer_store_dword v242, v243, {srd(SDBG)}, 0 offen sc1", "tagst")
    stamp(a, 31, opt)
    f = Rec()
    f(f"v_lshrrev_b32 v{F1}, 4, v0")
    f(f"v_and_b32 v{F2}, 15, v0")
    f(f"v_xor_b32 v{F2}, v{F2}, v{F1}")
    f(f"v_lshlrev_b32 v{F2}, 4, v{F2}")
    f(f"v_lshl_add_u32 v{VKS}, v{F1}, 8, v{F2}")
    seg_src(f, VVS, 8, F1, F2)
    seg_src(f, VWO[0], 11, F1, F2)
    for j in range(1, 4): f(f"v_add_u32 v{VWO[j]}, {(4*(j>>1) + 16*(j&1))*2048 - j*1024}, v{VWO[0]}")
    tr_base(f, VTB, VR4, F1)
    for i in range(4):
        f(f"s_add_u32 s{U+2}, s{S_W}, {i}")
        f(f"s_and_b32 s{U+2}, s{U+2}, 3")
        f(f"v_xor_b32 v{F1}, s{U+2}, v{VR4}")
        f(f"v_lshl_add_u32 v{VWT[i]}, v{F1}, 6, v{VTB}")
    f(f"v_and_b32 v{F1}, 3, v0")
    f(f"v_lshl_add_u32 v{F1}, v{VR4}, 3, v{F1}")
    f(f"v_and_b32 v{F2}, 15, v{F1}")
    f(f"v_lshrrev_b32 v{VKA}, 5, v0")
    f(f"v_xor_b32 v{F2}, v{F2}, v{VKA}")
    f(f"v_lshlrev_b32 v{F2}, 4, v{F2}")
    f(f"v_lshl_add_u32 v{F1}, v{F1}, 8, v{F2}")
    f(f"v_bfe_u32 v{F2}, v0, 4, 1")
    f(f"v_lshl_add_u32 v{F1}, v{F2}, 3, v{F1}")
    f(f"s_add_u32 s{U+2}, s{S_MK}, {KR}")
    f(f"v_add_u32 v{VKA}, s{U+2}, v{F1}")
    f(f"v_lshlrev_b32 v{VL16}, 4, v0")
    f(f"v_mov_b32 v{TT+1}, 0")
    f(f"s_lshl_b32 s{U}, s{S_G}, 2")
    f(f"s_add_u32 s{U}, s{U}, s{S_W}")
    f(f"s_lshl_b32 s{U+1}, s{U}, 19")
    f(f"s_add_u32 s{S_C}, s{S_HL}, {opt.coff}")
    f(f"s_and_b32 s{S_C}, s{S_C}, 7")
    f(f"s_lshl_b32 s{U+2}, s{S_C}, 8")
    f(f"s_add_u32 s{U+1}, s{U+1}, s{U+2}")
    for jg in range(4):
        f(f"s_add_u32 s{U+2}, s{S_LAM}, {jg}")
        f(f"s_and_b32 s{U+2}, s{U+2}, 3")
        f(f"s_lshl_b32 s{U+3}, s{U+2}, 17")
        f(f"s_add_u32 s{S_WOG[jg]}, s{U+1}, s{U+3}")
        f(f"s_lshl_b32 s{S_OG[jg]}, s{U+2}, 12")
        f(f"s_add_u32 s{S_Q[jg]}, s{S_G}, {jg+1}")
        f(f"s_and_b32 s{S_Q[jg]}, s{S_Q[jg]}, 3")
    f(f"s_lshl_b32 s{U+1}, s{S_BR}, 2")
    f(f"s_add_u32 s{U+1}, s{U+1}, s{S_R}")
    f(f"s_lshl_b32 s{U+1}, s{U+1}, 21")
    f(f"s_lshl_b32 s{U+2}, s{U}, 14")
    f(f"s_add_u32 s{S_OB}, s{U+1}, s{U+2}")
    f(f"s_and_b32 s{U+2}, s{S_KV}, 0xfffff")
    f(f"s_add_u32 s{S_OW[0]}, s{U+1}, s{U+2}")
    f(f"s_add_u32 s{S_OW[1]}, s{S_OW[0]}, 4096")
    f(f"s_add_u32 s{U+1}, s{U+1}, {1<<20}")
    f(f"s_mul_i32 s{U+2}, s{S_G}, {(1<<15) + (1<<13)}")
    f(f"s_add_u32 s{U+2}, s{U+2}, s{U+1}")
    f(f"s_lshl_b32 s{U+3}, s{S_W}, 10")
    f(f"s_add_u32 s{S_FOR}, s{U+2}, s{U+3}")
    f(f"s_lshl_b32 s{U+3}, s{S_HL}, 2")
    f(f"s_add_u32 s{U+3}, s{U+3}, s{S_W}")
    f(f"s_lshl_b32 s{U+3}, s{U+3}, 7")
    f(f"s_add_u32 s{S_FOW}, s{U+2}, s{U+3}")
    f(f"s_lshl_b32 s{U+2}, s{S_C}, 17")
    f(f"s_add_u32 s{U+2}, s{U+2}, s{U+1}")
    f(f"s_lshl_b32 s{U+3}, s{U}, 11")
    f(f"s_add_u32 s{S_PB}, s{U+2}, s{U+3}")
    f(f"s_lshl_b32 s{U+3}, s{S_G}, 15")
    f(f"s_add_u32 s{S_PR}, s{U+2}, s{U+3}")
    f(f"s_lshl_b32 s{U+3}, s{S_W}, 11")
    f(f"s_add_u32 s{S_PR}, s{S_PR}, s{U+3}")
    f(f"s_lshl_b32 s{U+2}, s{S_R}, 2")
    f(f"s_add_u32 s{U+2}, s{U+2}, s{S_G}")
    f(f"s_lshl_b32 s{U+2}, s{U+2}, 17")
    f(f"s_lshl_b32 s{U+3}, s{S_BR}, 11")
    f(f"s_add_u32 s{U+2}, s{U+2}, s{U+3}")
    f(f"s_lshl_b32 s{U+3}, s{S_C}, 8")
    f(f"s_add_u32 s{U+2}, s{U+2}, s{U+3}")
    f(f"s_lshl_b32 s{U+3}, s{S_W}, 6")
    f(f"s_add_u32 s{S_OUTB}, s{U+2}, s{U+3}")
    FILL = f.L
    for _ in range(opt.fill0): a(FILL.pop(0))

    SLOT = {"k0": (S_MK, KR), "k1": (S_MK, KR + 4096)}
    for i_ in range(4):
        SLOT[f"w{i_}"] = (S_MW, 16384 * i_); SLOT[f"x{i_}"] = (S_MX, 4096 * i_)
    def dma_wo(pos, j, slot):
        sb, off = SLOT[slot]
        n = group(("wo", pos), f"s_add_u32 m0, s{sb}, {off}", [f"s_add_u32 s{S_SO}, s{S_WOG[pos>>2]}, {(32*((pos&3)>>1) + 8*(pos&1))*2048}"])
        a.vmem(f"buffer_load_dwordx4 v{VWO[j]}, {srd(SWO)}, s{S_SO} offen offset:{j*1024} lds", ("wo", pos))
        a.ever.add(("woj", pos, j))
        return n + 1
    def tr_wo_items(pos, slot):
        sb, off = SLOT[slot]
        it = []
        for s4 in range(4):
            def g(s4=s4):
                if s4 == 0:
                    assert all(("woj", pos, j) in a.ever for j in range(4)), ("piece not fully issued", pos)
                    a.wait_vm(("wo", pos))
                    a(f"s_add_u32 s{T+1}, s{sb}, {off}")
                a(f"v_add_u32 v{VT2}, s{T+1}, v{VWT[s4]}")
                for h2 in range(2):
                    a.lds(f"ds_read_b64_tr_b16 {ar(16*pos+4*s4+2*h2,2)}, v{VT2} offset:{4*h2*256}", ("wo", pos))
            it.append(g)
        return it
    def dma_kv(pc, j):
        half = int(pc[1])
        group(pc, f"s_add_u32 m0, s{S_MK}, {(KR if pc[0] == 'K' else VR) + half*4096}", [f"s_add_u32 s{S_SO}, s{S_KV}, {half*4096}"])
        if pc[0] == "K":
            a(f"v_xor_b32 v{TT}, {64*j}, v{VKS}")
            a.vmem(f"buffer_load_dwordx4 v{TT}, {srd(SK)}, s{S_SO} offen offset:{j*1024} {opt.nt_kv} lds", "k")
        else:
            if j == 2: a(f"v_xor_b32 v{TT}, 32, v{VVS}")
            a.vmem(f"buffer_load_dwordx4 v{TT if j >= 2 else VVS}, {srd(SV)}, s{S_SO} offen offset:{j*1024} {opt.nt_kv} lds", "v")
    def reads(n):
        s, t = n >> 1, n & 1
        slot = s % 4
        fs = n & 1
        r = [(f"ds_read_b128 {vr(FB[fs]+4*nt,4)}, v{VB[t]} offset:{slot*4096 + nt*2048}", ("b", n)) for nt in range(2)]
        for i in range(8):
            for h2 in range(2):
                r.append((f"ds_read_b64_tr_b16 {vr(FA[fs]+4*i+2*h2,2)}, v{VA[i]} offset:{slot*16384 + (32*t+4*h2)*256}", ("a", n, i)))
        if opt.fakeD:
            r = r[:10] + [(f"ds_read_b128 {vr(FA[fs]+16+4*nt,4)}, v{VB[t]} offset:{slot*4096 + nt*2048}", ("a", n, 4+nt)) for nt in range(2)]
            a.ever.add(("lg", ("a", n, 6))); a.ever.add(("lg", ("a", n, 7)))
        return r
    def mfma(n, k):
        fs = n & 1
        i, nt = k >> 1, k & 1
        d = vr(ACC + 8*i + 4*nt, 4)
        a.wait_lg([("b", n), ("a", n, i)])
        a(f"{M16} {d}, {vr(FA[fs]+4*i,4)}, {vr(FB[fs]+4*nt,4)}, {'0' if n == 0 else d}")

    allex = [p for l in sched(0, opt)[1].values() for p in l]
    w_early = sorted(int(p[1]) for p in allex if p[0] == "W")
    w_late = [p for p in range(4) if p not in w_early]
    hit_first = [4*g + k for k in w_early for g in (1, 2, 3)]
    hit_last = [4*g + k for k in w_late for g in (1, 2, 3)]
    rest = w_late + hit_first + hit_last
    if opt.rest: rest = [int(x) for x in opt.rest.split(",")]
    assert sorted(rest + w_early) == list(range(16))
    late_slots = ["w0", "x0", "w1", "x1", "w2", "x2", "k0", "k1", "x3", "w3"]
    avail = {"w0": 13, "x0": 13, "w1": 14, "x1": 14, "w2": 15, "x2": 15, "k0": 15, "k1": 15, "x3": 16, "w3": 17}
    lateq = [(rest[i], j, late_slots[i]) for i in range(min(len(rest), len(late_slots))) for j in range(4)]
    def k_items():
        it = []
        for kt in range(2):
            for u in range(4):
                for h in range(2):
                    def g(kt=kt, u=u, h=h):
                        if (kt, u, h) == (0, 0, 0): a.wait_vm("k")
                        a(f"v_xor_b32 v{VT2}, {((4*u+2*h) ^ (4*kt)) << 4}, v{VKA}")
                        a.lds(f"ds_read_b64 {vr(KF+16*kt+4*u+2*h,2)}, v{VT2} offset:{1024*kt}", "kf")
                    it.append(g)
        return it
    def v_items():
        it = []
        for i in range(8):
            def g(i=i):
                if i == 0:
                    a.wait_vm("v")
                    a(f"s_add_u32 s{T+1}, s{S_MK}, {VR}")
                a(f"v_add_u32 v{VT2}, s{T+1}, v{VA[i]}")
                for h2 in range(2):
                    a.lds(f"ds_read_b64_tr_b16 {vr(VF+4*i+2*h2,2)}, v{VT2} offset:{4*h2*256}", "vf")
            it.append(g)
        return it
    uniform = all(sched(l, opt) == sched(0, opt) for l in range(4))
    for lam in range(1, 4):
        a(f"s_cmp_eq_u32 s{S_LAM}, {lam}")
        a(f"s_cbranch_scc1 L_p1_{lam}")
    vm0, lg0, cur0, ever0 = list(a.vm), list(a.lg), cur[0], set(a.ever)
    end_state = None
    a.lg_low = 7
    for lam in range(4):
        a.vm, a.lg, cur[0], a.ever = list(vm0), list(lg0), cur0, set(ever0)
        a.label(f"L_p1_{lam}")
        order, extras = sched(lam, opt)
        consume = {}; wslot = {}; free_at = {"k0": -9, "k1": -9}
        stream = []
        pend = {}
        non_stage = max(extras)
        assert min(extras) >= 0
        lq = list(lateq)
        for p in range(2, 16):
            c = order[p]
            lead = (c & 3) == lam
            for j in range(4): stream.append((lambda j=j, c=c, p=p: dma_x(p, j, c), opt.wm if lead and (not opt.half or not (c >> HB) & 1) else 1.0, p - 3, p - 2, None))
            for j in range(4): stream.append((lambda j=j, c=c, p=p: dma_wq(p, j, c), opt.wm if lead else 1.0, p - 3, p - 2, p))
            for pc in extras.get(p - 2, []):
                if pc[0] == "W":
                    sl = min(free_at, key=free_at.get); wslot[pc] = sl
                    cs = p + 1; consume.setdefault(cs, []).append(pc)
                else:
                    sl = "k" + pc[1]
                    other = [st for st, l in extras.items() for q in l if q[0] == pc[0]]
                    cs = max(other) + 3
                    if pc[1] == "1": consume.setdefault(cs, []).append(pc[0])
                e = free_at[sl]; assert e <= p - 2, (lam, pc, p, free_at)
                free_at[sl] = cs + 1
                for j in range(4):
                    fn = (lambda pc=pc, j=j: dma_wo(int(pc[1]), j, wslot[pc])) if pc[0] == "W" else (lambda pc=pc, j=j: dma_kv(pc, j))
                    stream.append((fn, opt.wm, max(e, 0 if pc[0] != "W" else 4), p - 2, None))
            if p - 2 == non_stage:
                stream.append((lambda: a.vmem(f"buffer_load_dword v{VNON}, v{TT+1}, {srd(SDBG)}, 0 offen sc1", "nonce"), 0.2, 4, p - 2, None))
                stream.append((lambda: a.vmem(f"buffer_load_dword v{TT+2}, v{TT+1}, {srd(SWS)}, s{S_FOW} offen", "touch"), 0.2, 4, p - 2, None))
        assert max(free_at.values()) <= 15
        for k in range(opt.n14):
            pos, j, sl = lq.pop(0)
            stream.append((lambda pos=pos, j=j, sl=sl: dma_wo(pos, j, sl), opt.wm, avail[sl], 14, None))
        fill = list(FILL)
        endidx = {}
        cnt = 0
        for it in stream:
            cnt += 1
            if it[4] is not None: endidx[it[4]] = cnt
        total = len(stream)
        unit = 32.0 / opt.bud
        clock = 0.0
        comp = [unit * opt.wm * (i + 1 - 8) for i in range(16)]
        posdone = {0: 0.0, 1: comp[15]}
        issued = 0
        def outstanding(): return sum(1 for c_ in comp if c_ > clock)
        def issue():
            nonlocal clock, issued
            fn, w, e, d, tagp = stream.pop(0); assert e <= s, (lam, s, e)
            if outstanding() >= opt.qmax: clock = comp[-opt.qmax]
            fn(); issued += 1
            comp.append(max(comp[-1], clock + opt.lat - unit * w) + unit * w)
            if tagp is not None: posdone[tagp] = comp[-1]
        for s in range(16):
            a.c(f"---- class {lam} stage {s} chunk {order[s]}")
            if a.lg: a.wait_lg_all()
            a.wait_vm(("st", s))
            a("s_barrier")
            stamp(a, 1 + s, opt)
            clock = max(clock, posdone[s])
            lw = []
            for pc in consume.get(s, []):
                assert not fill or len(FILL) - len(fill) > 60
                if pc == "K": lw += k_items()
                elif pc == "V": lw += v_items()
                else: lw += tr_wo_items(int(pc[1]), wslot[pc])
            nl = len(lw)
            target = min(total, (endidx.get(s + 1, 0) if s + 1 < 16 else total) + opt.ahead) if s < 14 else total
            while target > issued and stream[target - issued - 1][2] > s: target -= 1
            start = issued
            must = sum(1 for it in stream if it[3] <= s)
            gap = 0
            for t in range(2):
                n = 2 * s + t
                rd = reads(n); nrd = len(rd)
                for k in range(16):
                    if n > 0: mfma(n - 1, k)
                    span = 16 if t == 0 else opt.rspan
                    while rd and nrd - len(rd) < ((k + 1) * nrd + span - 1) // span: a.lds(*rd.pop(0))
                    gap += 1
                    clock += 1
                    did = False
                    if opt.oldp:
                        while issued - start < min(must, (gap * must + 29) // 32):
                            issue(); did = True
                    else:
                        if stream and stream[0][2] <= s and outstanding() < opt.qopp:
                            issue(); did = True
                        while target - issued > 32 - gap:
                            issue(); did = True
                    while lw and nl - len(lw) < (gap * nl) // 26: lw.pop(0)(); did = True
                    if fill and not did:
                        for _ in range(3 if n == 0 else 1):
                            if fill: a(fill.pop(0))
            assert not lw
            if opt.verbose: print(f"class {lam} stage {s}: {issued - start} dma clock {clock:.0f}", file=sys.stderr)
        assert not stream
        assert not fill
        st_ = (list(a.vm), list(a.lg), cur[0])
        if end_state is None: end_state = st_
        assert end_state == st_, (end_state, st_)
        if lam < 3: a("s_branch L_common")
    a.label("L_common")
    a.lg_low = 12
    natt = [opt.natt]
    def ad(lim=16):
        if natt[0] > 0 and lq and avail[lq[0][2]] <= lim:
            natt[0] -= 1
            return dma_wo(*lq.pop(0))
        return 0
    def pad(n):
        while n > 0:
            k = min(n, 8); a(f"s_nop {k-1}"); n -= k
    assert "nonce" not in a.vm
    def cvt4(dst, u, nt):
        for hh in range(2):
            t = ACC + 8*(2*u+hh) + 4*nt
            a(f"v_cvt_pk_bf16_f32 v{dst+2*hh}, v{t}, v{t+1}")
            a(f"v_cvt_pk_bf16_f32 v{dst+2*hh+1}, v{t+2}, v{t+3}")
    qp = lambda u, nt: QP + 8*u + 4*nt
    CS = 128 ** -0.5 * 1.4426950408889634
    if opt.att2:
        import hazcheck
        def cvl(u, nt, hh):
            t = ACC + 8*(2*u+hh) + 4*nt; d = qp(u, nt) + 2*hh
            return [f"v_cvt_pk_bf16_f32 v{d}, v{t}, v{t+1}", f"v_cvt_pk_bf16_f32 v{d+1}, v{t+2}, v{t+3}"]
        def stream(nt):
            L = []
            m, m2 = 240 + 2*nt, 241 + 2*nt
            b = SS + 8*nt
            for u in range(4):
                for hh in range(2): L += cvl(u, nt, hh)
            for u in range(4):
                for kt in range(2):
                    d = vr(b + 4*kt, 4)
                    L.append(f"{M16} {d}, {vr(KF+16*kt+4*u,4)}, {vr(qp(u,nt),4)}, {'0' if u == 0 else d}")
            def xr(op):
                return [f"v_mov_b32 v{m2}, v{m}", f"v_permlane32_swap_b32 v{m}, v{m2}", f"{op} v{m}, v{m}, v{m2}",
                        f"v_mov_b32 v{m2}, v{m}", f"v_permlane16_swap_b32 v{m}, v{m2}", f"{op} v{m}, v{m}, v{m2}"]
            L += [f"v_max3_f32 v{m}, v{b}, v{b+1}, v{b+2}", f"v_max3_f32 v{m2}, v{b+3}, v{b+4}, v{b+5}",
                  f"v_max3_f32 v{m}, v{m}, v{b+6}, v{b+7}", f"v_max_f32 v{m}, v{m}, v{m2}"] + xr("v_max_f32")
            L.append(f"v_mul_f32 v{m}, s{T+2}, v{m}")
            L += [f"v_fma_f32 v{b+k}, v{b+k}, s{T+2}, -v{m}" for k in range(8)]
            L += [f"v_exp_f32 v{b+k}, v{b+k}" for k in range(8)]
            L += [f"v_add_f32 v{m}, v{b}, v{b+1}", f"v_add_f32 v{m2}, v{b+2}, v{b+3}", f"v_add_f32 v{m}, v{m}, v{b+4}", f"v_add_f32 v{m2}, v{m2}, v{b+5}",
                  f"v_add_f32 v{m}, v{m}, v{b+6}", f"v_add_f32 v{m2}, v{m2}, v{b+7}", f"v_add_f32 v{m}, v{m}, v{m2}"] + xr("v_add_f32")
            L.append(f"v_rcp_f32 v{m}, v{m}")
            L += [f"v_mul_f32 v{b+k}, v{b+k}, v{m}" for k in range(8)]
            L += [f"v_cvt_pk_bf16_f32 v{PP+4*nt+p}, v{b+2*p}, v{b+2*p+1}" for p in range(4)]
            L += [f"{M16} {vr(ACC+8*i+4*nt,4)}, {vr(VF+4*i,4)}, {vr(PP+4*nt,4)}, 0" for i in range(8)]
            for u in range(4):
                blk = 2*u + nt
                L += cvl(u, nt, 0) + cvl(u, nt, 1)
                L.append(f"buffer_store_dwordx4 {vr(qp(u,nt),4)}, v{VL16}, {srd(SWS)}, s{S_OW[blk>>2]} offen offset:{(blk&3)*1024} sc1")
            return L
        A_, B_ = stream(0), stream(1)
        for kk, k in enumerate([0, 2, 4, 6, 8, 10, 12, 14, 1, 3, 5, 7, 9, 11, 13, 15]):
            mfma(31, k)
            if kk == 0: a(f"v_readfirstlane_b32 s{S_NONCE}, v{VNON}")
            if kk == 1: a(f"s_mov_b32 s{T+2}, {f32(CS)}")
            if kk >= 8:
                a(A_.pop(0)); a(A_.pop(0))
        if a.lg: a.wait_lg_all()
        stamp(a, 17, opt)
        a.c("---- attention")
        def okay(ins):
            win = [x for x in (hazcheck.parse(l) for l in a.L[-30:]) if x] + [hazcheck.parse(ins)]
            p = win[-2]
            if getattr(p, 'perm', False) and p.w & win[-1].r: return False
            return not [e for e in hazcheck.check(win) if e[4] == win[-1].txt and e[3] != e[4] or (e[4] == win[-1].txt)]
        now = 0; pipe = 0; spipe = 0
        def emit(L):
            nonlocal now, pipe, spipe
            ins = L.pop(0)
            if ins.startswith("buffer_store"): a.vmem(ins, "o"); now = max(now, spipe - opt.sq) + 16; spipe = max(spipe, now) + opt.scost
            elif ins.startswith("v_mfma"):
                a(ins); now = max(now, pipe); pipe = now + 16; now += 8
            else:
                a(ins); now += 8 if ins.startswith(("v_exp", "v_rcp")) else 4
        ism = lambda L: L[0].startswith("v_mfma")
        while A_ or B_:
            ca = bool(A_) and okay(A_[0]); cb = bool(B_) and okay(B_[0])
            if ca and B_ and A_[0].startswith("buffer_store") and spipe - opt.sq > now and not B_[0].startswith("buffer_store"): ca = False
            if A_ and not ca and cb and ism(B_) and pipe > now: cb = False
            if ca and cb:
                if ism(A_) and not ism(B_) and pipe > now: emit(B_)
                elif ism(B_) and not ism(A_) and pipe <= now: emit(B_)
                else: emit(A_)
            elif ca: emit(A_)
            elif cb: emit(B_)
            else:
                a("s_nop 0"); now += 4
    else:
        for k in range(16):
            mfma(31, k)
            if k == 0: a(f"v_readfirstlane_b32 s{S_NONCE}, v{VNON}")
            if k == 1: a(f"s_mov_b32 s{T+2}, {f32(CS)}")
            if k in (2, 6): ad(15)
            if k == 11: cvt4(qp(0,0), 0, 0)
            if k == 13: cvt4(qp(0,1), 0, 1)
            if k == 15: cvt4(qp(1,0), 1, 0)
        if a.lg: a.wait_lg_all()
        stamp(a, 17, opt)
        a.c("---- attention")
        cvt4(qp(1,1), 1, 1)
        ss = lambda kt, nt: SS + 8*nt + 4*kt
        def smf(u, kt, nt):
            d = vr(ss(kt, nt), 4)
            a(f"{M16} {d}, {vr(KF+16*kt+4*u,4)}, {vr(qp(u,nt),4)}, {'0' if u == 0 else d}")
        def cvt2(dst, u, nt, hh):
            t = ACC + 8*(2*u+hh) + 4*nt
            a(f"v_cvt_pk_bf16_f32 v{dst+2*hh}, v{t}, v{t+1}")
            a(f"v_cvt_pk_bf16_f32 v{dst+2*hh+1}, v{t+2}, v{t+3}")
        cv = [(u, nt, hh) for u in (2, 3) for nt in range(2) for hh in range(2)]
        for u in range(4):
            for nt in range(2):
                for kt in range(2):
                    smf(u, kt, nt)
                    if cv:
                        uu, n2, hh = cv.pop(0); cvt2(qp(uu, n2), uu, n2, hh)
                    elif (u, nt, kt) in ((2, 0, 1), (3, 0, 1)): ad()
        pad(8 - 2 - ad())
        for nt in range(2):
            b = SS + 8*nt
            a(f"v_max3_f32 v{240+nt}, v{b}, v{b+1}, v{b+2}")
            a(f"v_max3_f32 v{242+nt}, v{b+3}, v{b+4}, v{b+5}")
            a(f"v_max3_f32 v{240+nt}, v{240+nt}, v{b+6}, v{b+7}")
            a(f"v_max_f32 v{240+nt}, v{240+nt}, v{242+nt}")
        def xred(op):
            pad(2 - ad())
            a("v_permlane32_swap_b32 v240, v241")
            a("s_nop 0")
            a(f"{op} v240, v240, v241")
            a("v_mov_b32 v241, v240")
            a("s_nop 1")
            a("v_permlane16_swap_b32 v240, v241")
            a("s_nop 0")
            a(f"{op} v240, v240, v241")
        xred("v_max_f32")
        a(f"v_mul_f32 v240, s{T+2}, v240")
        a("v_mov_b32 v241, v240")
        a("s_nop 1")
        a("v_permlane32_swap_b32 v240, v241")
        a("s_nop 0")
        for k in range(16):
            a(f"v_fma_f32 v{SS+k}, v{SS+k}, s{T+2}, -v{240+(k>>3)}")
        ad()
        for k in range(16):
            a(f"v_exp_f32 v{SS+k}, v{SS+k}")
            if k == 7: ad()
        for k in range(1, 8):
            for nt in range(2):
                b = SS + 8*nt
                a(f"v_add_f32 v{240+nt}, v{b if k == 1 else 240+nt}, v{b+k}")
        xred("v_add_f32")
        a("v_rcp_f32 v240, v240")
        a("s_nop 0")
        a("v_mov_b32 v241, v240")
        a("s_nop 1")
        a("v_permlane32_swap_b32 v240, v241")
        a("s_nop 0")
        for nt in range(2):
            for k in range(8):
                a(f"v_mul_f32 v{SS+8*nt+k}, v{SS+8*nt+k}, v{240+nt}")
            for p in range(4):
                a(f"v_cvt_pk_bf16_f32 v{PP+4*nt+p}, v{SS+8*nt+2*p}, v{SS+8*nt+2*p+1}")
        def pv(i, nt):
            a(f"{M16} {vr(ACC+8*i+4*nt,4)}, {vr(VF+4*i,4)}, {vr(PP+4*nt,4)}, 0")
        def ost(u, nt):
            blk = 2*u + nt
            a.vmem(f"buffer_store_dwordx4 {vr(qp(u,nt),4)}, v{VL16}, {srd(SWS)}, s{S_OW[blk>>2]} offen offset:{(blk&3)*1024} sc1", "o")
        seq = [(i, nt) for nt in range(2) for i in range(8)]
        ev = [(u, nt, hh) for nt in range(2) for u in range(4) for hh in range(2)]
        for k, (i, nt) in enumerate(seq):
            pv(i, nt)
            if k in (1, 4): ad()
            if k >= 8:
                u, n2, hh = ev.pop(0); cvt2(qp(u, n2), u, n2, hh)
                if hh: ost(u, n2)
        while ev:
            u, n2, hh = ev.pop(0); cvt2(qp(u, n2), u, n2, hh)
            if hh: ost(u, n2)
    stamp(a, 18, opt)
    a("s_barrier")
    VL = 2; VRR = 3; VRW = [8, 9, 10]; VOUT = 11; VZ = 12; VNV = 13; VFL = 14; VFA = 15; VLO = 15
    nfirst = min(len(rest), len(late_slots))
    slot_of = {rest[i]: late_slots[i] for i in range(nfirst)}
    for _ in range(opt.pre_flag):
        if lq: dma_wo(*lq.pop(0))
    a(f"s_cmp_lg_u32 s{S_NONCE}, 0")
    a("s_cbranch_scc1 L_havenonce")
    a(f"s_mov_b32 s{S_CNT}, 0")
    a("v_mov_b32 v240, 0")
    a.label("L_nonce_spin")
    a(f"buffer_load_dword v{VNON}, v240, {srd(SDBG)}, 0 offen sc1")
    a("s_waitcnt vmcnt(0)")
    a(f"v_readfirstlane_b32 s{S_NONCE}, v{VNON}")
    a(f"s_add_u32 s{S_CNT}, s{S_CNT}, 1")
    a(f"s_cmp_gt_u32 s{S_CNT}, {SPIN_MAX}")
    a("s_cbranch_scc1 L_havenonce")
    a(f"s_cmp_eq_u32 s{S_NONCE}, 0")
    a("s_cbranch_scc1 L_nonce_spin")
    a.label("L_havenonce")
    a(f"v_mov_b32 v{VL}, v{VL16}")
    for sl in range(1, 4):
        a(f"s_add_u32 s{T}, s{S_W}, {sl}")
        a(f"s_and_b32 s{T}, s{T}, 3")
        a(f"s_mul_i32 s{T}, s{T}, 12288")
        a(f"s_add_u32 s{T}, s{T}, {(sl-1)*4096}")
        a(f"v_add_u32 v{VRW[sl-1]}, s{T}, v{VL16}")
    a(f"s_mul_i32 s{T}, s{S_W}, 12288")
    a(f"v_add_u32 v{VRR}, s{T}, v{VL16}")
    if opt.fl4:
        a(f"v_lshrrev_b32 v{VZ}, 3, v0")
        a(f"v_lshlrev_b32 v{VZ}, 25, v{VZ}")
        a(f"v_lshl_add_u32 v{VZ}, v0, 4, v{VZ}")
        for e in range(4): a(f"v_mov_b32 v{236+e}, s{S_NONCE}")
    else:
        a(f"v_lshrrev_b32 v{VZ}, 5, v0")
        a(f"v_lshlrev_b32 v{VZ}, 25, v{VZ}")
        a(f"v_lshl_add_u32 v{VZ}, v0, 2, v{VZ}")
    a(f"v_mov_b32 v{VNV}, s{S_NONCE}")
    a(f"v_and_b32 v{VFA}, 7, v0")
    a(f"v_lshlrev_b32 v{VFA}, 7, v{VFA}")
    a(f"v_and_b32 v{VOUT}, 31, v0")
    a(f"v_lshlrev_b32 v{VOUT}, 12, v{VOUT}")
    a(f"v_lshrrev_b32 v240, 5, v0")
    a(f"v_lshl_add_u32 v{VOUT}, v240, 4, v{VOUT}")
    a(f"v_and_b32 v241, 15, v0")
    a(f"v_lshlrev_b32 v241, 4, v241")
    a(f"v_lshl_add_u32 v241, v240, 8, v241")
    a(f"v_bfe_u32 v240, v0, 4, 1")
    a(f"v_lshl_add_u32 v241, v240, 10, v241")
    ri = nfirst
    resident = list(w_early)
    free_slots = []
    def issued_fully(pos): return pos in slot_of and not any(q[0] == pos for q in lq)
    def assign_more():
        nonlocal ri
        while ri < len(rest) and free_slots:
            sl = free_slots.pop(0); slot_of[rest[ri]] = sl
            for j in range(4): lq.append((rest[ri], j, sl))
            ri += 1
    def tr_piece(pos):
        for g in tr_wo_items(pos, slot_of[pos]): g()
        resident.append(pos); free_slots.append(slot_of[pos])
    todo = list(rest)
    while todo and issued_fully(todo[0]) and a._cnt(a.vm, ("wo", todo[0])) < a.vm.index("o"):
        tr_piece(todo.pop(0))
    if a.lg: a.wait_lg_all()
    assign_more()
    a.wait_vm("o")
    if opt.fl4: a.vmem(f"buffer_store_dwordx4 v[236:239], v{VZ}, {srd(SWS)}, s{S_FOW} offen sc1", "flag")
    else: a.vmem(f"buffer_store_dword v{VNV}, v{VZ}, {srd(SWS)}, s{S_FOW} offen sc1", "flag")
    stamp(a, 19, opt)
    if opt.diag:
        a.wait_vm_all(); stamp(a, 32, opt)
        a(f"s_mov_b32 s{S_CNT}, 0")
        a.label("L_dp")
        a(f"buffer_load_dword v{VFL}, v{VFA}, {srd(SWS)}, s{S_FOR} offen sc1")
        a("s_waitcnt vmcnt(0)")
        a(f"v_cmp_ne_u32 vcc, s{S_NONCE}, v{VFL}")
        a(f"s_add_u32 s{S_CNT}, s{S_CNT}, 1")
        a(f"s_cmp_gt_u32 s{S_CNT}, {SPIN_MAX}")
        a(f"s_cbranch_scc1 L_dpd")
        a("s_nop 1")
        a(f"s_cbranch_vccnz L_dp")
        a.label("L_dpd")
        stamp(a, 33, opt)
        for k in range(5):
            for _ in range(8):
                if lq: dma_wo(*lq.pop(0))
            a("s_waitcnt vmcnt(0)")
            stamp(a, 34 + k, opt)
    if opt.pipe:
        nis = 0; polled = False
        def inflight(): return sum(1 for p in todo if issued_fully(p))
        while lq or ri < len(rest):
            if lq and inflight() < opt.pipe:
                for _ in range(4): dma_wo(*lq.pop(0))
                nis += 1
                if nis == opt.poll_at:
                    a.vmem(f"buffer_load_dword v{VFL}, v{VFA}, {srd(SWS)}, s{S_FOR} offen sc1", "poll"); polled = True
            else:
                tr_piece(todo.pop(0))
                if ri < len(rest) and len(lq) <= 4:
                    a.wait_lg_all(); assign_more()
        if not polled: a.vmem(f"buffer_load_dword v{VFL}, v{VFA}, {srd(SWS)}, s{S_FOR} offen sc1", "poll")
    else:
        for _ in range(opt.pre_poll):
            if lq: dma_wo(*lq.pop(0))
        a.vmem(f"buffer_load_dword v{VFL}, v{VFA}, {srd(SWS)}, s{S_FOR} offen sc1", "poll")
        for _ in range(opt.post_poll):
            if lq: dma_wo(*lq.pop(0))
        while todo and issued_fully(todo[0]) and a._cnt(a.vm, ("wo", todo[0])) < a.vm.index("poll"):
            tr_piece(todo.pop(0))
        if a.lg: a.wait_lg_all()
        assign_more()
    S_OS = S_QW
    def obase(n):
        a(f"s_lshl_b32 s{T+2}, s{S_Q[n]}, 18")
        a(f"s_add_u32 s{T+2}, s{T+2}, s{S_OB}")
        for jg in range(4): a(f"s_add_u32 s{S_OS[jg]}, s{T+2}, s{S_OG[jg]}")
    obase(0)
    stamp(a, 20, opt)
    a(f"s_mov_b32 s{S_CNT}, 0")
    a.wait_vm("poll")
    a.label("L_pollo")
    a(f"v_cmp_ne_u32 vcc, s{S_NONCE}, v{VFL}")
    a(f"s_add_u32 s{S_CNT}, s{S_CNT}, 1")
    a(f"s_cmp_gt_u32 s{S_CNT}, {SPIN_MAX}")
    a(f"s_cbranch_scc1 L_pollo_done")
    a("s_nop 1")
    a(f"s_cbranch_vccz L_pollo_done")
    a(f"buffer_load_dword v{VFL}, v{VFA}, {srd(SWS)}, s{S_FOR} offen sc1")
    a("s_waitcnt vmcnt(0)")
    a("s_branch L_pollo")
    a.label("L_pollo_done")
    if opt.stamps: a(f"v_writelane_b32 v{VSTAMP}, s{S_CNT}, 62")
    stamp(a, 21, opt)
    assert ri == len(rest)
    AC = 16; TMP = 80; OF = [128, 192]
    def load_o(n, f):
        a.vmem(f"buffer_load_dwordx4 {vr(OF[n&1]+4*f,4)}, v{VLO}, {srd(SWS)}, s{S_OS[f>>2]} offen offset:{((f&3)>>1)*2048 + (f&1)*512} sc1", ("o", n, f))
    a(f"v_mov_b32 v{VLO}, v241")
    korder0 = resident + todo
    assert sorted(korder0) == list(range(16))
    INIT = opt.init_o
    for f in korder0[:INIT]: load_o(0, f)
    while todo and issued_fully(todo[0]): tr_piece(todo.pop(0))
    NG = opt.fmt
    assert NG == 2
    PT = OF[0]; PK = TMP + 16; PU = PT + 40; PS = PT + 44; S_HSEL = S_HX
    S_SEL = [S_QX[0], S_QX[1]]; S_ZSEL = S_QX[2]; S_M3 = S_QX[3]; S_MSK = S_HW
    VBAD, VPL = 12, 14
    VTG = [4, 5, 6, 7]
    dslot = [0, 1, 2, 4, 5, 6, 8, 9] if NG == 3 else list(range(8))
    PL = 131072
    def wr(n, sl, j):
        a.lds(f"ds_write_b128 v{VRW[sl-1]}, {vr(AC+16*sl+4*j,4)} offset:{(n&1)*49152 + j*1024}", "rw")
    def rd(n, k):
        a.lds(f"ds_read_b128 {vr(TMP+4*k,4)}, v{VRR} offset:{(n&1)*49152 + k*1024}", ("rr", k))
    def presum(src, j):
        a.wait_lg([("rr", j), ("rr", 4*src+j)])
        for e in range(4): a(f"v_add_f32 v{TMP+4*j+e}, v{TMP+4*j+e}, v{TMP+16*src+4*j+e}")
    def fin(j):
        for e in range(4): a(f"v_add_f32 v{TMP+4*j+e}, v{TMP+4*j+e}, v{AC+4*j+e}")
    def pack_items(gr):
        if NG == 3:
            def g():
                for p in range(3*gr, min(3*gr+3, 8)):
                    a(f"v_cvt_pk_bf16_f32 v{PK+dslot[p]}, v{TMP+2*p}, v{TMP+2*p+1}")
                a(f"v_mov_b32 v{PK+4*gr+3}, s{S_NONCE}")
                if gr == 2: a(f"v_mov_b32 v{PK+10}, s{S_NONCE}")
            return [g]
        def g1():
            for p in range(4*gr, 4*gr+4): a(f"v_perm_b32 v{PK+p}, v{TMP+2*p+1}, v{TMP+2*p}, s{S_HSEL}")
        def g2():
            for p in range(4*gr, 4*gr+4): a(f"v_bfi_b32 v{PK+p}, s{S_MSK}, v{VTG[p&3]}, v{PK+p}")
        return [g1, g2]
    def pst(n, j):
        if j == 0:
            a(f"s_lshl_b32 s{T+3}, s{S_Q[n]}, 15")
            a(f"s_add_u32 s{T+3}, s{T+3}, s{S_PB}")
        a.vmem(f"buffer_store_dwordx4 {vr(PK+4*j,4)}, v{VL}, {srd(SWS)}, s{T+3} offen offset:{j*1024} sc1", ("p", n))
    def pld(k, j, track=True):
        if j == 0:
            a(f"s_lshl_b32 s{T+4}, s{S_Q[k]}, 13")
            a(f"s_add_u32 s{T+4}, s{T+4}, s{S_PR}")
        ins = f"buffer_load_dwordx4 {vr(PT+12*k+4*j,4)}, v{VL}, {srd(SWS)}, s{T+4} offen offset:{j*1024} sc1"
        if track: a.vmem(ins, ("pp", k))
        else: a(ins)
    def chk_items(k):
        b = PT + 12*k
        if NG == 3:
            def g():
                a(f"v_xor_b32 v{VBAD}, s{S_NONCE}, v{b+3}")
                a(f"v_bitop3_b32 v{VBAD}, v{VBAD}, v{b+7}, s{S_NONCE} bitop3:0xf6")
                a(f"v_bitop3_b32 v{VBAD}, v{VBAD}, v{b+11}, s{S_NONCE} bitop3:0xf6")
                a(f"v_cmp_ne_u32 vcc, 0, v{VBAD}")
            return [g]
        def g1():
            a(f"v_xor_b32 v{VBAD}, v{VTG[0]}, v{b}")
            for p in range(1, 5): a(f"v_bitop3_b32 v{VBAD}, v{VBAD}, v{b+p}, v{VTG[p&3]} bitop3:0xf6")
        def g2():
            for p in range(5, 8): a(f"v_bitop3_b32 v{VBAD}, v{VBAD}, v{b+p}, v{VTG[p&3]} bitop3:0xf6")
            a(f"v_and_b32 v{VBAD}, s{S_MSK}, v{VBAD}")
            a(f"v_cmp_ne_u32 vcc, 0, v{VBAD}")
        return [g1, g2]
    def mid_items(k):
        if NG == 3: return []
        def g(h):
            for p in range(4*h, 4*h+4): a(f"v_or_b32 v{PT+12*k+p}, s{S_MSK}, v{PT+12*k+p}")
        return [lambda: g(0), lambda: g(1)]
    def sel(k):
        a("s_cmp_eq_u64 vcc, 0")
        a(f"s_cselect_b32 s{S_SEL[0]}, 0x01000c0c, s{S_ZSEL}")
        a(f"s_cselect_b32 s{S_SEL[1]}, 0x03020c0c, s{S_ZSEL}")
        a(f"s_cselect_b32 s{T+5}, {1<<k}, 0")
        a(f"s_or_b32 s{S_DONE}, s{S_DONE}, s{T+5}")
    def unp_set(k, p2):
        for p in (2*p2, 2*p2+1):
            for h in range(2):
                d = PT + 12*k + dslot[p]
                a(f"v_perm_b32 v{PS+2*p+h}, v{d}, v{d}, s{S_SEL[h]}")
    def unp_add(k, p, dst):
        d = PT + 12*k + dslot[p]
        for h in range(2): a(f"v_perm_b32 v{PU+h}, v{d}, v{d}, s{S_SEL[h]}")
        for h in range(2): a(f"v_add_f32 v{dst+2*p+h}, v{dst+2*p+h}, v{PU+h}")
    def bar():
        if a.lg: a.wait_lg_all()
        a("s_barrier")
    def consts():
        a(f"s_mov_b32 s{S_ZSEL}, 0x0c0c0c0c")
        a(f"s_mov_b32 s{S_DONE}, 0")
        a(f"s_add_u32 s{S_M3}, s{S_MK}, {PL}")
        a(f"v_add_u32 v{VPL}, s{S_M3}, v{VL}")
        a(f"s_mov_b32 s{S_MSK}, 0x00010001")
        a(f"s_mov_b32 s{S_HSEL}, 0x07060302")
    def tags(h):
        if h == 0:
            a(f"v_and_b32 v{VTG[0]}, 3, v0")
            a(f"v_lshlrev_b32 v{VTG[0]}, 2, v{VTG[0]}")
            a(f"v_lshrrev_b32 v{VTG[0]}, v{VTG[0]}, v{VNV}")
        else:
            for p in range(1, 4): a(f"v_lshrrev_b32 v{VTG[p]}, {p}, v{VTG[0]}")
    consts()
    carry = []
    ro = [0, 4, 8, 1, 5, 9, 2, 6, 10, 3, 7, 11]
    ps = [(src, j) for j in range(4) for src in (1, 2)]
    packs = lambda: [g for gr in range(NG) for g in pack_items(gr)]
    for n in range(4):
        a.c(f"---- strip {n}")
        allres = not todo and not lq if n == 0 else allres
        if n == 0 and allres: seq = [(ks, sl) for ks in korder0 for sl in (1, 2)] + [(ks, sl) for sl in (3, 0) for ks in korder0]
        elif n == 0: seq = [(ks, sl) for ks in korder0 for sl in (1, 2, 3)] + [(ks, 0) for ks in korder0]
        elif n == 1: seq = [(ks, sl) for ks in range(16) for sl in (1, 2)] + [(ks, sl) for sl in (3, 0) for ks in range(16)]
        else: seq = [(ks, sl) for sl in (1, 2, 3, 0) for ks in range(16)]
        at = {}
        def put(g, fn): at.setdefault(g, []).append(fn)
        for g, fn in carry: put(g, fn)
        carry = []
        if n == 0:
            mq = []
            of = korder0[INIT:]
            wl = list(lq); lq.clear()
            while of or wl:
                for _ in range(opt.mq_w):
                    if wl: mq.append(lambda w=wl.pop(0): dma_wo(*w))
                if of: mq.append(lambda f=of.pop(0): load_o(0, f))
            g = 0
            for fn in mq:
                put(g // opt.mq_den, fn); g += opt.mq_num
            gq = g // opt.mq_den + 1
            for i, pos in enumerate(korder0):
                if pos in todo:
                    its = tr_wo_items(pos, slot_of[pos])
                    for k2, fn in enumerate(its): put(3 * i - 4 + (k2 >> 1), fn)
            if todo: gq = max(gq, 20)
            def place(g, fn):
                if g < 64: put(g, fn)
                else: carry.append((g - 64, fn))
            g = gq - 1
            place(g, lambda: obase(1)); g += 1
            for f in range(16): place(g, lambda f=f: load_o(1, f)); g += 2
            g = max(g, 65)
            g += (g & 1) ^ 1
            place(g, lambda: obase(2)); g += 1
            for f in range(16): place(g, lambda f=f: load_o(2, f)); g += 2
            place(g - 1, lambda: obase(3))
            gend = g - 64
            g = 1
            if allres:
                put(32, bar)
                put(33, lambda: tags(0) or a("s_nop 0"))
                put(34, lambda: tags(1))
                for i, (sl, j) in enumerate([(sl, j) for sl in (1, 2) for j in range(4)]): put(36 + i + (i >> 1), lambda sl=sl, j=j: wr(n, sl, j))
                put(48, lambda: a("s_nop 3"))
                put(49, lambda: a("s_nop 4"))
                for j in range(4): put(50 + 2 * j, lambda j=j: wr(n, 3, j))
                put(58, bar)
                for i in range(6): put(58 + i, lambda i=i: (rd(0, ro[2*i]), rd(0, ro[2*i+1])))
            else:
                put(47, bar)
                put(48, lambda: tags(0) or a("s_nop 0"))
                put(49, lambda: tags(1))
                for i, (sl, j) in enumerate([(sl, j) for sl in (1, 2) for j in range(4)]): put(50 + i + (i >> 1), lambda sl=sl, j=j: wr(n, sl, j))
                put(62, lambda: wr(0, 3, 0))
                put(63, lambda: a.wait_lg_all())
                for j in range(1, 4): carry.append((2 * j - 1, lambda j=j: wr(0, 3, j)))
                carry.append((7, bar))
                g = 7
                for i in range(6):
                    carry.append((g, lambda i=i: (rd(0, ro[2*i]), rd(0, ro[2*i+1])))); g += 1
            work = [lambda i=i: presum(*ps[i]) for i in range(8)] + [lambda j=j: fin(j) for j in range(4)] + packs()
            for fn in work: carry.append((g, fn)); g += 2
            assert g <= 47
            gs = max(gend, g)
            assert gs + NG <= 58, gs
            for j in range(NG): carry.append((gs + j, lambda j=j: pst(0, j)))
            left = []
        else:
            fast = n >= 2
            if n == 1:
                for i, (sl, j) in enumerate([(sl, j) for sl in (1, 2) for j in range(4)]): put(36 + i + (i >> 1), lambda sl=sl, j=j: wr(n, sl, j))
            else:
                if n == 2:
                    for f in range(16): put(opt.g_o3 + 2 * f, lambda f=f: load_o(3, f))
                    def pdma(j):
                        if j == 0:
                            a(f"s_lshl_b32 s{T+4}, s{S_Q[2]}, 13")
                            a(f"s_mov_b32 m0, s{S_M3}")
                            a(f"s_add_u32 s{T+4}, s{T+4}, s{S_PR}")
                        a.vmem(f"buffer_load_dwordx4 v{VL}, {srd(SWS)}, s{T+4} offen offset:{j*1024} sc1 lds", "pdma")
                    for j in range(NG): put(opt.g_p2 + 2 * j, lambda j=j: pdma(j))
                    if opt.g_ot >= 0:
                        assert opt.g_ot < opt.g_p2
                        put(opt.g_ot, lambda: a.vmem(f"buffer_load_dword v{VBAD}, v{VOUT}, {srd(SOUT)}, s{S_OUTB} offen", "otouch"))
                for j in range(4): put(32 + 2 * j, lambda j=j: wr(n, 1, j))
                for j in range(4): put(41 + 2 * j, lambda j=j: wr(n, 2, j))
            put(48, lambda: a("s_nop 3"))
            put(49, lambda: a("s_nop 4" if n == 1 else "s_nop 3"))
            if fast:
                for j in range(4): put(50 + j, lambda j=j: wr(n, 3, j))
                gb = 55
            else:
                for j in range(4): put(50 + 2 * j, lambda j=j: wr(n, 3, j))
                gb = 58
            put(gb, bar)
            for i in range(6):
                put(gb + i, lambda i=i: (rd(n, ro[2*i]), rd(n, ro[2*i+1])))
            npre_s = 63 - (gb + 5)
            for i in range(npre_s): put(gb + 6 + i, lambda i=i: presum(*ps[i]))
            left = [lambda i=i: presum(*ps[i]) for i in range(npre_s, 8)]
            if n == 1:
                g = 1
                for fn in left + [lambda j=j: fin(j) for j in range(4)] + packs(): carry.append((g, fn)); g += 2
                assert opt.g_s1 >= g - 2, g
                for j in range(NG): carry.append((opt.g_s1 + 2 * j, lambda j=j: pst(1, j)))
            if n == 2:
                if opt.dense:
                    rem = list(range(npre_s, 8))
                    pre = lambda js: [(lambda i=i: presum(*ps[i])) for i in rem if ps[i][1] in js]
                    its = pre((0, 1)) + pre((2,)) + [lambda: fin(0), lambda: fin(1)] + pack_items(0) + ["s0"] + pre((3,)) + [lambda: fin(2), lambda: fin(3)] + pack_items(1) + ["s1"]
                    h = 0
                    for it in its:
                        if isinstance(it, str):
                            carry.append((h // 3, lambda j=int(it[1]): pst(2, j))); h += 2
                        else:
                            carry.append((h // 3, it)); h += opt.dense
                    g = h // 3 + 1
                else:
                    g = NG if opt.g_p1 == 0 else 0
                    for fn in left + [lambda j=j: fin(j) for j in range(4)]: carry.append((g, fn)); g += 1
                    for j in range(NG):
                        for fn in pack_items(j): carry.append((g, fn)); g += 1
                        carry.append((g, lambda j=j: pst(2, j))); g += 1
                gfree = g
            if n == 3:
                for j in range(NG): put(opt.g_p1 + j, lambda j=j: pld(1, j))
                def prd():
                    a.wait_vm("pdma")
                    for j in range(NG):
                        a.lds(f"ds_read_b128 {vr(PT+24+4*j,4)}, v{VPL} offset:{j*1024}", "prd")
                g = gfree
                put(g - 3, prd)
                put(g, lambda: a.wait_lg("prd"))
                for fn in chk_items(2): put(g, fn); g += 1
                put(g, lambda: sel(2)); g += 1
                for fn in mid_items(2): put(g, fn); g += 1
                for p2 in range(4): put(g, lambda p2=p2: unp_set(2, p2)); g += 1
                g = max(g, opt.g_c1)
                put(g, lambda: a.wait_vm(("pp", 1)))
                for fn in chk_items(1): put(g, fn); g += 1
                put(g, lambda: sel(1)); g += 1
                for fn in mid_items(1) + [lambda p=p: unp_add(1, p, PS) for p in range(8)]:
                    while g in (32, 34, 36, 38, 41, 43, 45, 47) or 50 <= g <= 53: g += 1
                    put(g, fn); g += 1
                assert g <= 56, g
                for j in range(NG): put(opt.g_p0 + j, lambda j=j: pld(0, j))
        seen = set()
        if n >= 2: a.wait_vm(("o", n, 15))
        for g, (ks, sl) in enumerate(seq):
            if ks not in seen:
                a.wait_vm(("o", n, ks)); seen.add(ks)
                if n == 0: a.wait_lg(("wo", ks))
            first = (ks == korder0[0]) if n == 0 else (ks == 0)
            c = "0" if first else vr(AC+16*sl, 16)
            if opt.fakeB:
                q = 8 * (g & 1)
                k2 = (ks ^ 1) if (ks ^ 1) in seen else ks
                d0, d1 = vr(AC+16*sl+q, 4), vr(AC+16*sl+q+4, 4)
                z = g % 16 < 2 and n > 0 and False
                a(f"{M16} {d0}, {ar(16*ks+4*sl,4)}, {vr(OF[n&1]+4*ks,4)}, {'0' if first else d0}")
                p0 = len(a.L)
                for fn in at.get(g, []): fn()
                mid = p0 + (len(a.L) - p0) // 2
                a.L.insert(mid, f"    {M16} {d1}, {ar(16*ks+4*sl,4)}, {vr(OF[n&1]+4*k2,4)}, {'0' if first else d1}")
            else:
                a(f"{MF} {vr(AC+16*sl,16)}, {ar(16*ks+4*sl,4)}, {vr(OF[n&1]+4*ks,4)}, {c}")
                for fn in at.get(g, []): fn()
            if n == opt.sst and g % 8 == 7 and g < 63: stamp(a, 32 + g // 8, opt)
        stamp(a, 22 + n, opt)
    for fn in left: fn()
    for j in range(4): fin(j)
    if opt.lean:
        a(f"s_mov_b32 s{S_SEL[0]}, 0x00010000")
        a(f"v_mov_b32 v{AC+48}, 0xffff0000")
    else:
        a(f"s_mov_b32 s{S_SEL[0]}, 0x01000c0c")
        a(f"s_mov_b32 s{S_SEL[1]}, 0x03020c0c")
    if opt.outtr == 2:
        a(f"v_and_b32 v{PU+2}, 31, v0")
        a(f"v_mul_u32_u24 v{PU+2}, 272, v{PU+2}")
        a(f"v_lshrrev_b32 v{PU+3}, 5, v0")
        a(f"v_lshl_add_u32 v{PU+2}, v{PU+3}, 4, v{PU+2}")
        a(f"s_lshl_b32 s{T+6}, s{S_W}, 6")
        a(f"s_add_u32 s{T+7}, s{T+6}, 98304")
        a(f"v_add_u32 v{PU+2}, s{T+7}, v{PU+2}")
        a(f"v_lshrrev_b32 v{PU}, 4, v0")
        a(f"v_and_b32 v{PU+1}, 15, v0")
        a(f"v_lshlrev_b32 v{PU+1}, 4, v{PU+1}")
        a(f"v_lshl_add_u32 v{PU+3}, v{PU}, 12, v{PU+1}")
        a(f"v_mul_u32_u24 v{VPL}, 272, v{PU}")
        a(f"v_add_u32 v{VPL}, v{VPL}, v{PU+1}")
        a(f"s_mul_i32 s{T+7}, s{S_W}, {8*272}")
        a(f"s_add_u32 s{T+7}, s{T+7}, 98304")
        a(f"v_add_u32 v{VPL}, s{T+7}, v{VPL}")
        a(f"s_sub_u32 s{T+6}, s{S_OUTB}, s{T+6}")
        a(f"s_lshl_b32 s{T+7}, s{S_W}, 15")
        a(f"s_add_u32 s{T+6}, s{T+6}, s{T+7}")
        a(f"s_add_u32 s{T+7}, s{T+6}, 16384")
    elif opt.outtr:
        a(f"v_and_b32 v{PU+2}, 31, v0")
        a(f"v_lshlrev_b32 v{PU+2}, 6, v{PU+2}")
        a(f"v_lshrrev_b32 v{PU+3}, 5, v0")
        a(f"v_lshl_add_u32 v{PU+2}, v{PU+3}, 4, v{PU+2}")
        a(f"v_add_u32 v{PU+2}, s{S_M3}, v{PU+2}")
        a(f"v_lshrrev_b32 v{PU+3}, 2, v0")
        a(f"v_lshlrev_b32 v{PU+3}, 12, v{PU+3}")
        a(f"v_and_b32 v{PU}, 3, v0")
        a(f"v_lshl_add_u32 v{PU+3}, v{PU}, 4, v{PU+3}")
        a(f"s_add_u32 s{T+6}, s{S_OUTB}, 65536")
    stamp(a, 26, opt)
    a(f"s_mov_b32 s{S_CNT}, 0")
    for k in (0, 1, 2):
        if k:
            a(f"s_bitcmp1_b32 s{S_DONE}, {k}")
            a(f"s_cbranch_scc1 L_skip{k}")
            a(f"s_branch L_rel{k}")
        else:
            a.wait_vm(("pp", 0))
        a.label(f"L_chk{k}")
        for fn in chk_items(k): fn()
        a(f"s_add_u32 s{S_CNT}, s{S_CNT}, 1")
        a(f"s_cmp_gt_u32 s{S_CNT}, {SPIN_MAX}")
        a(f"s_cbranch_scc1 L_ok{k}")
        a("s_nop 1")
        a(f"s_cbranch_vccz L_ok{k}")
        a.label(f"L_rel{k}")
        for j in range(NG): pld(k, j, track=False)
        a("s_waitcnt vmcnt(0)")
        a(f"s_branch L_chk{k}")
        a.label(f"L_ok{k}")
        if opt.lean:
            for p in range(8):
                d = PT + 12*k + p; t = AC + 32 + 2*p
                a(f"v_lshl_or_b32 v{t}, v{d}, 16, s{S_SEL[0]}")
                a(f"v_and_or_b32 v{t+1}, v{d}, v{AC+48}, s{S_SEL[0]}")
            for p in range(8): a(f"v_pk_add_f32 {vr(PS+2*p,2)}, {vr(PS+2*p,2)}, {vr(AC+32+2*p,2)}")
        else:
            for fn in mid_items(k): fn()
            for p in range(8): unp_add(k, p, PS)
        a.label(f"L_skip{k}")
    if opt.lean:
        for p in range(8): a(f"v_pk_add_f32 {vr(TMP+2*p,2)}, {vr(TMP+2*p,2)}, {vr(PS+2*p,2)}")
    else:
        for e in range(16): a(f"v_add_f32 v{TMP+e}, v{TMP+e}, v{PS+e}")
    stamp(a, 27, opt)
    for p in range(8):
        a(f"v_cvt_pk_bf16_f32 v{AC+p}, v{TMP+2*p}, v{TMP+2*p+1}")
    if opt.outtr == 2:
        a(f"ds_write_b128 v{PU+2}, {vr(AC,4)}")
        a(f"ds_write_b128 v{PU+2}, {vr(AC+4,4)} offset:32")
        a("s_waitcnt lgkmcnt(0)")
        a("s_barrier")
        a(f"ds_read_b128 {vr(AC+8,4)}, v{VPL}")
        a(f"ds_read_b128 {vr(AC+12,4)}, v{VPL} offset:{4*272}")
        a("s_waitcnt lgkmcnt(1)")
        a(f"buffer_store_dwordx4 {vr(AC+8,4)}, v{PU+3}, {srd(SOUT)}, s{T+6} offen {opt.outaux}")
        a("s_waitcnt lgkmcnt(0)")
        a(f"buffer_store_dwordx4 {vr(AC+12,4)}, v{PU+3}, {srd(SOUT)}, s{T+7} offen {opt.outaux}")
    elif opt.outtr:
        a(f"ds_write_b128 v{PU+2}, {vr(AC,4)}")
        a(f"ds_write_b128 v{PU+2}, {vr(AC+4,4)} offset:32")
        a("s_waitcnt lgkmcnt(0)")
        a(f"ds_read_b128 {vr(AC+8,4)}, v{VPL}")
        a(f"ds_read_b128 {vr(AC+12,4)}, v{VPL} offset:1024")
        a("s_waitcnt lgkmcnt(1)")
        a(f"buffer_store_dwordx4 {vr(AC+8,4)}, v{PU+3}, {srd(SOUT)}, s{S_OUTB} offen {opt.outaux}")
        a("s_waitcnt lgkmcnt(0)")
        a(f"buffer_store_dwordx4 {vr(AC+12,4)}, v{PU+3}, {srd(SOUT)}, s{T+6} offen {opt.outaux}")
    else:
        a(f"buffer_store_dwordx4 {vr(AC,4)}, v{VOUT}, {srd(SOUT)}, s{S_OUTB} offen")
        a(f"buffer_store_dwordx4 {vr(AC+4,4)}, v{VOUT}, {srd(SOUT)}, s{S_OUTB} offen offset:32")
    if opt.stamps:
        a("s_waitcnt vmcnt(0)")
        stamp(a, 28, opt)
        a(f"v_writelane_b32 v{VSTAMP}, s{S_CNT}, 63")
        dump_stamps(a, opt)
    if opt.amp:
        a("s_waitcnt vmcnt(0)")
        stamp(a, 28, opt)
        a("s_nop 1")
        a(f"v_readlane_b32 s4, v{VSTAMP}, 0")
        a(f"v_readlane_b32 s5, v{VSTAMP}, 1")
        a("s_memrealtime s[30:31]")
        a("s_waitcnt lgkmcnt(0)")
        a("s_sub_u32 s5, s5, s4")
        a("s_min_u32 s5, s5, 10000")
        a("s_lshl_b32 s5, s5, 3")
        a("s_add_u32 s6, s30, s5")
        a.label("L_amp")
        a("s_sleep 1")
        a("s_memrealtime s[30:31]")
        a("s_waitcnt lgkmcnt(0)")
        a("s_sub_u32 s7, s30, s6")
        a("s_cmp_lt_i32 s7, 0")
        a("s_cbranch_scc1 L_amp")
    a.label(end)
    a("s_endpgm")
    a.label("L_codeend")

Opt.fill0 = 12
Opt.rest = ""
Opt.oldp = False
Opt.att2 = True
Opt.scost = 60
Opt.sq = 0
Opt.light = False
Opt.g_ot = -1
Opt.half = True
Opt.wm = 2.2
Opt.bud = 9.6
Opt.ahead = 8
Opt.qmax = 12
Opt.qopp = 10
Opt.lat = 20.0
Opt.verbose = False
Opt.pipe = 3
Opt.poll_at = 10
Opt.fakeB = False
Opt.fakeD = False
Opt.amp = ""
Opt.fl4 = False
Opt.ptouch = 0
Opt.pt_stage = 14
Opt.otouch = -1
Opt.et = 0
Opt.etm = 63
Opt.touch = 1
Opt.mq_w = 2
Opt.rspan = 12
Opt.diag = False

def build(opt):
    nm = NAME + "_kernel"
    out = []
    out.append("; One persistent launch, one workgroup per CU (generated by a script of my own):")
    out.append(";   phase 2  o[128 rows, 8 heads] @ wo[8 heads, 128 cols]; three of the four row strips go to the")
    out.append(";            owning workgroups as tagged tiles in d_ws, the own strip is finished last and stored")
    out.append("; @launch grid=(256,1,1) block=(256,1,1) lds=163840")
    out.append('.amdgcn_target "amdgcn-amd-amdhsa--gfx950"')
    out.append(".text")
    a = Asm()
    gen(a, opt)
    out.append(f".globl {nm}\n.p2align 8\n.type {nm},@function\n{nm}:")
    out.append(a.text())
    out.append('.section .rodata,"a"')
    out.append(f""".p2align 6
.amdhsa_kernel {nm}
  .amdhsa_next_free_vgpr 512
  .amdhsa_next_free_sgpr 102
  .amdhsa_accum_offset 256
  .amdhsa_group_segment_fixed_size 0
  .amdhsa_kernarg_size 104
  .amdhsa_user_sgpr_count 2
  .amdhsa_user_sgpr_kernarg_segment_ptr 1
  .amdhsa_system_sgpr_workgroup_id_x 1
.end_amdhsa_kernel
""")
    return "\n".join(out)

if __name__ == "__main__":
    opt = Opt()
    for kv in sys.argv[2:]:
        k, v = kv.split("=")
        cur = getattr(opt, k)
        setattr(opt, k, (v == "1") if isinstance(cur, bool) else type(cur)(v))
    t = build(opt)
    open(sys.argv[1], "w").write(t)
```

```python
import sys, struct
from asmlib import *

NAME = "concat_heads__mha_block_cached__gqa_block_cached__near_ridge"
def f32(x): return "0x%08x" % struct.unpack("<I", struct.pack("<f", x))[0]

PART_BASE = 8 << 20
FO_BASE = 24 << 20
STAMP_BASE = 28 << 20
WS_USED = 32 << 20
SPIN_MAX = 100000

SX, SK, SV, SWQ, SWO, SWS, SOUT, SDBG = 32, 36, 40, 44, 48, 52, 56, 60
S_W, S_BR, S_G, S_HL, S_R, S_B = 64, 65, 66, 67, 68, 69
S_T = 70
S_MX, S_LAM, S_KV, S_MW, S_MK, S_C = 78, 79, 80, 81, 82, 83
S_NONCE, S_CNT, S_DONE = 84, 85, 86
S_SO = 87
S_QW = [88, 89, 90, 91]; S_QX = [92, 93, 94, 95]
S_HW, S_HX = 96, 97
S_U = 98
S_WOG = [4, 5, 6, 7]; S_OG = [8, 9, 10, 11]; S_Q = [12, 13, 14, 15]
S_OB, S_PB, S_FOW, S_FOR, S_OUTB, S_PR = 16, 17, 18, 19, 20, 21
S_OW = [22, 23]

class Opt:
    nt_kv = "nt"
    stamps = False
    clk = "s_memrealtime"
    ab = ""
    ex = "K0,K1|V0,V1|W0,W1"
    mid = "||"
    lead = 2; bal = False; stag = False; hbit = 3
    n14 = 8; n15 = 0; natt = 0
    pre_flag = 0; pre_poll = 40; post_poll = 0
    codepf = True
    fill = 4
    coff = 1
    non_stage = -1
    init_o = 8
    mq_num = 2; mq_den = 1
    fmt = 2
    g_s1 = 33; g_p2 = 44; g_p1 = 0; g_c1 = 28; g_p0 = 56; g_o3 = 0
    sst = -1

VSTAMP = 1
def stamp(a, idx, opt):
    if opt.amp and str(idx) in opt.amp.split(","):
        a(f"s_memrealtime s[30:31]")
        a("s_waitcnt lgkmcnt(0)"); a.lg = []
        a(f"v_writelane_b32 v{VSTAMP}, s30, {opt.amp.split(',').index(str(idx))}")
    if opt.stamps and (not opt.light or idx in (0, 5, 9, 13, 17, 19, 21, 23, 25, 28)):
        a(f"{opt.clk} s[30:31]")
        a("s_waitcnt lgkmcnt(0)"); a.lg = []
        a(f"v_writelane_b32 v{VSTAMP}, s30, {idx}")

def dump_stamps(a, opt):
    a(f"s_lshl_b32 s{S_T}, s2, 2")
    a(f"s_add_u32 s{S_T}, s{S_T}, s{S_W}")
    a(f"s_lshl_b32 s{S_T}, s{S_T}, 8")
    a(f"s_add_u32 s{S_T}, s{S_T}, {STAMP_BASE}")
    a("v_lshlrev_b32 v2, 2, v0")
    a(f"buffer_store_dword v{VSTAMP}, v2, s[{SWS}:{SWS+3}], s{S_T} offen")
    a("s_waitcnt vmcnt(0)")

def seg_src(a, dst, rowstride_shift, t1, t2):
    a(f"v_lshrrev_b32 v{t1}, 4, v0")
    a(f"v_bfe_u32 v{t2}, v0, 2, 2")
    a(f"v_xor_b32 v{t2}, v{t2}, v{t1}")
    a(f"v_lshlrev_b32 v{t2}, 6, v{t2}")
    a(f"v_lshl_add_u32 v{dst}, v{t1}, {rowstride_shift}, v{t2}")
    a(f"v_and_b32 v{t2}, 3, v0")
    a(f"v_lshl_add_u32 v{dst}, v{t2}, 4, v{dst}")

def tr_base(a, dst, r4, t1):
    a(f"v_bfe_u32 v{r4}, v0, 2, 2")
    a(f"v_lshrrev_b32 v{t1}, 5, v0")
    a(f"v_lshl_add_u32 v{t1}, v{t1}, 3, v{r4}")
    a(f"v_lshlrev_b32 v{dst}, 8, v{t1}")
    a(f"v_bfe_u32 v{t1}, v0, 4, 1")
    a(f"v_lshl_add_u32 v{dst}, v{t1}, 5, v{dst}")
    a(f"v_and_b32 v{t1}, 1, v0")
    a(f"v_lshl_add_u32 v{dst}, v{t1}, 4, v{dst}")
    a(f"v_bfe_u32 v{t1}, v0, 1, 1")
    a(f"v_lshl_add_u32 v{dst}, v{t1}, 3, v{dst}")

MF = "v_mfma_f32_32x32x16_bf16"
M16 = "v_mfma_f32_16x16x32_bf16"
srd = lambda r: f"s[{r}:{r+3}]"

def sched(lam, opt):
    order = list(range(16))
    mpos = []
    for c in range(lam, 16, 4):
        p = order.index(c)
        q = max(0, p - opt.lead)
        if c < 4 and opt.bal: q = 0
        order.pop(p); order.insert(q, c)
        if c >= 4: mpos.append(q)
    if opt.stag:
        order = [(4 * lam + i) & 15 for i in range(16)]
        mpos = [2 + lam, 6 + lam, 10 + lam]
    extras = {}
    for j, lst in enumerate(opt.ex.split("|")):
        for pc in filter(None, lst.split(",")):
            extras.setdefault(mpos[j] - 2, []).append(pc)
    for j, lst in enumerate(opt.mid.split("|")):
        for pc in filter(None, lst.split(",")):
            extras.setdefault(mpos[j], []).append(pc)
    for it in filter(None, opt.ab.split(";")):
        st, lst = it.split(":")
        for pc in lst.split(","): extras.setdefault(int(st), []).append(pc)
    return order, extras

class Rec:
    def __init__(self): self.L = []
    def __call__(self, s): self.L.append(s)

def gen(a, opt):
    end = "L_end"
    T = S_T; U = S_U
    stamp(a, 0, opt)
    a("s_cmp_ge_u32 s2, 256")
    a(f"s_cbranch_scc1 {end}")
    a("s_load_dwordx16 s[4:19], s[0:1], 0")
    a("s_load_dwordx4 s[20:23], s[0:1], 64")
    a("s_load_dwordx4 s[24:27], s[0:1], 80")
    a("s_load_dwordx2 s[28:29], s[0:1], 96")
    a(f"s_memrealtime s[{T+6}:{T+7}]")
    if opt.codepf:
        a(f"s_getpc_b64 s[{U}:{U+1}]")
        a.label("L_pc")
        a(f"s_lshr_b32 s{T}, s2, 3")
        a(f"v_lshrrev_b32 v240, 4, v0")
        a(f"v_lshl_add_u32 v240, s{T}, 4, v240")
        a(f"v_lshlrev_b32 v240, 7, v240")
        a(f"v_min_u32 v240, L_codeend-L_pc-4, v240")
        a(f"v_mov_b32 v241, s{U+1}")
        a(f"v_add_co_u32 v240, vcc, s{U}, v240")
        a("s_nop 1")
        a(f"v_addc_co_u32 v241, vcc, 0, v241, vcc")
        a.vmem(f"global_load_dword v241, v[240:241], off", "cpf")
    a("v_lshrrev_b32 v2, 6, v0")
    a("v_and_b32 v0, 63, v0")
    a(f"v_readfirstlane_b32 s{S_W}, v2")
    a(f"s_and_b32 s{T}, s2, 7")
    a(f"s_lshr_b32 s{T+1}, s2, 3")
    a(f"s_lshr_b32 s{S_BR}, s{T}, 2")
    a(f"s_and_b32 s{S_G}, s{T}, 3")
    a(f"s_and_b32 s{S_HL}, s{T+1}, 7")
    a(f"s_lshr_b32 s{S_R}, s{T+1}, 3")
    VKS, VVS = 2, 3
    VWO = [4, 5, 6, 7]
    VA = list(range(8, 16))
    ACC = 16
    FA = [80, 120]; FB = [112, 152]
    KF, VF = 160, 192
    QP, SS, PP = 80, 112, 128
    VWQ = [224, 225, 226, 227]; VX = [228, 229, 230, 231]; VB = [232, 233]
    TT = 240
    VWT = [244, 245, 246, 247]
    VKA, VL16, VTB, VR4, VNON, VT2 = 248, 249, 250, 251, 252, 253
    F1, F2 = 254, 255
    XR, KR, VR = 65536, 131072, 131072
    a(f"s_lshl_b32 s{S_B}, s{S_R}, 2")
    a(f"s_add_u32 s{S_B}, s{S_B}, s{S_W}")
    a(f"s_lshl_b32 s{T+4}, s{S_G}, 3")
    a(f"s_add_u32 s{T+4}, s{T+4}, s{S_HL}")
    a(f"s_lshl_b32 s{T}, s{S_W}, 17")
    a(f"s_lshl_b32 s{T+1}, s{T+4}, 8")
    a(f"s_add_u32 s{T}, s{T}, s{T+1}")
    a(f"s_lshl_b32 s{T+1}, s{S_B}, 16")
    a(f"s_lshr_b32 s{T+2}, s{S_HL}, {2 if opt.half else 3}")
    HB = opt.hbit
    S_WQB = S_QW[:2]; S_XB = S_QX[:2]
    a(f"s_lshl_b32 s{T+3}, s{T+2}, {19+HB}")
    a(f"s_add_u32 s{S_WQB[0]}, s{T}, s{T+3}")
    a(f"s_xor_b32 s{T+3}, s{T+3}, {1<<(19+HB)}")
    a(f"s_add_u32 s{S_WQB[1]}, s{T}, s{T+3}")
    a(f"s_lshl_b32 s{T+3}, s{T+2}, {7+HB}")
    a(f"s_add_u32 s{S_XB[0]}, s{T+1}, s{T+3}")
    a(f"s_xor_b32 s{T+3}, s{T+3}, {1<<(7+HB)}")
    a(f"s_add_u32 s{S_XB[1]}, s{T+1}, s{T+3}")
    a(f"s_add_u32 s{S_LAM}, s{S_R}, s{S_HL}")
    a(f"s_and_b32 s{S_LAM}, s{S_LAM}, 3")
    ords = [sched(l, opt)[0] for l in range(4)]
    for pos in range(2):
        assert all(not (o[pos] >> HB) & 1 for o in ords)
        pk = sum(ords[l][pos] << (4 * l) for l in range(4))
        a(f"s_lshl_b32 s{T+2}, s{S_LAM}, 2")
        a(f"s_lshr_b32 s{T+2}, {pk}, s{T+2}")
        a(f"s_and_b32 s{T+2}, s{T+2}, 15")
        a(f"s_lshl_b32 s{T+3}, s{T+2}, 19")
        a(f"s_add_u32 s{S_QW[2+pos]}, s{S_WQB[0]}, s{T+3}")
        a(f"s_lshl_b32 s{T+3}, s{T+2}, 7")
        a(f"s_add_u32 s{S_QX[2+pos]}, s{S_XB[0]}, s{T+3}")
    a(f"s_lshl_b32 s{S_MW}, s{S_W}, 12")
    a(f"s_lshl_b32 s{S_MX}, s{S_W}, 14")
    a(f"s_add_u32 s{S_MX}, s{S_MX}, {XR}")
    seg_src(a, VWQ[0], 13, 242, 243)
    a(f"v_add_u32 v{VWQ[1]}, {32768-1024}, v{VWQ[0]}")
    a(f"v_xor_b32 v242, 32, v{VWQ[0]}")
    for j in (2, 3): a(f"v_add_u32 v{VWQ[j]}, {j*(32768-1024)}, v242")
    a("v_lshrrev_b32 v242, 3, v0")
    a("v_lshrrev_b32 v243, 4, v0")
    a(f"v_and_b32 v{F1}, 7, v0")
    a(f"v_xor_b32 v{F1}, v{F1}, v243")
    a(f"v_lshlrev_b32 v{F1}, 4, v{F1}")
    a(f"v_lshl_add_u32 v{VX[0]}, v242, 11, v{F1}")
    a(f"v_xor_b32 v{F1}, 64, v{VX[0]}")
    a(f"v_add_u32 v{VX[1]}, {16384-1024}, v{F1}")
    a(f"v_add_u32 v{VX[2]}, {2*(16384-1024)}, v{VX[0]}")
    a(f"v_add_u32 v{VX[3]}, {3*(16384-1024)}, v{F1}")
    for s_, n in [(SX, 1 << 20), (SWQ, 8 << 20)]:
        a(f"s_mov_b32 s{s_+2}, {n}")
        a(f"s_mov_b32 s{s_+3}, 0x20000")
    a("s_waitcnt lgkmcnt(0)")
    stamp(a, 29, opt)
    a(f"s_cmp_eq_u32 s{S_BR}, 0")
    for i, s_ in [(0, SX), (3, SWQ), (1, SK), (2, SV), (4, SWO)]:
        a(f"s_cselect_b32 s{s_}, s{4+2*i}, s{14+2*i}")
        a(f"s_cselect_b32 s{s_+1}, s{5+2*i}, s{15+2*i}")
    cur = [None]
    def group(key, m0_ins, so_ins):
        n = 0
        if cur[0] != key:
            a(m0_ins); n += 1
            for x in so_ins: a(x); n += 1
            cur[0] = key
        return n
    def dma_x(pos, j, c=None):
        so = f"s_mov_b32 s{S_SO}, s{S_QX[2+pos]}" if c is None else f"s_add_u32 s{S_SO}, s{S_XB[(c>>HB)&1]}, {(c & ~(1<<HB))*128}"
        group(("x", pos), f"s_add_u32 m0, s{S_MX}, {(pos%4)*4096}", [so])
        a.vmem(f"buffer_load_dwordx4 v{VX[j]}, {srd(SX)}, s{S_SO} offen offset:{j*1024} lds", ("st", pos))
    def dma_wq(pos, j, c=None):
        so = f"s_mov_b32 s{S_SO}, s{S_QW[2+pos]}" if c is None else f"s_add_u32 s{S_SO}, s{S_WQB[(c>>HB)&1]}, {(c & ~(1<<HB))<<19}"
        group(("q", pos), f"s_add_u32 m0, s{S_MW}, {(pos%4)*16384}", [so])
        a.vmem(f"buffer_load_dwordx4 v{VWQ[j]}, {srd(SWQ)}, s{S_SO} offen offset:{j*1024} lds", ("st", pos))
    for j in range(4): dma_x(0, j)
    for j in range(4): dma_wq(0, j)
    stamp(a, 30, opt)
    a(f"v_bfe_u32 v{VR4}, v0, 2, 2")
    a("v_lshrrev_b32 v242, 4, v0")
    a(f"v_lshl_add_u32 v243, v242, 3, v{VR4}")
    a("v_lshlrev_b32 v243, 8, v243")
    a(f"v_and_b32 v{F1}, 1, v242")
    a(f"v_lshl_add_u32 v243, v{F1}, 5, v243")
    a(f"v_and_b32 v{F1}, 3, v0")
    a(f"v_lshl_add_u32 v243, v{F1}, 3, v243")
    a(f"v_lshl_add_u32 v{VA[0]}, v{VR4}, 6, v243")
    for i in range(1, 8): a(f"v_xor_b32 v{VA[i]}, {32*i}, v{VA[0]}")
    a(f"v_bfe_u32 v{F1}, v0, 1, 3")
    a(f"v_xor_b32 v242, v242, v{F1}")
    a("v_lshlrev_b32 v242, 4, v242")
    a("v_and_b32 v243, 15, v0")
    a("v_lshl_add_u32 v242, v243, 7, v242")
    a(f"v_add_u32 v{VB[0]}, s{S_MX}, v242")
    a("v_xor_b32 v242, 64, v242")
    a(f"v_add_u32 v{VB[1]}, s{S_MX}, v242")
    for s_, lo in [(SOUT, 24), (SDBG, 26), (SWS, 28)]:
        a(f"s_mov_b32 s{s_}, s{lo}")
        a(f"s_mov_b32 s{s_+1}, s{lo+1}")
    for s_, n in [(SK, 4 << 20), (SV, 4 << 20), (SWO, 8 << 20), (SWS, WS_USED), (SOUT, 2 << 20), (SDBG, 256)]:
        a(f"s_mov_b32 s{s_+2}, {n}")
        a(f"s_mov_b32 s{s_+3}, 0x20000")
    a(f"s_lshl_b32 s{S_KV}, s{S_B}, 5")
    a(f"s_add_u32 s{S_KV}, s{S_KV}, s{T+4}")
    a(f"s_lshl_b32 s{S_KV}, s{S_KV}, 13")
    a(f"s_lshl_b32 s{S_MK}, s{S_W}, 13")
    def early_touch():
        a(f"v_and_b32 v242, 3, v0")
        a(f"v_lshlrev_b32 v242, 21, v242")
        a("v_mov_b32 v243, 0")
        a(f"s_lshl_b32 s{T+2}, s{S_BR}, 2")
        a(f"s_add_u32 s{T+2}, s{T+2}, s{S_R}")
        a(f"s_lshl_b32 s{T+2}, s{T+2}, 21")
        a(f"s_lshl_b32 s{T+3}, s{S_G}, 21")
        a(f"s_lshl_b32 s{T+5}, s{S_R}, 19")
        for k_, (vo, sd, so) in enumerate([(242, SWQ, "0"), (243, SK, f"s{S_KV}"), (243, SV, f"s{S_KV}"), (243, SWO, f"s{T+3}"), (243, SWS, f"s{T+2}"), (243, SOUT, f"s{T+5}")]):
            if opt.etm >> k_ & 1:
                a.vmem(f"buffer_load_dword v{234+k_}, v{vo}, {srd(sd)}, {so} offen", "touch")
    if opt.et == 1: early_touch()
    for j in range(4): dma_x(1, j)
    for j in range(4): dma_wq(1, j)
    if opt.et == 2: early_touch()
    a(f"s_or_b32 s{T}, s2, s{S_W}")
    a(f"s_or_b32 s{T+6}, s{T+6}, 1")
    a(f"s_mul_i32 s{T+6}, s{T+6}, 0x9e3779b1")
    a(f"v_or_b32 v243, s{T}, v0")
    a(f"v_lshlrev_b32 v243, 8, v243")
    a(f"v_mov_b32 v242, s{T+6}")
    a.vmem(f"buffer_store_dword v242, v243, {srd(SDBG)}, 0 offen sc1", "tagst")
    stamp(a, 31, opt)
    f = Rec()
    f(f"v_lshrrev_b32 v{F1}, 4, v0")
    f(f"v_and_b32 v{F2}, 15, v0")
    f(f"v_xor_b32 v{F2}, v{F2}, v{F1}")
    f(f"v_lshlrev_b32 v{F2}, 4, v{F2}")
    f(f"v_lshl_add_u32 v{VKS}, v{F1}, 8, v{F2}")
    seg_src(f, VVS, 8, F1, F2)
    seg_src(f, VWO[0], 11, F1, F2)
    for j in range(1, 4): f(f"v_add_u32 v{VWO[j]}, {(4*(j>>1) + 16*(j&1))*2048 - j*1024}, v{VWO[0]}")
    tr_base(f, VTB, VR4, F1)
    for i in range(4):
        f(f"s_add_u32 s{U+2}, s{S_W}, {i}")
        f(f"s_and_b32 s{U+2}, s{U+2}, 3")
        f(f"v_xor_b32 v{F1}, s{U+2}, v{VR4}")
        f(f"v_lshl_add_u32 v{VWT[i]}, v{F1}, 6, v{VTB}")
    f(f"v_and_b32 v{F1}, 3, v0")
    f(f"v_lshl_add_u32 v{F1}, v{VR4}, 3, v{F1}")
    f(f"v_and_b32 v{F2}, 15, v{F1}")
    f(f"v_lshrrev_b32 v{VKA}, 5, v0")
    f(f"v_xor_b32 v{F2}, v{F2}, v{VKA}")
    f(f"v_lshlrev_b32 v{F2}, 4, v{F2}")
    f(f"v_lshl_add_u32 v{F1}, v{F1}, 8, v{F2}")
    f(f"v_bfe_u32 v{F2}, v0, 4, 1")
    f(f"v_lshl_add_u32 v{F1}, v{F2}, 3, v{F1}")
    f(f"s_add_u32 s{U+2}, s{S_MK}, {KR}")
    f(f"v_add_u32 v{VKA}, s{U+2}, v{F1}")
    f(f"v_lshlrev_b32 v{VL16}, 4, v0")
    f(f"v_mov_b32 v{TT+1}, 0")
    f(f"s_lshl_b32 s{U}, s{S_G}, 2")
    f(f"s_add_u32 s{U}, s{U}, s{S_W}")
    f(f"s_lshl_b32 s{U+1}, s{U}, 19")
    f(f"s_add_u32 s{S_C}, s{S_HL}, {opt.coff}")
    f(f"s_and_b32 s{S_C}, s{S_C}, 7")
    f(f"s_lshl_b32 s{U+2}, s{S_C}, 8")
    f(f"s_add_u32 s{U+1}, s{U+1}, s{U+2}")
    for jg in range(4):
        f(f"s_add_u32 s{U+2}, s{S_LAM}, {jg}")
        f(f"s_and_b32 s{U+2}, s{U+2}, 3")
        f(f"s_lshl_b32 s{U+3}, s{U+2}, 17")
        f(f"s_add_u32 s{S_WOG[jg]}, s{U+1}, s{U+3}")
        f(f"s_lshl_b32 s{S_OG[jg]}, s{U+2}, 12")
        f(f"s_add_u32 s{S_Q[jg]}, s{S_G}, {jg+1}")
        f(f"s_and_b32 s{S_Q[jg]}, s{S_Q[jg]}, 3")
    f(f"s_lshl_b32 s{U+1}, s{S_BR}, 2")
    f(f"s_add_u32 s{U+1}, s{U+1}, s{S_R}")
    f(f"s_lshl_b32 s{U+1}, s{U+1}, 21")
    f(f"s_lshl_b32 s{U+2}, s{U}, 14")
    f(f"s_add_u32 s{S_OB}, s{U+1}, s{U+2}")
    f(f"s_and_b32 s{U+2}, s{S_KV}, 0xfffff")
    f(f"s_add_u32 s{S_OW[0]}, s{U+1}, s{U+2}")
    f(f"s_add_u32 s{S_OW[1]}, s{S_OW[0]}, 4096")
    f(f"s_add_u32 s{U+1}, s{U+1}, {1<<20}")
    f(f"s_mul_i32 s{U+2}, s{S_G}, {(1<<15) + (1<<13)}")
    f(f"s_add_u32 s{U+2}, s{U+2}, s{U+1}")
    f(f"s_lshl_b32 s{U+3}, s{S_W}, 10")
    f(f"s_add_u32 s{S_FOR}, s{U+2}, s{U+3}")
    f(f"s_lshl_b32 s{U+3}, s{S_HL}, 2")
    f(f"s_add_u32 s{U+3}, s{U+3}, s{S_W}")
    f(f"s_lshl_b32 s{U+3}, s{U+3}, 7")
    f(f"s_add_u32 s{S_FOW}, s{U+2}, s{U+3}")
    f(f"s_lshl_b32 s{U+2}, s{S_C}, 17")
    f(f"s_add_u32 s{U+2}, s{U+2}, s{U+1}")
    f(f"s_lshl_b32 s{U+3}, s{U}, 11")
    f(f"s_add_u32 s{S_PB}, s{U+2}, s{U+3}")
    f(f"s_lshl_b32 s{U+3}, s{S_G}, 15")
    f(f"s_add_u32 s{S_PR}, s{U+2}, s{U+3}")
    f(f"s_lshl_b32 s{U+3}, s{S_W}, 11")
    f(f"s_add_u32 s{S_PR}, s{S_PR}, s{U+3}")
    f(f"s_lshl_b32 s{U+2}, s{S_R}, 2")
    f(f"s_add_u32 s{U+2}, s{U+2}, s{S_G}")
    f(f"s_lshl_b32 s{U+2}, s{U+2}, 17")
    f(f"s_lshl_b32 s{U+3}, s{S_BR}, 11")
    f(f"s_add_u32 s{U+2}, s{U+2}, s{U+3}")
    f(f"s_lshl_b32 s{U+3}, s{S_C}, 8")
    f(f"s_add_u32 s{U+2}, s{U+2}, s{U+3}")
    f(f"s_lshl_b32 s{U+3}, s{S_W}, 6")
    f(f"s_add_u32 s{S_OUTB}, s{U+2}, s{U+3}")
    FILL = f.L
    for _ in range(opt.fill0): a(FILL.pop(0))

    SLOT = {"k0": (S_MK, KR), "k1": (S_MK, KR + 4096)}
    for i_ in range(4):
        SLOT[f"w{i_}"] = (S_MW, 16384 * i_); SLOT[f"x{i_}"] = (S_MX, 4096 * i_)
    def dma_wo(pos, j, slot):
        sb, off = SLOT[slot]
        n = group(("wo", pos), f"s_add_u32 m0, s{sb}, {off}", [f"s_add_u32 s{S_SO}, s{S_WOG[pos>>2]}, {(32*((pos&3)>>1) + 8*(pos&1))*2048}"])
        a.vmem(f"buffer_load_dwordx4 v{VWO[j]}, {srd(SWO)}, s{S_SO} offen offset:{j*1024} lds", ("wo", pos))
        a.ever.add(("woj", pos, j))
        return n + 1
    def tr_wo_items(pos, slot):
        sb, off = SLOT[slot]
        it = []
        for s4 in range(4):
            def g(s4=s4):
                if s4 == 0:
                    assert all(("woj", pos, j) in a.ever for j in range(4)), ("piece not fully issued", pos)
                    a.wait_vm(("wo", pos))
                    a(f"s_add_u32 s{T+1}, s{sb}, {off}")
                a(f"v_add_u32 v{VT2}, s{T+1}, v{VWT[s4]}")
                for h2 in range(2):
                    a.lds(f"ds_read_b64_tr_b16 {ar(16*pos+4*s4+2*h2,2)}, v{VT2} offset:{4*h2*256}", ("wo", pos))
            it.append(g)
        return it
    def dma_kv(pc, j):
        half = int(pc[1])
        group(pc, f"s_add_u32 m0, s{S_MK}, {(KR if pc[0] == 'K' else VR) + half*4096}", [f"s_add_u32 s{S_SO}, s{S_KV}, {half*4096}"])
        if pc[0] == "K":
            a(f"v_xor_b32 v{TT}, {64*j}, v{VKS}")
            a.vmem(f"buffer_load_dwordx4 v{TT}, {srd(SK)}, s{S_SO} offen offset:{j*1024} {opt.nt_kv} lds", "k")
        else:
            if j == 2: a(f"v_xor_b32 v{TT}, 32, v{VVS}")
            a.vmem(f"buffer_load_dwordx4 v{TT if j >= 2 else VVS}, {srd(SV)}, s{S_SO} offen offset:{j*1024} {opt.nt_kv} lds", "v")
    def reads(n):
        s, t = n >> 1, n & 1
        slot = s % 4
        fs = n & 1
        r = [(f"ds_read_b128 {vr(FB[fs]+4*nt,4)}, v{VB[t]} offset:{slot*4096 + nt*2048}", ("b", n)) for nt in range(2)]
        for i in range(8):
            for h2 in range(2):
                r.append((f"ds_read_b64_tr_b16 {vr(FA[fs]+4*i+2*h2,2)}, v{VA[i]} offset:{slot*16384 + (32*t+4*h2)*256}", ("a", n, i)))
        if opt.fakeD:
            r = r[:10] + [(f"ds_read_b128 {vr(FA[fs]+16+4*nt,4)}, v{VB[t]} offset:{slot*4096 + nt*2048}", ("a", n, 4+nt)) for nt in range(2)]
            a.ever.add(("lg", ("a", n, 6))); a.ever.add(("lg", ("a", n, 7)))
        return r
    def mfma(n, k):
        fs = n & 1
        i, nt = k >> 1, k & 1
        d = vr(ACC + 8*i + 4*nt, 4)
        a.wait_lg([("b", n), ("a", n, i)])
        a(f"{M16} {d}, {vr(FA[fs]+4*i,4)}, {vr(FB[fs]+4*nt,4)}, {'0' if n == 0 else d}")

    allex = [p for l in sched(0, opt)[1].values() for p in l]
    w_early = sorted(int(p[1]) for p in allex if p[0] == "W")
    w_late = [p for p in range(4) if p not in w_early]
    hit_first = [4*g + k for k in w_early for g in (1, 2, 3)]
    hit_last = [4*g + k for k in w_late for g in (1, 2, 3)]
    rest = w_late + hit_first + hit_last
    if opt.rest: rest = [int(x) for x in opt.rest.split(",")]
    assert sorted(rest + w_early) == list(range(16))
    late_slots = ["w0", "x0", "w1", "x1", "w2", "x2", "k0", "k1", "x3", "w3"]
    avail = {"w0": 13, "x0": 13, "w1": 14, "x1": 14, "w2": 15, "x2": 15, "k0": 15, "k1": 15, "x3": 16, "w3": 17}
    lateq = [(rest[i], j, late_slots[i]) for i in range(min(len(rest), len(late_slots))) for j in range(4)]
    def k_items():
        it = []
        for kt in range(2):
            for u in range(4):
                for h in range(2):
                    def g(kt=kt, u=u, h=h):
                        if (kt, u, h) == (0, 0, 0): a.wait_vm("k")
                        a(f"v_xor_b32 v{VT2}, {((4*u+2*h) ^ (4*kt)) << 4}, v{VKA}")
                        a.lds(f"ds_read_b64 {vr(KF+16*kt+4*u+2*h,2)}, v{VT2} offset:{1024*kt}", "kf")
                    it.append(g)
        return it
    def v_items():
        it = []
        for i in range(8):
            def g(i=i):
                if i == 0:
                    a.wait_vm("v")
                    a(f"s_add_u32 s{T+1}, s{S_MK}, {VR}")
                a(f"v_add_u32 v{VT2}, s{T+1}, v{VA[i]}")
                for h2 in range(2):
                    a.lds(f"ds_read_b64_tr_b16 {vr(VF+4*i+2*h2,2)}, v{VT2} offset:{4*h2*256}", "vf")
            it.append(g)
        return it
    uniform = all(sched(l, opt) == sched(0, opt) for l in range(4))
    for lam in range(1, 4):
        a(f"s_cmp_eq_u32 s{S_LAM}, {lam}")
        a(f"s_cbranch_scc1 L_p1_{lam}")
    vm0, lg0, cur0, ever0 = list(a.vm), list(a.lg), cur[0], set(a.ever)
    end_state = None
    a.lg_low = 7
    for lam in range(4):
        a.vm, a.lg, cur[0], a.ever = list(vm0), list(lg0), cur0, set(ever0)
        a.label(f"L_p1_{lam}")
        order, extras = sched(lam, opt)
        consume = {}; wslot = {}; free_at = {"k0": -9, "k1": -9}
        stream = []
        pend = {}
        non_stage = max(extras)
        assert min(extras) >= 0
        lq = list(lateq)
        for p in range(2, 16):
            c = order[p]
            lead = (c & 3) == lam
            for j in range(4): stream.append((lambda j=j, c=c, p=p: dma_x(p, j, c), opt.wm if lead and (not opt.half or not (c >> HB) & 1) else 1.0, p - 3, p - 2, None))
            for j in range(4): stream.append((lambda j=j, c=c, p=p: dma_wq(p, j, c), opt.wm if lead else 1.0, p - 3, p - 2, p))
            for pc in extras.get(p - 2, []):
                if pc[0] == "W":
                    sl = min(free_at, key=free_at.get); wslot[pc] = sl
                    cs = p + 1; consume.setdefault(cs, []).append(pc)
                else:
                    sl = "k" + pc[1]
                    other = [st for st, l in extras.items() for q in l if q[0] == pc[0]]
                    cs = max(other) + 3
                    if pc[1] == "1": consume.setdefault(cs, []).append(pc[0])
                e = free_at[sl]; assert e <= p - 2, (lam, pc, p, free_at)
                free_at[sl] = cs + 1
                for j in range(4):
                    fn = (lambda pc=pc, j=j: dma_wo(int(pc[1]), j, wslot[pc])) if pc[0] == "W" else (lambda pc=pc, j=j: dma_kv(pc, j))
                    stream.append((fn, opt.wm, max(e, 0 if pc[0] != "W" else 4), p - 2, None))
            if p - 2 == non_stage:
                stream.append((lambda: a.vmem(f"buffer_load_dword v{VNON}, v{TT+1}, {srd(SDBG)}, 0 offen sc1", "nonce"), 0.2, 4, p - 2, None))
                stream.append((lambda: a.vmem(f"buffer_load_dword v{TT+2}, v{TT+1}, {srd(SWS)}, s{S_FOW} offen", "touch"), 0.2, 4, p - 2, None))
        assert max(free_at.values()) <= 15
        for k in range(opt.n14):
            pos, j, sl = lq.pop(0)
            stream.append((lambda pos=pos, j=j, sl=sl: dma_wo(pos, j, sl), opt.wm if k < 8 else opt.wh, max(avail[sl], opt.hst if k >= 8 else 0), 15, None))
        fill = list(FILL)
        endidx = {}
        cnt = 0
        for it in stream:
            cnt += 1
            if it[4] is not None: endidx[it[4]] = cnt
        total = len(stream)
        unit = 32.0 / opt.bud
        clock = 0.0
        comp = [unit * opt.wm * (i + 1 - 8) for i in range(16)]
        posdone = {0: 0.0, 1: comp[15]}
        issued = 0
        def outstanding(): return sum(1 for c_ in comp if c_ > clock)
        def issue():
            nonlocal clock, issued
            fn, w, e, d, tagp = stream.pop(0); assert e <= s, (lam, s, e)
            if outstanding() >= opt.qmax: clock = comp[-opt.qmax]
            fn(); issued += 1
            comp.append(max(comp[-1], clock + opt.lat - unit * w) + unit * w)
            if tagp is not None: posdone[tagp] = comp[-1]
        for s in range(16):
            a.c(f"---- class {lam} stage {s} chunk {order[s]}")
            if a.lg: a.wait_lg_all()
            a.wait_vm(("st", s))
            a("s_barrier")
            stamp(a, 1 + s, opt)
            clock = max(clock, posdone[s])
            lw = []
            for pc in consume.get(s, []):
                assert not fill or len(FILL) - len(fill) > 60
                if pc == "K": lw += k_items()
                elif pc == "V": lw += v_items()
                else: lw += tr_wo_items(int(pc[1]), wslot[pc])
            nl = len(lw)
            target = min(total, (endidx.get(s + 1, 0) if s + 1 < 16 else total) + opt.ahead) if s < 15 else total
            while target > issued and stream[target - issued - 1][2] > s: target -= 1
            start = issued
            must = sum(1 for it in stream if it[3] <= s)
            gap = 0
            for t in range(2):
                n = 2 * s + t
                rd = reads(n); nrd = len(rd)
                for k in range(16):
                    if n > 0: mfma(n - 1, k)
                    span = 16 if t == 0 else opt.rspan
                    while rd and nrd - len(rd) < ((k + 1) * nrd + span - 1) // span: a.lds(*rd.pop(0))
                    gap += 1
                    clock += 1
                    did = False
                    if opt.oldp:
                        while issued - start < min(must, (gap * must + 29) // 32):
                            issue(); did = True
                    else:
                        if stream and stream[0][2] <= s and outstanding() < opt.qopp:
                            issue(); did = True
                        while target - issued > 32 - gap:
                            issue(); did = True
                    while lw and nl - len(lw) < (gap * nl) // 26: lw.pop(0)(); did = True
                    if fill and not did:
                        for _ in range(3 if n == 0 else 1):
                            if fill: a(fill.pop(0))
            assert not lw
            if opt.verbose: print(f"class {lam} stage {s}: {issued - start} dma clock {clock:.0f}", file=sys.stderr)
        assert not stream
        assert not fill
        st_ = (list(a.vm), list(a.lg), cur[0])
        if end_state is None: end_state = st_
        assert end_state == st_, (end_state, st_)
        if lam < 3: a("s_branch L_common")
    a.label("L_common")
    a.lg_low = 12
    natt = [opt.natt]
    def ad(lim=16):
        if natt[0] > 0 and lq and avail[lq[0][2]] <= lim:
            natt[0] -= 1
            return dma_wo(*lq.pop(0))
        return 0
    def pad(n):
        while n > 0:
            k = min(n, 8); a(f"s_nop {k-1}"); n -= k
    assert "nonce" not in a.vm
    def cvt4(dst, u, nt):
        for hh in range(2):
            t = ACC + 8*(2*u+hh) + 4*nt
            a(f"v_cvt_pk_bf16_f32 v{dst+2*hh}, v{t}, v{t+1}")
            a(f"v_cvt_pk_bf16_f32 v{dst+2*hh+1}, v{t+2}, v{t+3}")
    qp = lambda u, nt: QP + 8*u + 4*nt
    CS = 128 ** -0.5 * 1.4426950408889634
    if opt.att2:
        import hazcheck
        def cvl(u, nt, hh):
            t = ACC + 8*(2*u+hh) + 4*nt; d = qp(u, nt) + 2*hh
            return [f"v_cvt_pk_bf16_f32 v{d}, v{t}, v{t+1}", f"v_cvt_pk_bf16_f32 v{d+1}, v{t+2}, v{t+3}"]
        def stream(nt):
            L = []
            m, m2 = 240 + 2*nt, 241 + 2*nt
            b = SS + 8*nt
            for u in range(4):
                for hh in range(2): L += cvl(u, nt, hh)
            for u in range(4):
                for kt in range(2):
                    d = vr(b + 4*kt, 4)
                    L.append(f"{M16} {d}, {vr(KF+16*kt+4*u,4)}, {vr(qp(u,nt),4)}, {'0' if u == 0 else d}")
            def xr(op):
                return [f"v_mov_b32 v{m2}, v{m}", f"v_permlane32_swap_b32 v{m}, v{m2}", f"{op} v{m}, v{m}, v{m2}",
                        f"v_mov_b32 v{m2}, v{m}", f"v_permlane16_swap_b32 v{m}, v{m2}", f"{op} v{m}, v{m}, v{m2}"]
            if opt.rr:
                def rnd():
                    R = [f"v_cvt_pk_bf16_f32 v{b+2*p+1}, v{b+2*p}, v{b+2*p+1}" for p in range(4)]
                    for p in range(4):
                        R += [f"v_lshlrev_b32 v{b+2*p}, 16, v{b+2*p+1}", f"v_and_b32 v{b+2*p+1}, 0xffff0000, v{b+2*p+1}"]
                    return R
                L += rnd() + [f"v_mul_f32 v{b+k}, s{T+3}, v{b+k}" for k in range(8)] + rnd()
            L += [f"v_max3_f32 v{m}, v{b}, v{b+1}, v{b+2}", f"v_max3_f32 v{m2}, v{b+3}, v{b+4}, v{b+5}",
                  f"v_max3_f32 v{m}, v{m}, v{b+6}, v{b+7}", f"v_max_f32 v{m}, v{m}, v{m2}"] + xr("v_max_f32")
            L.append(f"v_mul_f32 v{m}, s{T+2}, v{m}")
            L += [f"v_fma_f32 v{b+k}, v{b+k}, s{T+2}, -v{m}" for k in range(8)]
            L += [f"v_exp_f32 v{b+k}, v{b+k}" for k in range(8)]
            L += [f"v_add_f32 v{m}, v{b}, v{b+1}", f"v_add_f32 v{m2}, v{b+2}, v{b+3}", f"v_add_f32 v{m}, v{m}, v{b+4}", f"v_add_f32 v{m2}, v{m2}, v{b+5}",
                  f"v_add_f32 v{m}, v{m}, v{b+6}", f"v_add_f32 v{m2}, v{m2}, v{b+7}", f"v_add_f32 v{m}, v{m}, v{m2}"] + xr("v_add_f32")
            L.append(f"v_rcp_f32 v{m}, v{m}")
            L += [f"v_mul_f32 v{b+k}, v{b+k}, v{m}" for k in range(8)]
            L += [f"v_cvt_pk_bf16_f32 v{PP+4*nt+p}, v{b+2*p}, v{b+2*p+1}" for p in range(4)]
            L += [f"{M16} {vr(ACC+8*i+4*nt,4)}, {vr(VF+4*i,4)}, {vr(PP+4*nt,4)}, 0" for i in range(8)]
            for u in range(4):
                blk = 2*u + nt
                L += cvl(u, nt, 0) + cvl(u, nt, 1)
                L.append(f"buffer_store_dwordx4 {vr(qp(u,nt),4)}, v{VL16}, {srd(SWS)}, s{S_OW[blk>>2]} offen offset:{(blk&3)*1024} sc1")
            return L
        A_, B_ = stream(0), stream(1)
        for kk, k in enumerate([0, 2, 4, 6, 8, 10, 12, 14, 1, 3, 5, 7, 9, 11, 13, 15]):
            mfma(31, k)
            if kk == 0: a(f"v_readfirstlane_b32 s{S_NONCE}, v{VNON}")
            if kk == 1: a(f"s_mov_b32 s{T+2}, {f32(1.4426950408889634 if opt.rr else CS)}")
            if kk == 2 and opt.rr: a(f"s_mov_b32 s{T+3}, {f32(128 ** -0.5)}")
            if kk >= 8:
                a(A_.pop(0)); a(A_.pop(0))
        if a.lg: a.wait_lg_all()
        stamp(a, 17, opt)
        a.c("---- attention")
        def okay(ins):
            win = [x for x in (hazcheck.parse(l) for l in a.L[-30:]) if x] + [hazcheck.parse(ins)]
            p = win[-2]
            if getattr(p, 'perm', False) and p.w & win[-1].r: return False
            return not [e for e in hazcheck.check(win) if e[4] == win[-1].txt and e[3] != e[4] or (e[4] == win[-1].txt)]
        now = 0; pipe = 0; spipe = 0
        def emit(L):
            nonlocal now, pipe, spipe
            ins = L.pop(0)
            if ins.startswith("buffer_store"): a.vmem(ins, "o"); now = max(now, spipe - opt.sq) + 16; spipe = max(spipe, now) + opt.scost
            elif ins.startswith("v_mfma"):
                a(ins); now = max(now, pipe); pipe = now + 16; now += 8
            else:
                a(ins); now += 8 if ins.startswith(("v_exp", "v_rcp")) else 4
        ism = lambda L: L[0].startswith("v_mfma")
        while A_ or B_:
            ca = bool(A_) and okay(A_[0]); cb = bool(B_) and okay(B_[0])
            if ca and B_ and A_[0].startswith("buffer_store") and spipe - opt.sq > now and not B_[0].startswith("buffer_store"): ca = False
            if A_ and not ca and cb and ism(B_) and pipe > now: cb = False
            if ca and cb:
                if ism(A_) and not ism(B_) and pipe > now: emit(B_)
                elif ism(B_) and not ism(A_) and pipe <= now: emit(B_)
                else: emit(A_)
            elif ca: emit(A_)
            elif cb: emit(B_)
            else:
                a("s_nop 0"); now += 4
    else:
        for k in range(16):
            mfma(31, k)
            if k == 0: a(f"v_readfirstlane_b32 s{S_NONCE}, v{VNON}")
            if k == 1: a(f"s_mov_b32 s{T+2}, {f32(CS)}")
            if k in (2, 6): ad(15)
            if k == 11: cvt4(qp(0,0), 0, 0)
            if k == 13: cvt4(qp(0,1), 0, 1)
            if k == 15: cvt4(qp(1,0), 1, 0)
        if a.lg: a.wait_lg_all()
        stamp(a, 17, opt)
        a.c("---- attention")
        cvt4(qp(1,1), 1, 1)
        ss = lambda kt, nt: SS + 8*nt + 4*kt
        def smf(u, kt, nt):
            d = vr(ss(kt, nt), 4)
            a(f"{M16} {d}, {vr(KF+16*kt+4*u,4)}, {vr(qp(u,nt),4)}, {'0' if u == 0 else d}")
        def cvt2(dst, u, nt, hh):
            t = ACC + 8*(2*u+hh) + 4*nt
            a(f"v_cvt_pk_bf16_f32 v{dst+2*hh}, v{t}, v{t+1}")
            a(f"v_cvt_pk_bf16_f32 v{dst+2*hh+1}, v{t+2}, v{t+3}")
        cv = [(u, nt, hh) for u in (2, 3) for nt in range(2) for hh in range(2)]
        for u in range(4):
            for nt in range(2):
                for kt in range(2):
                    smf(u, kt, nt)
                    if cv:
                        uu, n2, hh = cv.pop(0); cvt2(qp(uu, n2), uu, n2, hh)
                    elif (u, nt, kt) in ((2, 0, 1), (3, 0, 1)): ad()
        pad(8 - 2 - ad())
        for nt in range(2):
            b = SS + 8*nt
            a(f"v_max3_f32 v{240+nt}, v{b}, v{b+1}, v{b+2}")
            a(f"v_max3_f32 v{242+nt}, v{b+3}, v{b+4}, v{b+5}")
            a(f"v_max3_f32 v{240+nt}, v{240+nt}, v{b+6}, v{b+7}")
            a(f"v_max_f32 v{240+nt}, v{240+nt}, v{242+nt}")
        def xred(op):
            pad(2 - ad())
            a("v_permlane32_swap_b32 v240, v241")
            a("s_nop 0")
            a(f"{op} v240, v240, v241")
            a("v_mov_b32 v241, v240")
            a("s_nop 1")
            a("v_permlane16_swap_b32 v240, v241")
            a("s_nop 0")
            a(f"{op} v240, v240, v241")
        xred("v_max_f32")
        a(f"v_mul_f32 v240, s{T+2}, v240")
        a("v_mov_b32 v241, v240")
        a("s_nop 1")
        a("v_permlane32_swap_b32 v240, v241")
        a("s_nop 0")
        for k in range(16):
            a(f"v_fma_f32 v{SS+k}, v{SS+k}, s{T+2}, -v{240+(k>>3)}")
        ad()
        for k in range(16):
            a(f"v_exp_f32 v{SS+k}, v{SS+k}")
            if k == 7: ad()
        for k in range(1, 8):
            for nt in range(2):
                b = SS + 8*nt
                a(f"v_add_f32 v{240+nt}, v{b if k == 1 else 240+nt}, v{b+k}")
        xred("v_add_f32")
        a("v_rcp_f32 v240, v240")
        a("s_nop 0")
        a("v_mov_b32 v241, v240")
        a("s_nop 1")
        a("v_permlane32_swap_b32 v240, v241")
        a("s_nop 0")
        for nt in range(2):
            for k in range(8):
                a(f"v_mul_f32 v{SS+8*nt+k}, v{SS+8*nt+k}, v{240+nt}")
            for p in range(4):
                a(f"v_cvt_pk_bf16_f32 v{PP+4*nt+p}, v{SS+8*nt+2*p}, v{SS+8*nt+2*p+1}")
        def pv(i, nt):
            a(f"{M16} {vr(ACC+8*i+4*nt,4)}, {vr(VF+4*i,4)}, {vr(PP+4*nt,4)}, 0")
        def ost(u, nt):
            blk = 2*u + nt
            a.vmem(f"buffer_store_dwordx4 {vr(qp(u,nt),4)}, v{VL16}, {srd(SWS)}, s{S_OW[blk>>2]} offen offset:{(blk&3)*1024} sc1", "o")
        seq = [(i, nt) for nt in range(2) for i in range(8)]
        ev = [(u, nt, hh) for nt in range(2) for u in range(4) for hh in range(2)]
        for k, (i, nt) in enumerate(seq):
            pv(i, nt)
            if k in (1, 4): ad()
            if k >= 8:
                u, n2, hh = ev.pop(0); cvt2(qp(u, n2), u, n2, hh)
                if hh: ost(u, n2)
        while ev:
            u, n2, hh = ev.pop(0); cvt2(qp(u, n2), u, n2, hh)
            if hh: ost(u, n2)
    stamp(a, 18, opt)
    a("s_barrier")
    VL = 2; VRR = 3; VRW = [8, 9, 10]; VOUT = 11; VZ = 12; VNV = 13; VFL = 14; VFA = 15; VLO = 15
    nfirst = min(len(rest), len(late_slots))
    slot_of = {rest[i]: late_slots[i] for i in range(nfirst)}
    for _ in range(opt.pre_flag):
        if lq: dma_wo(*lq.pop(0))
    a(f"s_cmp_lg_u32 s{S_NONCE}, 0")
    a("s_cbranch_scc1 L_havenonce")
    a(f"s_mov_b32 s{S_CNT}, 0")
    a("v_mov_b32 v240, 0")
    a.label("L_nonce_spin")
    a(f"buffer_load_dword v{VNON}, v240, {srd(SDBG)}, 0 offen sc1")
    a("s_waitcnt vmcnt(0)")
    a(f"v_readfirstlane_b32 s{S_NONCE}, v{VNON}")
    a(f"s_add_u32 s{S_CNT}, s{S_CNT}, 1")
    a(f"s_cmp_gt_u32 s{S_CNT}, {SPIN_MAX}")
    a("s_cbranch_scc1 L_havenonce")
    a(f"s_cmp_eq_u32 s{S_NONCE}, 0")
    a("s_cbranch_scc1 L_nonce_spin")
    a.label("L_havenonce")
    a(f"v_mov_b32 v{VL}, v{VL16}")
    for sl in range(1, 4):
        a(f"s_add_u32 s{T}, s{S_W}, {sl}")
        a(f"s_and_b32 s{T}, s{T}, 3")
        a(f"s_mul_i32 s{T}, s{T}, 12288")
        a(f"s_add_u32 s{T}, s{T}, {(sl-1)*4096}")
        a(f"v_add_u32 v{VRW[sl-1]}, s{T}, v{VL16}")
    a(f"s_mul_i32 s{T}, s{S_W}, 12288")
    a(f"v_add_u32 v{VRR}, s{T}, v{VL16}")
    if opt.fl4:
        a(f"v_lshrrev_b32 v{VZ}, 3, v0")
        a(f"v_lshlrev_b32 v{VZ}, 25, v{VZ}")
        a(f"v_lshl_add_u32 v{VZ}, v0, 4, v{VZ}")
        for e in range(4): a(f"v_mov_b32 v{236+e}, s{S_NONCE}")
    else:
        a(f"v_lshrrev_b32 v{VZ}, 5, v0")
        a(f"v_lshlrev_b32 v{VZ}, 25, v{VZ}")
        a(f"v_lshl_add_u32 v{VZ}, v0, 2, v{VZ}")
    a(f"v_mov_b32 v{VNV}, s{S_NONCE}")
    a(f"v_and_b32 v{VFA}, 7, v0")
    a(f"v_lshlrev_b32 v{VFA}, 7, v{VFA}")
    a(f"v_and_b32 v{VOUT}, 31, v0")
    a(f"v_lshlrev_b32 v{VOUT}, 12, v{VOUT}")
    a(f"v_lshrrev_b32 v240, 5, v0")
    a(f"v_lshl_add_u32 v{VOUT}, v240, 4, v{VOUT}")
    a(f"v_and_b32 v241, 15, v0")
    a(f"v_lshlrev_b32 v241, 4, v241")
    a(f"v_lshl_add_u32 v241, v240, 8, v241")
    a(f"v_bfe_u32 v240, v0, 4, 1")
    a(f"v_lshl_add_u32 v241, v240, 10, v241")
    ri = nfirst
    resident = list(w_early)
    free_slots = []
    def issued_fully(pos): return pos in slot_of and not any(q[0] == pos for q in lq)
    def assign_more():
        nonlocal ri
        while ri < len(rest) and free_slots:
            sl = free_slots.pop(0); slot_of[rest[ri]] = sl
            for j in range(4): lq.append((rest[ri], j, sl))
            ri += 1
    def tr_piece(pos):
        for g in tr_wo_items(pos, slot_of[pos]): g()
        resident.append(pos); free_slots.append(slot_of[pos])
    todo = list(rest)
    while todo and issued_fully(todo[0]) and a._cnt(a.vm, ("wo", todo[0])) < a.vm.index("o"):
        tr_piece(todo.pop(0))
    if a.lg: a.wait_lg_all()
    assign_more()
    a.wait_vm("o")
    if opt.fl4: a.vmem(f"buffer_store_dwordx4 v[236:239], v{VZ}, {srd(SWS)}, s{S_FOW} offen sc1", "flag")
    else: a.vmem(f"buffer_store_dword v{VNV}, v{VZ}, {srd(SWS)}, s{S_FOW} offen sc1", "flag")
    stamp(a, 19, opt)
    if opt.diag:
        a.wait_vm_all(); stamp(a, 32, opt)
        a(f"s_mov_b32 s{S_CNT}, 0")
        a.label("L_dp")
        a(f"buffer_load_dword v{VFL}, v{VFA}, {srd(SWS)}, s{S_FOR} offen sc1")
        a("s_waitcnt vmcnt(0)")
        a(f"v_cmp_ne_u32 vcc, s{S_NONCE}, v{VFL}")
        a(f"s_add_u32 s{S_CNT}, s{S_CNT}, 1")
        a(f"s_cmp_gt_u32 s{S_CNT}, {SPIN_MAX}")
        a(f"s_cbranch_scc1 L_dpd")
        a("s_nop 1")
        a(f"s_cbranch_vccnz L_dp")
        a.label("L_dpd")
        stamp(a, 33, opt)
        for k in range(5):
            for _ in range(8):
                if lq: dma_wo(*lq.pop(0))
            a("s_waitcnt vmcnt(0)")
            stamp(a, 34 + k, opt)
    if opt.pipe:
        nis = 0; polled = False
        def inflight(): return sum(1 for p in todo if issued_fully(p))
        while lq or ri < len(rest):
            if lq and inflight() < opt.pipe:
                for _ in range(4): dma_wo(*lq.pop(0))
                nis += 1
                if nis == opt.poll_at:
                    a.vmem(f"buffer_load_dword v{VFL}, v{VFA}, {srd(SWS)}, s{S_FOR} offen sc1", "poll"); polled = True
            else:
                tr_piece(todo.pop(0))
                if ri < len(rest) and len(lq) <= 4:
                    a.wait_lg_all(); assign_more()
        if not polled: a.vmem(f"buffer_load_dword v{VFL}, v{VFA}, {srd(SWS)}, s{S_FOR} offen sc1", "poll")
    else:
        for _ in range(opt.pre_poll):
            if lq: dma_wo(*lq.pop(0))
        a.vmem(f"buffer_load_dword v{VFL}, v{VFA}, {srd(SWS)}, s{S_FOR} offen sc1", "poll")
        for _ in range(opt.post_poll):
            if lq: dma_wo(*lq.pop(0))
        while todo and issued_fully(todo[0]) and a._cnt(a.vm, ("wo", todo[0])) < a.vm.index("poll"):
            tr_piece(todo.pop(0))
        if a.lg: a.wait_lg_all()
        assign_more()
    S_OS = S_QW
    def obase(n):
        a(f"s_lshl_b32 s{T+2}, s{S_Q[n]}, 18")
        a(f"s_add_u32 s{T+2}, s{T+2}, s{S_OB}")
        for jg in range(4): a(f"s_add_u32 s{S_OS[jg]}, s{T+2}, s{S_OG[jg]}")
    obase(0)
    stamp(a, 20, opt)
    a(f"s_mov_b32 s{S_CNT}, 0")
    a.wait_vm("poll")
    a.label("L_pollo")
    a(f"v_cmp_ne_u32 vcc, s{S_NONCE}, v{VFL}")
    a(f"s_add_u32 s{S_CNT}, s{S_CNT}, 1")
    a(f"s_cmp_gt_u32 s{S_CNT}, {SPIN_MAX}")
    a(f"s_cbranch_scc1 L_pollo_done")
    a("s_nop 1")
    a(f"s_cbranch_vccz L_pollo_done")
    a(f"buffer_load_dword v{VFL}, v{VFA}, {srd(SWS)}, s{S_FOR} offen sc1")
    a("s_waitcnt vmcnt(0)")
    a("s_branch L_pollo")
    a.label("L_pollo_done")
    if opt.stamps: a(f"v_writelane_b32 v{VSTAMP}, s{S_CNT}, 62")
    stamp(a, 21, opt)
    assert ri == len(rest)
    AC = 16; TMP = 80; OF = [128, 192]
    def load_o(n, f):
        a.vmem(f"buffer_load_dwordx4 {vr(OF[n&1]+4*f,4)}, v{VLO}, {srd(SWS)}, s{S_OS[f>>2]} offen offset:{((f&3)>>1)*2048 + (f&1)*512} sc1", ("o", n, f))
    a(f"v_mov_b32 v{VLO}, v241")
    korder0 = resident + todo
    assert sorted(korder0) == list(range(16))
    INIT = opt.init_o
    for f in korder0[:INIT]: load_o(0, f)
    while todo and issued_fully(todo[0]): tr_piece(todo.pop(0))
    NG = opt.fmt
    assert NG == 2
    PT = OF[0]; PK = TMP + 16; PU = PT + 40; PS = PT + 44; S_HSEL = S_HX
    S_SEL = [S_QX[0], S_QX[1]]; S_ZSEL = S_QX[2]; S_M3 = S_QX[3]; S_MSK = S_HW
    VBAD, VPL = 12, 14
    VTG = [4, 5, 6, 7]
    dslot = [0, 1, 2, 4, 5, 6, 8, 9] if NG == 3 else list(range(8))
    PL = 131072
    def wr(n, sl, j):
        a.lds(f"ds_write_b128 v{VRW[sl-1]}, {vr(AC+16*sl+4*j,4)} offset:{(n&1)*49152 + j*1024}", "rw")
    def rd(n, k):
        a.lds(f"ds_read_b128 {vr(TMP+4*k,4)}, v{VRR} offset:{(n&1)*49152 + k*1024}", ("rr", k))
    def presum(src, j):
        a.wait_lg([("rr", j), ("rr", 4*src+j)])
        for e in range(4): a(f"v_add_f32 v{TMP+4*j+e}, v{TMP+4*j+e}, v{TMP+16*src+4*j+e}")
    def fin(j):
        for e in range(4): a(f"v_add_f32 v{TMP+4*j+e}, v{TMP+4*j+e}, v{AC+4*j+e}")
    def pack_items(gr):
        if NG == 3:
            def g():
                for p in range(3*gr, min(3*gr+3, 8)):
                    a(f"v_cvt_pk_bf16_f32 v{PK+dslot[p]}, v{TMP+2*p}, v{TMP+2*p+1}")
                a(f"v_mov_b32 v{PK+4*gr+3}, s{S_NONCE}")
                if gr == 2: a(f"v_mov_b32 v{PK+10}, s{S_NONCE}")
            return [g]
        def g1():
            for p in range(4*gr, 4*gr+4): a(f"v_perm_b32 v{PK+p}, v{TMP+2*p+1}, v{TMP+2*p}, s{S_HSEL}")
        def g2():
            for p in range(4*gr, 4*gr+4): a(f"v_bfi_b32 v{PK+p}, s{S_MSK}, v{VTG[p&3]}, v{PK+p}")
        return [g1, g2]
    def pst(n, j):
        if j == 0:
            a(f"s_lshl_b32 s{T+3}, s{S_Q[n]}, 15")
            a(f"s_add_u32 s{T+3}, s{T+3}, s{S_PB}")
        a.vmem(f"buffer_store_dwordx4 {vr(PK+4*j,4)}, v{VL}, {srd(SWS)}, s{T+3} offen offset:{j*1024} sc1", ("p", n))
    def pld(k, j, track=True):
        if j == 0:
            a(f"s_lshl_b32 s{T+4}, s{S_Q[k]}, 13")
            a(f"s_add_u32 s{T+4}, s{T+4}, s{S_PR}")
        ins = f"buffer_load_dwordx4 {vr(PT+12*k+4*j,4)}, v{VL}, {srd(SWS)}, s{T+4} offen offset:{j*1024} sc1"
        if track: a.vmem(ins, ("pp", k))
        else: a(ins)
    def chk_items(k):
        b = PT + 12*k
        if NG == 3:
            def g():
                a(f"v_xor_b32 v{VBAD}, s{S_NONCE}, v{b+3}")
                a(f"v_bitop3_b32 v{VBAD}, v{VBAD}, v{b+7}, s{S_NONCE} bitop3:0xf6")
                a(f"v_bitop3_b32 v{VBAD}, v{VBAD}, v{b+11}, s{S_NONCE} bitop3:0xf6")
                a(f"v_cmp_ne_u32 vcc, 0, v{VBAD}")
            return [g]
        def g1():
            a(f"v_xor_b32 v{VBAD}, v{VTG[0]}, v{b}")
            for p in range(1, 5): a(f"v_bitop3_b32 v{VBAD}, v{VBAD}, v{b+p}, v{VTG[p&3]} bitop3:0xf6")
        def g2():
            for p in range(5, 8): a(f"v_bitop3_b32 v{VBAD}, v{VBAD}, v{b+p}, v{VTG[p&3]} bitop3:0xf6")
            a(f"v_and_b32 v{VBAD}, s{S_MSK}, v{VBAD}")
            a(f"v_cmp_ne_u32 vcc, 0, v{VBAD}")
        return [g1, g2]
    def mid_items(k):
        if NG == 3: return []
        def g(h):
            for p in range(4*h, 4*h+4): a(f"v_or_b32 v{PT+12*k+p}, s{S_MSK}, v{PT+12*k+p}")
        return [lambda: g(0), lambda: g(1)]
    def sel(k):
        a("s_cmp_eq_u64 vcc, 0")
        a(f"s_cselect_b32 s{S_SEL[0]}, 0x01000c0c, s{S_ZSEL}")
        a(f"s_cselect_b32 s{S_SEL[1]}, 0x03020c0c, s{S_ZSEL}")
        a(f"s_cselect_b32 s{T+5}, {1<<k}, 0")
        a(f"s_or_b32 s{S_DONE}, s{S_DONE}, s{T+5}")
    def unp_set(k, p2):
        for p in (2*p2, 2*p2+1):
            for h in range(2):
                d = PT + 12*k + dslot[p]
                a(f"v_perm_b32 v{PS+2*p+h}, v{d}, v{d}, s{S_SEL[h]}")
    def unp_add(k, p, dst):
        d = PT + 12*k + dslot[p]
        for h in range(2): a(f"v_perm_b32 v{PU+h}, v{d}, v{d}, s{S_SEL[h]}")
        for h in range(2): a(f"v_add_f32 v{dst+2*p+h}, v{dst+2*p+h}, v{PU+h}")
    def bar():
        if a.lg: a.wait_lg_all()
        a("s_barrier")
    def consts():
        a(f"s_mov_b32 s{S_ZSEL}, 0x0c0c0c0c")
        a(f"s_mov_b32 s{S_DONE}, 0")
        a(f"s_add_u32 s{S_M3}, s{S_MK}, {PL}")
        a(f"v_add_u32 v{VPL}, s{S_M3}, v{VL}")
        a(f"s_mov_b32 s{S_MSK}, 0x00010001")
        a(f"s_mov_b32 s{S_HSEL}, 0x07060302")
    def tags(h):
        if h == 0:
            a(f"v_and_b32 v{VTG[0]}, 3, v0")
            a(f"v_lshlrev_b32 v{VTG[0]}, 2, v{VTG[0]}")
            a(f"v_lshrrev_b32 v{VTG[0]}, v{VTG[0]}, v{VNV}")
        else:
            for p in range(1, 4): a(f"v_lshrrev_b32 v{VTG[p]}, {p}, v{VTG[0]}")
    consts()
    carry = []
    ro = [0, 4, 8, 1, 5, 9, 2, 6, 10, 3, 7, 11]
    ps = [(src, j) for j in range(4) for src in (1, 2)]
    packs = lambda: [g for gr in range(NG) for g in pack_items(gr)]
    for n in range(4):
        a.c(f"---- strip {n}")
        allres = not todo and not lq if n == 0 else allres
        if n == 0 and allres: seq = [(ks, sl) for ks in korder0 for sl in (1, 2)] + [(ks, sl) for sl in (3, 0) for ks in korder0]
        elif n == 0: seq = [(ks, sl) for ks in korder0 for sl in (1, 2, 3)] + [(ks, 0) for ks in korder0]
        elif n == 1: seq = [(ks, sl) for ks in range(16) for sl in (1, 2)] + [(ks, sl) for sl in (3, 0) for ks in range(16)]
        else: seq = [(ks, sl) for sl in (1, 2, 3, 0) for ks in range(16)]
        at = {}
        def put(g, fn): at.setdefault(g, []).append(fn)
        for g, fn in carry: put(g, fn)
        carry = []
        if n == 0:
            mq = []
            of = korder0[INIT:]
            wl = list(lq); lq.clear()
            while of or wl:
                for _ in range(opt.mq_w):
                    if wl: mq.append(lambda w=wl.pop(0): dma_wo(*w))
                if of: mq.append(lambda f=of.pop(0): load_o(0, f))
            g = 0
            for fn in mq:
                put(g // opt.mq_den, fn); g += opt.mq_num
            gq = g // opt.mq_den + 1
            for i, pos in enumerate(korder0):
                if pos in todo:
                    its = tr_wo_items(pos, slot_of[pos])
                    for k2, fn in enumerate(its): put(3 * i - 4 + (k2 >> 1), fn)
            if todo: gq = max(gq, 20)
            def place(g, fn):
                if g < 64: put(g, fn)
                else: carry.append((g - 64, fn))
            g = gq - 1
            place(g, lambda: obase(1)); g += 1
            for f in range(16): place(g, lambda f=f: load_o(1, f)); g += 2
            g = max(g, 65)
            g += (g & 1) ^ 1
            place(g, lambda: obase(2)); g += 1
            for f in range(16): place(g, lambda f=f: load_o(2, f)); g += 2
            place(g - 1, lambda: obase(3))
            gend = g - 64
            g = 1
            if allres:
                put(32, bar)
                put(33, lambda: tags(0) or a("s_nop 0"))
                put(34, lambda: tags(1))
                for i, (sl, j) in enumerate([(sl, j) for sl in (1, 2) for j in range(4)]): put(36 + i + (i >> 1), lambda sl=sl, j=j: wr(n, sl, j))
                put(48, lambda: a("s_nop 3"))
                put(49, lambda: a("s_nop 4"))
                for j in range(4): put(50 + 2 * j, lambda j=j: wr(n, 3, j))
                put(58, bar)
                for i in range(6): put(58 + i, lambda i=i: (rd(0, ro[2*i]), rd(0, ro[2*i+1])))
            else:
                put(47, bar)
                put(48, lambda: tags(0) or a("s_nop 0"))
                put(49, lambda: tags(1))
                for i, (sl, j) in enumerate([(sl, j) for sl in (1, 2) for j in range(4)]): put(50 + i + (i >> 1), lambda sl=sl, j=j: wr(n, sl, j))
                put(62, lambda: wr(0, 3, 0))
                put(63, lambda: a.wait_lg_all())
                for j in range(1, 4): carry.append((2 * j - 1, lambda j=j: wr(0, 3, j)))
                carry.append((7, bar))
                g = 7
                for i in range(6):
                    carry.append((g, lambda i=i: (rd(0, ro[2*i]), rd(0, ro[2*i+1])))); g += 1
            work = [lambda i=i: presum(*ps[i]) for i in range(8)] + [lambda j=j: fin(j) for j in range(4)] + packs()
            for fn in work: carry.append((g, fn)); g += 2
            assert g <= 47
            gs = max(gend, g)
            assert gs + NG <= 58, gs
            for j in range(NG): carry.append((gs + j, lambda j=j: pst(0, j)))
            left = []
        else:
            fast = n >= 2
            if n == 1:
                for i, (sl, j) in enumerate([(sl, j) for sl in (1, 2) for j in range(4)]): put(36 + i + (i >> 1), lambda sl=sl, j=j: wr(n, sl, j))
            else:
                if n == 2:
                    for f in range(16): put(opt.g_o3 + 2 * f, lambda f=f: load_o(3, f))
                    def pdma(j):
                        if j == 0:
                            a(f"s_lshl_b32 s{T+4}, s{S_Q[2]}, 13")
                            a(f"s_mov_b32 m0, s{S_M3}")
                            a(f"s_add_u32 s{T+4}, s{T+4}, s{S_PR}")
                        a.vmem(f"buffer_load_dwordx4 v{VL}, {srd(SWS)}, s{T+4} offen offset:{j*1024} sc1 lds", "pdma")
                    for j in range(NG): put(opt.g_p2 + 2 * j, lambda j=j: pdma(j))
                    if opt.g_ot >= 0:
                        assert opt.g_ot < opt.g_p2
                        put(opt.g_ot, lambda: a.vmem(f"buffer_load_dword v{VBAD}, v{VOUT}, {srd(SOUT)}, s{S_OUTB} offen", "otouch"))
                for j in range(4): put(32 + 2 * j, lambda j=j: wr(n, 1, j))
                for j in range(4): put(41 + 2 * j, lambda j=j: wr(n, 2, j))
            put(48, lambda: a("s_nop 3"))
            put(49, lambda: a("s_nop 4" if n == 1 else "s_nop 3"))
            if fast:
                for j in range(4): put(50 + j, lambda j=j: wr(n, 3, j))
                gb = 55
            else:
                for j in range(4): put(50 + 2 * j, lambda j=j: wr(n, 3, j))
                gb = 58
            put(gb, bar)
            for i in range(6):
                put(gb + i, lambda i=i: (rd(n, ro[2*i]), rd(n, ro[2*i+1])))
            npre_s = 63 - (gb + 5)
            for i in range(npre_s): put(gb + 6 + i, lambda i=i: presum(*ps[i]))
            left = [lambda i=i: presum(*ps[i]) for i in range(npre_s, 8)]
            if n == 1:
                g = 1
                for fn in left + [lambda j=j: fin(j) for j in range(4)] + packs(): carry.append((g, fn)); g += 2
                assert opt.g_s1 >= g - 2, g
                for j in range(NG): carry.append((opt.g_s1 + 2 * j, lambda j=j: pst(1, j)))
            if n == 2:
                if opt.dense:
                    rem = list(range(npre_s, 8))
                    pre = lambda js: [(lambda i=i: presum(*ps[i])) for i in rem if ps[i][1] in js]
                    its = pre((0, 1)) + pre((2,)) + [lambda: fin(0), lambda: fin(1)] + pack_items(0) + ["s0"] + pre((3,)) + [lambda: fin(2), lambda: fin(3)] + pack_items(1) + ["s1"]
                    h = 0
                    for it in its:
                        if isinstance(it, str):
                            carry.append((h // 3, lambda j=int(it[1]): pst(2, j))); h += 2
                        else:
                            carry.append((h // 3, it)); h += opt.dense
                    g = h // 3 + 1
                else:
                    g = NG if opt.g_p1 == 0 else 0
                    for fn in left + [lambda j=j: fin(j) for j in range(4)]: carry.append((g, fn)); g += 1
                    for j in range(NG):
                        for fn in pack_items(j): carry.append((g, fn)); g += 1
                        carry.append((g, lambda j=j: pst(2, j))); g += 1
                gfree = g
            if n == 3:
                for j in range(NG): put(opt.g_p1 + j, lambda j=j: pld(1, j))
                def prd():
                    a.wait_vm("pdma")
                    for j in range(NG):
                        a.lds(f"ds_read_b128 {vr(PT+24+4*j,4)}, v{VPL} offset:{j*1024}", "prd")
                g = gfree
                put(g - 3, prd)
                put(g, lambda: a.wait_lg("prd"))
                for fn in chk_items(2): put(g, fn); g += 1
                put(g, lambda: sel(2)); g += 1
                for fn in mid_items(2): put(g, fn); g += 1
                for p2 in range(4): put(g, lambda p2=p2: unp_set(2, p2)); g += 1
                g = max(g, opt.g_c1)
                put(g, lambda: a.wait_vm(("pp", 1)))
                for fn in chk_items(1): put(g, fn); g += 1
                put(g, lambda: sel(1)); g += 1
                for fn in mid_items(1) + [lambda p=p: unp_add(1, p, PS) for p in range(8)]:
                    while g in (32, 34, 36, 38, 41, 43, 45, 47) or 50 <= g <= 53: g += 1
                    put(g, fn); g += 1
                assert g <= 56, g
                for j in range(NG): put(opt.g_p0 + j, lambda j=j: pld(0, j))
        seen = set()
        if n >= 2: a.wait_vm(("o", n, 15))
        for g, (ks, sl) in enumerate(seq):
            if ks not in seen:
                a.wait_vm(("o", n, ks)); seen.add(ks)
                if n == 0: a.wait_lg(("wo", ks))
            first = (ks == korder0[0]) if n == 0 else (ks == 0)
            c = "0" if first else vr(AC+16*sl, 16)
            if opt.fakeB:
                q = 8 * (g & 1)
                k2 = (ks ^ 1) if (ks ^ 1) in seen else ks
                d0, d1 = vr(AC+16*sl+q, 4), vr(AC+16*sl+q+4, 4)
                z = g % 16 < 2 and n > 0 and False
                a(f"{M16} {d0}, {ar(16*ks+4*sl,4)}, {vr(OF[n&1]+4*ks,4)}, {'0' if first else d0}")
                p0 = len(a.L)
                for fn in at.get(g, []): fn()
                mid = p0 + (len(a.L) - p0) // 2
                a.L.insert(mid, f"    {M16} {d1}, {ar(16*ks+4*sl,4)}, {vr(OF[n&1]+4*k2,4)}, {'0' if first else d1}")
            else:
                a(f"{MF} {vr(AC+16*sl,16)}, {ar(16*ks+4*sl,4)}, {vr(OF[n&1]+4*ks,4)}, {c}")
                for fn in at.get(g, []): fn()
            if n == opt.sst and g % 8 == 7 and g < 63: stamp(a, 32 + g // 8, opt)
        stamp(a, 22 + n, opt)
    for fn in left: fn()
    for j in range(4): fin(j)
    if opt.lean:
        a(f"s_mov_b32 s{S_SEL[0]}, 0x00010000")
        a(f"v_mov_b32 v{AC+48}, 0xffff0000")
    else:
        a(f"s_mov_b32 s{S_SEL[0]}, 0x01000c0c")
        a(f"s_mov_b32 s{S_SEL[1]}, 0x03020c0c")
    if opt.outtr == 2:
        a(f"v_and_b32 v{PU+2}, 31, v0")
        a(f"v_mul_u32_u24 v{PU+2}, 272, v{PU+2}")
        a(f"v_lshrrev_b32 v{PU+3}, 5, v0")
        a(f"v_lshl_add_u32 v{PU+2}, v{PU+3}, 4, v{PU+2}")
        a(f"s_lshl_b32 s{T+6}, s{S_W}, 6")
        a(f"s_add_u32 s{T+7}, s{T+6}, 98304")
        a(f"v_add_u32 v{PU+2}, s{T+7}, v{PU+2}")
        a(f"v_lshrrev_b32 v{PU}, 4, v0")
        a(f"v_and_b32 v{PU+1}, 15, v0")
        a(f"v_lshlrev_b32 v{PU+1}, 4, v{PU+1}")
        a(f"v_lshl_add_u32 v{PU+3}, v{PU}, 12, v{PU+1}")
        a(f"v_mul_u32_u24 v{VPL}, 272, v{PU}")
        a(f"v_add_u32 v{VPL}, v{VPL}, v{PU+1}")
        a(f"s_mul_i32 s{T+7}, s{S_W}, {8*272}")
        a(f"s_add_u32 s{T+7}, s{T+7}, 98304")
        a(f"v_add_u32 v{VPL}, s{T+7}, v{VPL}")
        a(f"s_sub_u32 s{T+6}, s{S_OUTB}, s{T+6}")
        a(f"s_lshl_b32 s{T+7}, s{S_W}, 15")
        a(f"s_add_u32 s{T+6}, s{T+6}, s{T+7}")
        a(f"s_add_u32 s{T+7}, s{T+6}, 16384")
    elif opt.outtr:
        a(f"v_and_b32 v{PU+2}, 31, v0")
        a(f"v_lshlrev_b32 v{PU+2}, 6, v{PU+2}")
        a(f"v_lshrrev_b32 v{PU+3}, 5, v0")
        a(f"v_lshl_add_u32 v{PU+2}, v{PU+3}, 4, v{PU+2}")
        a(f"v_add_u32 v{PU+2}, s{S_M3}, v{PU+2}")
        a(f"v_lshrrev_b32 v{PU+3}, 2, v0")
        a(f"v_lshlrev_b32 v{PU+3}, 12, v{PU+3}")
        a(f"v_and_b32 v{PU}, 3, v0")
        a(f"v_lshl_add_u32 v{PU+3}, v{PU}, 4, v{PU+3}")
        a(f"s_add_u32 s{T+6}, s{S_OUTB}, 65536")
    stamp(a, 26, opt)
    a(f"s_mov_b32 s{S_CNT}, 0")
    for k in (0, 1, 2):
        if k:
            a(f"s_bitcmp1_b32 s{S_DONE}, {k}")
            a(f"s_cbranch_scc1 L_skip{k}")
            a(f"s_branch L_rel{k}")
        else:
            a.wait_vm(("pp", 0))
        a.label(f"L_chk{k}")
        for fn in chk_items(k): fn()
        a(f"s_add_u32 s{S_CNT}, s{S_CNT}, 1")
        a(f"s_cmp_gt_u32 s{S_CNT}, {SPIN_MAX}")
        a(f"s_cbranch_scc1 L_ok{k}")
        a("s_nop 1")
        a(f"s_cbranch_vccz L_ok{k}")
        a.label(f"L_rel{k}")
        for j in range(NG): pld(k, j, track=False)
        a("s_waitcnt vmcnt(0)")
        a(f"s_branch L_chk{k}")
        a.label(f"L_ok{k}")
        if opt.lean:
            for p in range(8):
                d = PT + 12*k + p; t = AC + 32 + 2*p
                a(f"v_lshl_or_b32 v{t}, v{d}, 16, s{S_SEL[0]}")
                a(f"v_and_or_b32 v{t+1}, v{d}, v{AC+48}, s{S_SEL[0]}")
            for p in range(8): a(f"v_pk_add_f32 {vr(PS+2*p,2)}, {vr(PS+2*p,2)}, {vr(AC+32+2*p,2)}")
        else:
            for fn in mid_items(k): fn()
            for p in range(8): unp_add(k, p, PS)
        a.label(f"L_skip{k}")
    if opt.lean:
        for p in range(8): a(f"v_pk_add_f32 {vr(TMP+2*p,2)}, {vr(TMP+2*p,2)}, {vr(PS+2*p,2)}")
    else:
        for e in range(16): a(f"v_add_f32 v{TMP+e}, v{TMP+e}, v{PS+e}")
    stamp(a, 27, opt)
    for p in range(8):
        a(f"v_cvt_pk_bf16_f32 v{AC+p}, v{TMP+2*p}, v{TMP+2*p+1}")
    if opt.outtr == 2:
        a(f"ds_write_b128 v{PU+2}, {vr(AC,4)}")
        a(f"ds_write_b128 v{PU+2}, {vr(AC+4,4)} offset:32")
        a("s_waitcnt lgkmcnt(0)")
        a("s_barrier")
        a(f"ds_read_b128 {vr(AC+8,4)}, v{VPL}")
        a(f"ds_read_b128 {vr(AC+12,4)}, v{VPL} offset:{4*272}")
        a("s_waitcnt lgkmcnt(1)")
        a(f"buffer_store_dwordx4 {vr(AC+8,4)}, v{PU+3}, {srd(SOUT)}, s{T+6} offen {opt.outaux}")
        a("s_waitcnt lgkmcnt(0)")
        a(f"buffer_store_dwordx4 {vr(AC+12,4)}, v{PU+3}, {srd(SOUT)}, s{T+7} offen {opt.outaux}")
    elif opt.outtr:
        a(f"ds_write_b128 v{PU+2}, {vr(AC,4)}")
        a(f"ds_write_b128 v{PU+2}, {vr(AC+4,4)} offset:32")
        a("s_waitcnt lgkmcnt(0)")
        a(f"ds_read_b128 {vr(AC+8,4)}, v{VPL}")
        a(f"ds_read_b128 {vr(AC+12,4)}, v{VPL} offset:1024")
        a("s_waitcnt lgkmcnt(1)")
        a(f"buffer_store_dwordx4 {vr(AC+8,4)}, v{PU+3}, {srd(SOUT)}, s{S_OUTB} offen {opt.outaux}")
        a("s_waitcnt lgkmcnt(0)")
        a(f"buffer_store_dwordx4 {vr(AC+12,4)}, v{PU+3}, {srd(SOUT)}, s{T+6} offen {opt.outaux}")
    else:
        a(f"buffer_store_dwordx4 {vr(AC,4)}, v{VOUT}, {srd(SOUT)}, s{S_OUTB} offen")
        a(f"buffer_store_dwordx4 {vr(AC+4,4)}, v{VOUT}, {srd(SOUT)}, s{S_OUTB} offen offset:32")
    if opt.stamps:
        a("s_waitcnt vmcnt(0)")
        stamp(a, 28, opt)
        a(f"v_writelane_b32 v{VSTAMP}, s{S_CNT}, 63")
        dump_stamps(a, opt)
    if opt.amp:
        a("s_waitcnt vmcnt(0)")
        stamp(a, 28, opt)
        a("s_nop 1")
        a(f"v_readlane_b32 s4, v{VSTAMP}, 0")
        a(f"v_readlane_b32 s5, v{VSTAMP}, 1")
        a("s_memrealtime s[30:31]")
        a("s_waitcnt lgkmcnt(0)")
        a("s_sub_u32 s5, s5, s4")
        a("s_min_u32 s5, s5, 10000")
        a("s_lshl_b32 s5, s5, 3")
        a("s_add_u32 s6, s30, s5")
        a.label("L_amp")
        a("s_sleep 1")
        a("s_memrealtime s[30:31]")
        a("s_waitcnt lgkmcnt(0)")
        a("s_sub_u32 s7, s30, s6")
        a("s_cmp_lt_i32 s7, 0")
        a("s_cbranch_scc1 L_amp")
    a.label(end)
    a("s_endpgm")
    a.label("L_codeend")

Opt.fill0 = 12
Opt.rest = ""
Opt.rr = True
Opt.hst = 14
Opt.wh = 1.0
Opt.oldp = False
Opt.att2 = True
Opt.scost = 60
Opt.sq = 0
Opt.light = False
Opt.g_ot = -1
Opt.half = True
Opt.wm = 1.0
Opt.bud = 12.0
Opt.ahead = 8
Opt.qmax = 12
Opt.qopp = 10
Opt.lat = 20.0
Opt.verbose = False
Opt.pipe = 3
Opt.poll_at = 10
Opt.fakeB = False
Opt.fakeD = False
Opt.amp = ""
Opt.fl4 = False
Opt.ptouch = 0
Opt.pt_stage = 14
Opt.otouch = -1
Opt.et = 0
Opt.etm = 63
Opt.touch = 1
Opt.mq_w = 2
Opt.rspan = 12
Opt.diag = False

def build(opt):
    nm = NAME + "_kernel"
    out = []
    out.append("; One persistent launch, one workgroup per CU (generated by a script of my own):")
    out.append(";   phase 2  o[128 rows, 8 heads] @ wo[8 heads, 128 cols]; three of the four row strips go to the")
    out.append(";            owning workgroups as tagged tiles in d_ws, the own strip is finished last and stored")
    out.append("; @launch grid=(256,1,1) block=(256,1,1) lds=163840")
    out.append('.amdgcn_target "amdgcn-amd-amdhsa--gfx950"')
    out.append(".text")
    a = Asm()
    gen(a, opt)
    out.append(f".globl {nm}\n.p2align 8\n.type {nm},@function\n{nm}:")
    out.append(a.text())
    out.append('.section .rodata,"a"')
    out.append(f""".p2align 6
.amdhsa_kernel {nm}
  .amdhsa_next_free_vgpr 512
  .amdhsa_next_free_sgpr 102
  .amdhsa_accum_offset 256
  .amdhsa_group_segment_fixed_size 0
  .amdhsa_kernarg_size 104
  .amdhsa_user_sgpr_count 2
  .amdhsa_user_sgpr_kernarg_segment_ptr 1
  .amdhsa_system_sgpr_workgroup_id_x 1
.end_amdhsa_kernel
""")
    return "\n".join(out)

if __name__ == "__main__":
    opt = Opt()
    for kv in sys.argv[2:]:
        k, v = kv.split("=")
        cur = getattr(opt, k)
        setattr(opt, k, (v == "1") if isinstance(cur, bool) else type(cur)(v))
    t = build(opt)
    open(sys.argv[1], "w").write(t)
```

```python
import sys, struct
from asmlib import *

NAME = "concat_heads__mha_block_cached__gqa_block_cached__near_ridge"
def f32(x): return "0x%08x" % struct.unpack("<I", struct.pack("<f", x))[0]

PART_BASE = 8 << 20
FO_BASE = 24 << 20
STAMP_BASE = 28 << 20
WS_USED = 32 << 20
SPIN_MAX = 100000

SX, SK, SV, SWQ, SWO, SWS, SOUT, SDBG = 32, 36, 40, 44, 48, 52, 56, 60
S_W, S_BR, S_G, S_HL, S_R, S_B = 64, 65, 66, 67, 68, 69
S_T = 70
S_MX, S_LAM, S_KV, S_MW, S_MK, S_C = 78, 79, 80, 81, 82, 83
S_NONCE, S_CNT, S_DONE = 84, 85, 86
S_SO = 87
S_QW = [88, 89, 90, 91]; S_QX = [92, 93, 94, 95]
S_HW, S_HX = 96, 97
S_U = 98
S_WOG = [4, 5, 6, 7]; S_OG = [8, 9, 10, 11]; S_Q = [12, 13, 14, 15]
S_OB, S_PB, S_FOW, S_FOR, S_OUTB, S_PR = 16, 17, 18, 19, 20, 21
S_OW = [22, 23]

class Opt:
    nt_kv = "nt"
    stamps = False
    clk = "s_memrealtime"
    ab = ""
    ex = "K0,K1|V0,V1|W0,W1"
    mid = "||"
    lead = 2; bal = False; stag = False; hbit = 3
    n14 = 8; n15 = 0; natt = 0
    pre_flag = 0; pre_poll = 40; post_poll = 0
    codepf = True
    fill = 4
    coff = 1
    non_stage = -1
    init_o = 8
    mq_num = 2; mq_den = 1
    fmt = 2
    g_s1 = 33; g_p2 = 44; g_p1 = 0; g_c1 = 28; g_p0 = 56; g_o3 = 0
    sst = -1

VSTAMP = 1
def stamp(a, idx, opt):
    if opt.amp and str(idx) in opt.amp.split(","):
        a(f"s_memrealtime s[30:31]")
        a("s_waitcnt lgkmcnt(0)"); a.lg = []
        a(f"v_writelane_b32 v{VSTAMP}, s30, {opt.amp.split(',').index(str(idx))}")
    if opt.stamps and (not opt.light or idx in (0, 5, 9, 13, 17, 19, 21, 23, 25, 28)):
        a(f"{opt.clk} s[30:31]")
        a("s_waitcnt lgkmcnt(0)"); a.lg = []
        a(f"v_writelane_b32 v{VSTAMP}, s30, {idx}")

def dump_stamps(a, opt):
    a(f"s_lshl_b32 s{S_T}, s2, 2")
    a(f"s_add_u32 s{S_T}, s{S_T}, s{S_W}")
    a(f"s_lshl_b32 s{S_T}, s{S_T}, 8")
    a(f"s_add_u32 s{S_T}, s{S_T}, {STAMP_BASE}")
    a("v_lshlrev_b32 v2, 2, v0")
    a(f"buffer_store_dword v{VSTAMP}, v2, s[{SWS}:{SWS+3}], s{S_T} offen")
    a("s_waitcnt vmcnt(0)")

def seg_src(a, dst, rowstride_shift, t1, t2):
    a(f"v_lshrrev_b32 v{t1}, 4, v0")
    a(f"v_bfe_u32 v{t2}, v0, 2, 2")
    a(f"v_xor_b32 v{t2}, v{t2}, v{t1}")
    a(f"v_lshlrev_b32 v{t2}, 6, v{t2}")
    a(f"v_lshl_add_u32 v{dst}, v{t1}, {rowstride_shift}, v{t2}")
    a(f"v_and_b32 v{t2}, 3, v0")
    a(f"v_lshl_add_u32 v{dst}, v{t2}, 4, v{dst}")

def tr_base(a, dst, r4, t1):
    a(f"v_bfe_u32 v{r4}, v0, 2, 2")
    a(f"v_lshrrev_b32 v{t1}, 5, v0")
    a(f"v_lshl_add_u32 v{t1}, v{t1}, 3, v{r4}")
    a(f"v_lshlrev_b32 v{dst}, 8, v{t1}")
    a(f"v_bfe_u32 v{t1}, v0, 4, 1")
    a(f"v_lshl_add_u32 v{dst}, v{t1}, 5, v{dst}")
    a(f"v_and_b32 v{t1}, 1, v0")
    a(f"v_lshl_add_u32 v{dst}, v{t1}, 4, v{dst}")
    a(f"v_bfe_u32 v{t1}, v0, 1, 1")
    a(f"v_lshl_add_u32 v{dst}, v{t1}, 3, v{dst}")

MF = "v_mfma_f32_32x32x16_bf16"
M16 = "v_mfma_f32_16x16x32_bf16"
srd = lambda r: f"s[{r}:{r+3}]"

def sched(lam, opt):
    order = list(range(16))
    mpos = []
    for c in range(lam, 16, 4):
        p = order.index(c)
        q = max(0, p - opt.lead)
        if c < 4 and opt.bal: q = 0
        order.pop(p); order.insert(q, c)
        if c >= 4: mpos.append(q)
    if opt.stag:
        order = [(4 * lam + i) & 15 for i in range(16)]
        mpos = [2 + lam, 6 + lam, 10 + lam]
    extras = {}
    for j, lst in enumerate(opt.ex.split("|")):
        for pc in filter(None, lst.split(",")):
            extras.setdefault(mpos[j] - 2, []).append(pc)
    for j, lst in enumerate(opt.mid.split("|")):
        for pc in filter(None, lst.split(",")):
            extras.setdefault(mpos[j], []).append(pc)
    for it in filter(None, opt.ab.split(";")):
        st, lst = it.split(":")
        for pc in lst.split(","): extras.setdefault(int(st), []).append(pc)
    return order, extras

class Rec:
    def __init__(self): self.L = []
    def __call__(self, s): self.L.append(s)

def gen(a, opt):
    end = "L_end"
    T = S_T; U = S_U
    stamp(a, 0, opt)
    a("s_cmp_ge_u32 s2, 256")
    a(f"s_cbranch_scc1 {end}")
    a("s_load_dwordx16 s[4:19], s[0:1], 0")
    a("s_load_dwordx4 s[20:23], s[0:1], 64")
    a("s_load_dwordx4 s[24:27], s[0:1], 80")
    a("s_load_dwordx2 s[28:29], s[0:1], 96")
    a(f"s_memrealtime s[{T+6}:{T+7}]")
    if opt.codepf:
        a(f"s_getpc_b64 s[{U}:{U+1}]")
        a.label("L_pc")
        a(f"s_lshr_b32 s{T}, s2, 3")
        a(f"v_lshrrev_b32 v240, 4, v0")
        a(f"v_lshl_add_u32 v240, s{T}, 4, v240")
        a(f"v_lshlrev_b32 v240, 7, v240")
        a(f"v_min_u32 v240, L_codeend-L_pc-4, v240")
        a(f"v_mov_b32 v241, s{U+1}")
        a(f"v_add_co_u32 v240, vcc, s{U}, v240")
        a("s_nop 1")
        a(f"v_addc_co_u32 v241, vcc, 0, v241, vcc")
        a.vmem(f"global_load_dword v241, v[240:241], off", "cpf")
    a("v_lshrrev_b32 v2, 6, v0")
    a("v_and_b32 v0, 63, v0")
    a(f"v_readfirstlane_b32 s{S_W}, v2")
    a(f"s_and_b32 s{T}, s2, 7")
    a(f"s_lshr_b32 s{T+1}, s2, 3")
    a(f"s_lshr_b32 s{S_BR}, s{T}, 2")
    a(f"s_and_b32 s{S_G}, s{T}, 3")
    a(f"s_and_b32 s{S_HL}, s{T+1}, 7")
    a(f"s_lshr_b32 s{S_R}, s{T+1}, 3")
    VKS, VVS = 2, 3
    VWO = [4, 5, 6, 7]
    VA = list(range(8, 16))
    ACC = 16
    FA = [80, 120]; FB = [112, 152]
    KF, VF = 160, 192
    QP, SS, PP = 80, 112, 128
    VWQ = [224, 225, 226, 227]; VX = [228, 229, 230, 231]; VB = [232, 233]
    TT = 240
    VWT = [244, 245, 246, 247]
    VKA, VL16, VTB, VR4, VNON, VT2 = 248, 249, 250, 251, 252, 253
    F1, F2 = 254, 255
    XR, KR, VR = 65536, 131072, 131072
    a(f"s_lshl_b32 s{S_B}, s{S_R}, 2")
    a(f"s_add_u32 s{S_B}, s{S_B}, s{S_W}")
    a(f"s_lshl_b32 s{T+4}, s{S_G}, 3")
    a(f"s_add_u32 s{T+4}, s{T+4}, s{S_HL}")
    a(f"s_lshl_b32 s{T}, s{S_W}, 17")
    a(f"s_lshl_b32 s{T+1}, s{T+4}, 8")
    a(f"s_add_u32 s{T}, s{T}, s{T+1}")
    a(f"s_lshl_b32 s{T+1}, s{S_B}, 16")
    a(f"s_lshr_b32 s{T+2}, s{S_HL}, {2 if opt.half else 3}")
    HB = opt.hbit
    S_WQB = S_QW[:2]; S_XB = S_QX[:2]
    a(f"s_lshl_b32 s{T+3}, s{T+2}, {19+HB}")
    a(f"s_add_u32 s{S_WQB[0]}, s{T}, s{T+3}")
    a(f"s_xor_b32 s{T+3}, s{T+3}, {1<<(19+HB)}")
    a(f"s_add_u32 s{S_WQB[1]}, s{T}, s{T+3}")
    a(f"s_lshl_b32 s{T+3}, s{T+2}, {7+HB}")
    a(f"s_add_u32 s{S_XB[0]}, s{T+1}, s{T+3}")
    a(f"s_xor_b32 s{T+3}, s{T+3}, {1<<(7+HB)}")
    a(f"s_add_u32 s{S_XB[1]}, s{T+1}, s{T+3}")
    a(f"s_add_u32 s{S_LAM}, s{S_R}, s{S_HL}")
    a(f"s_and_b32 s{S_LAM}, s{S_LAM}, 3")
    ords = [sched(l, opt)[0] for l in range(4)]
    for pos in range(2):
        assert all(not (o[pos] >> HB) & 1 for o in ords)
        pk = sum(ords[l][pos] << (4 * l) for l in range(4))
        a(f"s_lshl_b32 s{T+2}, s{S_LAM}, 2")
        a(f"s_lshr_b32 s{T+2}, {pk}, s{T+2}")
        a(f"s_and_b32 s{T+2}, s{T+2}, 15")
        a(f"s_lshl_b32 s{T+3}, s{T+2}, 19")
        a(f"s_add_u32 s{S_QW[2+pos]}, s{S_WQB[0]}, s{T+3}")
        a(f"s_lshl_b32 s{T+3}, s{T+2}, 7")
        a(f"s_add_u32 s{S_QX[2+pos]}, s{S_XB[0]}, s{T+3}")
    a(f"s_lshl_b32 s{S_MW}, s{S_W}, 12")
    a(f"s_lshl_b32 s{S_MX}, s{S_W}, 14")
    a(f"s_add_u32 s{S_MX}, s{S_MX}, {XR}")
    seg_src(a, VWQ[0], 13, 242, 243)
    a(f"v_add_u32 v{VWQ[1]}, {32768-1024}, v{VWQ[0]}")
    a(f"v_xor_b32 v242, 32, v{VWQ[0]}")
    for j in (2, 3): a(f"v_add_u32 v{VWQ[j]}, {j*(32768-1024)}, v242")
    a("v_lshrrev_b32 v242, 3, v0")
    a("v_lshrrev_b32 v243, 4, v0")
    a(f"v_and_b32 v{F1}, 7, v0")
    a(f"v_xor_b32 v{F1}, v{F1}, v243")
    a(f"v_lshlrev_b32 v{F1}, 4, v{F1}")
    a(f"v_lshl_add_u32 v{VX[0]}, v242, 11, v{F1}")
    a(f"v_xor_b32 v{F1}, 64, v{VX[0]}")
    a(f"v_add_u32 v{VX[1]}, {16384-1024}, v{F1}")
    a(f"v_add_u32 v{VX[2]}, {2*(16384-1024)}, v{VX[0]}")
    a(f"v_add_u32 v{VX[3]}, {3*(16384-1024)}, v{F1}")
    for s_, n in [(SX, 1 << 20), (SWQ, 8 << 20)]:
        a(f"s_mov_b32 s{s_+2}, {n}")
        a(f"s_mov_b32 s{s_+3}, 0x20000")
    a("s_waitcnt lgkmcnt(0)")
    stamp(a, 29, opt)
    a(f"s_cmp_eq_u32 s{S_BR}, 0")
    for i, s_ in [(0, SX), (3, SWQ), (1, SK), (2, SV), (4, SWO)]:
        a(f"s_cselect_b32 s{s_}, s{4+2*i}, s{14+2*i}")
        a(f"s_cselect_b32 s{s_+1}, s{5+2*i}, s{15+2*i}")
    cur = [None]
    def group(key, m0_ins, so_ins):
        n = 0
        if cur[0] != key:
            a(m0_ins); n += 1
            for x in so_ins: a(x); n += 1
            cur[0] = key
        return n
    def dma_x(pos, j, c=None):
        so = f"s_mov_b32 s{S_SO}, s{S_QX[2+pos]}" if c is None else f"s_add_u32 s{S_SO}, s{S_XB[(c>>HB)&1]}, {(c & ~(1<<HB))*128}"
        group(("x", pos), f"s_add_u32 m0, s{S_MX}, {(pos%4)*4096}", [so])
        a.vmem(f"buffer_load_dwordx4 v{VX[j]}, {srd(SX)}, s{S_SO} offen offset:{j*1024} lds", ("st", pos))
    def dma_wq(pos, j, c=None):
        so = f"s_mov_b32 s{S_SO}, s{S_QW[2+pos]}" if c is None else f"s_add_u32 s{S_SO}, s{S_WQB[(c>>HB)&1]}, {(c & ~(1<<HB))<<19}"
        group(("q", pos), f"s_add_u32 m0, s{S_MW}, {(pos%4)*16384}", [so])
        a.vmem(f"buffer_load_dwordx4 v{VWQ[j]}, {srd(SWQ)}, s{S_SO} offen offset:{j*1024} lds", ("st", pos))
    for j in range(4): dma_x(0, j)
    for j in range(4): dma_wq(0, j)
    stamp(a, 30, opt)
    a(f"v_bfe_u32 v{VR4}, v0, 2, 2")
    a("v_lshrrev_b32 v242, 4, v0")
    a(f"v_lshl_add_u32 v243, v242, 3, v{VR4}")
    a("v_lshlrev_b32 v243, 8, v243")
    a(f"v_and_b32 v{F1}, 1, v242")
    a(f"v_lshl_add_u32 v243, v{F1}, 5, v243")
    a(f"v_and_b32 v{F1}, 3, v0")
    a(f"v_lshl_add_u32 v243, v{F1}, 3, v243")
    a(f"v_lshl_add_u32 v{VA[0]}, v{VR4}, 6, v243")
    for i in range(1, 8): a(f"v_xor_b32 v{VA[i]}, {32*i}, v{VA[0]}")
    a(f"v_bfe_u32 v{F1}, v0, 1, 3")
    a(f"v_xor_b32 v242, v242, v{F1}")
    a("v_lshlrev_b32 v242, 4, v242")
    a("v_and_b32 v243, 15, v0")
    a("v_lshl_add_u32 v242, v243, 7, v242")
    a(f"v_add_u32 v{VB[0]}, s{S_MX}, v242")
    a("v_xor_b32 v242, 64, v242")
    a(f"v_add_u32 v{VB[1]}, s{S_MX}, v242")
    for s_, lo in [(SOUT, 24), (SDBG, 26), (SWS, 28)]:
        a(f"s_mov_b32 s{s_}, s{lo}")
        a(f"s_mov_b32 s{s_+1}, s{lo+1}")
    for s_, n in [(SK, 4 << 20), (SV, 4 << 20), (SWO, 8 << 20), (SWS, WS_USED), (SOUT, 2 << 20), (SDBG, 256)]:
        a(f"s_mov_b32 s{s_+2}, {n}")
        a(f"s_mov_b32 s{s_+3}, 0x20000")
    a(f"s_lshl_b32 s{S_KV}, s{S_B}, 5")
    a(f"s_add_u32 s{S_KV}, s{S_KV}, s{T+4}")
    a(f"s_lshl_b32 s{S_KV}, s{S_KV}, 13")
    a(f"s_lshl_b32 s{S_MK}, s{S_W}, 13")
    def early_touch():
        a(f"v_and_b32 v242, 3, v0")
        a(f"v_lshlrev_b32 v242, 21, v242")
        a("v_mov_b32 v243, 0")
        a(f"s_lshl_b32 s{T+2}, s{S_BR}, 2")
        a(f"s_add_u32 s{T+2}, s{T+2}, s{S_R}")
        a(f"s_lshl_b32 s{T+2}, s{T+2}, 21")
        a(f"s_lshl_b32 s{T+3}, s{S_G}, 21")
        a(f"s_lshl_b32 s{T+5}, s{S_R}, 19")
        for k_, (vo, sd, so) in enumerate([(242, SWQ, "0"), (243, SK, f"s{S_KV}"), (243, SV, f"s{S_KV}"), (243, SWO, f"s{T+3}"), (243, SWS, f"s{T+2}"), (243, SOUT, f"s{T+5}")]):
            if opt.etm >> k_ & 1:
                a.vmem(f"buffer_load_dword v{234+k_}, v{vo}, {srd(sd)}, {so} offen", "touch")
    if opt.et == 1: early_touch()
    for j in range(4): dma_x(1, j)
    for j in range(4): dma_wq(1, j)
    if opt.et == 2: early_touch()
    a(f"s_or_b32 s{T}, s2, s{S_W}")
    a(f"s_or_b32 s{T+6}, s{T+6}, 1")
    a(f"s_mul_i32 s{T+6}, s{T+6}, 0x9e3779b1")
    a(f"v_or_b32 v243, s{T}, v0")
    a(f"v_lshlrev_b32 v243, 8, v243")
    a(f"v_mov_b32 v242, s{T+6}")
    a.vmem(f"buffer_store_dword v242, v243, {srd(SDBG)}, 0 offen sc1", "tagst")
    stamp(a, 31, opt)
    f = Rec()
    f(f"v_lshrrev_b32 v{F1}, 4, v0")
    f(f"v_and_b32 v{F2}, 15, v0")
    f(f"v_xor_b32 v{F2}, v{F2}, v{F1}")
    f(f"v_lshlrev_b32 v{F2}, 4, v{F2}")
    f(f"v_lshl_add_u32 v{VKS}, v{F1}, 8, v{F2}")
    seg_src(f, VVS, 8, F1, F2)
    seg_src(f, VWO[0], 11, F1, F2)
    for j in range(1, 4): f(f"v_add_u32 v{VWO[j]}, {(4*(j>>1) + 16*(j&1))*2048 - j*1024}, v{VWO[0]}")
    tr_base(f, VTB, VR4, F1)
    for i in range(4):
        f(f"s_add_u32 s{U+2}, s{S_W}, {i}")
        f(f"s_and_b32 s{U+2}, s{U+2}, 3")
        f(f"v_xor_b32 v{F1}, s{U+2}, v{VR4}")
        f(f"v_lshl_add_u32 v{VWT[i]}, v{F1}, 6, v{VTB}")
    f(f"v_and_b32 v{F1}, 3, v0")
    f(f"v_lshl_add_u32 v{F1}, v{VR4}, 3, v{F1}")
    f(f"v_and_b32 v{F2}, 15, v{F1}")
    f(f"v_lshrrev_b32 v{VKA}, 5, v0")
    f(f"v_xor_b32 v{F2}, v{F2}, v{VKA}")
    f(f"v_lshlrev_b32 v{F2}, 4, v{F2}")
    f(f"v_lshl_add_u32 v{F1}, v{F1}, 8, v{F2}")
    f(f"v_bfe_u32 v{F2}, v0, 4, 1")
    f(f"v_lshl_add_u32 v{F1}, v{F2}, 3, v{F1}")
    f(f"s_add_u32 s{U+2}, s{S_MK}, {KR}")
    f(f"v_add_u32 v{VKA}, s{U+2}, v{F1}")
    f(f"v_lshlrev_b32 v{VL16}, 4, v0")
    f(f"v_mov_b32 v{TT+1}, 0")
    f(f"s_lshl_b32 s{U}, s{S_G}, 2")
    f(f"s_add_u32 s{U}, s{U}, s{S_W}")
    f(f"s_lshl_b32 s{U+1}, s{U}, 19")
    f(f"s_add_u32 s{S_C}, s{S_HL}, {opt.coff}")
    f(f"s_and_b32 s{S_C}, s{S_C}, 7")
    f(f"s_lshl_b32 s{U+2}, s{S_C}, 8")
    f(f"s_add_u32 s{U+1}, s{U+1}, s{U+2}")
    for jg in range(4):
        f(f"s_add_u32 s{U+2}, s{S_LAM}, {jg}")
        f(f"s_and_b32 s{U+2}, s{U+2}, 3")
        f(f"s_lshl_b32 s{U+3}, s{U+2}, 17")
        f(f"s_add_u32 s{S_WOG[jg]}, s{U+1}, s{U+3}")
        f(f"s_lshl_b32 s{S_OG[jg]}, s{U+2}, 12")
        f(f"s_add_u32 s{S_Q[jg]}, s{S_G}, {jg+1}")
        f(f"s_and_b32 s{S_Q[jg]}, s{S_Q[jg]}, 3")
    f(f"s_lshl_b32 s{U+1}, s{S_BR}, 2")
    f(f"s_add_u32 s{U+1}, s{U+1}, s{S_R}")
    f(f"s_lshl_b32 s{U+1}, s{U+1}, 21")
    f(f"s_lshl_b32 s{U+2}, s{U}, 14")
    f(f"s_add_u32 s{S_OB}, s{U+1}, s{U+2}")
    f(f"s_and_b32 s{U+2}, s{S_KV}, 0xfffff")
    f(f"s_add_u32 s{S_OW[0]}, s{U+1}, s{U+2}")
    f(f"s_add_u32 s{S_OW[1]}, s{S_OW[0]}, 4096")
    f(f"s_add_u32 s{U+1}, s{U+1}, {1<<20}")
    f(f"s_mul_i32 s{U+2}, s{S_G}, {(1<<15) + (1<<13)}")
    f(f"s_add_u32 s{U+2}, s{U+2}, s{U+1}")
    f(f"s_lshl_b32 s{U+3}, s{S_W}, 10")
    f(f"s_add_u32 s{S_FOR}, s{U+2}, s{U+3}")
    f(f"s_lshl_b32 s{U+3}, s{S_HL}, 2")
    f(f"s_add_u32 s{U+3}, s{U+3}, s{S_W}")
    f(f"s_lshl_b32 s{U+3}, s{U+3}, 7")
    f(f"s_add_u32 s{S_FOW}, s{U+2}, s{U+3}")
    f(f"s_lshl_b32 s{U+2}, s{S_C}, 17")
    f(f"s_add_u32 s{U+2}, s{U+2}, s{U+1}")
    f(f"s_lshl_b32 s{U+3}, s{U}, 11")
    f(f"s_add_u32 s{S_PB}, s{U+2}, s{U+3}")
    f(f"s_lshl_b32 s{U+3}, s{S_G}, 15")
    f(f"s_add_u32 s{S_PR}, s{U+2}, s{U+3}")
    f(f"s_lshl_b32 s{U+3}, s{S_W}, 11")
    f(f"s_add_u32 s{S_PR}, s{S_PR}, s{U+3}")
    f(f"s_lshl_b32 s{U+2}, s{S_R}, 2")
    f(f"s_add_u32 s{U+2}, s{U+2}, s{S_G}")
    f(f"s_lshl_b32 s{U+2}, s{U+2}, 17")
    f(f"s_lshl_b32 s{U+3}, s{S_BR}, 11")
    f(f"s_add_u32 s{U+2}, s{U+2}, s{U+3}")
    f(f"s_lshl_b32 s{U+3}, s{S_C}, 8")
    f(f"s_add_u32 s{U+2}, s{U+2}, s{U+3}")
    f(f"s_lshl_b32 s{U+3}, s{S_W}, 6")
    f(f"s_add_u32 s{S_OUTB}, s{U+2}, s{U+3}")
    FILL = f.L
    for _ in range(opt.fill0): a(FILL.pop(0))

    SLOT = {"k0": (S_MK, KR), "k1": (S_MK, KR + 4096)}
    for i_ in range(4):
        SLOT[f"w{i_}"] = (S_MW, 16384 * i_); SLOT[f"x{i_}"] = (S_MX, 4096 * i_)
    def dma_wo(pos, j, slot):
        sb, off = SLOT[slot]
        n = group(("wo", pos), f"s_add_u32 m0, s{sb}, {off}", [f"s_add_u32 s{S_SO}, s{S_WOG[pos>>2]}, {(32*((pos&3)>>1) + 8*(pos&1))*2048}"])
        a.vmem(f"buffer_load_dwordx4 v{VWO[j]}, {srd(SWO)}, s{S_SO} offen offset:{j*1024} lds", ("wo", pos))
        a.ever.add(("woj", pos, j))
        return n + 1
    def tr_wo_items(pos, slot):
        sb, off = SLOT[slot]
        it = []
        for s4 in range(4):
            def g(s4=s4):
                if s4 == 0:
                    assert all(("woj", pos, j) in a.ever for j in range(4)), ("piece not fully issued", pos)
                    a.wait_vm(("wo", pos))
                    a(f"s_add_u32 s{T+1}, s{sb}, {off}")
                a(f"v_add_u32 v{VT2}, s{T+1}, v{VWT[s4]}")
                for h2 in range(2):
                    a.lds(f"ds_read_b64_tr_b16 {ar(16*pos+4*s4+2*h2,2)}, v{VT2} offset:{4*h2*256}", ("wo", pos))
            it.append(g)
        return it
    def dma_kv(pc, j):
        half = int(pc[1])
        group(pc, f"s_add_u32 m0, s{S_MK}, {(KR if pc[0] == 'K' else VR) + half*4096}", [f"s_add_u32 s{S_SO}, s{S_KV}, {half*4096}"])
        if pc[0] == "K":
            a(f"v_xor_b32 v{TT}, {64*j}, v{VKS}")
            a.vmem(f"buffer_load_dwordx4 v{TT}, {srd(SK)}, s{S_SO} offen offset:{j*1024} {opt.nt_kv} lds", "k")
        else:
            if j == 2: a(f"v_xor_b32 v{TT}, 32, v{VVS}")
            a.vmem(f"buffer_load_dwordx4 v{TT if j >= 2 else VVS}, {srd(SV)}, s{S_SO} offen offset:{j*1024} {opt.nt_kv} lds", "v")
    def reads(n):
        s, t = n >> 1, n & 1
        slot = s % 4
        fs = n & 1
        r = [(f"ds_read_b128 {vr(FB[fs]+4*nt,4)}, v{VB[t]} offset:{slot*4096 + nt*2048}", ("b", n)) for nt in range(2)]
        for i in range(8):
            for h2 in range(2):
                r.append((f"ds_read_b64_tr_b16 {vr(FA[fs]+4*i+2*h2,2)}, v{VA[i]} offset:{slot*16384 + (32*t+4*h2)*256}", ("a", n, i)))
        if opt.fakeD:
            r = r[:10] + [(f"ds_read_b128 {vr(FA[fs]+16+4*nt,4)}, v{VB[t]} offset:{slot*4096 + nt*2048}", ("a", n, 4+nt)) for nt in range(2)]
            a.ever.add(("lg", ("a", n, 6))); a.ever.add(("lg", ("a", n, 7)))
        return r
    def mfma(n, k):
        fs = n & 1
        i, nt = k >> 1, k & 1
        d = vr(ACC + 8*i + 4*nt, 4)
        a.wait_lg([("b", n), ("a", n, i)])
        a(f"{M16} {d}, {vr(FA[fs]+4*i,4)}, {vr(FB[fs]+4*nt,4)}, {'0' if n == 0 else d}")

    allex = [p for l in sched(0, opt)[1].values() for p in l]
    w_early = sorted(int(p[1]) for p in allex if p[0] == "W")
    w_late = [p for p in range(4) if p not in w_early]
    hit_first = [4*g + k for k in w_early for g in (1, 2, 3)]
    hit_last = [4*g + k for k in w_late for g in (1, 2, 3)]
    rest = w_late + hit_first + hit_last
    if opt.rest: rest = [int(x) for x in opt.rest.split(",")]
    assert sorted(rest + w_early) == list(range(16))
    late_slots = ["w0", "x0", "w1", "x1", "w2", "x2", "k0", "k1", "x3", "w3"]
    avail = {"w0": 13, "x0": 13, "w1": 14, "x1": 14, "w2": 15, "x2": 15, "k0": 15, "k1": 15, "x3": 16, "w3": 17}
    lateq = [(rest[i], j, late_slots[i]) for i in range(min(len(rest), len(late_slots))) for j in range(4)]
    def k_items():
        it = []
        for kt in range(2):
            for u in range(4):
                for h in range(2):
                    def g(kt=kt, u=u, h=h):
                        if (kt, u, h) == (0, 0, 0): a.wait_vm("k")
                        a(f"v_xor_b32 v{VT2}, {((4*u+2*h) ^ (4*kt)) << 4}, v{VKA}")
                        a.lds(f"ds_read_b64 {vr(KF+16*kt+4*u+2*h,2)}, v{VT2} offset:{1024*kt}", "kf")
                    it.append(g)
        return it
    def v_items():
        it = []
        for i in range(8):
            def g(i=i):
                if i == 0:
                    a.wait_vm("v")
                    a(f"s_add_u32 s{T+1}, s{S_MK}, {VR}")
                a(f"v_add_u32 v{VT2}, s{T+1}, v{VA[i]}")
                for h2 in range(2):
                    a.lds(f"ds_read_b64_tr_b16 {vr(VF+4*i+2*h2,2)}, v{VT2} offset:{4*h2*256}", "vf")
            it.append(g)
        return it
    uniform = all(sched(l, opt) == sched(0, opt) for l in range(4))
    for lam in range(1, 4):
        a(f"s_cmp_eq_u32 s{S_LAM}, {lam}")
        a(f"s_cbranch_scc1 L_p1_{lam}")
    vm0, lg0, cur0, ever0 = list(a.vm), list(a.lg), cur[0], set(a.ever)
    end_state = None
    a.lg_low = 7
    for lam in range(4):
        a.vm, a.lg, cur[0], a.ever = list(vm0), list(lg0), cur0, set(ever0)
        a.label(f"L_p1_{lam}")
        order, extras = sched(lam, opt)
        consume = {}; wslot = {}; free_at = {"k0": -9, "k1": -9}
        stream = []
        pend = {}
        non_stage = max(extras)
        assert min(extras) >= 0
        lq = list(lateq)
        for p in range(2, 16):
            c = order[p]
            lead = (c & 3) == lam
            for j in range(4): stream.append((lambda j=j, c=c, p=p: dma_x(p, j, c), opt.wm if lead and (not opt.half or not (c >> HB) & 1) else 1.0, p - 3, p - 2, None))
            for j in range(4): stream.append((lambda j=j, c=c, p=p: dma_wq(p, j, c), opt.wm if lead else 1.0, p - 3, p - 2, p))
            for pc in extras.get(p - 2, []):
                if pc[0] == "W":
                    sl = min(free_at, key=free_at.get); wslot[pc] = sl
                    cs = p + 1; consume.setdefault(cs, []).append(pc)
                else:
                    sl = "k" + pc[1]
                    other = [st for st, l in extras.items() for q in l if q[0] == pc[0]]
                    cs = max(other) + 3
                    if pc[1] == "1": consume.setdefault(cs, []).append(pc[0])
                e = free_at[sl]; assert e <= p - 2, (lam, pc, p, free_at)
                free_at[sl] = cs + 1
                for j in range(4):
                    fn = (lambda pc=pc, j=j: dma_wo(int(pc[1]), j, wslot[pc])) if pc[0] == "W" else (lambda pc=pc, j=j: dma_kv(pc, j))
                    stream.append((fn, opt.wm, max(e, 0 if pc[0] != "W" else 4), p - 2, None))
            if p - 2 == non_stage:
                stream.append((lambda: a.vmem(f"buffer_load_dword v{VNON}, v{TT+1}, {srd(SDBG)}, 0 offen sc1", "nonce"), 0.2, 4, p - 2, None))
                stream.append((lambda: a.vmem(f"buffer_load_dword v{TT+2}, v{TT+1}, {srd(SWS)}, s{S_FOW} offen", "touch"), 0.2, 4, p - 2, None))
        assert max(free_at.values()) <= 15
        for k in range(opt.n14):
            pos, j, sl = lq.pop(0)
            stream.append((lambda pos=pos, j=j, sl=sl: dma_wo(pos, j, sl), opt.wm, avail[sl], 14, None))
        fill = list(FILL)
        endidx = {}
        cnt = 0
        for it in stream:
            cnt += 1
            if it[4] is not None: endidx[it[4]] = cnt
        total = len(stream)
        unit = 32.0 / opt.bud
        clock = 0.0
        comp = [unit * opt.wm * (i + 1 - 8) for i in range(16)]
        posdone = {0: 0.0, 1: comp[15]}
        issued = 0
        def outstanding(): return sum(1 for c_ in comp if c_ > clock)
        def issue():
            nonlocal clock, issued
            fn, w, e, d, tagp = stream.pop(0); assert e <= s, (lam, s, e)
            if outstanding() >= opt.qmax: clock = comp[-opt.qmax]
            fn(); issued += 1
            comp.append(max(comp[-1], clock + opt.lat - unit * w) + unit * w)
            if tagp is not None: posdone[tagp] = comp[-1]
        for s in range(16):
            a.c(f"---- class {lam} stage {s} chunk {order[s]}")
            if a.lg: a.wait_lg_all()
            a.wait_vm(("st", s))
            a("s_barrier")
            stamp(a, 1 + s, opt)
            clock = max(clock, posdone[s])
            lw = []
            for pc in consume.get(s, []):
                assert not fill or len(FILL) - len(fill) > 60
                if pc == "K": lw += k_items()
                elif pc == "V": lw += v_items()
                else: lw += tr_wo_items(int(pc[1]), wslot[pc])
            nl = len(lw)
            target = min(total, (endidx.get(s + 1, 0) if s + 1 < 16 else total) + opt.ahead) if s < 14 else total
            while target > issued and stream[target - issued - 1][2] > s: target -= 1
            start = issued
            gap = 0
            for t in range(2):
                n = 2 * s + t
                rd = reads(n); nrd = len(rd)
                for k in range(16):
                    if n > 0: mfma(n - 1, k)
                    span = 16 if t == 0 else opt.rspan
                    while rd and nrd - len(rd) < ((k + 1) * nrd + span - 1) // span: a.lds(*rd.pop(0))
                    gap += 1
                    clock += 1
                    did = False
                    if stream and stream[0][2] <= s and outstanding() < opt.qopp:
                        issue(); did = True
                    while target - issued > 32 - gap:
                        issue(); did = True
                    while lw and nl - len(lw) < (gap * nl) // 26: lw.pop(0)(); did = True
                    if fill and not did:
                        for _ in range(3 if n == 0 else 1):
                            if fill: a(fill.pop(0))
            assert not lw
            if opt.verbose: print(f"class {lam} stage {s}: {issued - start} dma clock {clock:.0f}", file=sys.stderr)
        assert not stream
        assert not fill
        st_ = (list(a.vm), list(a.lg), cur[0])
        if end_state is None: end_state = st_
        assert end_state == st_, (end_state, st_)
        if lam < 3: a("s_branch L_common")
    a.label("L_common")
    a.lg_low = 12
    natt = [opt.natt]
    def ad(lim=16):
        if natt[0] > 0 and lq and avail[lq[0][2]] <= lim:
            natt[0] -= 1
            return dma_wo(*lq.pop(0))
        return 0
    def pad(n):
        while n > 0:
            k = min(n, 8); a(f"s_nop {k-1}"); n -= k
    assert "nonce" not in a.vm
    def cvt4(dst, u, nt):
        for hh in range(2):
            t = ACC + 8*(2*u+hh) + 4*nt
            a(f"v_cvt_pk_bf16_f32 v{dst+2*hh}, v{t}, v{t+1}")
            a(f"v_cvt_pk_bf16_f32 v{dst+2*hh+1}, v{t+2}, v{t+3}")
    qp = lambda u, nt: QP + 8*u + 4*nt
    CS = 128 ** -0.5 * 1.4426950408889634
    if opt.att2:
        import hazcheck
        def cvl(u, nt, hh):
            t = ACC + 8*(2*u+hh) + 4*nt; d = qp(u, nt) + 2*hh
            return [f"v_cvt_pk_bf16_f32 v{d}, v{t}, v{t+1}", f"v_cvt_pk_bf16_f32 v{d+1}, v{t+2}, v{t+3}"]
        def stream(nt):
            L = []
            m, m2 = 240 + 2*nt, 241 + 2*nt
            b = SS + 8*nt
            for u in range(4):
                for hh in range(2): L += cvl(u, nt, hh)
            for u in range(4):
                for kt in range(2):
                    d = vr(b + 4*kt, 4)
                    L.append(f"{M16} {d}, {vr(KF+16*kt+4*u,4)}, {vr(qp(u,nt),4)}, {'0' if u == 0 else d}")
            def xr(op):
                return [f"v_mov_b32 v{m2}, v{m}", f"v_permlane32_swap_b32 v{m}, v{m2}", f"{op} v{m}, v{m}, v{m2}",
                        f"v_mov_b32 v{m2}, v{m}", f"v_permlane16_swap_b32 v{m}, v{m2}", f"{op} v{m}, v{m}, v{m2}"]
            L += [f"v_max3_f32 v{m}, v{b}, v{b+1}, v{b+2}", f"v_max3_f32 v{m2}, v{b+3}, v{b+4}, v{b+5}",
                  f"v_max3_f32 v{m}, v{m}, v{b+6}, v{b+7}", f"v_max_f32 v{m}, v{m}, v{m2}"] + xr("v_max_f32")
            L.append(f"v_mul_f32 v{m}, s{T+2}, v{m}")
            L += [f"v_fma_f32 v{b+k}, v{b+k}, s{T+2}, -v{m}" for k in range(8)]
            L += [f"v_exp_f32 v{b+k}, v{b+k}" for k in range(8)]
            L += [f"v_add_f32 v{m}, v{b}, v{b+1}", f"v_add_f32 v{m2}, v{b+2}, v{b+3}", f"v_add_f32 v{m}, v{m}, v{b+4}", f"v_add_f32 v{m2}, v{m2}, v{b+5}",
                  f"v_add_f32 v{m}, v{m}, v{b+6}", f"v_add_f32 v{m2}, v{m2}, v{b+7}", f"v_add_f32 v{m}, v{m}, v{m2}"] + xr("v_add_f32")
            L.append(f"v_rcp_f32 v{m}, v{m}")
            L += [f"v_mul_f32 v{b+k}, v{b+k}, v{m}" for k in range(8)]
            L += [f"v_cvt_pk_bf16_f32 v{PP+4*nt+p}, v{b+2*p}, v{b+2*p+1}" for p in range(4)]
            L += [f"{M16} {vr(ACC+8*i+4*nt,4)}, {vr(VF+4*i,4)}, {vr(PP+4*nt,4)}, 0" for i in range(8)]
            for u in range(4):
                blk = 2*u + nt
                L += cvl(u, nt, 0) + cvl(u, nt, 1)
                L.append(f"buffer_store_dwordx4 {vr(qp(u,nt),4)}, v{VL16}, {srd(SWS)}, s{S_OW[blk>>2]} offen offset:{(blk&3)*1024} sc1")
            return L
        A_, B_ = stream(0), stream(1)
        for kk, k in enumerate([0, 2, 4, 6, 8, 10, 12, 14, 1, 3, 5, 7, 9, 11, 13, 15]):
            mfma(31, k)
            if kk == 0: a(f"v_readfirstlane_b32 s{S_NONCE}, v{VNON}")
            if kk == 1: a(f"s_mov_b32 s{T+2}, {f32(CS)}")
            if kk >= 8:
                a(A_.pop(0)); a(A_.pop(0))
        if a.lg: a.wait_lg_all()
        stamp(a, 17, opt)
        a.c("---- attention")
        def okay(ins):
            win = [x for x in (hazcheck.parse(l) for l in a.L[-30:]) if x] + [hazcheck.parse(ins)]
            p = win[-2]
            if getattr(p, 'perm', False) and p.w & win[-1].r: return False
            return not [e for e in hazcheck.check(win) if e[4] == win[-1].txt and e[3] != e[4] or (e[4] == win[-1].txt)]
        now = 0; pipe = 0; spipe = 0
        def emit(L):
            nonlocal now, pipe, spipe
            ins = L.pop(0)
            if ins.startswith("buffer_store"): a.vmem(ins, "o"); now = max(now, spipe - opt.sq) + 16; spipe = max(spipe, now) + opt.scost
            elif ins.startswith("v_mfma"):
                a(ins); now = max(now, pipe); pipe = now + 16; now += 8
            else:
                a(ins); now += 8 if ins.startswith(("v_exp", "v_rcp")) else 4
        ism = lambda L: L[0].startswith("v_mfma")
        while A_ or B_:
            ca = bool(A_) and okay(A_[0]); cb = bool(B_) and okay(B_[0])
            if ca and B_ and A_[0].startswith("buffer_store") and spipe - opt.sq > now and not B_[0].startswith("buffer_store"): ca = False
            if A_ and not ca and cb and ism(B_) and pipe > now: cb = False
            if ca and cb:
                if ism(A_) and not ism(B_) and pipe > now: emit(B_)
                elif ism(B_) and not ism(A_) and pipe <= now: emit(B_)
                else: emit(A_)
            elif ca: emit(A_)
            elif cb: emit(B_)
            else:
                a("s_nop 0"); now += 4
    else:
        for k in range(16):
            mfma(31, k)
            if k == 0: a(f"v_readfirstlane_b32 s{S_NONCE}, v{VNON}")
            if k == 1: a(f"s_mov_b32 s{T+2}, {f32(CS)}")
            if k in (2, 6): ad(15)
            if k == 11: cvt4(qp(0,0), 0, 0)
            if k == 13: cvt4(qp(0,1), 0, 1)
            if k == 15: cvt4(qp(1,0), 1, 0)
        if a.lg: a.wait_lg_all()
        stamp(a, 17, opt)
        a.c("---- attention")
        cvt4(qp(1,1), 1, 1)
        ss = lambda kt, nt: SS + 8*nt + 4*kt
        def smf(u, kt, nt):
            d = vr(ss(kt, nt), 4)
            a(f"{M16} {d}, {vr(KF+16*kt+4*u,4)}, {vr(qp(u,nt),4)}, {'0' if u == 0 else d}")
        def cvt2(dst, u, nt, hh):
            t = ACC + 8*(2*u+hh) + 4*nt
            a(f"v_cvt_pk_bf16_f32 v{dst+2*hh}, v{t}, v{t+1}")
            a(f"v_cvt_pk_bf16_f32 v{dst+2*hh+1}, v{t+2}, v{t+3}")
        cv = [(u, nt, hh) for u in (2, 3) for nt in range(2) for hh in range(2)]
        for u in range(4):
            for nt in range(2):
                for kt in range(2):
                    smf(u, kt, nt)
                    if cv:
                        uu, n2, hh = cv.pop(0); cvt2(qp(uu, n2), uu, n2, hh)
                    elif (u, nt, kt) in ((2, 0, 1), (3, 0, 1)): ad()
        pad(8 - 2 - ad())
        for nt in range(2):
            b = SS + 8*nt
            a(f"v_max3_f32 v{240+nt}, v{b}, v{b+1}, v{b+2}")
            a(f"v_max3_f32 v{242+nt}, v{b+3}, v{b+4}, v{b+5}")
            a(f"v_max3_f32 v{240+nt}, v{240+nt}, v{b+6}, v{b+7}")
            a(f"v_max_f32 v{240+nt}, v{240+nt}, v{242+nt}")
        def xred(op):
            pad(2 - ad())
            a("v_permlane32_swap_b32 v240, v241")
            a("s_nop 0")
            a(f"{op} v240, v240, v241")
            a("v_mov_b32 v241, v240")
            a("s_nop 1")
            a("v_permlane16_swap_b32 v240, v241")
            a("s_nop 0")
            a(f"{op} v240, v240, v241")
        xred("v_max_f32")
        a(f"v_mul_f32 v240, s{T+2}, v240")
        a("v_mov_b32 v241, v240")
        a("s_nop 1")
        a("v_permlane32_swap_b32 v240, v241")
        a("s_nop 0")
        for k in range(16):
            a(f"v_fma_f32 v{SS+k}, v{SS+k}, s{T+2}, -v{240+(k>>3)}")
        ad()
        for k in range(16):
            a(f"v_exp_f32 v{SS+k}, v{SS+k}")
            if k == 7: ad()
        for k in range(1, 8):
            for nt in range(2):
                b = SS + 8*nt
                a(f"v_add_f32 v{240+nt}, v{b if k == 1 else 240+nt}, v{b+k}")
        xred("v_add_f32")
        a("v_rcp_f32 v240, v240")
        a("s_nop 0")
        a("v_mov_b32 v241, v240")
        a("s_nop 1")
        a("v_permlane32_swap_b32 v240, v241")
        a("s_nop 0")
        for nt in range(2):
            for k in range(8):
                a(f"v_mul_f32 v{SS+8*nt+k}, v{SS+8*nt+k}, v{240+nt}")
            for p in range(4):
                a(f"v_cvt_pk_bf16_f32 v{PP+4*nt+p}, v{SS+8*nt+2*p}, v{SS+8*nt+2*p+1}")
        def pv(i, nt):
            a(f"{M16} {vr(ACC+8*i+4*nt,4)}, {vr(VF+4*i,4)}, {vr(PP+4*nt,4)}, 0")
        def ost(u, nt):
            blk = 2*u + nt
            a.vmem(f"buffer_store_dwordx4 {vr(qp(u,nt),4)}, v{VL16}, {srd(SWS)}, s{S_OW[blk>>2]} offen offset:{(blk&3)*1024} sc1", "o")
        seq = [(i, nt) for nt in range(2) for i in range(8)]
        ev = [(u, nt, hh) for nt in range(2) for u in range(4) for hh in range(2)]
        for k, (i, nt) in enumerate(seq):
            pv(i, nt)
            if k in (1, 4): ad()
            if k >= 8:
                u, n2, hh = ev.pop(0); cvt2(qp(u, n2), u, n2, hh)
                if hh: ost(u, n2)
        while ev:
            u, n2, hh = ev.pop(0); cvt2(qp(u, n2), u, n2, hh)
            if hh: ost(u, n2)
    stamp(a, 18, opt)
    a("s_barrier")
    VL = 2; VRR = 3; VRW = [8, 9, 10]; VOUT = 11; VZ = 12; VNV = 13; VFL = 14; VFA = 15; VLO = 15
    nfirst = min(len(rest), len(late_slots))
    slot_of = {rest[i]: late_slots[i] for i in range(nfirst)}
    for _ in range(opt.pre_flag):
        if lq: dma_wo(*lq.pop(0))
    a(f"s_cmp_lg_u32 s{S_NONCE}, 0")
    a("s_cbranch_scc1 L_havenonce")
    a(f"s_mov_b32 s{S_CNT}, 0")
    a("v_mov_b32 v240, 0")
    a.label("L_nonce_spin")
    a(f"buffer_load_dword v{VNON}, v240, {srd(SDBG)}, 0 offen sc1")
    a("s_waitcnt vmcnt(0)")
    a(f"v_readfirstlane_b32 s{S_NONCE}, v{VNON}")
    a(f"s_add_u32 s{S_CNT}, s{S_CNT}, 1")
    a(f"s_cmp_gt_u32 s{S_CNT}, {SPIN_MAX}")
    a("s_cbranch_scc1 L_havenonce")
    a(f"s_cmp_eq_u32 s{S_NONCE}, 0")
    a("s_cbranch_scc1 L_nonce_spin")
    a.label("L_havenonce")
    a(f"v_mov_b32 v{VL}, v{VL16}")
    for sl in range(1, 4):
        a(f"s_add_u32 s{T}, s{S_W}, {sl}")
        a(f"s_and_b32 s{T}, s{T}, 3")
        a(f"s_mul_i32 s{T}, s{T}, 12288")
        a(f"s_add_u32 s{T}, s{T}, {(sl-1)*4096}")
        a(f"v_add_u32 v{VRW[sl-1]}, s{T}, v{VL16}")
    a(f"s_mul_i32 s{T}, s{S_W}, 12288")
    a(f"v_add_u32 v{VRR}, s{T}, v{VL16}")
    if opt.fl4:
        a(f"v_lshrrev_b32 v{VZ}, 3, v0")
        a(f"v_lshlrev_b32 v{VZ}, 25, v{VZ}")
        a(f"v_lshl_add_u32 v{VZ}, v0, 4, v{VZ}")
        for e in range(4): a(f"v_mov_b32 v{236+e}, s{S_NONCE}")
    else:
        a(f"v_lshrrev_b32 v{VZ}, 5, v0")
        a(f"v_lshlrev_b32 v{VZ}, 25, v{VZ}")
        a(f"v_lshl_add_u32 v{VZ}, v0, 2, v{VZ}")
    a(f"v_mov_b32 v{VNV}, s{S_NONCE}")
    a(f"v_and_b32 v{VFA}, 7, v0")
    a(f"v_lshlrev_b32 v{VFA}, 7, v{VFA}")
    a(f"v_and_b32 v{VOUT}, 31, v0")
    a(f"v_lshlrev_b32 v{VOUT}, 12, v{VOUT}")
    a(f"v_lshrrev_b32 v240, 5, v0")
    a(f"v_lshl_add_u32 v{VOUT}, v240, 4, v{VOUT}")
    a(f"v_and_b32 v241, 15, v0")
    a(f"v_lshlrev_b32 v241, 4, v241")
    a(f"v_lshl_add_u32 v241, v240, 8, v241")
    a(f"v_bfe_u32 v240, v0, 4, 1")
    a(f"v_lshl_add_u32 v241, v240, 10, v241")
    ri = nfirst
    resident = list(w_early)
    free_slots = []
    def issued_fully(pos): return pos in slot_of and not any(q[0] == pos for q in lq)
    def assign_more():
        nonlocal ri
        while ri < len(rest) and free_slots:
            sl = free_slots.pop(0); slot_of[rest[ri]] = sl
            for j in range(4): lq.append((rest[ri], j, sl))
            ri += 1
    def tr_piece(pos):
        for g in tr_wo_items(pos, slot_of[pos]): g()
        resident.append(pos); free_slots.append(slot_of[pos])
    todo = list(rest)
    while todo and issued_fully(todo[0]) and a._cnt(a.vm, ("wo", todo[0])) < a.vm.index("o"):
        tr_piece(todo.pop(0))
    if a.lg: a.wait_lg_all()
    assign_more()
    a.wait_vm("o")
    if opt.fl4: a.vmem(f"buffer_store_dwordx4 v[236:239], v{VZ}, {srd(SWS)}, s{S_FOW} offen sc1", "flag")
    else: a.vmem(f"buffer_store_dword v{VNV}, v{VZ}, {srd(SWS)}, s{S_FOW} offen sc1", "flag")
    stamp(a, 19, opt)
    if opt.diag:
        a.wait_vm_all(); stamp(a, 32, opt)
        a(f"s_mov_b32 s{S_CNT}, 0")
        a.label("L_dp")
        a(f"buffer_load_dword v{VFL}, v{VFA}, {srd(SWS)}, s{S_FOR} offen sc1")
        a("s_waitcnt vmcnt(0)")
        a(f"v_cmp_ne_u32 vcc, s{S_NONCE}, v{VFL}")
        a(f"s_add_u32 s{S_CNT}, s{S_CNT}, 1")
        a(f"s_cmp_gt_u32 s{S_CNT}, {SPIN_MAX}")
        a(f"s_cbranch_scc1 L_dpd")
        a("s_nop 1")
        a(f"s_cbranch_vccnz L_dp")
        a.label("L_dpd")
        stamp(a, 33, opt)
        for k in range(5):
            for _ in range(8):
                if lq: dma_wo(*lq.pop(0))
            a("s_waitcnt vmcnt(0)")
            stamp(a, 34 + k, opt)
    if opt.pipe:
        nis = 0; polled = False
        def inflight(): return sum(1 for p in todo if issued_fully(p))
        while lq or ri < len(rest):
            if lq and inflight() < opt.pipe:
                for _ in range(4): dma_wo(*lq.pop(0))
                nis += 1
                if nis == opt.poll_at:
                    a.vmem(f"buffer_load_dword v{VFL}, v{VFA}, {srd(SWS)}, s{S_FOR} offen sc1", "poll"); polled = True
            else:
                tr_piece(todo.pop(0))
                if ri < len(rest) and len(lq) <= 4:
                    a.wait_lg_all(); assign_more()
        if not polled: a.vmem(f"buffer_load_dword v{VFL}, v{VFA}, {srd(SWS)}, s{S_FOR} offen sc1", "poll")
    else:
        for _ in range(opt.pre_poll):
            if lq: dma_wo(*lq.pop(0))
        a.vmem(f"buffer_load_dword v{VFL}, v{VFA}, {srd(SWS)}, s{S_FOR} offen sc1", "poll")
        for _ in range(opt.post_poll):
            if lq: dma_wo(*lq.pop(0))
        while todo and issued_fully(todo[0]) and a._cnt(a.vm, ("wo", todo[0])) < a.vm.index("poll"):
            tr_piece(todo.pop(0))
        if a.lg: a.wait_lg_all()
        assign_more()
    S_OS = S_QW
    def obase(n):
        a(f"s_lshl_b32 s{T+2}, s{S_Q[n]}, 18")
        a(f"s_add_u32 s{T+2}, s{T+2}, s{S_OB}")
        for jg in range(4): a(f"s_add_u32 s{S_OS[jg]}, s{T+2}, s{S_OG[jg]}")
    obase(0)
    stamp(a, 20, opt)
    a(f"s_mov_b32 s{S_CNT}, 0")
    a.wait_vm("poll")
    a.label("L_pollo")
    a(f"v_cmp_ne_u32 vcc, s{S_NONCE}, v{VFL}")
    a(f"s_add_u32 s{S_CNT}, s{S_CNT}, 1")
    a(f"s_cmp_gt_u32 s{S_CNT}, {SPIN_MAX}")
    a(f"s_cbranch_scc1 L_pollo_done")
    a("s_nop 1")
    a(f"s_cbranch_vccz L_pollo_done")
    a(f"buffer_load_dword v{VFL}, v{VFA}, {srd(SWS)}, s{S_FOR} offen sc1")
    a("s_waitcnt vmcnt(0)")
    a("s_branch L_pollo")
    a.label("L_pollo_done")
    if opt.stamps: a(f"v_writelane_b32 v{VSTAMP}, s{S_CNT}, 62")
    stamp(a, 21, opt)
    assert ri == len(rest)
    AC = 16; TMP = 80; OF = [128, 192]
    def load_o(n, f):
        a.vmem(f"buffer_load_dwordx4 {vr(OF[n&1]+4*f,4)}, v{VLO}, {srd(SWS)}, s{S_OS[f>>2]} offen offset:{((f&3)>>1)*2048 + (f&1)*512} sc1", ("o", n, f))
    a(f"v_mov_b32 v{VLO}, v241")
    korder0 = resident + todo
    assert sorted(korder0) == list(range(16))
    INIT = opt.init_o
    for f in korder0[:INIT]: load_o(0, f)
    while todo and issued_fully(todo[0]): tr_piece(todo.pop(0))
    NG = opt.fmt
    assert NG == 2
    PT = OF[0]; PK = TMP + 16; PU = PT + 40; PS = PT + 44; S_HSEL = S_HX
    S_SEL = [S_QX[0], S_QX[1]]; S_ZSEL = S_QX[2]; S_M3 = S_QX[3]; S_MSK = S_HW
    VBAD, VPL = 12, 14
    VTG = [4, 5, 6, 7]
    dslot = [0, 1, 2, 4, 5, 6, 8, 9] if NG == 3 else list(range(8))
    PL = 131072
    def wr(n, sl, j):
        a.lds(f"ds_write_b128 v{VRW[sl-1]}, {vr(AC+16*sl+4*j,4)} offset:{(n&1)*49152 + j*1024}", "rw")
    def rd(n, k):
        a.lds(f"ds_read_b128 {vr(TMP+4*k,4)}, v{VRR} offset:{(n&1)*49152 + k*1024}", ("rr", k))
    def presum(src, j):
        a.wait_lg([("rr", j), ("rr", 4*src+j)])
        for e in range(4): a(f"v_add_f32 v{TMP+4*j+e}, v{TMP+4*j+e}, v{TMP+16*src+4*j+e}")
    def fin(j):
        for e in range(4): a(f"v_add_f32 v{TMP+4*j+e}, v{TMP+4*j+e}, v{AC+4*j+e}")
    def pack_items(gr):
        if NG == 3:
            def g():
                for p in range(3*gr, min(3*gr+3, 8)):
                    a(f"v_cvt_pk_bf16_f32 v{PK+dslot[p]}, v{TMP+2*p}, v{TMP+2*p+1}")
                a(f"v_mov_b32 v{PK+4*gr+3}, s{S_NONCE}")
                if gr == 2: a(f"v_mov_b32 v{PK+10}, s{S_NONCE}")
            return [g]
        def g1():
            for p in range(4*gr, 4*gr+4): a(f"v_perm_b32 v{PK+p}, v{TMP+2*p+1}, v{TMP+2*p}, s{S_HSEL}")
        def g2():
            for p in range(4*gr, 4*gr+4): a(f"v_bfi_b32 v{PK+p}, s{S_MSK}, v{VTG[p&3]}, v{PK+p}")
        return [g1, g2]
    def pst(n, j):
        if j == 0:
            a(f"s_lshl_b32 s{T+3}, s{S_Q[n]}, 15")
            a(f"s_add_u32 s{T+3}, s{T+3}, s{S_PB}")
        a.vmem(f"buffer_store_dwordx4 {vr(PK+4*j,4)}, v{VL}, {srd(SWS)}, s{T+3} offen offset:{j*1024} sc1", ("p", n))
    def pld(k, j, track=True):
        if j == 0:
            a(f"s_lshl_b32 s{T+4}, s{S_Q[k]}, 13")
            a(f"s_add_u32 s{T+4}, s{T+4}, s{S_PR}")
        ins = f"buffer_load_dwordx4 {vr(PT+12*k+4*j,4)}, v{VL}, {srd(SWS)}, s{T+4} offen offset:{j*1024} sc1"
        if track: a.vmem(ins, ("pp", k))
        else: a(ins)
    def chk_items(k):
        b = PT + 12*k
        if NG == 3:
            def g():
                a(f"v_xor_b32 v{VBAD}, s{S_NONCE}, v{b+3}")
                a(f"v_bitop3_b32 v{VBAD}, v{VBAD}, v{b+7}, s{S_NONCE} bitop3:0xf6")
                a(f"v_bitop3_b32 v{VBAD}, v{VBAD}, v{b+11}, s{S_NONCE} bitop3:0xf6")
                a(f"v_cmp_ne_u32 vcc, 0, v{VBAD}")
            return [g]
        def g1():
            a(f"v_xor_b32 v{VBAD}, v{VTG[0]}, v{b}")
            for p in range(1, 5): a(f"v_bitop3_b32 v{VBAD}, v{VBAD}, v{b+p}, v{VTG[p&3]} bitop3:0xf6")
        def g2():
            for p in range(5, 8): a(f"v_bitop3_b32 v{VBAD}, v{VBAD}, v{b+p}, v{VTG[p&3]} bitop3:0xf6")
            a(f"v_and_b32 v{VBAD}, s{S_MSK}, v{VBAD}")
            a(f"v_cmp_ne_u32 vcc, 0, v{VBAD}")
        return [g1, g2]
    def mid_items(k):
        if NG == 3: return []
        def g(h):
            for p in range(4*h, 4*h+4): a(f"v_or_b32 v{PT+12*k+p}, s{S_MSK}, v{PT+12*k+p}")
        return [lambda: g(0), lambda: g(1)]
    def sel(k):
        a("s_cmp_eq_u64 vcc, 0")
        a(f"s_cselect_b32 s{S_SEL[0]}, 0x01000c0c, s{S_ZSEL}")
        a(f"s_cselect_b32 s{S_SEL[1]}, 0x03020c0c, s{S_ZSEL}")
        a(f"s_cselect_b32 s{T+5}, {1<<k}, 0")
        a(f"s_or_b32 s{S_DONE}, s{S_DONE}, s{T+5}")
    def unp_set(k, p2):
        for p in (2*p2, 2*p2+1):
            for h in range(2):
                d = PT + 12*k + dslot[p]
                a(f"v_perm_b32 v{PS+2*p+h}, v{d}, v{d}, s{S_SEL[h]}")
    def unp_add(k, p, dst):
        d = PT + 12*k + dslot[p]
        for h in range(2): a(f"v_perm_b32 v{PU+h}, v{d}, v{d}, s{S_SEL[h]}")
        for h in range(2): a(f"v_add_f32 v{dst+2*p+h}, v{dst+2*p+h}, v{PU+h}")
    def bar():
        if a.lg: a.wait_lg_all()
        a("s_barrier")
    def consts():
        a(f"s_mov_b32 s{S_ZSEL}, 0x0c0c0c0c")
        a(f"s_mov_b32 s{S_DONE}, 0")
        a(f"s_add_u32 s{S_M3}, s{S_MK}, {PL}")
        a(f"v_add_u32 v{VPL}, s{S_M3}, v{VL}")
        a(f"s_mov_b32 s{S_MSK}, 0x00010001")
        a(f"s_mov_b32 s{S_HSEL}, 0x07060302")
    def tags(h):
        if h == 0:
            a(f"v_and_b32 v{VTG[0]}, 3, v0")
            a(f"v_lshlrev_b32 v{VTG[0]}, 2, v{VTG[0]}")
            a(f"v_lshrrev_b32 v{VTG[0]}, v{VTG[0]}, v{VNV}")
        else:
            for p in range(1, 4): a(f"v_lshrrev_b32 v{VTG[p]}, {p}, v{VTG[0]}")
    consts()
    carry = []
    ro = [0, 4, 8, 1, 5, 9, 2, 6, 10, 3, 7, 11]
    ps = [(src, j) for j in range(4) for src in (1, 2)]
    packs = lambda: [g for gr in range(NG) for g in pack_items(gr)]
    for n in range(4):
        a.c(f"---- strip {n}")
        allres = not todo and not lq if n == 0 else allres
        if n == 0 and allres: seq = [(ks, sl) for ks in korder0 for sl in (1, 2)] + [(ks, sl) for sl in (3, 0) for ks in korder0]
        elif n == 0: seq = [(ks, sl) for ks in korder0 for sl in (1, 2, 3)] + [(ks, 0) for ks in korder0]
        elif n == 1: seq = [(ks, sl) for ks in range(16) for sl in (1, 2)] + [(ks, sl) for sl in (3, 0) for ks in range(16)]
        else: seq = [(ks, sl) for sl in (1, 2, 3, 0) for ks in range(16)]
        at = {}
        def put(g, fn): at.setdefault(g, []).append(fn)
        for g, fn in carry: put(g, fn)
        carry = []
        if n == 0:
            mq = []
            of = korder0[INIT:]
            wl = list(lq); lq.clear()
            while of or wl:
                for _ in range(opt.mq_w):
                    if wl: mq.append(lambda w=wl.pop(0): dma_wo(*w))
                if of: mq.append(lambda f=of.pop(0): load_o(0, f))
            g = 0
            for fn in mq:
                put(g // opt.mq_den, fn); g += opt.mq_num
            gq = g // opt.mq_den + 1
            for i, pos in enumerate(korder0):
                if pos in todo:
                    its = tr_wo_items(pos, slot_of[pos])
                    for k2, fn in enumerate(its): put(3 * i - 4 + (k2 >> 1), fn)
            if todo: gq = max(gq, 20)
            def place(g, fn):
                if g < 64: put(g, fn)
                else: carry.append((g - 64, fn))
            g = gq - 1
            place(g, lambda: obase(1)); g += 1
            for f in range(16): place(g, lambda f=f: load_o(1, f)); g += 2
            g = max(g, 65)
            g += (g & 1) ^ 1
            place(g, lambda: obase(2)); g += 1
            for f in range(16): place(g, lambda f=f: load_o(2, f)); g += 2
            place(g - 1, lambda: obase(3))
            gend = g - 64
            g = 1
            if allres:
                put(32, bar)
                put(33, lambda: tags(0) or a("s_nop 0"))
                put(34, lambda: tags(1))
                for i, (sl, j) in enumerate([(sl, j) for sl in (1, 2) for j in range(4)]): put(36 + i + (i >> 1), lambda sl=sl, j=j: wr(n, sl, j))
                put(48, lambda: a("s_nop 3"))
                put(49, lambda: a("s_nop 4"))
                for j in range(4): put(50 + 2 * j, lambda j=j: wr(n, 3, j))
                put(58, bar)
                for i in range(6): put(58 + i, lambda i=i: (rd(0, ro[2*i]), rd(0, ro[2*i+1])))
            else:
                put(47, bar)
                put(48, lambda: tags(0) or a("s_nop 0"))
                put(49, lambda: tags(1))
                for i, (sl, j) in enumerate([(sl, j) for sl in (1, 2) for j in range(4)]): put(50 + i + (i >> 1), lambda sl=sl, j=j: wr(n, sl, j))
                put(62, lambda: wr(0, 3, 0))
                put(63, lambda: a.wait_lg_all())
                for j in range(1, 4): carry.append((2 * j - 1, lambda j=j: wr(0, 3, j)))
                carry.append((7, bar))
                g = 7
                for i in range(6):
                    carry.append((g, lambda i=i: (rd(0, ro[2*i]), rd(0, ro[2*i+1])))); g += 1
            work = [lambda i=i: presum(*ps[i]) for i in range(8)] + [lambda j=j: fin(j) for j in range(4)] + packs()
            for fn in work: carry.append((g, fn)); g += 2
            assert g <= 47
            gs = max(gend, g)
            assert gs + NG <= 58, gs
            for j in range(NG): carry.append((gs + j, lambda j=j: pst(0, j)))
            left = []
        else:
            fast = n >= 2
            if n == 1:
                for i, (sl, j) in enumerate([(sl, j) for sl in (1, 2) for j in range(4)]): put(36 + i + (i >> 1), lambda sl=sl, j=j: wr(n, sl, j))
            else:
                if n == 2:
                    for f in range(16): put(opt.g_o3 + 2 * f, lambda f=f: load_o(3, f))
                    def pdma(j):
                        if j == 0:
                            a(f"s_lshl_b32 s{T+4}, s{S_Q[2]}, 13")
                            a(f"s_mov_b32 m0, s{S_M3}")
                            a(f"s_add_u32 s{T+4}, s{T+4}, s{S_PR}")
                        a.vmem(f"buffer_load_dwordx4 v{VL}, {srd(SWS)}, s{T+4} offen offset:{j*1024} sc1 lds", "pdma")
                    for j in range(NG): put(opt.g_p2 + 2 * j, lambda j=j: pdma(j))
                    if opt.g_ot >= 0:
                        assert opt.g_ot < opt.g_p2
                        put(opt.g_ot, lambda: a.vmem(f"buffer_load_dword v{VBAD}, v{VOUT}, {srd(SOUT)}, s{S_OUTB} offen", "otouch"))
                for j in range(4): put(32 + 2 * j, lambda j=j: wr(n, 1, j))
                for j in range(4): put(41 + 2 * j, lambda j=j: wr(n, 2, j))
            put(48, lambda: a("s_nop 3"))
            put(49, lambda: a("s_nop 4" if n == 1 else "s_nop 3"))
            if fast:
                for j in range(4): put(50 + j, lambda j=j: wr(n, 3, j))
                gb = 55
            else:
                for j in range(4): put(50 + 2 * j, lambda j=j: wr(n, 3, j))
                gb = 58
            put(gb, bar)
            for i in range(6):
                put(gb + i, lambda i=i: (rd(n, ro[2*i]), rd(n, ro[2*i+1])))
            npre_s = 63 - (gb + 5)
            for i in range(npre_s): put(gb + 6 + i, lambda i=i: presum(*ps[i]))
            left = [lambda i=i: presum(*ps[i]) for i in range(npre_s, 8)]
            if n == 1:
                g = 1
                for fn in left + [lambda j=j: fin(j) for j in range(4)] + packs(): carry.append((g, fn)); g += 2
                assert opt.g_s1 >= g - 2, g
                for j in range(NG): carry.append((opt.g_s1 + 2 * j, lambda j=j: pst(1, j)))
            if n == 2:
                if opt.dense:
                    rem = list(range(npre_s, 8))
                    pre = lambda js: [(lambda i=i: presum(*ps[i])) for i in rem if ps[i][1] in js]
                    its = pre((0, 1)) + pre((2,)) + [lambda: fin(0), lambda: fin(1)] + pack_items(0) + ["s0"] + pre((3,)) + [lambda: fin(2), lambda: fin(3)] + pack_items(1) + ["s1"]
                    h = 0
                    for it in its:
                        if isinstance(it, str):
                            carry.append((h // 3, lambda j=int(it[1]): pst(2, j))); h += 2
                        else:
                            carry.append((h // 3, it)); h += opt.dense
                    g = h // 3 + 1
                else:
                    g = NG if opt.g_p1 == 0 else 0
                    for fn in left + [lambda j=j: fin(j) for j in range(4)]: carry.append((g, fn)); g += 1
                    for j in range(NG):
                        for fn in pack_items(j): carry.append((g, fn)); g += 1
                        carry.append((g, lambda j=j: pst(2, j))); g += 1
                gfree = g
            if n == 3:
                for j in range(NG): put(opt.g_p1 + j, lambda j=j: pld(1, j))
                def prd():
                    a.wait_vm("pdma")
                    for j in range(NG):
                        a.lds(f"ds_read_b128 {vr(PT+24+4*j,4)}, v{VPL} offset:{j*1024}", "prd")
                g = gfree
                put(g - 3, prd)
                put(g, lambda: a.wait_lg("prd"))
                for fn in chk_items(2): put(g, fn); g += 1
                put(g, lambda: sel(2)); g += 1
                for fn in mid_items(2): put(g, fn); g += 1
                for p2 in range(4): put(g, lambda p2=p2: unp_set(2, p2)); g += 1
                g = max(g, opt.g_c1)
                put(g, lambda: a.wait_vm(("pp", 1)))
                for fn in chk_items(1): put(g, fn); g += 1
                put(g, lambda: sel(1)); g += 1
                for fn in mid_items(1) + [lambda p=p: unp_add(1, p, PS) for p in range(8)]:
                    while g in (32, 34, 36, 38, 41, 43, 45, 47) or 50 <= g <= 53: g += 1
                    put(g, fn); g += 1
                assert g <= 56, g
                for j in range(NG): put(opt.g_p0 + j, lambda j=j: pld(0, j))
        seen = set()
        if n >= 2: a.wait_vm(("o", n, 15))
        for g, (ks, sl) in enumerate(seq):
            if ks not in seen:
                a.wait_vm(("o", n, ks)); seen.add(ks)
                if n == 0: a.wait_lg(("wo", ks))
            first = (ks == korder0[0]) if n == 0 else (ks == 0)
            c = "0" if first else vr(AC+16*sl, 16)
            if opt.fakeB:
                q = 8 * (g & 1)
                k2 = (ks ^ 1) if (ks ^ 1) in seen else ks
                d0, d1 = vr(AC+16*sl+q, 4), vr(AC+16*sl+q+4, 4)
                z = g % 16 < 2 and n > 0 and False
                a(f"{M16} {d0}, {ar(16*ks+4*sl,4)}, {vr(OF[n&1]+4*ks,4)}, {'0' if first else d0}")
                p0 = len(a.L)
                for fn in at.get(g, []): fn()
                mid = p0 + (len(a.L) - p0) // 2
                a.L.insert(mid, f"    {M16} {d1}, {ar(16*ks+4*sl,4)}, {vr(OF[n&1]+4*k2,4)}, {'0' if first else d1}")
            else:
                a(f"{MF} {vr(AC+16*sl,16)}, {ar(16*ks+4*sl,4)}, {vr(OF[n&1]+4*ks,4)}, {c}")
                for fn in at.get(g, []): fn()
            if n == opt.sst and g % 8 == 7 and g < 63: stamp(a, 32 + g // 8, opt)
        stamp(a, 22 + n, opt)
    for fn in left: fn()
    for j in range(4): fin(j)
    if opt.lean:
        a(f"s_mov_b32 s{S_SEL[0]}, 0x00010000")
        a(f"v_mov_b32 v{AC+48}, 0xffff0000")
    else:
        a(f"s_mov_b32 s{S_SEL[0]}, 0x01000c0c")
        a(f"s_mov_b32 s{S_SEL[1]}, 0x03020c0c")
    if opt.outtr == 2:
        a(f"v_and_b32 v{PU+2}, 31, v0")
        a(f"v_mul_u32_u24 v{PU+2}, 272, v{PU+2}")
        a(f"v_lshrrev_b32 v{PU+3}, 5, v0")
        a(f"v_lshl_add_u32 v{PU+2}, v{PU+3}, 4, v{PU+2}")
        a(f"s_lshl_b32 s{T+6}, s{S_W}, 6")
        a(f"s_add_u32 s{T+7}, s{T+6}, 98304")
        a(f"v_add_u32 v{PU+2}, s{T+7}, v{PU+2}")
        a(f"v_lshrrev_b32 v{PU}, 4, v0")
        a(f"v_and_b32 v{PU+1}, 15, v0")
        a(f"v_lshlrev_b32 v{PU+1}, 4, v{PU+1}")
        a(f"v_lshl_add_u32 v{PU+3}, v{PU}, 12, v{PU+1}")
        a(f"v_mul_u32_u24 v{VPL}, 272, v{PU}")
        a(f"v_add_u32 v{VPL}, v{VPL}, v{PU+1}")
        a(f"s_mul_i32 s{T+7}, s{S_W}, {8*272}")
        a(f"s_add_u32 s{T+7}, s{T+7}, 98304")
        a(f"v_add_u32 v{VPL}, s{T+7}, v{VPL}")
        a(f"s_sub_u32 s{T+6}, s{S_OUTB}, s{T+6}")
        a(f"s_lshl_b32 s{T+7}, s{S_W}, 15")
        a(f"s_add_u32 s{T+6}, s{T+6}, s{T+7}")
        a(f"s_add_u32 s{T+7}, s{T+6}, 16384")
    elif opt.outtr:
        a(f"v_and_b32 v{PU+2}, 31, v0")
        a(f"v_lshlrev_b32 v{PU+2}, 6, v{PU+2}")
        a(f"v_lshrrev_b32 v{PU+3}, 5, v0")
        a(f"v_lshl_add_u32 v{PU+2}, v{PU+3}, 4, v{PU+2}")
        a(f"v_add_u32 v{PU+2}, s{S_M3}, v{PU+2}")
        a(f"v_lshrrev_b32 v{PU+3}, 2, v0")
        a(f"v_lshlrev_b32 v{PU+3}, 12, v{PU+3}")
        a(f"v_and_b32 v{PU}, 3, v0")
        a(f"v_lshl_add_u32 v{PU+3}, v{PU}, 4, v{PU+3}")
        a(f"s_add_u32 s{T+6}, s{S_OUTB}, 65536")
    stamp(a, 26, opt)
    a(f"s_mov_b32 s{S_CNT}, 0")
    for k in (0, 1, 2):
        if k:
            a(f"s_bitcmp1_b32 s{S_DONE}, {k}")
            a(f"s_cbranch_scc1 L_skip{k}")
            a(f"s_branch L_rel{k}")
        else:
            a.wait_vm(("pp", 0))
        a.label(f"L_chk{k}")
        for fn in chk_items(k): fn()
        a(f"s_add_u32 s{S_CNT}, s{S_CNT}, 1")
        a(f"s_cmp_gt_u32 s{S_CNT}, {SPIN_MAX}")
        a(f"s_cbranch_scc1 L_ok{k}")
        a("s_nop 1")
        a(f"s_cbranch_vccz L_ok{k}")
        a.label(f"L_rel{k}")
        for j in range(NG): pld(k, j, track=False)
        a("s_waitcnt vmcnt(0)")
        a(f"s_branch L_chk{k}")
        a.label(f"L_ok{k}")
        if opt.lean:
            for p in range(8):
                d = PT + 12*k + p; t = AC + 32 + 2*p
                a(f"v_lshl_or_b32 v{t}, v{d}, 16, s{S_SEL[0]}")
                a(f"v_and_or_b32 v{t+1}, v{d}, v{AC+48}, s{S_SEL[0]}")
            for p in range(8): a(f"v_pk_add_f32 {vr(PS+2*p,2)}, {vr(PS+2*p,2)}, {vr(AC+32+2*p,2)}")
        else:
            for fn in mid_items(k): fn()
            for p in range(8): unp_add(k, p, PS)
        a.label(f"L_skip{k}")
    if opt.lean:
        for p in range(8): a(f"v_pk_add_f32 {vr(TMP+2*p,2)}, {vr(TMP+2*p,2)}, {vr(PS+2*p,2)}")
    else:
        for e in range(16): a(f"v_add_f32 v{TMP+e}, v{TMP+e}, v{PS+e}")
    stamp(a, 27, opt)
    for p in range(8):
        a(f"v_cvt_pk_bf16_f32 v{AC+p}, v{TMP+2*p}, v{TMP+2*p+1}")
    if opt.outtr == 2:
        a(f"ds_write_b128 v{PU+2}, {vr(AC,4)}")
        a(f"ds_write_b128 v{PU+2}, {vr(AC+4,4)} offset:32")
        a("s_waitcnt lgkmcnt(0)")
        a("s_barrier")
        a(f"ds_read_b128 {vr(AC+8,4)}, v{VPL}")
        a(f"ds_read_b128 {vr(AC+12,4)}, v{VPL} offset:{4*272}")
        a("s_waitcnt lgkmcnt(1)")
        a(f"buffer_store_dwordx4 {vr(AC+8,4)}, v{PU+3}, {srd(SOUT)}, s{T+6} offen {opt.outaux}")
        a("s_waitcnt lgkmcnt(0)")
        a(f"buffer_store_dwordx4 {vr(AC+12,4)}, v{PU+3}, {srd(SOUT)}, s{T+7} offen {opt.outaux}")
    elif opt.outtr:
        a(f"ds_write_b128 v{PU+2}, {vr(AC,4)}")
        a(f"ds_write_b128 v{PU+2}, {vr(AC+4,4)} offset:32")
        a("s_waitcnt lgkmcnt(0)")
        a(f"ds_read_b128 {vr(AC+8,4)}, v{VPL}")
        a(f"ds_read_b128 {vr(AC+12,4)}, v{VPL} offset:1024")
        a("s_waitcnt lgkmcnt(1)")
        a(f"buffer_store_dwordx4 {vr(AC+8,4)}, v{PU+3}, {srd(SOUT)}, s{S_OUTB} offen {opt.outaux}")
        a("s_waitcnt lgkmcnt(0)")
        a(f"buffer_store_dwordx4 {vr(AC+12,4)}, v{PU+3}, {srd(SOUT)}, s{T+6} offen {opt.outaux}")
    else:
        a(f"buffer_store_dwordx4 {vr(AC,4)}, v{VOUT}, {srd(SOUT)}, s{S_OUTB} offen")
        a(f"buffer_store_dwordx4 {vr(AC+4,4)}, v{VOUT}, {srd(SOUT)}, s{S_OUTB} offen offset:32")
    if opt.stamps:
        a("s_waitcnt vmcnt(0)")
        stamp(a, 28, opt)
        a(f"v_writelane_b32 v{VSTAMP}, s{S_CNT}, 63")
        dump_stamps(a, opt)
    if opt.amp:
        a("s_waitcnt vmcnt(0)")
        stamp(a, 28, opt)
        a("s_nop 1")
        a(f"v_readlane_b32 s4, v{VSTAMP}, 0")
        a(f"v_readlane_b32 s5, v{VSTAMP}, 1")
        a("s_memrealtime s[30:31]")
        a("s_waitcnt lgkmcnt(0)")
        a("s_sub_u32 s5, s5, s4")
        a("s_min_u32 s5, s5, 10000")
        a("s_lshl_b32 s5, s5, 3")
        a("s_add_u32 s6, s30, s5")
        a.label("L_amp")
        a("s_sleep 1")
        a("s_memrealtime s[30:31]")
        a("s_waitcnt lgkmcnt(0)")
        a("s_sub_u32 s7, s30, s6")
        a("s_cmp_lt_i32 s7, 0")
        a("s_cbranch_scc1 L_amp")
    a.label(end)
    a("s_endpgm")
    a.label("L_codeend")

Opt.fill0 = 12
Opt.rest = ""
Opt.att2 = True
Opt.scost = 60
Opt.sq = 0
Opt.light = False
Opt.g_ot = -1
Opt.half = True
Opt.wm = 2.2
Opt.bud = 9.6
Opt.ahead = 8
Opt.qmax = 12
Opt.qopp = 10
Opt.lat = 20.0
Opt.verbose = False
Opt.pipe = 3
Opt.poll_at = 10
Opt.fakeB = False
Opt.fakeD = False
Opt.amp = ""
Opt.fl4 = False
Opt.ptouch = 0
Opt.pt_stage = 14
Opt.otouch = -1
Opt.et = 0
Opt.etm = 63
Opt.touch = 1
Opt.mq_w = 2
Opt.rspan = 12
Opt.diag = False

def build(opt):
    nm = NAME + "_kernel"
    out = []
    out.append("; One persistent launch, one workgroup per CU (generated by a script of my own):")
    out.append(";   phase 2  o[128 rows, 8 heads] @ wo[8 heads, 128 cols]; three of the four row strips go to the")
    out.append(";            owning workgroups as tagged tiles in d_ws, the own strip is finished last and stored")
    out.append("; @launch grid=(256,1,1) block=(256,1,1) lds=163840")
    out.append('.amdgcn_target "amdgcn-amd-amdhsa--gfx950"')
    out.append(".text")
    a = Asm()
    gen(a, opt)
    out.append(f".globl {nm}\n.p2align 8\n.type {nm},@function\n{nm}:")
    out.append(a.text())
    out.append('.section .rodata,"a"')
    out.append(f""".p2align 6
.amdhsa_kernel {nm}
  .amdhsa_next_free_vgpr 512
  .amdhsa_next_free_sgpr 102
  .amdhsa_accum_offset 256
  .amdhsa_group_segment_fixed_size 0
  .amdhsa_kernarg_size 104
  .amdhsa_user_sgpr_count 2
  .amdhsa_user_sgpr_kernarg_segment_ptr 1
  .amdhsa_system_sgpr_workgroup_id_x 1
.end_amdhsa_kernel
""")
    return "\n".join(out)

if __name__ == "__main__":
    opt = Opt()
    for kv in sys.argv[2:]:
        k, v = kv.split("=")
        cur = getattr(opt, k)
        setattr(opt, k, (v == "1") if isinstance(cur, bool) else type(cur)(v))
    t = build(opt)
    open(sys.argv[1], "w").write(t)
```

```python
import sys, struct
from asmlib import *

NAME = "concat_heads__mha_block_cached__gqa_block_cached__near_ridge"
def f32(x): return "0x%08x" % struct.unpack("<I", struct.pack("<f", x))[0]

PART_BASE = 8 << 20
FO_BASE = 24 << 20
STAMP_BASE = 28 << 20
WS_USED = 32 << 20
SPIN_MAX = 100000

SX, SK, SV, SWQ, SWO, SWS, SOUT, SDBG = 32, 36, 40, 44, 48, 52, 56, 60
S_W, S_BR, S_G, S_HL, S_R, S_B = 64, 65, 66, 67, 68, 69
S_T = 70
S_MX, S_LAM, S_KV, S_MW, S_MK, S_C = 78, 79, 80, 81, 82, 83
S_NONCE, S_CNT, S_DONE = 84, 85, 86
S_SO = 87
S_QW = [88, 89, 90, 91]; S_QX = [92, 93, 94, 95]
S_HW, S_HX = 96, 97
S_U = 98
S_WOG = [4, 5, 6, 7]; S_OG = [8, 9, 10, 11]; S_Q = [12, 13, 14, 15]
S_OB, S_PB, S_FOW, S_FOR, S_OUTB, S_PR = 16, 17, 18, 19, 20, 21
S_OW = [22, 23]

class Opt:
    nt_kv = "nt"
    stamps = False
    clk = "s_memrealtime"
    ab = ""
    ex = "K0,K1|V0,V1|W0,W1"
    mid = "||"
    lead = 2; bal = False; stag = False; hbit = 3
    n14 = 8; n15 = 0; natt = 0
    pre_flag = 0; pre_poll = 40; post_poll = 0
    codepf = True
    fill = 4
    coff = 1
    non_stage = -1
    init_o = 8
    mq_num = 2; mq_den = 1
    fmt = 2
    g_s1 = 33; g_p2 = 44; g_p1 = 0; g_c1 = 28; g_p0 = 56; g_o3 = 0
    sst = -1

VSTAMP = 1
def stamp(a, idx, opt):
    if opt.amp and str(idx) in opt.amp.split(","):
        a(f"s_memrealtime s[30:31]")
        a("s_waitcnt lgkmcnt(0)"); a.lg = []
        a(f"v_writelane_b32 v{VSTAMP}, s30, {opt.amp.split(',').index(str(idx))}")
    if opt.stamps and (not opt.light or idx in (0, 5, 9, 13, 17, 19, 21, 23, 25, 28)):
        a(f"{opt.clk} s[30:31]")
        a("s_waitcnt lgkmcnt(0)"); a.lg = []
        a(f"v_writelane_b32 v{VSTAMP}, s30, {idx}")

def dump_stamps(a, opt):
    a(f"s_lshl_b32 s{S_T}, s2, 2")
    a(f"s_add_u32 s{S_T}, s{S_T}, s{S_W}")
    a(f"s_lshl_b32 s{S_T}, s{S_T}, 8")
    a(f"s_add_u32 s{S_T}, s{S_T}, {STAMP_BASE}")
    a("v_lshlrev_b32 v2, 2, v0")
    a(f"buffer_store_dword v{VSTAMP}, v2, s[{SWS}:{SWS+3}], s{S_T} offen")
    a("s_waitcnt vmcnt(0)")

def seg_src(a, dst, rowstride_shift, t1, t2):
    a(f"v_lshrrev_b32 v{t1}, 4, v0")
    a(f"v_bfe_u32 v{t2}, v0, 2, 2")
    a(f"v_xor_b32 v{t2}, v{t2}, v{t1}")
    a(f"v_lshlrev_b32 v{t2}, 6, v{t2}")
    a(f"v_lshl_add_u32 v{dst}, v{t1}, {rowstride_shift}, v{t2}")
    a(f"v_and_b32 v{t2}, 3, v0")
    a(f"v_lshl_add_u32 v{dst}, v{t2}, 4, v{dst}")

def tr_base(a, dst, r4, t1):
    a(f"v_bfe_u32 v{r4}, v0, 2, 2")
    a(f"v_lshrrev_b32 v{t1}, 5, v0")
    a(f"v_lshl_add_u32 v{t1}, v{t1}, 3, v{r4}")
    a(f"v_lshlrev_b32 v{dst}, 8, v{t1}")
    a(f"v_bfe_u32 v{t1}, v0, 4, 1")
    a(f"v_lshl_add_u32 v{dst}, v{t1}, 5, v{dst}")
    a(f"v_and_b32 v{t1}, 1, v0")
    a(f"v_lshl_add_u32 v{dst}, v{t1}, 4, v{dst}")
    a(f"v_bfe_u32 v{t1}, v0, 1, 1")
    a(f"v_lshl_add_u32 v{dst}, v{t1}, 3, v{dst}")

MF = "v_mfma_f32_32x32x16_bf16"
M16 = "v_mfma_f32_16x16x32_bf16"
srd = lambda r: f"s[{r}:{r+3}]"

def sched(lam, opt):
    order = list(range(16))
    mpos = []
    for c in range(lam, 16, 4):
        p = order.index(c)
        q = max(0, p - opt.lead)
        if c < 4 and opt.bal: q = 0
        order.pop(p); order.insert(q, c)
        if c >= 4: mpos.append(q)
    if opt.stag:
        order = [(4 * lam + i) & 15 for i in range(16)]
        mpos = [2 + lam, 6 + lam, 10 + lam]
    extras = {}
    for j, lst in enumerate(opt.ex.split("|")):
        for pc in filter(None, lst.split(",")):
            extras.setdefault(mpos[j] - 2, []).append(pc)
    for j, lst in enumerate(opt.mid.split("|")):
        for pc in filter(None, lst.split(",")):
            extras.setdefault(mpos[j], []).append(pc)
    for it in filter(None, opt.ab.split(";")):
        st, lst = it.split(":")
        for pc in lst.split(","): extras.setdefault(int(st), []).append(pc)
    return order, extras

class Rec:
    def __init__(self): self.L = []
    def __call__(self, s): self.L.append(s)

def gen(a, opt):
    end = "L_end"
    T = S_T; U = S_U
    stamp(a, 0, opt)
    a("s_cmp_ge_u32 s2, 256")
    a(f"s_cbranch_scc1 {end}")
    a("s_load_dwordx16 s[4:19], s[0:1], 0")
    a("s_load_dwordx4 s[20:23], s[0:1], 64")
    a("s_load_dwordx4 s[24:27], s[0:1], 80")
    a("s_load_dwordx2 s[28:29], s[0:1], 96")
    a.c("seed of the per-launch hand-off tag (only workgroup 0's value is used)")
    a(f"s_memrealtime s[{T+6}:{T+7}]")
    if opt.codepf:
        a.c("prefetch of this kernel's own code into L2 (clamped to the code range)")
        a(f"s_getpc_b64 s[{U}:{U+1}]")
        a.label("L_pc")
        a(f"s_lshr_b32 s{T}, s2, 3")
        a(f"v_lshrrev_b32 v240, 4, v0")
        a(f"v_lshl_add_u32 v240, s{T}, 4, v240")
        a(f"v_lshlrev_b32 v240, 7, v240")
        a(f"v_min_u32 v240, L_codeend-L_pc-4, v240")
        a(f"v_mov_b32 v241, s{U+1}")
        a(f"v_add_co_u32 v240, vcc, s{U}, v240")
        a("s_nop 1")
        a(f"v_addc_co_u32 v241, vcc, 0, v241, vcc")
        a.vmem(f"global_load_dword v241, v[240:241], off", "cpf")
    a("v_lshrrev_b32 v2, 6, v0")
    a("v_and_b32 v0, 63, v0")
    a(f"v_readfirstlane_b32 s{S_W}, v2")
    a(f"s_and_b32 s{T}, s2, 7")
    a(f"s_lshr_b32 s{T+1}, s2, 3")
    if opt.xmap == 0:
        a(f"s_lshr_b32 s{S_BR}, s{T}, 2")
        a(f"s_and_b32 s{S_G}, s{T}, 3")
    else:
        a(f"s_and_b32 s{S_BR}, s{T}, 1")
        a(f"s_lshr_b32 s{S_G}, s{T}, 1")
    if opt.map == 0:
        a(f"s_and_b32 s{S_HL}, s{T+1}, 7")
        a(f"s_lshr_b32 s{S_R}, s{T+1}, 3")
    elif opt.map == 1:
        a(f"s_and_b32 s{S_R}, s{T+1}, 3")
        a(f"s_lshr_b32 s{S_HL}, s{T+1}, 2")
    elif opt.map == 2:
        a(f"s_lshr_b32 s{S_HL}, s{T+1}, 2")
        a(f"s_sub_u32 s{S_R}, s{T+1}, s{S_HL}")
        a(f"s_and_b32 s{S_R}, s{S_R}, 3")
    VKS, VVS = 2, 3
    VWO = [4, 5, 6, 7]
    VA = list(range(8, 16))
    ACC = 16
    FA = [80, 120]; FB = [112, 152]
    KF, VF = 160, 192
    QP, SS, PP = 80, 112, 128
    VWQ = [224, 225, 226, 227]; VX = [228, 229, 230, 231]; VB = [232, 233]
    TT = 240
    VWT = [244, 245, 246, 247]
    VKA, VL16, VTB, VR4, VNON, VT2 = 248, 249, 250, 251, 252, 253
    F1, F2 = 254, 255
    XR, KR, VR = 65536, 131072, 131072
    a(f"s_lshl_b32 s{S_B}, s{S_R}, 2")
    a(f"s_add_u32 s{S_B}, s{S_B}, s{S_W}")
    a(f"s_lshl_b32 s{T+4}, s{S_G}, 3")
    a(f"s_add_u32 s{T+4}, s{T+4}, s{S_HL}")
    a(f"s_lshl_b32 s{T}, s{S_W}, 17")
    a(f"s_lshl_b32 s{T+1}, s{T+4}, 8")
    a(f"s_add_u32 s{T}, s{T}, s{T+1}")
    a(f"s_lshl_b32 s{T+1}, s{S_B}, 16")
    a(f"s_lshr_b32 s{T+2}, s{S_HL}, {2 if opt.half else 3}")
    HB = opt.hbit
    S_WQB = S_QW[:2]; S_XB = S_QX[:2]
    a(f"s_lshl_b32 s{T+3}, s{T+2}, {19+HB}")
    a(f"s_add_u32 s{S_WQB[0]}, s{T}, s{T+3}")
    a(f"s_xor_b32 s{T+3}, s{T+3}, {1<<(19+HB)}")
    a(f"s_add_u32 s{S_WQB[1]}, s{T}, s{T+3}")
    a(f"s_lshl_b32 s{T+3}, s{T+2}, {7+HB}")
    a(f"s_add_u32 s{S_XB[0]}, s{T+1}, s{T+3}")
    a(f"s_xor_b32 s{T+3}, s{T+3}, {1<<(7+HB)}")
    a(f"s_add_u32 s{S_XB[1]}, s{T+1}, s{T+3}")
    a(f"s_add_u32 s{S_LAM}, s{S_R}, s{S_HL}")
    a(f"s_and_b32 s{S_LAM}, s{S_LAM}, 3")
    ords = [sched(l, opt)[0] for l in range(4)]
    for pos in range(2):
        assert all(not (o[pos] >> HB) & 1 for o in ords)
        pk = sum(ords[l][pos] << (4 * l) for l in range(4))
        a(f"s_lshl_b32 s{T+2}, s{S_LAM}, 2")
        a(f"s_lshr_b32 s{T+2}, {pk}, s{T+2}")
        a(f"s_and_b32 s{T+2}, s{T+2}, 15")
        a(f"s_lshl_b32 s{T+3}, s{T+2}, 19")
        a(f"s_add_u32 s{S_QW[2+pos]}, s{S_WQB[0]}, s{T+3}")
        a(f"s_lshl_b32 s{T+3}, s{T+2}, 7")
        a(f"s_add_u32 s{S_QX[2+pos]}, s{S_XB[0]}, s{T+3}")
    a(f"s_lshl_b32 s{S_MW}, s{S_W}, 12")
    a(f"s_lshl_b32 s{S_MX}, s{S_W}, 14")
    a(f"s_add_u32 s{S_MX}, s{S_MX}, {XR}")
    seg_src(a, VWQ[0], 13, 242, 243)
    a(f"v_add_u32 v{VWQ[1]}, {32768-1024}, v{VWQ[0]}")
    a(f"v_xor_b32 v242, 32, v{VWQ[0]}")
    for j in (2, 3): a(f"v_add_u32 v{VWQ[j]}, {j*(32768-1024)}, v242")
    a("v_lshrrev_b32 v242, 3, v0")
    a("v_lshrrev_b32 v243, 4, v0")
    a(f"v_and_b32 v{F1}, 7, v0")
    a(f"v_xor_b32 v{F1}, v{F1}, v243")
    a(f"v_lshlrev_b32 v{F1}, 4, v{F1}")
    a(f"v_lshl_add_u32 v{VX[0]}, v242, 11, v{F1}")
    a(f"v_xor_b32 v{F1}, 64, v{VX[0]}")
    a(f"v_add_u32 v{VX[1]}, {16384-1024}, v{F1}")
    a(f"v_add_u32 v{VX[2]}, {2*(16384-1024)}, v{VX[0]}")
    a(f"v_add_u32 v{VX[3]}, {3*(16384-1024)}, v{F1}")
    for s_, n in [(SX, 1 << 20), (SWQ, 8 << 20)]:
        a(f"s_mov_b32 s{s_+2}, {n}")
        a(f"s_mov_b32 s{s_+3}, 0x20000")
    a("s_waitcnt lgkmcnt(0)")
    stamp(a, 29, opt)
    a(f"s_cmp_eq_u32 s{S_BR}, 0")
    for i, s_ in [(0, SX), (3, SWQ), (1, SK), (2, SV), (4, SWO)]:
        a(f"s_cselect_b32 s{s_}, s{4+2*i}, s{14+2*i}")
        a(f"s_cselect_b32 s{s_+1}, s{5+2*i}, s{15+2*i}")
    cur = [None]
    def group(key, m0_ins, so_ins):
        n = 0
        if cur[0] != key:
            a(m0_ins); n += 1
            for x in so_ins: a(x); n += 1
            cur[0] = key
        return n
    def dma_x(pos, j, c=None):
        so = f"s_mov_b32 s{S_SO}, s{S_QX[2+pos]}" if c is None else f"s_add_u32 s{S_SO}, s{S_XB[(c>>HB)&1]}, {(c & ~(1<<HB))*128}"
        group(("x", pos), f"s_add_u32 m0, s{S_MX}, {(pos%4)*4096}", [so])
        a.vmem(f"buffer_load_dwordx4 v{VX[j]}, {srd(SX)}, s{S_SO} offen offset:{j*1024} lds", ("st", pos))
    def dma_wq(pos, j, c=None):
        so = f"s_mov_b32 s{S_SO}, s{S_QW[2+pos]}" if c is None else f"s_add_u32 s{S_SO}, s{S_WQB[(c>>HB)&1]}, {(c & ~(1<<HB))<<19}"
        group(("q", pos), f"s_add_u32 m0, s{S_MW}, {(pos%4)*16384}", [so])
        a.vmem(f"buffer_load_dwordx4 v{VWQ[j]}, {srd(SWQ)}, s{S_SO} offen offset:{j*1024} lds", ("st", pos))
    for j in range(4): dma_x(0, j)
    for j in range(4): dma_wq(0, j)
    stamp(a, 30, opt)
    a(f"v_bfe_u32 v{VR4}, v0, 2, 2")
    a("v_lshrrev_b32 v242, 4, v0")
    a(f"v_lshl_add_u32 v243, v242, 3, v{VR4}")
    a("v_lshlrev_b32 v243, 8, v243")
    a(f"v_and_b32 v{F1}, 1, v242")
    a(f"v_lshl_add_u32 v243, v{F1}, 5, v243")
    a(f"v_and_b32 v{F1}, 3, v0")
    a(f"v_lshl_add_u32 v243, v{F1}, 3, v243")
    a(f"v_lshl_add_u32 v{VA[0]}, v{VR4}, 6, v243")
    for i in range(1, 8): a(f"v_xor_b32 v{VA[i]}, {32*i}, v{VA[0]}")
    a(f"v_bfe_u32 v{F1}, v0, 1, 3")
    a(f"v_xor_b32 v242, v242, v{F1}")
    a("v_lshlrev_b32 v242, 4, v242")
    a("v_and_b32 v243, 15, v0")
    a("v_lshl_add_u32 v242, v243, 7, v242")
    a(f"v_add_u32 v{VB[0]}, s{S_MX}, v242")
    a("v_xor_b32 v242, 64, v242")
    a(f"v_add_u32 v{VB[1]}, s{S_MX}, v242")
    for s_, lo in [(SOUT, 24), (SDBG, 26), (SWS, 28)]:
        a(f"s_mov_b32 s{s_}, s{lo}")
        a(f"s_mov_b32 s{s_+1}, s{lo+1}")
    for s_, n in [(SK, 4 << 20), (SV, 4 << 20), (SWO, 8 << 20), (SWS, WS_USED), (SOUT, 2 << 20), (SDBG, 256)]:
        a(f"s_mov_b32 s{s_+2}, {n}")
        a(f"s_mov_b32 s{s_+3}, 0x20000")
    a(f"s_lshl_b32 s{S_KV}, s{S_B}, 5")
    a(f"s_add_u32 s{S_KV}, s{S_KV}, s{T+4}")
    a(f"s_lshl_b32 s{S_KV}, s{S_KV}, 13")
    a(f"s_lshl_b32 s{S_MK}, s{S_W}, 13")
    def early_touch():
        a(f"v_and_b32 v242, 3, v0")
        a(f"v_lshlrev_b32 v242, 21, v242")
        a("v_mov_b32 v243, 0")
        a(f"s_lshl_b32 s{T+2}, s{S_BR}, 2")
        a(f"s_add_u32 s{T+2}, s{T+2}, s{S_R}")
        a(f"s_lshl_b32 s{T+2}, s{T+2}, 21")
        a(f"s_lshl_b32 s{T+3}, s{S_G}, 21")
        a(f"s_lshl_b32 s{T+5}, s{S_R}, 19")
        for k_, (vo, sd, so) in enumerate([(242, SWQ, "0"), (243, SK, f"s{S_KV}"), (243, SV, f"s{S_KV}"), (243, SWO, f"s{T+3}"), (243, SWS, f"s{T+2}"), (243, SOUT, f"s{T+5}")]):
            if opt.etm >> k_ & 1:
                a.vmem(f"buffer_load_dword v{234+k_}, v{vo}, {srd(sd)}, {so} offen", "touch")
    if opt.et == 1: early_touch()
    for j in range(4): dma_x(1, j)
    for j in range(4): dma_wq(1, j)
    if opt.et == 2: early_touch()
    a(f"s_or_b32 s{T}, s2, s{S_W}")
    a(f"s_or_b32 s{T+6}, s{T+6}, 1")
    a(f"s_mul_i32 s{T+6}, s{T+6}, 0x9e3779b1")
    a(f"v_or_b32 v243, s{T}, v0")
    a(f"v_lshlrev_b32 v243, 8, v243")
    a(f"v_mov_b32 v242, s{T+6}")
    a.vmem(f"buffer_store_dword v242, v243, {srd(SDBG)}, 0 offen sc1", "tagst")
    stamp(a, 31, opt)
    f = Rec()
    f(f"v_lshrrev_b32 v{F1}, 4, v0")
    f(f"v_and_b32 v{F2}, 15, v0")
    f(f"v_xor_b32 v{F2}, v{F2}, v{F1}")
    f(f"v_lshlrev_b32 v{F2}, 4, v{F2}")
    f(f"v_lshl_add_u32 v{VKS}, v{F1}, 8, v{F2}")
    seg_src(f, VVS, 8, F1, F2)
    seg_src(f, VWO[0], 11, F1, F2)
    for j in range(1, 4): f(f"v_add_u32 v{VWO[j]}, {(4*(j>>1) + 16*(j&1))*2048 - j*1024}, v{VWO[0]}")
    tr_base(f, VTB, VR4, F1)
    for i in range(4):
        f(f"s_add_u32 s{U+2}, s{S_W}, {i}")
        f(f"s_and_b32 s{U+2}, s{U+2}, 3")
        f(f"v_xor_b32 v{F1}, s{U+2}, v{VR4}")
        f(f"v_lshl_add_u32 v{VWT[i]}, v{F1}, 6, v{VTB}")
    f(f"v_and_b32 v{F1}, 3, v0")
    f(f"v_lshl_add_u32 v{F1}, v{VR4}, 3, v{F1}")
    f(f"v_and_b32 v{F2}, 15, v{F1}")
    f(f"v_lshrrev_b32 v{VKA}, 5, v0")
    f(f"v_xor_b32 v{F2}, v{F2}, v{VKA}")
    f(f"v_lshlrev_b32 v{F2}, 4, v{F2}")
    f(f"v_lshl_add_u32 v{F1}, v{F1}, 8, v{F2}")
    f(f"v_bfe_u32 v{F2}, v0, 4, 1")
    f(f"v_lshl_add_u32 v{F1}, v{F2}, 3, v{F1}")
    f(f"s_add_u32 s{U+2}, s{S_MK}, {KR}")
    f(f"v_add_u32 v{VKA}, s{U+2}, v{F1}")
    f(f"v_lshlrev_b32 v{VL16}, 4, v0")
    f(f"v_mov_b32 v{TT+1}, 0")
    f(f"s_lshl_b32 s{U}, s{S_G}, 2")
    f(f"s_add_u32 s{U}, s{U}, s{S_W}")
    f(f"s_lshl_b32 s{U+1}, s{U}, 19")
    f(f"s_add_u32 s{S_C}, s{S_HL}, {opt.coff}")
    f(f"s_and_b32 s{S_C}, s{S_C}, 7")
    f(f"s_lshl_b32 s{U+2}, s{S_C}, 8")
    f(f"s_add_u32 s{U+1}, s{U+1}, s{U+2}")
    for jg in range(4):
        f(f"s_add_u32 s{U+2}, s{S_LAM}, {jg}")
        f(f"s_and_b32 s{U+2}, s{U+2}, 3")
        f(f"s_lshl_b32 s{U+3}, s{U+2}, 17")
        f(f"s_add_u32 s{S_WOG[jg]}, s{U+1}, s{U+3}")
        f(f"s_lshl_b32 s{S_OG[jg]}, s{U+2}, 12")
        f(f"s_add_u32 s{S_Q[jg]}, s{S_G}, {jg+1}")
        f(f"s_and_b32 s{S_Q[jg]}, s{S_Q[jg]}, 3")
    f(f"s_lshl_b32 s{U+1}, s{S_BR}, 2")
    f(f"s_add_u32 s{U+1}, s{U+1}, s{S_R}")
    f(f"s_lshl_b32 s{U+1}, s{U+1}, 21")
    f(f"s_lshl_b32 s{U+2}, s{U}, 14")
    f(f"s_add_u32 s{S_OB}, s{U+1}, s{U+2}")
    f(f"s_and_b32 s{U+2}, s{S_KV}, 0xfffff")
    f(f"s_add_u32 s{S_OW[0]}, s{U+1}, s{U+2}")
    f(f"s_add_u32 s{S_OW[1]}, s{S_OW[0]}, 4096")
    f(f"s_add_u32 s{U+1}, s{U+1}, {1<<20}")
    f(f"s_mul_i32 s{U+2}, s{S_G}, {(1<<15) + (1<<13)}")
    f(f"s_add_u32 s{U+2}, s{U+2}, s{U+1}")
    f(f"s_lshl_b32 s{U+3}, s{S_W}, 10")
    f(f"s_add_u32 s{S_FOR}, s{U+2}, s{U+3}")
    f(f"s_lshl_b32 s{U+3}, s{S_HL}, 2")
    f(f"s_add_u32 s{U+3}, s{U+3}, s{S_W}")
    f(f"s_lshl_b32 s{U+3}, s{U+3}, 7")
    f(f"s_add_u32 s{S_FOW}, s{U+2}, s{U+3}")
    f(f"s_lshl_b32 s{U+2}, s{S_C}, 17")
    f(f"s_add_u32 s{U+2}, s{U+2}, s{U+1}")
    f(f"s_lshl_b32 s{U+3}, s{U}, 11")
    f(f"s_add_u32 s{S_PB}, s{U+2}, s{U+3}")
    f(f"s_lshl_b32 s{U+3}, s{S_G}, 15")
    f(f"s_add_u32 s{S_PR}, s{U+2}, s{U+3}")
    f(f"s_lshl_b32 s{U+3}, s{S_W}, 11")
    f(f"s_add_u32 s{S_PR}, s{S_PR}, s{U+3}")
    f(f"s_lshl_b32 s{U+2}, s{S_R}, 2")
    f(f"s_add_u32 s{U+2}, s{U+2}, s{S_G}")
    f(f"s_lshl_b32 s{U+2}, s{U+2}, 17")
    f(f"s_lshl_b32 s{U+3}, s{S_BR}, 11")
    f(f"s_add_u32 s{U+2}, s{U+2}, s{U+3}")
    f(f"s_lshl_b32 s{U+3}, s{S_C}, 8")
    f(f"s_add_u32 s{U+2}, s{U+2}, s{U+3}")
    f(f"s_lshl_b32 s{U+3}, s{S_W}, 6")
    f(f"s_add_u32 s{S_OUTB}, s{U+2}, s{U+3}")
    FILL = f.L
    for _ in range(opt.fill0): a(FILL.pop(0))

    SLOT = {"k0": (S_MK, KR), "k1": (S_MK, KR + 4096)}
    for i_ in range(4):
        SLOT[f"w{i_}"] = (S_MW, 16384 * i_); SLOT[f"x{i_}"] = (S_MX, 4096 * i_)
    def dma_wo(pos, j, slot):
        sb, off = SLOT[slot]
        n = group(("wo", pos), f"s_add_u32 m0, s{sb}, {off}", [f"s_add_u32 s{S_SO}, s{S_WOG[pos>>2]}, {(32*((pos&3)>>1) + 8*(pos&1))*2048}"])
        a.vmem(f"buffer_load_dwordx4 v{VWO[j]}, {srd(SWO)}, s{S_SO} offen offset:{j*1024} lds", ("wo", pos))
        a.ever.add(("woj", pos, j))
        return n + 1
    def tr_wo_items(pos, slot):
        sb, off = SLOT[slot]
        it = []
        for s4 in range(4):
            def g(s4=s4):
                if s4 == 0:
                    assert all(("woj", pos, j) in a.ever for j in range(4)), ("piece not fully issued", pos)
                    a.wait_vm(("wo", pos))
                    a(f"s_add_u32 s{T+1}, s{sb}, {off}")
                a(f"v_add_u32 v{VT2}, s{T+1}, v{VWT[s4]}")
                for h2 in range(2):
                    a.lds(f"ds_read_b64_tr_b16 {ar(16*pos+4*s4+2*h2,2)}, v{VT2} offset:{4*h2*256}", ("wo", pos))
            it.append(g)
        return it
    def dma_kv(pc, j):
        half = int(pc[1])
        group(pc, f"s_add_u32 m0, s{S_MK}, {(KR if pc[0] == 'K' else VR) + half*4096}", [f"s_add_u32 s{S_SO}, s{S_KV}, {half*4096}"])
        if pc[0] == "K":
            a(f"v_xor_b32 v{TT}, {64*j}, v{VKS}")
            a.vmem(f"buffer_load_dwordx4 v{TT}, {srd(SK)}, s{S_SO} offen offset:{j*1024} {opt.nt_kv} lds", "k")
        else:
            if j == 2: a(f"v_xor_b32 v{TT}, 32, v{VVS}")
            a.vmem(f"buffer_load_dwordx4 v{TT if j >= 2 else VVS}, {srd(SV)}, s{S_SO} offen offset:{j*1024} {opt.nt_kv} lds", "v")
    def reads(n):
        s, t = n >> 1, n & 1
        slot = s % 4
        fs = n & 1
        r = [(f"ds_read_b128 {vr(FB[fs]+4*nt,4)}, v{VB[t]} offset:{slot*4096 + nt*2048}", ("b", n)) for nt in range(2)]
        for i in range(8):
            for h2 in range(2):
                r.append((f"ds_read_b64_tr_b16 {vr(FA[fs]+4*i+2*h2,2)}, v{VA[i]} offset:{slot*16384 + (32*t+4*h2)*256}", ("a", n, i)))
        if opt.fakeD:
            r = r[:10] + [(f"ds_read_b128 {vr(FA[fs]+16+4*nt,4)}, v{VB[t]} offset:{slot*4096 + nt*2048}", ("a", n, 4+nt)) for nt in range(2)]
            a.ever.add(("lg", ("a", n, 6))); a.ever.add(("lg", ("a", n, 7)))
        return r
    def mfma(n, k):
        fs = n & 1
        i, nt = k >> 1, k & 1
        d = vr(ACC + 8*i + 4*nt, 4)
        a.wait_lg([("b", n), ("a", n, i)])
        a(f"{M16} {d}, {vr(FA[fs]+4*i,4)}, {vr(FB[fs]+4*nt,4)}, {'0' if n == 0 else d}")

    allex = [p for l in sched(0, opt)[1].values() for p in l]
    w_early = sorted(int(p[1]) for p in allex if p[0] == "W")
    w_late = [p for p in range(4) if p not in w_early]
    hit_first = [4*g + k for k in w_early for g in (1, 2, 3)]
    hit_last = [4*g + k for k in w_late for g in (1, 2, 3)]
    rest = w_late + hit_first + hit_last
    if opt.rest: rest = [int(x) for x in opt.rest.split(",")]
    assert sorted(rest + w_early) == list(range(16))
    late_slots = ["w0", "x0", "w1", "x1", "w2", "x2", "k0", "k1", "x3", "w3"]
    avail = {"w0": 13, "x0": 13, "w1": 14, "x1": 14, "w2": 15, "x2": 15, "k0": 15, "k1": 15, "x3": 16, "w3": 17}
    lateq = [(rest[i], j, late_slots[i]) for i in range(min(len(rest), len(late_slots))) for j in range(4)]
    def k_items():
        it = []
        for kt in range(2):
            for u in range(4):
                for h in range(2):
                    def g(kt=kt, u=u, h=h):
                        if (kt, u, h) == (0, 0, 0): a.wait_vm("k")
                        a(f"v_xor_b32 v{VT2}, {((4*u+2*h) ^ (4*kt)) << 4}, v{VKA}")
                        a.lds(f"ds_read_b64 {vr(KF+16*kt+4*u+2*h,2)}, v{VT2} offset:{1024*kt}", "kf")
                    it.append(g)
        return it
    def v_items():
        it = []
        for i in range(8):
            def g(i=i):
                if i == 0:
                    a.wait_vm("v")
                    a(f"s_add_u32 s{T+1}, s{S_MK}, {VR}")
                a(f"v_add_u32 v{VT2}, s{T+1}, v{VA[i]}")
                for h2 in range(2):
                    a.lds(f"ds_read_b64_tr_b16 {vr(VF+4*i+2*h2,2)}, v{VT2} offset:{4*h2*256}", "vf")
            it.append(g)
        return it
    uniform = all(sched(l, opt) == sched(0, opt) for l in range(4))
    for lam in range(1, 4):
        a(f"s_cmp_eq_u32 s{S_LAM}, {lam}")
        a(f"s_cbranch_scc1 L_p1_{lam}")
    vm0, lg0, cur0, ever0 = list(a.vm), list(a.lg), cur[0], set(a.ever)
    end_state = None
    a.lg_low = 7
    for lam in range(4):
        a.vm, a.lg, cur[0], a.ever = list(vm0), list(lg0), cur0, set(ever0)
        a.label(f"L_p1_{lam}")
        order, extras = sched(lam, opt)
        consume = {}; wslot = {}; free_at = {"k0": -9, "k1": -9}
        stream = []
        pend = {}
        non_stage = max(extras)
        assert min(extras) >= 0
        lq = list(lateq)
        for p in range(2, 16):
            c = order[p]
            lead = (c & 3) == lam
            for j in range(4): stream.append((lambda j=j, c=c, p=p: dma_x(p, j, c), opt.wm if lead and (not opt.half or not (c >> HB) & 1) else 1.0, p - 3, p - 2, None))
            for j in range(4): stream.append((lambda j=j, c=c, p=p: dma_wq(p, j, c), opt.wm if lead else 1.0, p - 3, p - 2, p))
            for pc in extras.get(p - 2, []):
                if pc[0] == "W":
                    sl = min(free_at, key=free_at.get); wslot[pc] = sl
                    cs = p + 1; consume.setdefault(cs, []).append(pc)
                else:
                    sl = "k" + pc[1]
                    other = [st for st, l in extras.items() for q in l if q[0] == pc[0]]
                    cs = max(other) + 3
                    if pc[1] == "1": consume.setdefault(cs, []).append(pc[0])
                e = free_at[sl]; assert e <= p - 2, (lam, pc, p, free_at)
                free_at[sl] = cs + 1
                for j in range(4):
                    fn = (lambda pc=pc, j=j: dma_wo(int(pc[1]), j, wslot[pc])) if pc[0] == "W" else (lambda pc=pc, j=j: dma_kv(pc, j))
                    stream.append((fn, opt.wm, max(e, 0 if pc[0] != "W" else 4), p - 2, None))
            if p - 2 == non_stage:
                stream.append((lambda: a.vmem(f"buffer_load_dword v{VNON}, v{TT+1}, {srd(SDBG)}, 0 offen sc1", "nonce"), 0.2, 4, p - 2, None))
                stream.append((lambda: a.vmem(f"buffer_load_dword v{TT+2}, v{TT+1}, {srd(SWS)}, s{S_FOW} offen", "touch"), 0.2, 4, p - 2, None))
        assert max(free_at.values()) <= 15
        for k in range(opt.n14):
            pos, j, sl = lq.pop(0)
            stream.append((lambda pos=pos, j=j, sl=sl: dma_wo(pos, j, sl), opt.wm if k < 8 else opt.wh, max(avail[sl], opt.hst if k >= 8 else 0), 15, None))
        fill = list(FILL)
        endidx = {}
        cnt = 0
        for it in stream:
            cnt += 1
            if it[4] is not None: endidx[it[4]] = cnt
        total = len(stream)
        unit = 32.0 / opt.bud
        clock = 0.0
        comp = [unit * opt.wm * (i + 1 - 8) for i in range(16)]
        posdone = {0: 0.0, 1: comp[15]}
        issued = 0
        def outstanding(): return sum(1 for c_ in comp if c_ > clock)
        def issue():
            nonlocal clock, issued
            fn, w, e, d, tagp = stream.pop(0); assert e <= s, (lam, s, e)
            if outstanding() >= opt.qmax: clock = comp[-opt.qmax]
            fn(); issued += 1
            comp.append(max(comp[-1], clock + opt.lat - unit * w) + unit * w)
            if tagp is not None: posdone[tagp] = comp[-1]
        for s in range(16):
            a.c(f"---- class {lam} stage {s} chunk {order[s]}")
            if a.lg: a.wait_lg_all()
            a.wait_vm(("st", s))
            a("s_barrier")
            stamp(a, 1 + s, opt)
            clock = max(clock, posdone[s])
            lw = []
            for pc in consume.get(s, []):
                assert not fill or len(FILL) - len(fill) > 60
                if pc == "K": lw += k_items()
                elif pc == "V": lw += v_items()
                else: lw += tr_wo_items(int(pc[1]), wslot[pc])
            nl = len(lw)
            target = min(total, (endidx.get(s + 1, 0) if s + 1 < 16 else total) + opt.ahead) if s < 15 else total
            while target > issued and stream[target - issued - 1][2] > s: target -= 1
            start = issued
            must = sum(1 for it in stream if it[3] <= s)
            gap = 0
            for t in range(2):
                n = 2 * s + t
                rd = reads(n); nrd = len(rd)
                for k in range(16):
                    if n > 0: mfma(n - 1, k)
                    span = 16 if t == 0 else opt.rspan
                    while rd and nrd - len(rd) < ((k + 1) * nrd + span - 1) // span: a.lds(*rd.pop(0))
                    gap += 1
                    clock += 1
                    did = False
                    if opt.oldp:
                        while issued - start < min(must, (gap * must + 29) // 32):
                            issue(); did = True
                    else:
                        if stream and stream[0][2] <= s and outstanding() < opt.qopp:
                            issue(); did = True
                        while target - issued > 32 - gap:
                            issue(); did = True
                    while lw and nl - len(lw) < (gap * nl) // 26: lw.pop(0)(); did = True
                    if fill and not did:
                        for _ in range(3 if n == 0 else 1):
                            if fill: a(fill.pop(0))
            assert not lw
            if opt.verbose: print(f"class {lam} stage {s}: {issued - start} dma clock {clock:.0f}", file=sys.stderr)
        assert not stream
        assert not fill
        st_ = (list(a.vm), list(a.lg), cur[0])
        if end_state is None: end_state = st_
        assert end_state == st_, (end_state, st_)
        if lam < 3: a("s_branch L_common")
    a.label("L_common")
    a.lg_low = 12
    natt = [opt.natt]
    def ad(lim=16):
        if natt[0] > 0 and lq and avail[lq[0][2]] <= lim:
            natt[0] -= 1
            return dma_wo(*lq.pop(0))
        return 0
    def pad(n):
        while n > 0:
            k = min(n, 8); a(f"s_nop {k-1}"); n -= k
    assert "nonce" not in a.vm
    def cvt4(dst, u, nt):
        for hh in range(2):
            t = ACC + 8*(2*u+hh) + 4*nt
            a(f"v_cvt_pk_bf16_f32 v{dst+2*hh}, v{t}, v{t+1}")
            a(f"v_cvt_pk_bf16_f32 v{dst+2*hh+1}, v{t+2}, v{t+3}")
    qp = lambda u, nt: QP + 8*u + 4*nt
    CS = 128 ** -0.5 * 1.4426950408889634
    if opt.att2:
        import hazcheck
        def cvl(u, nt, hh):
            t = ACC + 8*(2*u+hh) + 4*nt; d = qp(u, nt) + 2*hh
            return [f"v_cvt_pk_bf16_f32 v{d}, v{t}, v{t+1}", f"v_cvt_pk_bf16_f32 v{d+1}, v{t+2}, v{t+3}"]
        def stream(nt):
            L = []
            m, m2 = 240 + 2*nt, 241 + 2*nt
            b = SS + 8*nt
            for u in range(4):
                for hh in range(2): L += cvl(u, nt, hh)
            for u in range(4):
                for kt in range(2):
                    d = vr(b + 4*kt, 4)
                    L.append(f"{M16} {d}, {vr(KF+16*kt+4*u,4)}, {vr(qp(u,nt),4)}, {'0' if u == 0 else d}")
            def xr(op):
                return [f"v_mov_b32 v{m2}, v{m}", f"v_permlane32_swap_b32 v{m}, v{m2}", f"{op} v{m}, v{m}, v{m2}",
                        f"v_mov_b32 v{m2}, v{m}", f"v_permlane16_swap_b32 v{m}, v{m2}", f"{op} v{m}, v{m}, v{m2}"]
            if opt.rr:
                def rnd():
                    R = [f"v_cvt_pk_bf16_f32 v{b+2*p+1}, v{b+2*p}, v{b+2*p+1}" for p in range(4)]
                    for p in range(4):
                        R += [f"v_lshlrev_b32 v{b+2*p}, 16, v{b+2*p+1}", f"v_and_b32 v{b+2*p+1}, 0xffff0000, v{b+2*p+1}"]
                    return R
                L += rnd() + [f"v_mul_f32 v{b+k}, s{T+3}, v{b+k}" for k in range(8)] + rnd()
            L += [f"v_max3_f32 v{m}, v{b}, v{b+1}, v{b+2}", f"v_max3_f32 v{m2}, v{b+3}, v{b+4}, v{b+5}",
                  f"v_max3_f32 v{m}, v{m}, v{b+6}, v{b+7}", f"v_max_f32 v{m}, v{m}, v{m2}"] + xr("v_max_f32")
            L.append(f"v_mul_f32 v{m}, s{T+2}, v{m}")
            L += [f"v_fma_f32 v{b+k}, v{b+k}, s{T+2}, -v{m}" for k in range(8)]
            L += [f"v_exp_f32 v{b+k}, v{b+k}" for k in range(8)]
            L += [f"v_add_f32 v{m}, v{b}, v{b+1}", f"v_add_f32 v{m2}, v{b+2}, v{b+3}", f"v_add_f32 v{m}, v{m}, v{b+4}", f"v_add_f32 v{m2}, v{m2}, v{b+5}",
                  f"v_add_f32 v{m}, v{m}, v{b+6}", f"v_add_f32 v{m2}, v{m2}, v{b+7}", f"v_add_f32 v{m}, v{m}, v{m2}"] + xr("v_add_f32")
            L.append(f"v_rcp_f32 v{m}, v{m}")
            L += [f"v_mul_f32 v{b+k}, v{b+k}, v{m}" for k in range(8)]
            L += [f"v_cvt_pk_bf16_f32 v{PP+4*nt+p}, v{b+2*p}, v{b+2*p+1}" for p in range(4)]
            L += [f"{M16} {vr(ACC+8*i+4*nt,4)}, {vr(VF+4*i,4)}, {vr(PP+4*nt,4)}, 0" for i in range(8)]
            for u in range(4):
                blk = 2*u + nt
                L += cvl(u, nt, 0) + cvl(u, nt, 1)
                L.append(f"buffer_store_dwordx4 {vr(qp(u,nt),4)}, v{VL16}, {srd(SWS)}, s{S_OW[blk>>2]} offen offset:{(blk&3)*1024} sc1")
            return L
        A_, B_ = stream(0), stream(1)
        for kk, k in enumerate([0, 2, 4, 6, 8, 10, 12, 14, 1, 3, 5, 7, 9, 11, 13, 15]):
            mfma(31, k)
            if kk == 0: a(f"v_readfirstlane_b32 s{S_NONCE}, v{VNON}")
            if kk == 1: a(f"s_mov_b32 s{T+2}, {f32(1.4426950408889634 if opt.rr else CS)}")
            if kk == 2 and opt.rr: a(f"s_mov_b32 s{T+3}, {f32(128 ** -0.5)}")
            if kk >= 8:
                a(A_.pop(0)); a(A_.pop(0))
        if a.lg: a.wait_lg_all()
        stamp(a, 17, opt)
        a.c("---- attention")
        def okay(ins):
            win = [x for x in (hazcheck.parse(l) for l in a.L[-30:]) if x] + [hazcheck.parse(ins)]
            p = win[-2]
            if getattr(p, 'perm', False) and p.w & win[-1].r: return False
            return not [e for e in hazcheck.check(win) if e[4] == win[-1].txt and e[3] != e[4] or (e[4] == win[-1].txt)]
        now = 0; pipe = 0; spipe = 0
        def emit(L):
            nonlocal now, pipe, spipe
            ins = L.pop(0)
            if ins.startswith("buffer_store"): a.vmem(ins, "o"); now = max(now, spipe - opt.sq) + 16; spipe = max(spipe, now) + opt.scost
            elif ins.startswith("v_mfma"):
                a(ins); now = max(now, pipe); pipe = now + 16; now += 8
            else:
                a(ins); now += 8 if ins.startswith(("v_exp", "v_rcp")) else 4
        ism = lambda L: L[0].startswith("v_mfma")
        nextd = opt.ad0
        while A_ or B_:
            if now >= nextd and "o" not in a.vm and natt[0] > 0:
                now += 16 + 4 * (ad() - 1); nextd = now + opt.adgap
            ca = bool(A_) and okay(A_[0]); cb = bool(B_) and okay(B_[0])
            if ca and B_ and A_[0].startswith("buffer_store") and spipe - opt.sq > now and not B_[0].startswith("buffer_store"): ca = False
            if A_ and not ca and cb and ism(B_) and pipe > now: cb = False
            if ca and cb:
                if ism(A_) and not ism(B_) and pipe > now: emit(B_)
                elif ism(B_) and not ism(A_) and pipe <= now: emit(B_)
                else: emit(A_)
            elif ca: emit(A_)
            elif cb: emit(B_)
            else:
                a("s_nop 0"); now += 4
    else:
        for k in range(16):
            mfma(31, k)
            if k == 0: a(f"v_readfirstlane_b32 s{S_NONCE}, v{VNON}")
            if k == 1: a(f"s_mov_b32 s{T+2}, {f32(CS)}")
            if k in (2, 6): ad(15)
            if k == 11: cvt4(qp(0,0), 0, 0)
            if k == 13: cvt4(qp(0,1), 0, 1)
            if k == 15: cvt4(qp(1,0), 1, 0)
        if a.lg: a.wait_lg_all()
        stamp(a, 17, opt)
        a.c("---- attention")
        cvt4(qp(1,1), 1, 1)
        ss = lambda kt, nt: SS + 8*nt + 4*kt
        def smf(u, kt, nt):
            d = vr(ss(kt, nt), 4)
            a(f"{M16} {d}, {vr(KF+16*kt+4*u,4)}, {vr(qp(u,nt),4)}, {'0' if u == 0 else d}")
        def cvt2(dst, u, nt, hh):
            t = ACC + 8*(2*u+hh) + 4*nt
            a(f"v_cvt_pk_bf16_f32 v{dst+2*hh}, v{t}, v{t+1}")
            a(f"v_cvt_pk_bf16_f32 v{dst+2*hh+1}, v{t+2}, v{t+3}")
        cv = [(u, nt, hh) for u in (2, 3) for nt in range(2) for hh in range(2)]
        for u in range(4):
            for nt in range(2):
                for kt in range(2):
                    smf(u, kt, nt)
                    if cv:
                        uu, n2, hh = cv.pop(0); cvt2(qp(uu, n2), uu, n2, hh)
                    elif (u, nt, kt) in ((2, 0, 1), (3, 0, 1)): ad()
        pad(8 - 2 - ad())
        for nt in range(2):
            b = SS + 8*nt
            a(f"v_max3_f32 v{240+nt}, v{b}, v{b+1}, v{b+2}")
            a(f"v_max3_f32 v{242+nt}, v{b+3}, v{b+4}, v{b+5}")
            a(f"v_max3_f32 v{240+nt}, v{240+nt}, v{b+6}, v{b+7}")
            a(f"v_max_f32 v{240+nt}, v{240+nt}, v{242+nt}")
        def xred(op):
            pad(2 - ad())
            a("v_permlane32_swap_b32 v240, v241")
            a("s_nop 0")
            a(f"{op} v240, v240, v241")
            a("v_mov_b32 v241, v240")
            a("s_nop 1")
            a("v_permlane16_swap_b32 v240, v241")
            a("s_nop 0")
            a(f"{op} v240, v240, v241")
        xred("v_max_f32")
        a(f"v_mul_f32 v240, s{T+2}, v240")
        a("v_mov_b32 v241, v240")
        a("s_nop 1")
        a("v_permlane32_swap_b32 v240, v241")
        a("s_nop 0")
        for k in range(16):
            a(f"v_fma_f32 v{SS+k}, v{SS+k}, s{T+2}, -v{240+(k>>3)}")
        ad()
        for k in range(16):
            a(f"v_exp_f32 v{SS+k}, v{SS+k}")
            if k == 7: ad()
        for k in range(1, 8):
            for nt in range(2):
                b = SS + 8*nt
                a(f"v_add_f32 v{240+nt}, v{b if k == 1 else 240+nt}, v{b+k}")
        xred("v_add_f32")
        a("v_rcp_f32 v240, v240")
        a("s_nop 0")
        a("v_mov_b32 v241, v240")
        a("s_nop 1")
        a("v_permlane32_swap_b32 v240, v241")
        a("s_nop 0")
        for nt in range(2):
            for k in range(8):
                a(f"v_mul_f32 v{SS+8*nt+k}, v{SS+8*nt+k}, v{240+nt}")
            for p in range(4):
                a(f"v_cvt_pk_bf16_f32 v{PP+4*nt+p}, v{SS+8*nt+2*p}, v{SS+8*nt+2*p+1}")
        def pv(i, nt):
            a(f"{M16} {vr(ACC+8*i+4*nt,4)}, {vr(VF+4*i,4)}, {vr(PP+4*nt,4)}, 0")
        def ost(u, nt):
            blk = 2*u + nt
            a.vmem(f"buffer_store_dwordx4 {vr(qp(u,nt),4)}, v{VL16}, {srd(SWS)}, s{S_OW[blk>>2]} offen offset:{(blk&3)*1024} sc1", "o")
        seq = [(i, nt) for nt in range(2) for i in range(8)]
        ev = [(u, nt, hh) for nt in range(2) for u in range(4) for hh in range(2)]
        for k, (i, nt) in enumerate(seq):
            pv(i, nt)
            if k in (1, 4): ad()
            if k >= 8:
                u, n2, hh = ev.pop(0); cvt2(qp(u, n2), u, n2, hh)
                if hh: ost(u, n2)
        while ev:
            u, n2, hh = ev.pop(0); cvt2(qp(u, n2), u, n2, hh)
            if hh: ost(u, n2)
    stamp(a, 18, opt)
    a("s_barrier")
    VL = 2; VRR = 3; VRW = [8, 9, 10]; VOUT = 11; VZ = 12; VNV = 13; VFL = 14; VFA = 15; VLO = 15
    nfirst = min(len(rest), len(late_slots))
    slot_of = {rest[i]: late_slots[i] for i in range(nfirst)}
    for _ in range(opt.pre_flag):
        if lq: dma_wo(*lq.pop(0))
    a(f"s_cmp_lg_u32 s{S_NONCE}, 0")
    a("s_cbranch_scc1 L_havenonce")
    a(f"s_mov_b32 s{S_CNT}, 0")
    a("v_mov_b32 v240, 0")
    a.label("L_nonce_spin")
    a(f"buffer_load_dword v{VNON}, v240, {srd(SDBG)}, 0 offen sc1")
    a("s_waitcnt vmcnt(0)")
    a(f"v_readfirstlane_b32 s{S_NONCE}, v{VNON}")
    a(f"s_add_u32 s{S_CNT}, s{S_CNT}, 1")
    a(f"s_cmp_gt_u32 s{S_CNT}, {SPIN_MAX}")
    a("s_cbranch_scc1 L_havenonce")
    a(f"s_cmp_eq_u32 s{S_NONCE}, 0")
    a("s_cbranch_scc1 L_nonce_spin")
    a.label("L_havenonce")
    a(f"v_mov_b32 v{VL}, v{VL16}")
    for sl in range(1, 4):
        a(f"s_add_u32 s{T}, s{S_W}, {sl}")
        a(f"s_and_b32 s{T}, s{T}, 3")
        a(f"s_mul_i32 s{T}, s{T}, 12288")
        a(f"s_add_u32 s{T}, s{T}, {(sl-1)*4096}")
        a(f"v_add_u32 v{VRW[sl-1]}, s{T}, v{VL16}")
    a(f"s_mul_i32 s{T}, s{S_W}, 12288")
    a(f"v_add_u32 v{VRR}, s{T}, v{VL16}")
    if opt.fl4:
        a(f"v_lshrrev_b32 v{VZ}, 3, v0")
        a(f"v_lshlrev_b32 v{VZ}, 25, v{VZ}")
        a(f"v_lshl_add_u32 v{VZ}, v0, 4, v{VZ}")
        for e in range(4): a(f"v_mov_b32 v{236+e}, s{S_NONCE}")
    else:
        a(f"v_lshrrev_b32 v{VZ}, 5, v0")
        a(f"v_lshlrev_b32 v{VZ}, 25, v{VZ}")
        a(f"v_lshl_add_u32 v{VZ}, v0, 2, v{VZ}")
    a(f"v_mov_b32 v{VNV}, s{S_NONCE}")
    a(f"v_and_b32 v{VFA}, 7, v0")
    a(f"v_lshlrev_b32 v{VFA}, 7, v{VFA}")
    a(f"v_and_b32 v{VOUT}, 31, v0")
    a(f"v_lshlrev_b32 v{VOUT}, 12, v{VOUT}")
    a(f"v_lshrrev_b32 v240, 5, v0")
    a(f"v_lshl_add_u32 v{VOUT}, v240, 4, v{VOUT}")
    a(f"v_and_b32 v241, 15, v0")
    a(f"v_lshlrev_b32 v241, 4, v241")
    a(f"v_lshl_add_u32 v241, v240, 8, v241")
    a(f"v_bfe_u32 v240, v0, 4, 1")
    a(f"v_lshl_add_u32 v241, v240, 10, v241")
    ri = nfirst
    resident = list(w_early)
    free_slots = []
    def issued_fully(pos): return pos in slot_of and not any(q[0] == pos for q in lq)
    def assign_more():
        nonlocal ri
        while ri < len(rest) and free_slots:
            sl = free_slots.pop(0); slot_of[rest[ri]] = sl
            for j in range(4): lq.append((rest[ri], j, sl))
            ri += 1
    def tr_piece(pos):
        for g in tr_wo_items(pos, slot_of[pos]): g()
        resident.append(pos); free_slots.append(slot_of[pos])
    todo = list(rest)
    while todo and issued_fully(todo[0]) and a._cnt(a.vm, ("wo", todo[0])) < a.vm.index("o"):
        tr_piece(todo.pop(0))
    if a.lg: a.wait_lg_all()
    assign_more()
    a.wait_vm("o")
    if opt.fl4: a.vmem(f"buffer_store_dwordx4 v[236:239], v{VZ}, {srd(SWS)}, s{S_FOW} offen sc1", "flag")
    else: a.vmem(f"buffer_store_dword v{VNV}, v{VZ}, {srd(SWS)}, s{S_FOW} offen sc1", "flag")
    stamp(a, 19, opt)
    if opt.diag:
        a.wait_vm_all(); stamp(a, 32, opt)
        a(f"s_mov_b32 s{S_CNT}, 0")
        a.label("L_dp")
        a(f"buffer_load_dword v{VFL}, v{VFA}, {srd(SWS)}, s{S_FOR} offen sc1")
        a("s_waitcnt vmcnt(0)")
        a(f"v_cmp_ne_u32 vcc, s{S_NONCE}, v{VFL}")
        a(f"s_add_u32 s{S_CNT}, s{S_CNT}, 1")
        a(f"s_cmp_gt_u32 s{S_CNT}, {SPIN_MAX}")
        a(f"s_cbranch_scc1 L_dpd")
        a("s_nop 1")
        a(f"s_cbranch_vccnz L_dp")
        a.label("L_dpd")
        stamp(a, 33, opt)
        for k in range(5):
            for _ in range(8):
                if lq: dma_wo(*lq.pop(0))
            a("s_waitcnt vmcnt(0)")
            stamp(a, 34 + k, opt)
    if opt.pipe:
        nis = 0; polled = False
        def inflight(): return sum(1 for p in todo if issued_fully(p))
        while lq or ri < len(rest):
            if lq and inflight() < opt.pipe:
                for _ in range(4): dma_wo(*lq.pop(0))
                nis += 1
                if nis == opt.poll_at:
                    a.vmem(f"buffer_load_dword v{VFL}, v{VFA}, {srd(SWS)}, s{S_FOR} offen sc1", "poll"); polled = True
            else:
                tr_piece(todo.pop(0))
                if ri < len(rest) and len(lq) <= 4:
                    a.wait_lg_all(); assign_more()
        if not polled: a.vmem(f"buffer_load_dword v{VFL}, v{VFA}, {srd(SWS)}, s{S_FOR} offen sc1", "poll")
    else:
        for _ in range(opt.pre_poll):
            if lq: dma_wo(*lq.pop(0))
        a.vmem(f"buffer_load_dword v{VFL}, v{VFA}, {srd(SWS)}, s{S_FOR} offen sc1", "poll")
        for _ in range(opt.post_poll):
            if lq: dma_wo(*lq.pop(0))
        while todo and issued_fully(todo[0]) and a._cnt(a.vm, ("wo", todo[0])) < a.vm.index("poll"):
            tr_piece(todo.pop(0))
        if a.lg: a.wait_lg_all()
        assign_more()
    S_OS = S_QW
    def obase(n):
        a(f"s_lshl_b32 s{T+2}, s{S_Q[n]}, 18")
        a(f"s_add_u32 s{T+2}, s{T+2}, s{S_OB}")
        for jg in range(4): a(f"s_add_u32 s{S_OS[jg]}, s{T+2}, s{S_OG[jg]}")
    obase(0)
    stamp(a, 20, opt)
    a(f"s_mov_b32 s{S_CNT}, 0")
    a.wait_vm("poll")
    a.label("L_pollo")
    a(f"v_cmp_ne_u32 vcc, s{S_NONCE}, v{VFL}")
    a(f"s_add_u32 s{S_CNT}, s{S_CNT}, 1")
    a(f"s_cmp_gt_u32 s{S_CNT}, {SPIN_MAX}")
    a(f"s_cbranch_scc1 L_pollo_done")
    a("s_nop 1")
    a(f"s_cbranch_vccz L_pollo_done")
    a(f"buffer_load_dword v{VFL}, v{VFA}, {srd(SWS)}, s{S_FOR} offen sc1")
    a("s_waitcnt vmcnt(0)")
    a("s_branch L_pollo")
    a.label("L_pollo_done")
    if opt.stamps: a(f"v_writelane_b32 v{VSTAMP}, s{S_CNT}, 62")
    stamp(a, 21, opt)
    assert ri == len(rest)
    AC = 16; TMP = 80; OF = [128, 192]
    def load_o(n, f):
        a.vmem(f"buffer_load_dwordx4 {vr(OF[n&1]+4*f,4)}, v{VLO}, {srd(SWS)}, s{S_OS[f>>2]} offen offset:{((f&3)>>1)*2048 + (f&1)*512} sc1", ("o", n, f))
    a(f"v_mov_b32 v{VLO}, v241")
    korder0 = resident + todo
    assert sorted(korder0) == list(range(16))
    INIT = opt.init_o
    for f in korder0[:INIT]: load_o(0, f)
    while todo and issued_fully(todo[0]): tr_piece(todo.pop(0))
    NG = opt.fmt
    assert NG == 2
    PT = OF[0]; PK = TMP + 16; PU = PT + 40; PS = PT + 44; S_HSEL = S_HX
    S_SEL = [S_QX[0], S_QX[1]]; S_ZSEL = S_QX[2]; S_M3 = S_QX[3]; S_MSK = S_HW
    VBAD, VPL = 12, 14
    VTG = [4, 5, 6, 7]
    dslot = [0, 1, 2, 4, 5, 6, 8, 9] if NG == 3 else list(range(8))
    PL = 131072
    def wr(n, sl, j):
        a.lds(f"ds_write_b128 v{VRW[sl-1]}, {vr(AC+16*sl+4*j,4)} offset:{(n&1)*49152 + j*1024}", "rw")
    def rd(n, k):
        a.lds(f"ds_read_b128 {vr(TMP+4*k,4)}, v{VRR} offset:{(n&1)*49152 + k*1024}", ("rr", k))
    def presum(src, j):
        a.wait_lg([("rr", j), ("rr", 4*src+j)])
        for e in range(4): a(f"v_add_f32 v{TMP+4*j+e}, v{TMP+4*j+e}, v{TMP+16*src+4*j+e}")
    def fin(j):
        for e in range(4): a(f"v_add_f32 v{TMP+4*j+e}, v{TMP+4*j+e}, v{AC+4*j+e}")
    def pack_items(gr):
        if NG == 3:
            def g():
                for p in range(3*gr, min(3*gr+3, 8)):
                    a(f"v_cvt_pk_bf16_f32 v{PK+dslot[p]}, v{TMP+2*p}, v{TMP+2*p+1}")
                a(f"v_mov_b32 v{PK+4*gr+3}, s{S_NONCE}")
                if gr == 2: a(f"v_mov_b32 v{PK+10}, s{S_NONCE}")
            return [g]
        def g1():
            for p in range(4*gr, 4*gr+4): a(f"v_perm_b32 v{PK+p}, v{TMP+2*p+1}, v{TMP+2*p}, s{S_HSEL}")
        def g2():
            for p in range(4*gr, 4*gr+4): a(f"v_bfi_b32 v{PK+p}, s{S_MSK}, v{VTG[p&3]}, v{PK+p}")
        return [g1, g2]
    def pst(n, j):
        if j == 0:
            a(f"s_lshl_b32 s{T+3}, s{S_Q[n]}, 15")
            a(f"s_add_u32 s{T+3}, s{T+3}, s{S_PB}")
        a.vmem(f"buffer_store_dwordx4 {vr(PK+4*j,4)}, v{VL}, {srd(SWS)}, s{T+3} offen offset:{j*1024} sc1", ("p", n))
    def pld(k, j, track=True):
        if j == 0:
            a(f"s_lshl_b32 s{T+4}, s{S_Q[k]}, 13")
            a(f"s_add_u32 s{T+4}, s{T+4}, s{S_PR}")
        ins = f"buffer_load_dwordx4 {vr(PT+12*k+4*j,4)}, v{VL}, {srd(SWS)}, s{T+4} offen offset:{j*1024} sc1"
        if track: a.vmem(ins, ("pp", k))
        else: a(ins)
    def chk_items(k):
        b = PT + 12*k
        if NG == 3:
            def g():
                a(f"v_xor_b32 v{VBAD}, s{S_NONCE}, v{b+3}")
                a(f"v_bitop3_b32 v{VBAD}, v{VBAD}, v{b+7}, s{S_NONCE} bitop3:0xf6")
                a(f"v_bitop3_b32 v{VBAD}, v{VBAD}, v{b+11}, s{S_NONCE} bitop3:0xf6")
                a(f"v_cmp_ne_u32 vcc, 0, v{VBAD}")
            return [g]
        def g1():
            a(f"v_xor_b32 v{VBAD}, v{VTG[0]}, v{b}")
            for p in range(1, 5): a(f"v_bitop3_b32 v{VBAD}, v{VBAD}, v{b+p}, v{VTG[p&3]} bitop3:0xf6")
        def g2():
            for p in range(5, 8): a(f"v_bitop3_b32 v{VBAD}, v{VBAD}, v{b+p}, v{VTG[p&3]} bitop3:0xf6")
            a(f"v_and_b32 v{VBAD}, s{S_MSK}, v{VBAD}")
            a(f"v_cmp_ne_u32 vcc, 0, v{VBAD}")
        return [g1, g2]
    def mid_items(k):
        if NG == 3: return []
        def g(h):
            for p in range(4*h, 4*h+4): a(f"v_or_b32 v{PT+12*k+p}, s{S_MSK}, v{PT+12*k+p}")
        return [lambda: g(0), lambda: g(1)]
    def sel(k):
        a("s_cmp_eq_u64 vcc, 0")
        a(f"s_cselect_b32 s{S_SEL[0]}, 0x01000c0c, s{S_ZSEL}")
        a(f"s_cselect_b32 s{S_SEL[1]}, 0x03020c0c, s{S_ZSEL}")
        a(f"s_cselect_b32 s{T+5}, {1<<k}, 0")
        a(f"s_or_b32 s{S_DONE}, s{S_DONE}, s{T+5}")
    def unp_set(k, p2):
        for p in (2*p2, 2*p2+1):
            for h in range(2):
                d = PT + 12*k + dslot[p]
                a(f"v_perm_b32 v{PS+2*p+h}, v{d}, v{d}, s{S_SEL[h]}")
    def unp_add(k, p, dst):
        d = PT + 12*k + dslot[p]
        for h in range(2): a(f"v_perm_b32 v{PU+h}, v{d}, v{d}, s{S_SEL[h]}")
        for h in range(2): a(f"v_add_f32 v{dst+2*p+h}, v{dst+2*p+h}, v{PU+h}")
    def bar():
        if a.lg: a.wait_lg_all()
        a("s_barrier")
    def consts():
        a(f"s_mov_b32 s{S_ZSEL}, 0x0c0c0c0c")
        a(f"s_mov_b32 s{S_DONE}, 0")
        a(f"s_add_u32 s{S_M3}, s{S_MK}, {PL}")
        a(f"v_add_u32 v{VPL}, s{S_M3}, v{VL}")
        a(f"s_mov_b32 s{S_MSK}, 0x00010001")
        a(f"s_mov_b32 s{S_HSEL}, 0x07060302")
    def tags(h):
        if h == 0:
            a(f"v_and_b32 v{VTG[0]}, 3, v0")
            a(f"v_lshlrev_b32 v{VTG[0]}, 2, v{VTG[0]}")
            a(f"v_lshrrev_b32 v{VTG[0]}, v{VTG[0]}, v{VNV}")
        else:
            for p in range(1, 4): a(f"v_lshrrev_b32 v{VTG[p]}, {p}, v{VTG[0]}")
    consts()
    carry = []
    ro = [0, 4, 8, 1, 5, 9, 2, 6, 10, 3, 7, 11]
    ps = [(src, j) for j in range(4) for src in (1, 2)]
    packs = lambda: [g for gr in range(NG) for g in pack_items(gr)]
    for n in range(4):
        a.c(f"---- strip {n}")
        allres = not todo and not lq if n == 0 else allres
        if n == 0 and allres: seq = [(ks, sl) for ks in korder0 for sl in (1, 2)] + [(ks, sl) for sl in (3, 0) for ks in korder0]
        elif n == 0: seq = [(ks, sl) for ks in korder0 for sl in (1, 2, 3)] + [(ks, 0) for ks in korder0]
        elif n == 1: seq = [(ks, sl) for ks in range(16) for sl in (1, 2)] + [(ks, sl) for sl in (3, 0) for ks in range(16)]
        else: seq = [(ks, sl) for sl in (1, 2, 3, 0) for ks in range(16)]
        at = {}
        def put(g, fn): at.setdefault(g, []).append(fn)
        for g, fn in carry: put(g, fn)
        carry = []
        if n == 0:
            mq = []
            of = korder0[INIT:]
            wl = list(lq); lq.clear()
            while of or wl:
                for _ in range(opt.mq_w):
                    if wl: mq.append(lambda w=wl.pop(0): dma_wo(*w))
                if of: mq.append(lambda f=of.pop(0): load_o(0, f))
            g = 0
            for fn in mq:
                put(g // opt.mq_den, fn); g += opt.mq_num
            gq = g // opt.mq_den + 1
            for i, pos in enumerate(korder0):
                if pos in todo:
                    its = tr_wo_items(pos, slot_of[pos])
                    for k2, fn in enumerate(its): put(3 * i - 4 + (k2 >> 1), fn)
            if todo: gq = max(gq, 20)
            def place(g, fn):
                if g < 64: put(g, fn)
                else: carry.append((g - 64, fn))
            g = gq - 1
            place(g, lambda: obase(1)); g += 1
            for f in range(16): place(g, lambda f=f: load_o(1, f)); g += 2
            g = max(g, 65)
            g += (g & 1) ^ 1
            place(g, lambda: obase(2)); g += 1
            for f in range(16): place(g, lambda f=f: load_o(2, f)); g += 2
            place(g - 1, lambda: obase(3))
            gend = g - 64
            g = 1
            if allres:
                put(32, bar)
                put(33, lambda: tags(0) or a("s_nop 0"))
                put(34, lambda: tags(1))
                for i, (sl, j) in enumerate([(sl, j) for sl in (1, 2) for j in range(4)]): put(36 + i + (i >> 1), lambda sl=sl, j=j: wr(n, sl, j))
                put(48, lambda: a("s_nop 3"))
                put(49, lambda: a("s_nop 4"))
                for j in range(4): put(50 + 2 * j, lambda j=j: wr(n, 3, j))
                put(58, bar)
                for i in range(6): put(58 + i, lambda i=i: (rd(0, ro[2*i]), rd(0, ro[2*i+1])))
            else:
                put(47, bar)
                put(48, lambda: tags(0) or a("s_nop 0"))
                put(49, lambda: tags(1))
                for i, (sl, j) in enumerate([(sl, j) for sl in (1, 2) for j in range(4)]): put(50 + i + (i >> 1), lambda sl=sl, j=j: wr(n, sl, j))
                put(62, lambda: wr(0, 3, 0))
                put(63, lambda: a.wait_lg_all())
                for j in range(1, 4): carry.append((2 * j - 1, lambda j=j: wr(0, 3, j)))
                carry.append((7, bar))
                g = 7
                for i in range(6):
                    carry.append((g, lambda i=i: (rd(0, ro[2*i]), rd(0, ro[2*i+1])))); g += 1
            work = [lambda i=i: presum(*ps[i]) for i in range(8)] + [lambda j=j: fin(j) for j in range(4)] + packs()
            for fn in work: carry.append((g, fn)); g += 2
            assert g <= 47
            gs = max(gend, g)
            assert gs + NG <= 58, gs
            for j in range(NG): carry.append((gs + j, lambda j=j: pst(0, j)))
            left = []
        else:
            fast = n >= 2
            if n == 1:
                for i, (sl, j) in enumerate([(sl, j) for sl in (1, 2) for j in range(4)]): put(36 + i + (i >> 1), lambda sl=sl, j=j: wr(n, sl, j))
            else:
                if n == 2:
                    for f in range(16): put(opt.g_o3 + 2 * f, lambda f=f: load_o(3, f))
                    def pdma(j):
                        if j == 0:
                            a(f"s_lshl_b32 s{T+4}, s{S_Q[2]}, 13")
                            a(f"s_mov_b32 m0, s{S_M3}")
                            a(f"s_add_u32 s{T+4}, s{T+4}, s{S_PR}")
                        a.vmem(f"buffer_load_dwordx4 v{VL}, {srd(SWS)}, s{T+4} offen offset:{j*1024} sc1 lds", "pdma")
                    for j in range(NG): put(opt.g_p2 + 2 * j, lambda j=j: pdma(j))
                    if opt.g_ot >= 0:
                        assert opt.g_ot < opt.g_p2
                        put(opt.g_ot, lambda: a.vmem(f"buffer_load_dword v{VBAD}, v{VOUT}, {srd(SOUT)}, s{S_OUTB} offen", "otouch"))
                for j in range(4): put(32 + 2 * j, lambda j=j: wr(n, 1, j))
                for j in range(4): put(41 + 2 * j, lambda j=j: wr(n, 2, j))
            put(48, lambda: a("s_nop 3"))
            put(49, lambda: a("s_nop 4" if n == 1 else "s_nop 3"))
            if fast:
                for j in range(4): put(50 + j, lambda j=j: wr(n, 3, j))
                gb = 55
            else:
                for j in range(4): put(50 + 2 * j, lambda j=j: wr(n, 3, j))
                gb = 58
            put(gb, bar)
            for i in range(6):
                put(gb + i, lambda i=i: (rd(n, ro[2*i]), rd(n, ro[2*i+1])))
            npre_s = 63 - (gb + 5)
            for i in range(npre_s): put(gb + 6 + i, lambda i=i: presum(*ps[i]))
            left = [lambda i=i: presum(*ps[i]) for i in range(npre_s, 8)]
            if n == 1:
                g = 1
                for fn in left + [lambda j=j: fin(j) for j in range(4)] + packs(): carry.append((g, fn)); g += 2
                assert opt.g_s1 >= g - 2, g
                for j in range(NG): carry.append((opt.g_s1 + 2 * j, lambda j=j: pst(1, j)))
            if n == 2:
                if opt.dense:
                    rem = list(range(npre_s, 8))
                    pre = lambda js: [(lambda i=i: presum(*ps[i])) for i in rem if ps[i][1] in js]
                    its = pre((0, 1)) + pre((2,)) + [lambda: fin(0), lambda: fin(1)] + pack_items(0) + ["s0"] + pre((3,)) + [lambda: fin(2), lambda: fin(3)] + pack_items(1) + ["s1"]
                    h = 0
                    for it in its:
                        if isinstance(it, str):
                            carry.append((h // 3, lambda j=int(it[1]): pst(2, j))); h += 2
                        else:
                            carry.append((h // 3, it)); h += opt.dense
                    g = h // 3 + 1
                else:
                    g = NG if opt.g_p1 == 0 else 0
                    for fn in left + [lambda j=j: fin(j) for j in range(4)]: carry.append((g, fn)); g += 1
                    for j in range(NG):
                        for fn in pack_items(j): carry.append((g, fn)); g += 1
                        carry.append((g, lambda j=j: pst(2, j))); g += 1
                gfree = g
            if n == 3:
                for j in range(NG): put(opt.g_p1 + j, lambda j=j: pld(1, j))
                def prd():
                    a.wait_vm("pdma")
                    for j in range(NG):
                        a.lds(f"ds_read_b128 {vr(PT+24+4*j,4)}, v{VPL} offset:{j*1024}", "prd")
                g = gfree
                put(g - 3, prd)
                put(g, lambda: a.wait_lg("prd"))
                for fn in chk_items(2): put(g, fn); g += 1
                put(g, lambda: sel(2)); g += 1
                for fn in mid_items(2): put(g, fn); g += 1
                for p2 in range(4): put(g, lambda p2=p2: unp_set(2, p2)); g += 1
                g = max(g, opt.g_c1)
                put(g, lambda: a.wait_vm(("pp", 1)))
                for fn in chk_items(1): put(g, fn); g += 1
                put(g, lambda: sel(1)); g += 1
                for fn in mid_items(1) + [lambda p=p: unp_add(1, p, PS) for p in range(8)]:
                    while g in (32, 34, 36, 38, 41, 43, 45, 47) or 50 <= g <= 53: g += 1
                    put(g, fn); g += 1
                assert g <= 56, g
                for j in range(NG): put(opt.g_p0 + j, lambda j=j: pld(0, j))
        seen = set()
        if n >= 2: a.wait_vm(("o", n, 15))
        for g, (ks, sl) in enumerate(seq):
            if ks not in seen:
                a.wait_vm(("o", n, ks)); seen.add(ks)
                if n == 0: a.wait_lg(("wo", ks))
            first = (ks == korder0[0]) if n == 0 else (ks == 0)
            c = "0" if first else vr(AC+16*sl, 16)
            if opt.fakeB:
                q = 8 * (g & 1)
                k2 = (ks ^ 1) if (ks ^ 1) in seen else ks
                d0, d1 = vr(AC+16*sl+q, 4), vr(AC+16*sl+q+4, 4)
                z = g % 16 < 2 and n > 0 and False
                a(f"{M16} {d0}, {ar(16*ks+4*sl,4)}, {vr(OF[n&1]+4*ks,4)}, {'0' if first else d0}")
                p0 = len(a.L)
                for fn in at.get(g, []): fn()
                mid = p0 + (len(a.L) - p0) // 2
                a.L.insert(mid, f"    {M16} {d1}, {ar(16*ks+4*sl,4)}, {vr(OF[n&1]+4*k2,4)}, {'0' if first else d1}")
            else:
                a(f"{MF} {vr(AC+16*sl,16)}, {ar(16*ks+4*sl,4)}, {vr(OF[n&1]+4*ks,4)}, {c}")
                for fn in at.get(g, []): fn()
            if n == opt.sst and g % 8 == 7 and g < 63: stamp(a, 32 + g // 8, opt)
        stamp(a, 22 + n, opt)
    for fn in left: fn()
    for j in range(4): fin(j)
    if opt.lean:
        a(f"s_mov_b32 s{S_SEL[0]}, 0x00010000")
        a(f"v_mov_b32 v{AC+48}, 0xffff0000")
    else:
        a(f"s_mov_b32 s{S_SEL[0]}, 0x01000c0c")
        a(f"s_mov_b32 s{S_SEL[1]}, 0x03020c0c")
    if opt.outtr == 2:
        a(f"v_and_b32 v{PU+2}, 31, v0")
        a(f"v_mul_u32_u24 v{PU+2}, 272, v{PU+2}")
        a(f"v_lshrrev_b32 v{PU+3}, 5, v0")
        a(f"v_lshl_add_u32 v{PU+2}, v{PU+3}, 4, v{PU+2}")
        a(f"s_lshl_b32 s{T+6}, s{S_W}, 6")
        a(f"s_add_u32 s{T+7}, s{T+6}, 98304")
        a(f"v_add_u32 v{PU+2}, s{T+7}, v{PU+2}")
        a(f"v_lshrrev_b32 v{PU}, 4, v0")
        a(f"v_and_b32 v{PU+1}, 15, v0")
        a(f"v_lshlrev_b32 v{PU+1}, 4, v{PU+1}")
        a(f"v_lshl_add_u32 v{PU+3}, v{PU}, 12, v{PU+1}")
        a(f"v_mul_u32_u24 v{VPL}, 272, v{PU}")
        a(f"v_add_u32 v{VPL}, v{VPL}, v{PU+1}")
        a(f"s_mul_i32 s{T+7}, s{S_W}, {8*272}")
        a(f"s_add_u32 s{T+7}, s{T+7}, 98304")
        a(f"v_add_u32 v{VPL}, s{T+7}, v{VPL}")
        a(f"s_sub_u32 s{T+6}, s{S_OUTB}, s{T+6}")
        a(f"s_lshl_b32 s{T+7}, s{S_W}, 15")
        a(f"s_add_u32 s{T+6}, s{T+6}, s{T+7}")
        a(f"s_add_u32 s{T+7}, s{T+6}, 16384")
    elif opt.outtr:
        a(f"v_and_b32 v{PU+2}, 31, v0")
        a(f"v_lshlrev_b32 v{PU+2}, 6, v{PU+2}")
        a(f"v_lshrrev_b32 v{PU+3}, 5, v0")
        a(f"v_lshl_add_u32 v{PU+2}, v{PU+3}, 4, v{PU+2}")
        a(f"v_add_u32 v{PU+2}, s{S_M3}, v{PU+2}")
        a(f"v_lshrrev_b32 v{PU+3}, 2, v0")
        a(f"v_lshlrev_b32 v{PU+3}, 12, v{PU+3}")
        a(f"v_and_b32 v{PU}, 3, v0")
        a(f"v_lshl_add_u32 v{PU+3}, v{PU}, 4, v{PU+3}")
        a(f"s_add_u32 s{T+6}, s{S_OUTB}, 65536")
    stamp(a, 26, opt)
    a(f"s_mov_b32 s{S_CNT}, 0")
    for k in (0, 1, 2):
        if k:
            a(f"s_bitcmp1_b32 s{S_DONE}, {k}")
            a(f"s_cbranch_scc1 L_skip{k}")
            a(f"s_branch L_rel{k}")
        else:
            a.wait_vm(("pp", 0))
        a.label(f"L_chk{k}")
        for fn in chk_items(k): fn()
        a(f"s_add_u32 s{S_CNT}, s{S_CNT}, 1")
        a(f"s_cmp_gt_u32 s{S_CNT}, {SPIN_MAX}")
        a(f"s_cbranch_scc1 L_ok{k}")
        a("s_nop 1")
        a(f"s_cbranch_vccz L_ok{k}")
        a.label(f"L_rel{k}")
        for j in range(NG): pld(k, j, track=False)
        a("s_waitcnt vmcnt(0)")
        a(f"s_branch L_chk{k}")
        a.label(f"L_ok{k}")
        if opt.lean:
            for p in range(8):
                d = PT + 12*k + p; t = AC + 32 + 2*p
                a(f"v_lshl_or_b32 v{t}, v{d}, 16, s{S_SEL[0]}")
                a(f"v_and_or_b32 v{t+1}, v{d}, v{AC+48}, s{S_SEL[0]}")
            for p in range(8): a(f"v_pk_add_f32 {vr(PS+2*p,2)}, {vr(PS+2*p,2)}, {vr(AC+32+2*p,2)}")
        else:
            for fn in mid_items(k): fn()
            for p in range(8): unp_add(k, p, PS)
        a.label(f"L_skip{k}")
    if opt.lean:
        for p in range(8): a(f"v_pk_add_f32 {vr(TMP+2*p,2)}, {vr(TMP+2*p,2)}, {vr(PS+2*p,2)}")
    else:
        for e in range(16): a(f"v_add_f32 v{TMP+e}, v{TMP+e}, v{PS+e}")
    stamp(a, 27, opt)
    for p in range(8):
        a(f"v_cvt_pk_bf16_f32 v{AC+p}, v{TMP+2*p}, v{TMP+2*p+1}")
    if opt.outtr == 2:
        a(f"ds_write_b128 v{PU+2}, {vr(AC,4)}")
        a(f"ds_write_b128 v{PU+2}, {vr(AC+4,4)} offset:32")
        a("s_waitcnt lgkmcnt(0)")
        a("s_barrier")
        a(f"ds_read_b128 {vr(AC+8,4)}, v{VPL}")
        a(f"ds_read_b128 {vr(AC+12,4)}, v{VPL} offset:{4*272}")
        a("s_waitcnt lgkmcnt(1)")
        a(f"buffer_store_dwordx4 {vr(AC+8,4)}, v{PU+3}, {srd(SOUT)}, s{T+6} offen {opt.outaux}")
        a("s_waitcnt lgkmcnt(0)")
        a(f"buffer_store_dwordx4 {vr(AC+12,4)}, v{PU+3}, {srd(SOUT)}, s{T+7} offen {opt.outaux}")
    elif opt.outtr:
        a(f"ds_write_b128 v{PU+2}, {vr(AC,4)}")
        a(f"ds_write_b128 v{PU+2}, {vr(AC+4,4)} offset:32")
        a("s_waitcnt lgkmcnt(0)")
        a(f"ds_read_b128 {vr(AC+8,4)}, v{VPL}")
        a(f"ds_read_b128 {vr(AC+12,4)}, v{VPL} offset:1024")
        a("s_waitcnt lgkmcnt(1)")
        a(f"buffer_store_dwordx4 {vr(AC+8,4)}, v{PU+3}, {srd(SOUT)}, s{S_OUTB} offen {opt.outaux}")
        a("s_waitcnt lgkmcnt(0)")
        a(f"buffer_store_dwordx4 {vr(AC+12,4)}, v{PU+3}, {srd(SOUT)}, s{T+6} offen {opt.outaux}")
    else:
        a(f"buffer_store_dwordx4 {vr(AC,4)}, v{VOUT}, {srd(SOUT)}, s{S_OUTB} offen")
        a(f"buffer_store_dwordx4 {vr(AC+4,4)}, v{VOUT}, {srd(SOUT)}, s{S_OUTB} offen offset:32")
    if opt.stamps:
        a("s_waitcnt vmcnt(0)")
        stamp(a, 28, opt)
        a(f"v_writelane_b32 v{VSTAMP}, s{S_CNT}, 63")
        dump_stamps(a, opt)
    if opt.amp:
        a("s_waitcnt vmcnt(0)")
        stamp(a, 28, opt)
        a("s_nop 1")
        a(f"v_readlane_b32 s4, v{VSTAMP}, 0")
        a(f"v_readlane_b32 s5, v{VSTAMP}, 1")
        a("s_memrealtime s[30:31]")
        a("s_waitcnt lgkmcnt(0)")
        a("s_sub_u32 s5, s5, s4")
        a("s_min_u32 s5, s5, 10000")
        a("s_lshl_b32 s5, s5, 3")
        a("s_add_u32 s6, s30, s5")
        a.label("L_amp")
        a("s_sleep 1")
        a("s_memrealtime s[30:31]")
        a("s_waitcnt lgkmcnt(0)")
        a("s_sub_u32 s7, s30, s6")
        a("s_cmp_lt_i32 s7, 0")
        a("s_cbranch_scc1 L_amp")
    a.label(end)
    a("s_endpgm")
    a.label("L_codeend")

Opt.fill0 = 12
Opt.rest = ""
Opt.ad0 = 0
Opt.adgap = 50
Opt.map = 0
Opt.xmap = 0
Opt.rr = True
Opt.hst = 14
Opt.wh = 1.0
Opt.oldp = False
Opt.att2 = True
Opt.scost = 60
Opt.sq = 0
Opt.light = False
Opt.g_ot = -1
Opt.half = True
Opt.wm = 1.0
Opt.bud = 12.0
Opt.ahead = 8
Opt.qmax = 12
Opt.qopp = 10
Opt.lat = 20.0
Opt.verbose = False
Opt.pipe = 3
Opt.poll_at = 10
Opt.fakeB = False
Opt.fakeD = False
Opt.amp = ""
Opt.fl4 = False
Opt.ptouch = 0
Opt.pt_stage = 14
Opt.otouch = -1
Opt.et = 0
Opt.etm = 63
Opt.touch = 1
Opt.mq_w = 2
Opt.rspan = 12
Opt.diag = False

def build(opt):
    nm = NAME + "_kernel"
    out = []
    out.append("; One persistent launch, one workgroup per CU (generated by a script of my own):")
    out.append(";   phase 2  o[128 rows, 8 heads] @ wo[8 heads, 128 cols]; three of the four row strips go to the")
    out.append(";            owning workgroups as tagged tiles in d_ws, the own strip is finished last and stored")
    out.append("; @launch grid=(256,1,1) block=(256,1,1) lds=163840")
    out.append('.amdgcn_target "amdgcn-amd-amdhsa--gfx950"')
    out.append(".text")
    a = Asm()
    gen(a, opt)
    out.append(f".globl {nm}\n.p2align 8\n.type {nm},@function\n{nm}:")
    out.append(a.text())
    out.append('.section .rodata,"a"')
    out.append(f""".p2align 6
.amdhsa_kernel {nm}
  .amdhsa_next_free_vgpr 512
  .amdhsa_next_free_sgpr 102
  .amdhsa_accum_offset 256
  .amdhsa_group_segment_fixed_size 0
  .amdhsa_kernarg_size 104
  .amdhsa_user_sgpr_count 2
  .amdhsa_user_sgpr_kernarg_segment_ptr 1
  .amdhsa_system_sgpr_workgroup_id_x 1
.end_amdhsa_kernel
""")
    return "\n".join(out)

if __name__ == "__main__":
    opt = Opt()
    for kv in sys.argv[2:]:
        k, v = kv.split("=")
        cur = getattr(opt, k)
        setattr(opt, k, (v == "1") if isinstance(cur, bool) else type(cur)(v))
    t = build(opt)
    open(sys.argv[1], "w").write(t)
```
